```python
import torch

def _softmax(x, axis=-1):
    return torch.softmax(x, dim=axis)
def _gelu(x):
    return torch.nn.functional.gelu(x, approximate="tanh")
def _silu(x):
    return torch.nn.functional.silu(x)
def _sigmoid(x):
    return torch.sigmoid(x)
def _layernorm(x, axis=-1, eps=1e-5):
    m = x.mean(dim=axis, keepdim=True)
    v = x.var(dim=axis, keepdim=True, unbiased=False)
    return (x - m) / torch.sqrt(v + eps)
def _scatter_add(tgt, idx, src, axis=0):
    return tgt.clone().index_add_(axis, idx, src)
def _segment_sum(src, seg, n):
    out = torch.zeros((n,) + src.shape[1:], dtype=src.dtype)
    return out.index_add_(0, seg, src)
def _pad(x, pw):
    flat = tuple(v for pair in reversed(pw) for v in pair)
    return torch.nn.functional.pad(x, flat)

kernel_name = 'concat_heads__mha_block_cached__gqa_block_cached__decode'

def setup_inputs():

    _w = (lambda a: (lambda t: t.to(torch.bfloat16) if t.is_floating_point() else t)(torch.as_tensor(a)))
    def _A_setup():
        B, Sq, D = 1, 1, 640
        H, Sk, Dh = 32, 4096, 192
        return {
            "x": _w((lambda *s: torch.randn(*s, dtype=torch.bfloat16) * 0.8)(B, Sq, D)),
            "k_cache": _w((lambda *s: torch.randn(*s, dtype=torch.bfloat16) * 0.8)(B, H, Sk, Dh)),
            "v_cache": _w((lambda *s: torch.randn(*s, dtype=torch.bfloat16) * 0.05)(B, H, Sk, Dh)),
            "wq": _w((lambda *s: torch.randn(*s, dtype=torch.bfloat16) * 0.8)(D, H * Dh) * (D ** -0.5)),
            "wo": _w((lambda *s: torch.randn(*s, dtype=torch.bfloat16) * 0.05)(H * Dh, D) * ((H * Dh) ** -0.5)),
        }
    _A_in = _A_setup()

    def _B_setup():
        B, Sq, D = 1, 1, 640
        Hq, Hkv, Sk, Dh = 32, 32, 4096, 192
        assert Hq % Hkv == 0, (Hq, Hkv)
        return {
            "x": _w((lambda *s: torch.randn(*s, dtype=torch.bfloat16) * 0.8)(B, Sq, D)),
            "k_cache": _w((lambda *s: torch.randn(*s, dtype=torch.bfloat16) * 0.8)(B, Hkv, Sk, Dh)),
            "v_cache": _w((lambda *s: torch.randn(*s, dtype=torch.bfloat16) * 0.05)(B, Hkv, Sk, Dh)),
            "wq": _w((lambda *s: torch.randn(*s, dtype=torch.bfloat16) * 0.8)(D, Hq * Dh) * (D ** -0.5)),
            "wo": _w((lambda *s: torch.randn(*s, dtype=torch.bfloat16) * 0.05)(Hq * Dh, D) * ((Hq * Dh) ** -0.5)),
        }
    _B_in = _B_setup()

    return {
        "A_x": _A_in["x"],
        "A_k_cache": _A_in["k_cache"],
        "A_v_cache": _A_in["v_cache"],
        "A_wq": _A_in["wq"],
        "A_wo": _A_in["wo"],
        "B_x": _B_in["x"],
        "B_k_cache": _B_in["k_cache"],
        "B_v_cache": _B_in["v_cache"],
        "B_wq": _B_in["wq"],
        "B_wo": _B_in["wo"],
    }

def reference(A_x, A_k_cache, A_v_cache, A_wq, A_wo, B_x, B_k_cache, B_v_cache, B_wq, B_wo):
    def _A_ref(x, k_cache, v_cache, wq, wo):
        B, Sq, D = x.shape
        H, Dh = 32, 192
        q = (lambda x, *d: x.permute(*d))((x @ wq).reshape(B, Sq, H, Dh), 0, 2, 1, 3)
        scores = torch.einsum("bhqd,bhkd->bhqk", q, k_cache) * (Dh ** -0.5)
        p = _softmax(scores, axis=-1)
        o = torch.einsum("bhqk,bhkd->bhqd", p, v_cache)
        return (lambda x, *d: x.permute(*d))(o, 0, 2, 1, 3).reshape(B, Sq, H * Dh) @ wo

    def _B_ref(x, k_cache, v_cache, wq, wo):
        B, Sq, D = x.shape
        Hq, Dh = 32, 192
        Hkv = k_cache.shape[1]
        rep = Hq // Hkv
        q = (lambda x, *d: x.permute(*d))((x @ wq).reshape(B, Sq, Hq, Dh), 0, 2, 1, 3)
        k = (lambda x, n, axis: torch.repeat_interleave(x, n, dim=axis))(k_cache, rep, axis=1)
        v = (lambda x, n, axis: torch.repeat_interleave(x, n, dim=axis))(v_cache, rep, axis=1)
        scores = torch.einsum("bhqd,bhkd->bhqk", q, k) * (Dh ** -0.5)
        p = _softmax(scores, axis=-1)
        o = torch.einsum("bhqk,bhkd->bhqd", p, v)
        return (lambda x, *d: x.permute(*d))(o, 0, 2, 1, 3).reshape(B, Sq, Hq * Dh) @ wo

    a = _A_ref(A_x, A_k_cache, A_v_cache, A_wq, A_wo)
    b = _B_ref(B_x, B_k_cache, B_v_cache, B_wq, B_wo)
    return torch.concatenate([a, b], axis=-1)
```

```python
import re

TRANS = ("v_exp_f32", "v_log_f32", "v_rcp_f32", "v_rsq_f32", "v_sqrt_f32", "v_sin_f32", "v_cos_f32")


def _regs(tok, kind):
    tok = tok.strip()
    if tok.startswith("-"):
        tok = tok[1:]
    tok = tok.strip("|")
    m = re.fullmatch(kind + r"\[(\d+):(\d+)\]", tok)
    if m:
        return set(range(int(m.group(1)), int(m.group(2)) + 1))
    m = re.fullmatch(kind + r"(\d+)", tok)
    if m:
        return {int(m.group(1))}
    if kind == "s":
        if tok == "vcc":
            return {106, 107}
        if tok == "vcc_lo":
            return {106}
        if tok == "vcc_hi":
            return {107}
    return set()


class Ins:
    def __init__(self, text):
        self.text = text
        t = text.split(";")[0].strip()
        self.label = t.endswith(":")
        self.states = 0 if (self.label or not t or t.startswith(".")) else 1
        self.kind = "other"
        self.vw, self.vr, self.sw, self.sr = set(), set(), set(), set()
        self.srcc = set()
        self.dppsrc = set()
        self.sdata = set()
        self.op = ""
        if self.states == 0:
            return
        parts = t.split(None, 1)
        op = parts[0]
        self.op = op
        rest = parts[1] if len(parts) > 1 else ""
        ops = [o.strip() for o in rest.split(",")] if rest else []
        if ops:
            last = ops[-1].split()
            mods = " ".join(last[1:]) if last else ""
            m = re.search(r"(quad_perm|row_|op_sel|neg_|offen|offset|idxen|off\b)", rest)
            head = rest[:m.start()] if m else rest
            ops = [o.strip() for o in head.split(",") if o.strip()]
            ops = [o.split()[0] for o in ops]
        else:
            mods = ""
        V = lambda tok: _regs(tok, "v")
        S = lambda tok: _regs(tok, "s")
        if op == "s_nop":
            self.states = int(ops[0]) + 1
            self.kind = "nop"
        elif op.startswith("v_mfma"):
            self.kind = "mfma"
            self.vw = V(ops[0])
            self.vr = V(ops[1]) | V(ops[2]) | V(ops[3])
            self.srcab = V(ops[1]) | V(ops[2])
            self.srcc = V(ops[3])
        elif op.startswith("v_"):
            self.kind = "valu"
            dpp = ("quad_perm" in rest) or ("row_" in rest)
            if op.startswith("v_cmp"):
                self.sw = S(ops[0])
                srcs = ops[1:]
            elif op.startswith("v_readfirstlane") or op.startswith("v_readlane"):
                self.kind = "rfl"
                self.sw = S(ops[0])
                srcs = ops[1:]
            elif op.startswith("v_permlane"):
                self.kind = "perml"
                self.vw = V(ops[0]) | V(ops[1])
                srcs = ops
            else:
                self.vw = V(ops[0])
                srcs = ops[1:]
                if op.startswith(("v_dot2c", "v_fmac", "v_mac")) or dpp:
                    self.vr |= V(ops[0])
                if op.startswith("v_dot"):
                    self.kind = "dot"
                    if op.startswith("v_dot2c"):
                        self.srcc = V(ops[0])
                        self.srcab = V(ops[1]) | V(ops[2])
                    else:
                        self.srcc = V(ops[3])
                        self.srcab = V(ops[1]) | V(ops[2])
                if op.startswith(TRANS):
                    self.kind = "trans"
                if op.startswith("v_cndmask") and len(ops) == 3:
                    self.sr |= {106, 107}
            for s in srcs:
                self.vr |= V(s)
                self.sr |= S(s)
            if dpp:
                self.dppsrc = V(ops[1]) | V(ops[0])
        elif op.startswith(("buffer_load", "global_load")):
            self.kind = "vload"
            self.vw = V(ops[0])
            for s in ops[1:]:
                self.vr |= V(s)
                self.sr |= S(s)
        elif op.startswith(("buffer_store", "buffer_atomic")):
            self.kind = "vstore"
            for s in ops:
                self.vr |= V(s)
                self.sr |= S(s)
            if "x4" in op or "x3" in op:
                self.sdata = V(ops[0])
        elif op.startswith(("global_store", "global_atomic")):
            self.kind = "vstore"
            for s in ops:
                self.vr |= V(s)
                self.sr |= S(s)
            if "x4" in op or "x3" in op:
                self.sdata = V(ops[1])
        elif op.startswith("ds_read"):
            self.kind = "dsrd"
            self.vw = V(ops[0])
            self.vr = V(ops[1])
        elif op.startswith("ds_"):
            self.kind = "dswr"
            for s in ops:
                self.vr |= V(s)
        elif op.startswith("s_"):
            self.kind = "salu"

    @property
    def isvalu(self):
        return self.kind in ("valu", "trans", "dot", "perml", "rfl")


def need(p, c):
    n = 0
    cval = c.isvalu
    cmem = c.kind in ("vload", "vstore", "dsrd", "dswr")
    if p.isvalu:
        if p.vw & c.dppsrc:
            n = max(n, 2)
        if c.kind == "perml" and (p.vw & c.vr):
            n = max(n, 2)
        if c.kind == "rfl" and (p.vw & c.vr):
            n = max(n, 1)
        if c.kind == "mfma" and (p.vw & c.vr):
            n = max(n, 2)
        if p.sw:
            if cval and (p.sw & c.sr):
                n = max(n, 2)
            if c.kind in ("vload", "vstore") and (p.sw & c.sr):
                n = max(n, 5)
        if p.kind == "trans" and (p.vw & c.vr) and c.kind != "trans":
            n = max(n, 1)
        if p.kind == "dot":
            if c.kind == "dot" and c.op == p.op:
                if p.vw & c.srcab:
                    n = max(n, 3)
            elif p.vw & (c.vr | c.vw):
                n = max(n, 3)
    if p.kind == "mfma":
        if c.kind == "mfma":
            if p.vw & c.srcab:
                n = max(n, 8)
            if p.vw & c.srcc and p.vw != c.srcc:
                n = max(n, 6)
            if (p.vw & c.vw) and not (p.vw == c.srcc):
                n = max(n, 8)
        elif cval or cmem:
            if p.vw & (c.vr | c.vw):
                n = max(n, 8)
            if cval and (p.srcc & c.vw):
                n = max(n, 3)
    if p.sdata:
        if cval and (p.sdata & c.vw):
            n = max(n, 2)
        elif p.sdata & c.vw:
            n = max(n, 1)
    return n


def resolve(lines):
    out = []
    nops = 0
    for text in lines:
        c = Ins(text)
        if c.states and c.kind not in ("nop", "salu", "other"):
            req = 0
            between = 0
            for p in reversed(out):
                if between >= 10:
                    break
                if p.op in ("s_endpgm", "s_branch", "s_setpc_b64"):
                    break
                if p.states == 0:
                    continue
                k = need(p, c)
                if k > between:
                    req = max(req, k - between)
                between += p.states
            if req:
                out.append(Ins(f"s_nop {req - 1}"))
                nops += req
        out.append(c)
    return [i.text for i in out], nops


class VM:
    def __init__(self, e):
        self.e = e
        self.q = []

    def issue(self, tag, text):
        self.e(text)
        self.q.append(tag)
        assert len(self.q) <= 63, "vmcnt overflow"

    def wait(self, tag):
        if tag not in self.q:
            return
        k = self.q.index(tag)
        n = len(self.q) - 1 - k
        self.e(f"s_waitcnt vmcnt({n})")
        self.q = self.q[k + 1:]

    def drain(self):
        if self.q:
            self.e("s_waitcnt vmcnt(0)")
        self.q = []
```

```python
import sys, math, struct
from asmlib import resolve, VM

KN = "concat_heads__mha_block_cached__gqa_block_cached__decode_kernel"
HDR = open("concat_heads__mha_block_cached__gqa_block_cached__decode.s.ref").read().split("; Override launch")[0]

A1 = 4096
A2 = A1 + 256 * 768
A3 = A2 + 256 * 1024
WS_USED = A3 + 256 * 2560
L_P = 0
L_Q = 6144
L_T = 6528
L_F = 6544
L_ST = 6560
L_O = 6592
LDS = 6912

sS, sHH, sB, sH, sW, sJB = 10, 11, 12, 13, 14, 15
sX, sMASK, sCNT = 16, 18, 19
sKV, sWW, sOUT, sWS = 20, 24, 28, 30
rX, rWQ, rK, rV, rWO, rWS, rOUT = 32, 36, 40, 44, 48, 52, 56
sOFF, sC = 60, 61
sSEL = 62
sSA, sSB = 66, 67
sST = 68

vL, vKV, vWQ, vWO = 0, 1, 2, 3
vM = 4
vQ = 8
vACC = 20
vA = 32
vT = 36
vPW, vQR, vOR, vPUB = 37, 38, 39, 40
vMX, vLS, vNM = 41, 42, 43
vX = 44
vT0, vT1, vT2, vT3 = 49, 50, 51, 52
vZ, vONE = 53, 54
vSC = 56
vRING = 88


def f2u(x):
    return struct.unpack("<I", struct.pack("<f", x))[0]


def gen(F=6, F0=6, R=27, fl="nt", stamps=0, prio=1, codepf=0, pk=2):
    L = []
    e = L.append
    names = []
    nst = {"w": 0, "s": 0}

    def stamp(who, name):
        if not stamps:
            return
        i = nst[who]
        assert i < 14
        nst[who] += 1
        e(f"s_memrealtime s[{sST + 2 * i}:{sST + 2 * i + 1}]")
        names.append((i + (0 if who == "w" else 14), name))

    def srd(d, base, off, size):
        if off is None:
            e(f"s_mov_b32 s{d}, s{base}"); e(f"s_mov_b32 s{d + 1}, s{base + 1}")
            e(f"s_mov_b32 s{d + 2}, {size}")
        else:
            e(f"s_add_u32 s{d}, s{base}, s{off}"); e(f"s_addc_u32 s{d + 1}, s{base + 1}, 0")
            e(f"s_sub_u32 s{d + 2}, {size}, s{off}")
        e(f"s_mov_b32 s{d + 3}, 0x20000")

    def slot(i):
        return vRING + 4 * (i % R)

    def vr(a, n=4):
        return f"v[{a}:{a + n - 1}]"

    DPPM = "row_mask:0xf bank_mask:0xf"

    def allrows(op, v, t):
        e(f"v_mov_b32 v{t}, v{v}")
        e(f"v_permlane16_swap_b32 v{v}, v{t}")
        e(f"{op} v{v}, v{v}, v{t}")
        e(f"v_mov_b32 v{t}, v{v}")
        e(f"v_permlane32_swap_b32 v{v}, v{t}")
        e(f"{op} v{v}, v{v}, v{t}")

    def treduce(d):
        e(f"v_permlane32_swap_b32 v{d}, v{d + 1}")
        e(f"v_permlane32_swap_b32 v{d + 2}, v{d + 3}")
        e(f"v_add_f32 v{d}, v{d}, v{d + 1}")
        e(f"v_add_f32 v{d + 2}, v{d + 2}, v{d + 3}")
        e(f"v_permlane16_swap_b32 v{d}, v{d + 2}")
        e(f"v_add_f32 v{d}, v{d}, v{d + 2}")

    def tag4(dst, src):
        for r in range(4):
            e(f"v_perm_b32 v{dst + r}, v{src + r}, v{vT}, s{sSEL + r}")

    def poll(label, loads, units, tmp):
        e(f"s_mov_b32 s{sCNT}, 400000")
        e(f"{label}:")
        e("s_nop 1")
        for t in loads:
            e(t)
        e(f"s_sub_u32 s{sCNT}, s{sCNT}, 1")
        e("s_waitcnt vmcnt(0)")
        for k, u in enumerate(units):
            e(f"v_perm_b32 v{tmp}, v{u + 1}, v{u}, s{sSA}")
            e(f"v_perm_b32 v{tmp + 1}, v{u + 3}, v{u + 2}, s{sSB}")
            e(f"v_or_b32 v{tmp}, v{tmp}, v{tmp + 1}")
            if k == 0:
                e(f"v_xor_b32 v{tmp + 2}, v{tmp}, v{vT}")
            else:
                e(f"v_xor_b32 v{tmp}, v{tmp}, v{vT}")
                e(f"v_or_b32 v{tmp + 2}, v{tmp + 2}, v{tmp}")
        e(f"v_cmp_ne_u32 vcc, 0, v{tmp + 2}")
        e(f"s_cmp_eq_u32 s{sCNT}, 0")
        e(f"s_cbranch_scc1 {label}_x")
        e(f"s_cbranch_vccnz {label}")
        e(f"{label}_x:")
        for u in units:
            for r in range(4):
                e(f"v_and_b32 v{u + r}, s{sMASK}, v{u + r}")

    def ldsspin(label, off, tmp):
        e(f"s_mov_b32 s{sCNT}, 4000000")
        e(f"{label}:")
        e(f"ds_read_b32 v{tmp}, v{vZ} offset:{off}")
        e(f"s_sub_u32 s{sCNT}, s{sCNT}, 1")
        e("s_waitcnt lgkmcnt(0)")
        e(f"v_readfirstlane_b32 s3, v{tmp}")
        e(f"s_cmp_eq_u32 s{sCNT}, 0")
        e(f"s_cbranch_scc1 {label}_x")
        e("s_cmp_lt_u32 s3, 4")
        e(f"s_cbranch_scc1 {label}")
        e(f"{label}_x:")

    e("s_cmp_ge_u32 s2, 256"); e("s_cbranch_scc1 L_end")
    if stamps:
        e(f"s_memrealtime s[{sST}:{sST + 1}]")
        nst["w"] = 1; nst["s"] = 1
        names.append((0, "start")); names.append((14, "s.start"))
    e("s_and_b32 s3, s2, 7"); e("s_lshr_b32 s4, s2, 3"); e(f"s_and_b32 s{sS}, s4, 3")
    e("s_lshr_b32 s4, s4, 2"); e("s_lshl_b32 s4, s4, 3"); e(f"s_add_u32 s{sHH}, s4, s3")
    e(f"s_lshr_b32 s{sB}, s{sHH}, 5"); e(f"s_mul_i32 s7, s{sB}, 40")
    e("s_add_u32 s8, s0, s7"); e("s_addc_u32 s9, s1, 0")
    e(f"s_load_dwordx4 s[{sWW}:{sWW + 3}], s[8:9], 24")
    e(f"s_load_dwordx2 s[{sX}:{sX + 1}], s[8:9], 0")
    e(f"s_load_dwordx4 s[{sKV}:{sKV + 3}], s[8:9], 8")
    e(f"s_load_dwordx2 s[{sOUT}:{sOUT + 1}], s[0:1], 80")
    e(f"s_load_dwordx2 s[{sWS}:{sWS + 1}], s[0:1], 96")
    e(f"v_lshrrev_b32 v{vT0}, 6, v0")
    e(f"v_and_b32 v{vL}, 63, v0")
    e(f"v_readfirstlane_b32 s{sW}, v{vT0}")
    e(f"s_and_b32 s{sH}, s{sHH}, 31")
    e(f"s_lshl_b32 s{sJB}, s{sH}, 2"); e(f"s_add_u32 s{sJB}, s{sJB}, s{sS}")
    e(f"v_lshrrev_b32 v{vT0}, 3, v{vL}")
    e(f"v_and_b32 v{vT1}, 7, v{vL}")
    e(f"v_lshlrev_b32 v{vT2}, 4, v{vT1}")
    e(f"v_mul_u32_u24 v{vWQ}, 12288, v{vT0}"); e(f"v_add_u32 v{vWQ}, v{vWQ}, v{vT2}")
    e(f"v_mul_u32_u24 v{vKV}, 384, v{vT0}"); e(f"v_add_u32 v{vKV}, v{vKV}, v{vT2}")
    e(f"v_lshlrev_b32 v{vT3}, 1, v{vT0}")
    e(f"v_add_u32 v{vQR}, {L_Q}, v{vT2}")
    e(f"s_mul_i32 s3, s{sS}, 160"); e(f"s_mul_i32 s4, s{sW}, 40"); e("s_add_u32 s3, s3, s4")
    e("s_mul_i32 s4, s3, 12288"); e(f"s_mul_i32 s5, s{sH}, 384"); e("s_add_u32 s4, s4, s5")
    e("s_lshl_b32 s3, s3, 1")
    e(f"s_mul_i32 s5, s{sH}, 1572864"); e(f"s_mul_i32 s6, s{sS}, 393216"); e("s_add_u32 s5, s5, s6")
    e(f"s_mul_i32 s6, s{sW}, 3072"); e("s_add_u32 s5, s5, s6")
    e(f"s_mul_i32 s6, s{sJB}, 61440"); e(f"s_lshl_b32 s7, s{sW}, 8"); e("s_add_u32 s6, s6, s7")
    e(f"s_cmp_eq_u32 s{sW}, 4")
    e("s_cbranch_scc1 L_service")

    def common_consts():
        e(f"v_and_b32 v{vT0}, 1, v{vL}"); e(f"v_lshlrev_b32 v{vT0}, 4, v{vT0}")
        e(f"v_mov_b32 v{vT1}, 0xffff"); e(f"v_lshlrev_b32 v{vT0}, v{vT0}, v{vT1}")
        e(f"v_bfe_u32 v{vT1}, v{vL}, 1, 2")
        for r in range(4):
            e(f"v_cmp_eq_u32 vcc, {r}, v{vT1}")
            e(f"v_cndmask_b32 v{vM + r}, 0, v{vT0}, vcc")
        e(f"v_lshrrev_b32 v{vT0}, 4, v{vL}")
        e(f"v_and_b32 v{vT1}, 15, v{vL}")
        e(f"v_mul_u32_u24 v{vWO}, 15360, v{vT0}"); e(f"v_lshl_add_u32 v{vWO}, v{vT1}, 4, v{vWO}")
        e(f"v_mul_u32_u24 v{vOR}, 48, v{vT0}"); e(f"v_add_u32 v{vOR}, {L_O}, v{vOR}")
        e(f"v_lshlrev_b32 v{vPUB}, 5, v{vT1}"); e(f"v_lshl_add_u32 v{vPUB}, v{vT0}, 4, v{vPUB}")
        e(f"s_lshl_b32 s7, s{sB}, 7"); e(f"s_add_u32 s7, s7, s{sJB}"); e("s_mul_i32 s7, s7, 2560")
        e(f"s_lshl_b32 s8, s{sW}, 9"); e("s_add_u32 s7, s7, s8"); e(f"s_add_u32 s7, s7, {A3}")
        e(f"v_add_u32 v{vPUB}, s7, v{vPUB}")
        e(f"v_mov_b32 v{vZ}, 0"); e(f"v_mov_b32 v{vONE}, 1")
        for r in range(4):
            e(f"s_mov_b32 s{sSEL + r}, {0x07060500 + r}")
        srd(rWO, sWW + 2, 6, 7864320)
        srd(rWS, sWS, None, WS_USED)

    vm = VM(e)
    NQ, NK, NV, NO = 15, 96, 96, 12
    K0, V0, O0 = NQ, NQ + NK, NQ + NK + NV
    N = O0 + NO
    cur = [None]

    def setoff(v):
        if cur[0] != v:
            e(f"s_mov_b32 s{sOFF}, {v}")
            cur[0] = v

    def issue(i):
        d = vr(slot(i))
        if i < K0:
            g, t = divmod(i, 3)
            setoff(g * 8 * 12288)
            vm.issue(i, f"buffer_load_dwordx4 {d}, v{vWQ}, s[{rWQ}:{rWQ + 3}], s{sOFF} offen offset:{t * 128} {fl}")
        elif i < O0:
            r = rK if i < V0 else rV
            g, t = divmod(i - (K0 if i < V0 else V0), 3)
            setoff(g * 12288)
            vm.issue(i, f"buffer_load_dwordx4 {d}, v{vKV}, s[{r}:{r + 3}], s{sOFF} offen offset:{t * 128} {fl}")
        else:
            g = i - O0
            setoff((g // 4) * 5120)
            vm.issue(i, f"buffer_load_dwordx4 {d}, v{vWO}, s[{rWO}:{rWO + 3}], s{sOFF} offen offset:{(g % 4) * 1280} {fl}")

    def afrag(src):
        for r in range(4):
            e(f"v_and_b32 v{vA + r}, v{src}, v{vM + r}")

    def mfma(acc, b, first):
        c = "0" if first else vr(acc)
        e(f"v_mfma_f32_16x16x32_bf16 {vr(acc)}, {vr(vA)}, {vr(b)}, {c}")

    def partials_out(flag):
        e("s_mov_b32 exec_lo, 0x00ff00ff"); e("s_mov_b32 exec_hi, 0xff00ff00")
        for t in range(3):
            e(f"ds_write_b128 v{vPW}, {vr(vACC + 4 * t)} offset:{t * 256}")
        e("s_mov_b64 exec, 1")
        e(f"ds_add_u32 v{vZ}, v{vONE} offset:{flag}")
        e("s_mov_b64 exec, -1")

    def pcalc(g):
        s = vSC + g
        e(f"v_fma_f32 v{s}, v{s}, s{sC}, v{vNM}")
        e(f"v_exp_f32 v{s}, v{s}")
        if g == 0:
            e(f"v_mov_b32 v{vLS}, v{s}")
        else:
            e(f"v_add_f32 v{vLS}, v{vLS}, v{s}")
        e(f"v_cvt_pk_bf16_f32 v{s}, v{s}, v{s}")

    pend = []

    def red_steps(g):
        s = vSC + g
        st = [f"v_add_f32_dpp v{s}, v{s}, v{s} quad_perm:[1,0,3,2] {DPPM}",
              f"v_add_f32_dpp v{s}, v{s}, v{s} quad_perm:[2,3,0,1] {DPPM}",
              f"v_add_f32_dpp v{s}, v{s}, v{s} row_half_mirror {DPPM}"]
        st.append(f"v_mov_b32 v{vMX}, v{s}" if g == 0 else f"v_max_f32 v{vMX}, v{vMX}, v{s}")
        return st

    pdone = [0]

    def consume(i):
        vm.wait(i)
        b = slot(i)
        if i < K0:
            g, t = divmod(i, 3)
            if t == 0:
                e(f"v_lshl_or_b32 v{vT0}, v{vX + g}, 16, v{vX + g}")
                afrag(vT0)
            mfma(vACC + 4 * t, b, g == 0)
            if i == K0 - 1:
                partials_out(L_F)
                stamp("w", "qpart")
        elif i < V0:
            g, t = divmod(i - K0, 3)
            for r in range(4):
                e(f"v_dot2c_f32_bf16 v{vSC + g}, v{b + r}, v{vQ + 4 * t + r}")
                if r in (1, 3) and pend:
                    e(pend.pop(0))
            if t == 2:
                while pend:
                    e(pend.pop(0))
                pend.extend(red_steps(g))
            if i == V0 - 1:
                while pend:
                    e(pend.pop(0))
                e(f"v_max_f32_dpp v{vMX}, v{vMX}, v{vMX} row_ror:8 {DPPM}")
                allrows("v_max_f32", vMX, vT0)
                e(f"v_mul_f32 v{vMX}, s{sC}, v{vMX}")
                e(f"v_sub_f32 v{vNM}, 0, v{vMX}")
                for g2 in range(pk):
                    pcalc(g2)
                pdone[0] = pk
                stamp("w", "Kdone")
        elif i < O0:
            g, t = divmod(i - V0, 3)
            if t == 0:
                afrag(vSC + g)
            mfma(vACC + 4 * t, b, g == 0)
            if t < 2 and pdone[0] < 32:
                for _ in range((pk + 1 - t) // 2):
                    if pdone[0] < 32:
                        pcalc(pdone[0]); pdone[0] += 1
                if pdone[0] == 32:
                    pdone[0] = 33
                    e(f"v_add_f32_dpp v{vLS}, v{vLS}, v{vLS} row_ror:8 {DPPM}")
                    allrows("v_add_f32", vLS, vT0)
                    e(f"s_lshl_b32 s3, s{sW}, 3"); e(f"v_mov_b32 v{vT0}, s3")
                    e("s_mov_b64 exec, 1")
                    e(f"ds_write_b32 v{vT0}, v{vMX} offset:{L_ST}")
                    e(f"ds_write_b32 v{vT0}, v{vLS} offset:{L_ST + 4}")
                    e(f"ds_add_u32 v{vZ}, v{vONE} offset:{L_F + 4}")
                    e("s_mov_b64 exec, -1")
            if i == O0 - 1:
                partials_out(L_F + 8)
                stamp("w", "Vdone")

    e("s_waitcnt lgkmcnt(0)")
    srd(rX, sX, None, 1280)
    srd(rWQ, sWW, 4, 7864320)
    for g in range(5):
        vm.issue(("x", g), f"buffer_load_ushort v{vX + g}, v{vT3}, s[{rX}:{rX + 3}], s3 offen offset:{16 * g}")
    ni = 0
    while ni < F0:
        issue(ni); ni += 1
    srd(rK, sKV, 5, 50331648)
    srd(rV, sKV + 2, 5, 50331648)
    common_consts()
    e(f"v_lshrrev_b32 v{vT0}, 5, v{vL}"); e(f"v_mul_u32_u24 v{vPW}, 768, v{vT0}")
    e(f"v_and_b32 v{vT0}, 7, v{vL}"); e(f"v_lshl_add_u32 v{vPW}, v{vT0}, 5, v{vPW}")
    e(f"v_bfe_u32 v{vT0}, v{vL}, 4, 1"); e(f"v_lshl_add_u32 v{vPW}, v{vT0}, 4, v{vPW}")
    e(f"s_mul_i32 s7, s{sW}, 1536"); e(f"v_add_u32 v{vPW}, s7, v{vPW}")
    e(f"s_mov_b32 s{sC}, {f2u(192 ** -0.5 * math.log2(math.e)):#x}")
    for g in range(32):
        e(f"v_mov_b32 v{vSC + g}, 0")
    e("s_barrier")
    vm.wait(("x", 4))
    nc = 0

    def pace():
        j = ni - F
        if j >= 0:
            vm.wait(j)

    while nc < K0:
        if ni - nc <= F:
            pace(); issue(ni); ni += 1
        consume(nc); nc += 1
    while ni < K0 + R:
        pace(); issue(ni); ni += 1
    stamp("w", "ringfull")
    e("s_barrier")
    stamp("w", "qready")
    for t in range(3):
        e(f"ds_read_b128 {vr(vQ + 4 * t)}, v{vQR} offset:{t * 128}")
    e(f"ds_read_b32 v{vT}, v{vZ} offset:{L_T}")
    e("s_waitcnt lgkmcnt(0)")
    while nc < O0:
        lag = ni - nc
        if ni < N:
            if lag >= R:
                consume(nc); nc += 1
            pace(); issue(ni); ni += 1
            k = 0
            while nc < O0 and nc <= ni - 1 - F and k < 2:
                consume(nc); nc += 1; k += 1
        else:
            consume(nc); nc += 1
    while ni < N:
        pace(); issue(ni); ni += 1
    stamp("w", "woissued")
    e("L_tail:")
    e("s_barrier")
    stamp("w", "oready")
    for k in range(3):
        e(f"ds_read_b128 {vr(vQ + 4 * k)}, v{vOR} offset:{16 * k}")
    e("s_waitcnt lgkmcnt(0)")
    for g in range(12):
        afrag(vQ + g)
        vm.wait(O0 + g)
        mfma(vACC, slot(O0 + g), g == 0)
    tag4(vA, vACC)
    e("s_mov_b32 exec_hi, 0")
    e(f"buffer_store_dwordx4 {vr(vA)}, v{vPUB}, s[{rWS}:{rWS + 3}], 0 offen sc1")
    e("s_mov_b64 exec, -1")
    e(f"s_cmp_eq_u32 s{sW}, 4")
    e("s_cbranch_scc1 L_reduce")
    stamp("w", "pub")

    def stamps_out(who):
        if not stamps:
            return
        base = 0 if who == "w" else 14
        e("s_waitcnt lgkmcnt(0)")
        e("s_lshl_b32 s3, s2, 8"); e("s_add_u32 s3, s3, 0x8000000")
        e(f"s_add_u32 s4, s{sWS}, s3"); e(f"s_addc_u32 s5, s{sWS + 1}, 0")
        for i in range(nst[who]):
            e(f"v_mov_b32 v{vA}, s{sST + 2 * i}"); e(f"v_mov_b32 v{vA + 1}, s{sST + 2 * i + 1}")
            e(f"global_store_dwordx2 v{vZ}, v[{vA}:{vA + 1}], s[4:5] offset:{8 * (base + i)}")
        if who == "w":
            e("s_getreg_b32 s6, hwreg(HW_REG_XCC_ID)"); e("s_getreg_b32 s7, hwreg(HW_REG_HW_ID)")
            e(f"v_mov_b32 v{vA}, s6"); e(f"v_mov_b32 v{vA + 1}, s7")
            e(f"global_store_dwordx2 v{vZ}, v[{vA}:{vA + 1}], s[4:5] offset:{8 * 31}")

    if stamps:
        e(f"s_cmp_lg_u32 s{sW}, 0"); e("s_cbranch_scc1 L_end")
        stamps_out("w")
    e("s_endpgm")

    vD = vSC
    vE1, vE2, vP1, vP2, vP3 = 44, 45, 46, 47, 48
    vG = 8
    vS = 12
    e("L_service:")
    e("s_nop 4")
    if prio:
        e("s_setprio 3")
    e(f"v_mov_b32 v{vZ}, 0")
    for k in range(3):
        e(f"ds_write_b32 v{vZ}, v{vZ} offset:{L_F + 4 * k}")
    e("s_waitcnt lgkmcnt(0)")
    e("s_barrier")
    common_consts()
    e(f"s_lshl_b32 s9, s{sB}, 7")
    e(f"buffer_load_dword v{vT}, v{vZ}, s[{rWS}:{rWS + 3}], s9 offen sc1")
    e(f"s_mov_b32 s{sSA}, 0x0c0c0400"); e(f"s_mov_b32 s{sSB}, 0x04000c0c"); e(f"s_mov_b32 s{sMASK}, 0xffffff00")
    e(f"s_lshl_b32 s7, s{sHH}, 2"); e(f"s_add_u32 s8, s7, s{sS}")
    e(f"v_lshlrev_b32 v{vE1}, 4, v{vL}")
    e(f"v_lshrrev_b32 v{vT0}, 4, v{vL}"); e(f"v_and_b32 v{vT1}, 15, v{vL}")
    e(f"v_mul_u32_u24 v{vP1}, 768, v{vT0}"); e(f"v_lshl_add_u32 v{vP1}, v{vT1}, 4, v{vP1}")
    e(f"s_mul_i32 s3, s7, 768"); e(f"s_add_u32 s3, s3, {A1}"); e(f"v_add_u32 v{vP1}, s3, v{vP1}")
    e(f"v_lshlrev_b32 v{vP3}, 10, v{vT0}")
    e(f"s_lshl_b32 s3, s7, 10"); e(f"s_add_u32 s3, s3, {A2}"); e(f"v_add_u32 v{vP3}, s3, v{vP3}")
    e(f"v_min_u32 v{vT2}, 11, v{vT1}")
    e(f"s_mul_i32 s3, s{sS}, 192"); e(f"v_lshl_add_u32 v{vP2}, v{vT2}, 4, s3"); e(f"v_add_u32 v{vP2}, v{vP2}, v{vP3}")
    e(f"v_and_b32 v{vT3}, 1, v{vT0}"); e(f"v_lshlrev_b32 v{vT3}, 1, v{vT3}")
    e(f"v_lshrrev_b32 v{vT0}, 1, v{vT0}"); e(f"v_or_b32 v{vT3}, v{vT3}, v{vT0}")
    e(f"v_lshl_add_u32 v{vMX}, v{vT1}, 2, v{vT3}")
    e(f"v_lshlrev_b32 v{vMX}, 1, v{vMX}"); e(f"v_add_u32 v{vMX}, {L_Q}, v{vMX}")
    e(f"v_lshl_add_u32 v{vLS}, v{vT2}, 2, v{vT3}")
    e(f"v_lshlrev_b32 v{vLS}, 2, v{vLS}"); e(f"v_add_u32 v{vLS}, {L_O}, v{vLS}")
    e(f"s_mul_i32 s4, s8, 768"); e(f"s_add_u32 s4, s4, {A1}")
    e(f"s_lshl_b32 s5, s8, 10"); e(f"s_add_u32 s5, s5, {A2}")
    e("s_waitcnt vmcnt(0)")
    e(f"v_and_b32 v{vT0}, 0x7f7f7f7f, v{vT}"); e(f"v_add_u32 v{vT0}, 0x01010101, v{vT0}")
    e(f"v_and_b32 v{vT}, 0x80808080, v{vT}"); e(f"v_xor_b32 v{vT}, v{vT}, v{vT0}")
    e(f"ds_write_b32 v{vZ}, v{vT} offset:{L_T}")
    if codepf:
        pass
    ldsspin("L_f1", L_F, vT0)
    stamp("s", "s.f1")
    for p in range(8):
        e(f"ds_read_b128 {vr(vD + 4 * p)}, v{vE1} offset:{p * 768}")
    for p in range(1, 8):
        e(f"s_waitcnt lgkmcnt({7 - p})")
        for r in range(4):
            e(f"v_add_f32 v{vD + r}, v{vD + r}, v{vD + 4 * p + r}")
    tag4(vA, vD)
    e("s_mov_b32 exec_hi, 0xffff")
    e(f"buffer_store_dwordx4 {vr(vA)}, v{vE1}, s[{rWS}:{rWS + 3}], s4 offen sc1")
    e("s_mov_b32 exec_hi, -1")
    stamp("s", "s.qpub")
    poll("L_p1", [f"buffer_load_dwordx4 {vr(vD + 4 * t)}, v{vP1}, s[{rWS}:{rWS + 3}], 0 offen offset:{256 * t} sc1" for t in range(3)],
         [vD + 4 * t for t in range(3)], vT0)
    stamp("s", "s.qpoll")
    for t in range(3):
        treduce(vD + 4 * t)
    for t in range(3):
        e(f"v_cvt_pk_bf16_f32 v{vD + 4 * t}, v{vD + 4 * t}, v{vD + 4 * t}")
    for t in range(3):
        e(f"ds_write_b16 v{vMX}, v{vD + 4 * t} offset:{128 * t}")
    e("s_waitcnt lgkmcnt(0)")
    e("s_barrier")
    for g in range(12):
        e(f"s_mov_b32 s{sOFF}, {(g // 4) * 5120}")
        e(f"buffer_load_dwordx4 {vr(slot(O0 + g))}, v{vWO}, s[{rWO}:{rWO + 3}], s{sOFF} offen offset:{(g % 4) * 1280} {fl}")
    ldsspin("L_f2", L_F + 4, vT0)
    stamp("s", "s.f2")
    e(f"ds_read_b128 {vr(vS)}, v{vZ} offset:{L_ST}")
    e(f"ds_read_b128 {vr(vS + 4)}, v{vZ} offset:{L_ST + 16}")
    e("s_waitcnt lgkmcnt(0)")
    e(f"v_max_f32 v{vT0}, v{vS}, v{vS + 2}"); e(f"v_max3_f32 v{vT0}, v{vT0}, v{vS + 4}, v{vS + 6}")
    for w in range(4):
        e(f"v_sub_f32 v{vG + w}, v{vS + 2 * w}, v{vT0}")
    for w in range(4):
        e(f"v_exp_f32 v{vG + w}, v{vG + w}")
    e(f"v_mul_f32 v{vD + 2}, v{vG}, v{vS + 1}")
    for w in range(1, 4):
        e(f"v_fma_f32 v{vD + 2}, v{vG + w}, v{vS + 2 * w + 1}, v{vD + 2}")
    e(f"v_and_b32 v{vD}, s{sMASK}, v{vT0}"); e(f"v_sub_f32 v{vD + 1}, v{vT0}, v{vD}"); e(f"v_mov_b32 v{vD + 3}, 0")
    tag4(vA, vD)
    e("s_mov_b64 exec, 1")
    e(f"buffer_store_dwordx4 {vr(vA)}, v{vZ}, s[{rWS}:{rWS + 3}], s5 offen offset:768 sc1")
    e("s_mov_b64 exec, -1")
    poll("L_p2", [f"buffer_load_dwordx4 {vr(vD)}, v{vP3}, s[{rWS}:{rWS + 3}], 0 offen offset:768 sc1"], [vD], vT0)
    stamp("s", "s.stpoll")
    e(f"v_add_f32 v{vD}, v{vD}, v{vD + 1}")
    e(f"v_mov_b32 v{vD + 1}, v{vD}")
    allrows("v_max_f32", vD + 1, vT0)
    e(f"v_sub_f32 v{vD}, v{vD}, v{vD + 1}"); e(f"v_exp_f32 v{vD}, v{vD}")
    e(f"v_mul_f32 v{vD}, v{vD}, v{vD + 2}")
    allrows("v_add_f32", vD, vT0)
    e(f"v_rcp_f32 v{vD}, v{vD}")
    for w in range(4):
        e(f"v_sub_f32 v{vG + w}, v{vS + 2 * w}, v{vD + 1}")
    for w in range(4):
        e(f"v_exp_f32 v{vG + w}, v{vG + w}")
    for w in range(4):
        e(f"v_mul_f32 v{vG + w}, v{vG + w}, v{vD}")
    ldsspin("L_f3", L_F + 8, vT0)
    stamp("s", "s.f3")
    for p in range(8):
        e(f"ds_read_b128 {vr(vD + 4 * p)}, v{vE1} offset:{p * 768}")
    for w in range(4):
        e(f"s_waitcnt lgkmcnt({6 - 2 * w})")
        for r in range(4):
            e(f"v_add_f32 v{vD + 8 * w + r}, v{vD + 8 * w + r}, v{vD + 8 * w + 4 + r}")
        for r in range(4):
            if w == 0:
                e(f"v_mul_f32 v{vD + r}, v{vG}, v{vD + r}")
            else:
                e(f"v_fma_f32 v{vD + r}, v{vG + w}, v{vD + 8 * w + r}, v{vD + r}")
    tag4(vA, vD)
    e("s_mov_b32 exec_hi, 0xffff")
    e(f"buffer_store_dwordx4 {vr(vA)}, v{vE1}, s[{rWS}:{rWS + 3}], s5 offen sc1")
    e("s_mov_b32 exec_hi, -1")
    stamp("s", "s.opub")
    poll("L_p3", [f"buffer_load_dwordx4 {vr(vD)}, v{vP2}, s[{rWS}:{rWS + 3}], 0 offen sc1"], [vD], vT0)
    stamp("s", "s.opoll")
    treduce(vD)
    e(f"v_cvt_pk_bf16_f32 v{vD}, v{vD}, v{vD}")
    e(f"ds_write_b32 v{vLS}, v{vD}")
    e("s_waitcnt lgkmcnt(0)")
    if stamps:
        for i in range(nst["s"]):
            e(f"v_mov_b32 v{vSC + 2 * i}, s{sST + 2 * i}"); e(f"v_mov_b32 v{vSC + 2 * i + 1}, s{sST + 2 * i + 1}")
    e("s_branch L_tail")
    e("L_reduce:")
    e("s_nop 4")
    if stamps:
        for i in range(nst["s"]):
            e(f"v_readfirstlane_b32 s{sST + 2 * i}, v{vSC + 2 * i}"); e(f"v_readfirstlane_b32 s{sST + 2 * i + 1}, v{vSC + 2 * i + 1}")
    stamp("s", "s.pub")
    e(f"s_cmp_ge_u32 s{sJB}, 80")
    e("s_cbranch_scc1 L_sdone")
    e(f"v_lshrrev_b32 v{vT0}, 1, v{vL}"); e(f"v_mul_u32_u24 v{vP1}, 2560, v{vT0}")
    e(f"v_and_b32 v{vT1}, 1, v{vL}"); e(f"v_lshl_add_u32 v{vP1}, v{vT1}, 4, v{vP1}")
    e(f"s_mul_i32 s3, s{sB}, {128 * 2560}"); e(f"s_lshl_b32 s4, s{sJB}, 5"); e("s_add_u32 s3, s3, s4"); e(f"s_add_u32 s3, s3, {A3}")
    e(f"v_add_u32 v{vP1}, s3, v{vP1}")
    for k in range(1, 4):
        e(f"s_mov_b32 s{4 + k}, {k * 32 * 2560}")
    srd(rOUT, sOUT, None, 2560)
    e(f"v_bfe_u32 v{vT0}, v{vL}, 4, 1"); e(f"v_lshlrev_b32 v{vT0}, 1, v{vT0}")
    e(f"v_lshrrev_b32 v{vT2}, 5, v{vL}"); e(f"v_or_b32 v{vT0}, v{vT0}, v{vT2}")
    e(f"v_lshl_add_u32 v{vT0}, v{vT1}, 2, v{vT0}")
    e(f"s_mul_i32 s3, s{sB}, 640"); e(f"s_lshl_b32 s4, s{sJB}, 3"); e("s_add_u32 s3, s3, s4")
    e(f"v_add_u32 v{vP2}, s3, v{vT0}"); e(f"v_lshlrev_b32 v{vP2}, 1, v{vP2}")
    poll("L_p4", [f"buffer_load_dwordx4 {vr(vD + 4 * k)}, v{vP1}, s[{rWS}:{rWS + 3}], {'0' if k == 0 else 's' + str(4 + k)} offen sc1" for k in range(4)],
         [vD + 4 * k for k in range(4)], vT0)
    stamp("s", "s.fpoll")
    for r in range(4):
        e(f"v_add_f32 v{vD + r}, v{vD + r}, v{vD + 4 + r}")
        e(f"v_add_f32 v{vD + 8 + r}, v{vD + 8 + r}, v{vD + 12 + r}")
    for r in range(4):
        e(f"v_add_f32 v{vD + r}, v{vD + r}, v{vD + 8 + r}")
    treduce(vD)
    e(f"v_add_f32_dpp v{vD}, v{vD}, v{vD} quad_perm:[2,3,0,1] {DPPM}")
    e(f"v_add_f32_dpp v{vD}, v{vD}, v{vD} row_ror:4 {DPPM}")
    e(f"v_add_f32_dpp v{vD}, v{vD}, v{vD} row_ror:8 {DPPM}")
    e(f"v_cvt_pk_bf16_f32 v{vD}, v{vD}, v{vD}")
    e("s_mov_b32 exec_lo, 0x00030003"); e("s_mov_b32 exec_hi, 0x00030003")
    e(f"buffer_store_short v{vD}, v{vP2}, s[{rOUT}:{rOUT + 3}], 0 offen")
    e(f"s_cmp_lg_u32 s{sJB}, 0")
    e("s_cbranch_scc1 L_sdone")
    e("s_mov_b64 exec, 1")
    e(f"buffer_store_dword v{vT}, v{vZ}, s[{rWS}:{rWS + 3}], s9 offen sc1")
    e("L_sdone:")
    e("s_mov_b64 exec, -1")
    stamp("s", "s.end")
    stamps_out("s")
    e("L_end:")
    e("s_endpgm")

    body, nops = resolve(L)
    nv = vRING + 4 * R
    out = [HDR.rstrip("\n"),
           f"; @launch grid=(256,1,1) block=(320,1,1) lds={LDS}"]
    if stamps:
        out.append("; @stamps " + ",".join(f"{i}={n}" for i, n in names))
    out += ['.amdgcn_target "amdgcn-amd-amdhsa--gfx950"', ".text", f".globl {KN}", ".p2align 8",
            f".type {KN},@function", f"{KN}:"]
    out += [("" if t.endswith(":") else "    ") + t for t in body]
    out += ['.section .rodata,"a"', ".p2align 6", f".amdhsa_kernel {KN}",
            f"  .amdhsa_next_free_vgpr {nv}", "  .amdhsa_next_free_sgpr 102",
            f"  .amdhsa_accum_offset {(nv + 3) // 4 * 4}",
            "  .amdhsa_group_segment_fixed_size 0", "  .amdhsa_kernarg_size 104",
            "  .amdhsa_user_sgpr_count 2", "  .amdhsa_user_sgpr_kernarg_segment_ptr 1",
            "  .amdhsa_system_sgpr_workgroup_id_x 1", ".end_amdhsa_kernel"]
    return "\n".join(out) + "\n", nops


if __name__ == "__main__":
    outp = sys.argv[1]
    kw = {}
    for a in sys.argv[2:]:
        k, v = a.split("=")
        kw[k] = int(v) if v.lstrip("-").isdigit() else v.replace("+", " ")
    s, nops = gen(**kw)
    open(outp, "w").write(s)
    print(outp, "lines", s.count("\n"), "nop states", nops)
```

```python
import re

TRANS = ("v_exp_f32", "v_log_f32", "v_rcp_f32", "v_rsq_f32", "v_sqrt_f32", "v_sin_f32", "v_cos_f32")


def _regs(tok, kind):
    tok = tok.strip()
    if tok.startswith("-"):
        tok = tok[1:]
    tok = tok.strip("|")
    m = re.fullmatch(kind + r"\[(\d+):(\d+)\]", tok)
    if m:
        return set(range(int(m.group(1)), int(m.group(2)) + 1))
    m = re.fullmatch(kind + r"(\d+)", tok)
    if m:
        return {int(m.group(1))}
    if kind == "s":
        if tok == "vcc":
            return {106, 107}
        if tok == "vcc_lo":
            return {106}
        if tok == "vcc_hi":
            return {107}
    return set()


class Ins:
    def __init__(self, text):
        self.text = text
        t = text.split(";")[0].strip()
        self.label = t.endswith(":")
        self.states = 0 if (self.label or not t or t.startswith(".") or text.endswith("; cond")) else 1
        self.kind = "other"
        self.vw, self.vr, self.sw, self.sr = set(), set(), set(), set()
        self.srcc = set()
        self.dppsrc = set()
        self.sdata = set()
        self.op = ""
        if self.states == 0:
            return
        parts = t.split(None, 1)
        op = parts[0]
        self.op = op
        rest = parts[1] if len(parts) > 1 else ""
        ops = [o.strip() for o in rest.split(",")] if rest else []
        if ops:
            last = ops[-1].split()
            mods = " ".join(last[1:]) if last else ""
            m = re.search(r"(quad_perm|row_|op_sel|neg_|offen|offset|idxen|off\b)", rest)
            head = rest[:m.start()] if m else rest
            ops = [o.strip() for o in head.split(",") if o.strip()]
            ops = [o.split()[0] for o in ops]
        else:
            mods = ""
        V = lambda tok: _regs(tok, "v")
        S = lambda tok: _regs(tok, "s")
        if op == "s_nop":
            self.states = int(ops[0]) + 1
            self.kind = "nop"
        elif op.startswith("v_mfma"):
            self.kind = "mfma"
            self.vw = V(ops[0])
            self.vr = V(ops[1]) | V(ops[2]) | V(ops[3])
            self.srcab = V(ops[1]) | V(ops[2])
            self.srcc = V(ops[3])
        elif op.startswith("v_"):
            self.kind = "valu"
            dpp = ("quad_perm" in rest) or ("row_" in rest)
            if op.startswith("v_cmp"):
                self.sw = S(ops[0])
                srcs = ops[1:]
            elif op.startswith("v_readfirstlane") or op.startswith("v_readlane"):
                self.kind = "rfl"
                self.sw = S(ops[0])
                srcs = ops[1:]
            elif op.startswith("v_permlane"):
                self.kind = "perml"
                self.vw = V(ops[0]) | V(ops[1])
                srcs = ops
            else:
                self.vw = V(ops[0])
                srcs = ops[1:]
                if op.startswith(("v_dot2c", "v_fmac", "v_mac")) or dpp:
                    self.vr |= V(ops[0])
                if op.startswith("v_dot"):
                    self.kind = "dot"
                    if op.startswith("v_dot2c"):
                        self.srcc = V(ops[0])
                        self.srcab = V(ops[1]) | V(ops[2])
                    else:
                        self.srcc = V(ops[3])
                        self.srcab = V(ops[1]) | V(ops[2])
                if op.startswith(TRANS):
                    self.kind = "trans"
                if op.startswith("v_cndmask") and len(ops) == 3:
                    self.sr |= {106, 107}
            for s in srcs:
                self.vr |= V(s)
                self.sr |= S(s)
            if dpp:
                self.dppsrc = V(ops[1]) | V(ops[0])
        elif op.startswith(("buffer_load", "global_load")):
            self.kind = "vload"
            self.vw = V(ops[0])
            for s in ops[1:]:
                self.vr |= V(s)
                self.sr |= S(s)
        elif op.startswith(("buffer_store", "buffer_atomic")):
            self.kind = "vstore"
            for s in ops:
                self.vr |= V(s)
                self.sr |= S(s)
            if "x4" in op or "x3" in op:
                self.sdata = V(ops[0])
        elif op.startswith(("global_store", "global_atomic")):
            self.kind = "vstore"
            for s in ops:
                self.vr |= V(s)
                self.sr |= S(s)
            if "x4" in op or "x3" in op:
                self.sdata = V(ops[1])
        elif op.startswith("ds_add_rtn"):
            self.kind = "dsrd"
            self.vw = V(ops[0])
            self.vr = V(ops[1]) | V(ops[2])
        elif op.startswith("ds_read"):
            self.kind = "dsrd"
            self.vw = V(ops[0])
            self.vr = V(ops[1])
        elif op.startswith("ds_"):
            self.kind = "dswr"
            for s in ops:
                self.vr |= V(s)
        elif op.startswith("s_"):
            self.kind = "salu"

    @property
    def isvalu(self):
        return self.kind in ("valu", "trans", "dot", "perml", "rfl")


def need(p, c):
    n = 0
    cval = c.isvalu
    cmem = c.kind in ("vload", "vstore", "dsrd", "dswr")
    if p.isvalu:
        if p.vw & c.dppsrc:
            n = max(n, 2)
        if c.kind == "perml" and (p.vw & c.vr):
            n = max(n, 2)
        if c.kind == "rfl" and (p.vw & c.vr):
            n = max(n, 1)
        if c.kind == "mfma" and (p.vw & c.vr):
            n = max(n, 2)
        if p.sw:
            if cval and (p.sw & c.sr):
                n = max(n, 2)
            if c.kind in ("vload", "vstore") and (p.sw & c.sr):
                n = max(n, 5)
        if p.kind == "trans" and (p.vw & c.vr) and c.kind != "trans":
            n = max(n, 1)
        if p.kind == "dot":
            if c.kind == "dot" and c.op == p.op:
                if p.vw & c.srcab:
                    n = max(n, 3)
            elif p.vw & (c.vr | c.vw):
                n = max(n, 3)
    if p.kind == "mfma":
        if c.kind == "mfma":
            if p.vw & c.srcab:
                n = max(n, 8)
            if p.vw & c.srcc and p.vw != c.srcc:
                n = max(n, 6)
            if (p.vw & c.vw) and not (p.vw == c.srcc):
                n = max(n, 8)
        elif cval or cmem:
            if p.vw & (c.vr | c.vw):
                n = max(n, 8)
            if cval and (p.srcc & c.vw):
                n = max(n, 3)
    if p.sdata:
        if cval and (p.sdata & c.vw):
            n = max(n, 2)
        elif p.sdata & c.vw:
            n = max(n, 1)
    return n


def resolve(lines):
    out = []
    nops = 0
    for text in lines:
        c = Ins(text)
        if c.states and c.kind not in ("nop", "salu", "other"):
            req = 0
            between = 0
            for p in reversed(out):
                if between >= 10:
                    break
                if p.op in ("s_endpgm", "s_branch", "s_setpc_b64"):
                    break
                if p.states == 0:
                    continue
                k = need(p, c)
                if k > between:
                    req = max(req, k - between)
                between += p.states
            if req:
                out.append(Ins(f"s_nop {req - 1}"))
                nops += req
        out.append(c)
    return [i.text for i in out], nops


class VM:
    def __init__(self, e):
        self.e = e
        self.q = []

    def issue(self, tag, text):
        self.e(text)
        self.q.append(tag)
        assert len(self.q) <= 63, "vmcnt overflow"

    def wait(self, tag):
        if tag not in self.q:
            return
        k = self.q.index(tag)
        n = len(self.q) - 1 - k
        self.e(f"s_waitcnt vmcnt({n})")
        self.q = self.q[k + 1:]

    def drain(self):
        if self.q:
            self.e("s_waitcnt vmcnt(0)")
        self.q = []
```

```python
import sys, math, struct
from asmlib import resolve, VM

KN = "concat_heads__mha_block_cached__gqa_block_cached__decode_kernel"
HDR = open("concat_heads__mha_block_cached__gqa_block_cached__decode.s.ref").read().split("; Override launch")[0]

A1 = 4096
A2 = A1 + 256 * 768
A3 = A2 + 256 * 1024
A4 = A3 + 256 * 2560
AY = A4 + 256 * 4352
DY = AY - A1
WS_USED = AY + A3 - A1
L_P = 0
L_Q = 6144
L_T = 6528
L_F = 6544
L_ST = 6560
L_O = 6592
LDS = 6912

sS, sHH, sB, sH, sW, sJB = 10, 11, 12, 13, 14, 15
sX, sMASK, sCNT = 16, 18, 19
sKV, sWW, sOUT, sWS = 20, 24, 28, 30
rX, rWQ, rK, rV, rWO, rWS, rOUT = 32, 36, 40, 44, 48, 52, 56
sOFF, sC = 60, 61
sSEL = 62
sSA, sSB = 66, 67
sROT = 100
sPO = 101
rDBG = 96
sST = 68

vL, vKV, vWQ, vWO = 0, 1, 2, 3
vM = 4
vQ = 8
vACC = 20
vA = 32
vT = 36
vPW, vQR, vOR, vPUB = 37, 38, 39, 40
vMX, vLS, vNM = 41, 42, 43
vX = 44
vT0, vT1, vT2, vT3 = 49, 50, 51, 52
vZ, vONE, vPR = 53, 54, 55
vSC = 56
vRING = 88


def f2u(x):
    return struct.unpack("<I", struct.pack("<f", x))[0]


def gen(F=6, F0=6, F2=0, G2=99, rot=0, R=27, fl="nt", stamps=0, prio=1, codepf=0, pk=2, warm=0, qf=0, fb=0, FH=8, FH2=0, G3=99, TH0=48, THL=232, ksh=1, CM=4, bias=1, cb=0, xp=0, N0=32, IL=4, pre=0, nopoll=0, skip=0, dummy=0):
    L = []
    e = L.append
    names = []
    nst = {"w": 0, "s": 0}

    def stamp(who, name):
        if not stamps or (stamps == 2 and name in ("woissued", "oready", "pub")):
            return
        i = nst[who]
        assert i < 14
        nst[who] += 1
        e(f"s_memrealtime s[{sST + 2 * i}:{sST + 2 * i + 1}]")
        names.append((i + (0 if who == "w" else 14), name))

    def srd(d, base, off, size):
        if off is None:
            e(f"s_mov_b32 s{d}, s{base}"); e(f"s_mov_b32 s{d + 1}, s{base + 1}")
            e(f"s_mov_b32 s{d + 2}, {size}")
        else:
            e(f"s_add_u32 s{d}, s{base}, s{off}"); e(f"s_addc_u32 s{d + 1}, s{base + 1}, 0")
            e(f"s_sub_u32 s{d + 2}, {size}, s{off}")
        e(f"s_mov_b32 s{d + 3}, 0x20000")

    def slot(i):
        return vRING + 4 * (i % R)

    def vr(a, n=4):
        return f"v[{a}:{a + n - 1}]"

    DPPM = "row_mask:0xf bank_mask:0xf"

    def allrows(op, v, t):
        e(f"v_mov_b32 v{t}, v{v}")
        e(f"v_permlane16_swap_b32 v{v}, v{t}")
        e(f"{op} v{v}, v{v}, v{t}")
        e(f"v_mov_b32 v{t}, v{v}")
        e(f"v_permlane32_swap_b32 v{v}, v{t}")
        e(f"{op} v{v}, v{v}, v{t}")

    def treduce(d):
        e(f"v_permlane32_swap_b32 v{d}, v{d + 1}")
        e(f"v_permlane32_swap_b32 v{d + 2}, v{d + 3}")
        e(f"v_add_f32 v{d}, v{d}, v{d + 1}")
        e(f"v_add_f32 v{d + 2}, v{d + 2}, v{d + 3}")
        e(f"v_permlane16_swap_b32 v{d}, v{d + 2}")
        e(f"v_add_f32 v{d}, v{d}, v{d + 2}")

    def tag4(dst, src):
        for r in range(4):
            e(f"v_perm_b32 v{dst + r}, v{src + r}, v{vT}, s{sSEL + r}")

    def poll(label, loads, units, tmp, dual=None):
        e(f"s_mov_b32 s{sCNT}, {1 if nopoll >> (4 - int(label[-1])) & 1 else 400000}")
        if dual:
            e(f"s_mov_b32 s{sPO}, {0 if xp else DY}")
        e(f"{label}:")
        e("s_nop 1")
        for t in loads:
            if not skip >> (4 - int(label[-1])) & 1:
                e(t)
        e(f"s_sub_u32 s{sCNT}, s{sCNT}, 1")
        if dual and xp:
            e(f"s_cmp_lg_u32 s{sCNT}, {400000 - N0}"); e(f"s_cbranch_scc1 {label}_y")
            dual()
            e(f"{label}_y:")
            e(f"s_cmp_lt_u32 s{sCNT}, {400000 - N0}"); e(f"s_cselect_b32 s3, {DY}, 0"); e(f"s_xor_b32 s{sPO}, s{sPO}, s3")
        e("s_waitcnt vmcnt(0)")
        for k, u in enumerate(units):
            e(f"v_perm_b32 v{tmp}, v{u + 1}, v{u}, s{sSA}")
            e(f"v_perm_b32 v{tmp + 1}, v{u + 3}, v{u + 2}, s{sSB}")
            e(f"v_or_b32 v{tmp}, v{tmp}, v{tmp + 1}")
            if k == 0:
                e(f"v_xor_b32 v{tmp + 2}, v{tmp}, v{vT}")
            else:
                e(f"v_xor_b32 v{tmp}, v{tmp}, v{vT}")
                e(f"v_or_b32 v{tmp + 2}, v{tmp + 2}, v{tmp}")
        e(f"v_cmp_ne_u32 vcc, 0, v{tmp + 2}")
        e(f"s_cmp_eq_u32 s{sCNT}, 0")
        e(f"s_cbranch_scc1 {label}_x")
        e(f"s_cbranch_vccnz {label}")
        e(f"{label}_x:")
        for u in units:
            for r in range(4):
                e(f"v_and_b32 v{u + r}, s{sMASK}, v{u + r}")

    def publish(src, vaddr, sx, off, one, y):
        o = f" offset:{off}" if off else ""
        e("s_mov_b64 exec, 1" if one else "s_mov_b32 exec_hi, 0xffff")
        e(f"buffer_store_dwordx4 {vr(src)}, v{vaddr}, s[{rWS}:{rWS + 3}], s{sx + 2 * y} offen{o}" + (" sc1" if y else ""))
        e("s_mov_b64 exec, -1")

    def ldsspin(label, off, tmp):
        e(f"s_mov_b32 s{sCNT}, 4000000")
        e(f"{label}:")
        e(f"ds_read_b32 v{tmp}, v{vZ} offset:{off}")
        e(f"s_sub_u32 s{sCNT}, s{sCNT}, 1")
        e("s_waitcnt lgkmcnt(0)")
        e(f"v_readfirstlane_b32 s3, v{tmp}")
        e(f"s_cmp_eq_u32 s{sCNT}, 0")
        e(f"s_cbranch_scc1 {label}_x")
        e("s_cmp_lt_u32 s3, 4")
        e(f"s_cbranch_scc1 {label}")
        e(f"{label}_x:")

    sN, sSL, sCc, sTH, sP, sK, sAUX = 32, 33, 34, 35, 36, 37, 38

    def fbspin(label, k, tmp, vad):
        e(f"s_mov_b32 s{sCNT}, 4000000")
        e(f"{label}:")
        e(f"ds_read_b128 {vr(tmp)}, v{vZ} offset:{L_F}")
        e(f"s_sub_u32 s{sCNT}, s{sCNT}, 1")
        e(f"s_cbranch_scc1 {label}_x")
        e("s_waitcnt lgkmcnt(0)")
        e(f"v_readfirstlane_b32 s3, v{tmp + k}")
        e(f"v_readfirstlane_b32 s{sP}, v{tmp + 3}")
        e("s_cmp_ge_u32 s3, 4")
        e(f"s_cbranch_scc1 {label}_x")
        e(f"s_sub_i32 s{sP}, s{sP}, s{sCc}")
        e(f"s_cmp_lt_i32 s{sP}, s{sTH}")
        e(f"s_cbranch_scc1 {label}")
        e(f"s_sub_i32 s{sK}, s{sP}, s{sTH}"); e(f"s_lshr_b32 s{sK}, s{sK}, {IL}"); e(f"s_add_u32 s{sK}, s{sK}, 1")
        e(f"s_add_u32 s{sN}, s{sN}, s{sK}")
        e(f"v_and_b32 v{tmp}, s{sMASK}, v{vT}"); e(f"v_or_b32 v{tmp + 1}, s{sN}, v{tmp}")
        e(f"buffer_load_dword v{tmp + 2}, v{vad}, s[{rWS}:{rWS + 3}], 0 offen sc1")
        e("s_mov_b64 exec, 1")
        e(f"buffer_store_dword v{tmp + 1}, v{vZ}, s[{rWS}:{rWS + 3}], s{sSL} offen")
        e("s_mov_b64 exec, -1")
        e(f"s_lshl_b32 s{sK}, s{sK}, {IL}"); e(f"s_add_u32 s{sTH}, s{sTH}, s{sK}")
        e(f"s_cmp_gt_i32 s{sTH}, {THL + (1 << IL) - 1}"); e(f"s_cselect_b32 s{sTH}, 0x7fffffff, s{sTH}")
        e("s_waitcnt vmcnt(1)")
        e(f"v_xor_b32 v{tmp + 2}, v{tmp + 2}, v{vPR}")
        e(f"v_cmp_gt_u32 vcc, 64, v{tmp + 2}")
        e(f"v_cndmask_b32 v{tmp + 2}, 0, v{tmp + 2}, vcc")
        for m in ("quad_perm:[1,0,3,2]", "quad_perm:[2,3,0,1]", "row_half_mirror", "row_mirror"):
            e(f"v_add_u32_dpp v{tmp + 2}, v{tmp + 2}, v{tmp + 2} {m} {DPPM}")
        e(f"v_readlane_b32 s{sK}, v{tmp + 2}, 0"); e(f"v_readlane_b32 s3, v{tmp + 2}, 16")
        e(f"s_add_u32 s{sK}, s{sK}, s3")
        if IL > 3:
            e(f"s_lshl_b32 s{sK}, s{sK}, {IL - 3}")
        e(f"s_lshl_b32 s3, s{sP}, 2")
        e(f"s_sub_i32 s3, s{sK}, s3")
        e(f"s_add_u32 s3, s3, {4 * TH0 - 2 + (2 << ksh) + cb}")
        e(f"s_ashr_i32 s3, s3, {2 + ksh}")
        e(f"s_min_i32 s3, s3, {CM}"); e(f"s_max_i32 s3, s3, {-CM}")
        e(f"s_sub_i32 s{sK}, s3, s{sCc}"); e(f"s_mov_b32 s{sCc}, s3")
        e(f"v_mov_b32 v{tmp}, s{sK}")
        e("s_mov_b64 exec, 1")
        e(f"ds_add_u32 v{vZ}, v{tmp} offset:{L_F + 12}")
        e("s_mov_b64 exec, -1")
        if stamps:
            e(f"s_lshl_b64 s[{sAUX}:{sAUX + 1}], s[{sAUX}:{sAUX + 1}], 5")
            e(f"s_and_b32 s{sAUX + 1}, s{sAUX + 1}, 0xfffffff")
            e("s_add_u32 s3, s3, 16"); e(f"s_or_b32 s{sAUX}, s{sAUX}, s3")
        e(f"s_branch {label}")
        e(f"{label}_x:")

    e("s_cmp_ge_u32 s2, 256"); e("s_cbranch_scc1 L_end")
    if stamps:
        e(f"s_memrealtime s[{sST}:{sST + 1}]")
        nst["w"] = 1; nst["s"] = 1
        names.append((0, "start")); names.append((14, "s.start"))
    e("s_and_b32 s3, s2, 7"); e("s_lshr_b32 s4, s2, 3"); e(f"s_and_b32 s{sS}, s4, 3")
    e("s_lshr_b32 s4, s4, 2"); e("s_lshl_b32 s4, s4, 3"); e(f"s_add_u32 s{sHH}, s4, s3")
    e(f"s_lshr_b32 s{sB}, s{sHH}, 5"); e(f"s_mul_i32 s7, s{sB}, 40")
    e("s_add_u32 s8, s0, s7"); e("s_addc_u32 s9, s1, 0")
    e(f"s_load_dwordx4 s[{sWW}:{sWW + 3}], s[8:9], 24")
    e(f"s_load_dwordx2 s[{sX}:{sX + 1}], s[8:9], 0")
    e(f"s_load_dwordx4 s[{sKV}:{sKV + 3}], s[8:9], 8")
    e(f"s_load_dwordx2 s[{sOUT}:{sOUT + 1}], s[0:1], 80")
    e(f"s_load_dwordx2 s[{sWS}:{sWS + 1}], s[0:1], 96")
    e(f"v_lshrrev_b32 v{vT0}, 6, v0")
    e(f"v_and_b32 v{vL}, 63, v0")
    e(f"v_readfirstlane_b32 s{sW}, v{vT0}")
    e(f"s_and_b32 s{sH}, s{sHH}, 31")
    e(f"s_lshl_b32 s{sJB}, s{sH}, 2"); e(f"s_add_u32 s{sJB}, s{sJB}, s{sS}")
    e(f"v_lshrrev_b32 v{vT0}, 3, v{vL}")
    e(f"v_and_b32 v{vT1}, 7, v{vL}")
    e(f"v_lshlrev_b32 v{vT2}, 4, v{vT1}")
    e(f"v_mul_u32_u24 v{vWQ}, 12288, v{vT0}"); e(f"v_add_u32 v{vWQ}, v{vWQ}, v{vT2}")
    e(f"v_mul_u32_u24 v{vKV}, 384, v{vT0}"); e(f"v_add_u32 v{vKV}, v{vKV}, v{vT2}")
    e(f"v_lshlrev_b32 v{vT3}, 1, v{vT0}")
    e(f"v_add_u32 v{vQR}, {L_Q}, v{vT2}")
    e(f"s_mul_i32 s3, s{sS}, 160"); e(f"s_mul_i32 s4, s{sW}, 40"); e("s_add_u32 s3, s3, s4")
    e("s_mul_i32 s4, s3, 12288"); e(f"s_mul_i32 s5, s{sH}, 384"); e("s_add_u32 s4, s4, s5")
    e("s_lshl_b32 s3, s3, 1")
    e(f"s_mul_i32 s5, s{sH}, 1572864"); e(f"s_mul_i32 s6, s{sS}, 393216"); e("s_add_u32 s5, s5, s6")
    e(f"s_mul_i32 s6, s{sW}, 3072"); e("s_add_u32 s5, s5, s6")
    e(f"s_mul_i32 s6, s{sJB}, 61440"); e(f"s_lshl_b32 s7, s{sW}, 8"); e("s_add_u32 s6, s6, s7")
    e(f"s_cmp_eq_u32 s{sW}, 4")
    e("s_cbranch_scc1 L_service")

    def common_consts():
        e(f"v_and_b32 v{vT0}, 1, v{vL}"); e(f"v_lshlrev_b32 v{vT0}, 4, v{vT0}")
        e(f"v_mov_b32 v{vT1}, 0xffff"); e(f"v_lshlrev_b32 v{vT0}, v{vT0}, v{vT1}")
        e(f"v_bfe_u32 v{vT1}, v{vL}, 1, 2")
        for r in range(4):
            e(f"v_cmp_eq_u32 vcc, {r}, v{vT1}")
            e(f"v_cndmask_b32 v{vM + r}, 0, v{vT0}, vcc")
        e(f"v_lshrrev_b32 v{vT0}, 4, v{vL}")
        e(f"v_and_b32 v{vT1}, 15, v{vL}")
        e(f"v_mul_u32_u24 v{vWO}, 15360, v{vT0}"); e(f"v_lshl_add_u32 v{vWO}, v{vT1}, 4, v{vWO}")
        e(f"v_mul_u32_u24 v{vOR}, 48, v{vT0}"); e(f"v_add_u32 v{vOR}, {L_O}, v{vOR}")
        e(f"v_lshlrev_b32 v{vPUB}, 5, v{vT1}"); e(f"v_lshl_add_u32 v{vPUB}, v{vT0}, 4, v{vPUB}")
        e(f"s_lshl_b32 s7, s{sB}, 7"); e(f"s_add_u32 s7, s7, s{sJB}"); e("s_mul_i32 s7, s7, 2560")
        e(f"s_lshl_b32 s8, s{sW}, 9"); e("s_add_u32 s7, s7, s8"); e(f"s_add_u32 s7, s7, {A3}")
        e(f"v_add_u32 v{vPUB}, s7, v{vPUB}")
        e(f"v_mov_b32 v{vZ}, 0"); e(f"v_mov_b32 v{vONE}, 1")
        for r in range(4):
            e(f"s_mov_b32 s{sSEL + r}, {0x07060500 + r}")
        srd(rWO, sWW + 2, 6, 7864320)
        srd(rWS, sWS, None, WS_USED)

    vm = VM(e)
    NQ, NK, NV, NO = 15, 96, 96, 12
    K0, V0, O0 = NQ, NQ + NK, NQ + NK + NV
    N = O0 + NO
    cur = [None]

    def setoff(v):
        if cur[0] != v:
            e(f"s_mov_b32 s{sOFF}, {v}")
            cur[0] = v

    def issue(i):
        d = vr(slot(i))
        if i < K0:
            g, t = divmod(i, 3)
            setoff(g * 8 * 12288)
            vm.issue(i, f"buffer_load_dwordx4 {d}, v{vWQ}, s[{rWQ}:{rWQ + 3}], s{sOFF} offen offset:{t * 128} {fl}")
        elif i < O0:
            r = rK if i < V0 else rV
            g, t = divmod(i - (K0 if i < V0 else V0), 3)
            if fb and t == 0 and i < V0 + 3 * G3:
                ga = (i - K0) // 3
                e("s_mov_b64 exec, 1")
                if ga > 0:
                    e("s_waitcnt lgkmcnt(0)")
                    e(f"v_cmp_lt_i32 vcc, {4 * (ga - 1) + bias}, v{vPR}")
                e(f"ds_add_rtn_u32 v{vPR}, v{vZ}, v{vONE} offset:{L_F + 12}")
                e("s_mov_b64 exec, -1")
            if not rot:
                setoff(g * 12288)
            elif t == 0:
                cur[0] = None
                if g == 0:
                    e(f"s_mov_b32 s{sOFF}, s{sROT}")
                else:
                    e(f"s_add_u32 s{sOFF}, s{sOFF}, 12288"); e(f"s_cmp_eq_u32 s{sOFF}, 393216")
                    e(f"s_cselect_b32 s{sOFF}, 0, s{sOFF}")
            vm.issue(i, f"buffer_load_dwordx4 {d}, v{vKV}, s[{r}:{r + 3}], s{sOFF} offen offset:{t * 128} {fl}")
        else:
            g = i - O0
            setoff((g // 4) * 5120)
            vm.issue(i, f"buffer_load_dwordx4 {d}, v{vWO}, s[{rWO}:{rWO + 3}], s{sOFF} offen offset:{(g % 4) * 1280} {fl}")

    def afrag(src):
        for r in range(4):
            e(f"v_and_b32 v{vA + r}, v{src}, v{vM + r}")

    def mfma(acc, b, first):
        c = "0" if first else vr(acc)
        e(f"v_mfma_f32_16x16x32_bf16 {vr(acc)}, {vr(vA)}, {vr(b)}, {c}")

    def partials_out(flag):
        e("s_mov_b32 exec_lo, 0x00ff00ff"); e("s_mov_b32 exec_hi, 0xff00ff00")
        for t in range(3):
            e(f"ds_write_b128 v{vPW}, {vr(vACC + 4 * t)} offset:{t * 256}")
        e("s_mov_b64 exec, 1")
        e(f"ds_add_u32 v{vZ}, v{vONE} offset:{flag}")
        e("s_mov_b64 exec, -1")

    def pcalc(g):
        s = vSC + g
        e(f"v_fma_f32 v{s}, v{s}, s{sC}, v{vNM}")
        e(f"v_exp_f32 v{s}, v{s}")
        if g == 0:
            e(f"v_mov_b32 v{vLS}, v{s}")
        else:
            e(f"v_add_f32 v{vLS}, v{vLS}, v{s}")
        e(f"v_cvt_pk_bf16_f32 v{s}, v{s}, v{s}")

    pend = []

    def red_steps(g):
        s = vSC + g
        st = [f"v_add_f32_dpp v{s}, v{s}, v{s} quad_perm:[1,0,3,2] {DPPM}",
              f"v_add_f32_dpp v{s}, v{s}, v{s} quad_perm:[2,3,0,1] {DPPM}",
              f"v_add_f32_dpp v{s}, v{s}, v{s} row_half_mirror {DPPM}"]
        st.append(f"v_mov_b32 v{vMX}, v{s}" if g == 0 else f"v_max_f32 v{vMX}, v{vMX}, v{s}")
        return st

    pdone = [0]

    def consume(i):
        vm.wait(i)
        b = slot(i)
        if i < K0:
            g, t = divmod(i, 3)
            if t == 0:
                e(f"v_lshl_or_b32 v{vT0}, v{vX + g}, 16, v{vX + g}")
                afrag(vT0)
            mfma(vACC + 4 * t, b, g == 0)
            if stamps == 2 and i in (0, 5, 11):
                stamp("w", f"wq{i}")
            if i == K0 - 1:
                partials_out(L_F)
                stamp("w", "qpart")
        elif i < V0:
            g, t = divmod(i - K0, 3)
            for r in range(4):
                e(f"v_dot2c_f32_bf16 v{vSC + g}, v{b + r}, v{vQ + 4 * t + r}")
                if r in (1, 3) and pend:
                    e(pend.pop(0))
            if t == 2:
                while pend:
                    e(pend.pop(0))
                pend.extend(red_steps(g))
            if i == V0 - 1:
                while pend:
                    e(pend.pop(0))
                e(f"v_max_f32_dpp v{vMX}, v{vMX}, v{vMX} row_ror:8 {DPPM}")
                allrows("v_max_f32", vMX, vT0)
                e(f"v_mul_f32 v{vMX}, s{sC}, v{vMX}")
                e(f"v_sub_f32 v{vNM}, 0, v{vMX}")
                for g2 in range(pk):
                    pcalc(g2)
                pdone[0] = pk
                stamp("w", "Kdone")
        elif i < O0:
            g, t = divmod(i - V0, 3)
            if t == 0:
                afrag(vSC + g)
            mfma(vACC + 4 * t, b, g == 0)
            if t < 2 and pdone[0] < 32:
                for _ in range((pk + 1 - t) // 2):
                    if pdone[0] < 32:
                        pcalc(pdone[0]); pdone[0] += 1
                if pdone[0] == 32:
                    pdone[0] = 33
                    e(f"v_add_f32_dpp v{vLS}, v{vLS}, v{vLS} row_ror:8 {DPPM}")
                    allrows("v_add_f32", vLS, vT0)
                    e(f"s_lshl_b32 s3, s{sW}, 3"); e(f"v_mov_b32 v{vT0}, s3")
                    e("s_mov_b64 exec, 1")
                    e(f"ds_write_b32 v{vT0}, v{vMX} offset:{L_ST}")
                    e(f"ds_write_b32 v{vT0}, v{vLS} offset:{L_ST + 4}")
                    e(f"ds_add_u32 v{vZ}, v{vONE} offset:{L_F + 4}")
                    e("s_mov_b64 exec, -1")
            if i == O0 - 1:
                partials_out(L_F + 8)
                stamp("w", "Vdone")

    e("s_waitcnt lgkmcnt(0)")
    if stamps == 2:
        stamp("w", "karg")
    srd(rX, sX, None, 1280)
    srd(rWQ, sWW, 4, 7864320)
    for g in range(5):
        vm.issue(("x", g), f"buffer_load_ushort v{vX + g}, v{vT3}, s[{rX}:{rX + 3}], s3 offen offset:{16 * g}")
    ni = 0
    while ni < F0:
        issue(ni); ni += 1
    if rot:
        ra, rb, rc = rot // 10000 % 100, rot // 100 % 100, rot % 100
        e(f"s_and_b32 s7, s{sHH}, 7"); e(f"s_mul_i32 s{sROT}, s7, {ra}")
        e(f"s_mul_i32 s7, s{sS}, {rb}"); e(f"s_add_u32 s{sROT}, s{sROT}, s7")
        e(f"s_lshr_b32 s7, s{sHH}, 3"); e(f"s_mul_i32 s7, s7, {rc}"); e(f"s_add_u32 s{sROT}, s{sROT}, s7")
        e(f"s_and_b32 s{sROT}, s{sROT}, 31"); e(f"s_mul_i32 s{sROT}, s{sROT}, 12288")
    srd(rK, sKV, 5, 50331648)
    srd(rV, sKV + 2, 5, 50331648)
    common_consts()
    e(f"v_lshrrev_b32 v{vT0}, 5, v{vL}"); e(f"v_mul_u32_u24 v{vPW}, 768, v{vT0}")
    e(f"v_and_b32 v{vT0}, 7, v{vL}"); e(f"v_lshl_add_u32 v{vPW}, v{vT0}, 5, v{vPW}")
    e(f"v_bfe_u32 v{vT0}, v{vL}, 4, 1"); e(f"v_lshl_add_u32 v{vPW}, v{vT0}, 4, v{vPW}")
    e(f"s_mul_i32 s7, s{sW}, 1536"); e(f"v_add_u32 v{vPW}, s7, v{vPW}")
    e(f"s_mov_b32 s{sC}, {f2u(192 ** -0.5 * math.log2(math.e)):#x}")
    for g in range(32):
        e(f"v_mov_b32 v{vSC + g}, 0")
    e("s_barrier")
    if stamps == 2:
        stamp("w", "B0")
    vm.wait(("x", 4))
    if stamps == 2:
        stamp("w", "xdone")
    nc = 0

    def Flo(i):
        return F2 if (F2 and i >= V0 + 3 * G2) else F

    def Fof(i):
        if fb and i >= K0 + 3:
            return FH2 if (FH2 and i >= V0 + 3 * G2) else FH
        return Flo(i)

    ncond = [0]

    def pace():
        j = ni - Fof(ni)
        if j >= 0:
            vm.wait(j)
        j = ni - Flo(ni)
        if fb and ni < V0 + 3 * G3 and j >= 0 and j in vm.q:
            ncond[0] += 1
            e(f"s_cbranch_vccnz L_c{ncond[0]}")
            e(f"s_waitcnt vmcnt({len(vm.q) - 1 - vm.q.index(j)}) ; cond")
            e(f"L_c{ncond[0]}:")

    if fb:
        e("s_mov_b64 vcc, 0")

    while nc < K0:
        if ni - nc <= F:
            pace(); issue(ni); ni += 1
        consume(nc); nc += 1
    def qreads():
        e(f"ds_read_b32 v{vT1}, v{vZ} offset:{L_T + 4}")
        for t in range(3):
            e(f"ds_read_b128 {vr(vQ + 4 * t)}, v{vQR} offset:{t * 128}")
        e(f"ds_read_b32 v{vT}, v{vZ} offset:{L_T}")

    while ni < K0 + R:
        if qf and ni == K0 + R - 1:
            qreads()
        pace(); issue(ni); ni += 1
    stamp("w", "ringfull")
    if qf:
        e(f"s_mov_b32 s{sCNT}, 4000000")
        e("L_q:")
        e("s_waitcnt lgkmcnt(0)")
        e(f"v_readfirstlane_b32 s3, v{vT1}")
        e(f"s_sub_u32 s{sCNT}, s{sCNT}, 1")
        e("s_cbranch_scc1 L_qx")
        e("s_cmp_lg_u32 s3, 0")
        e("s_cbranch_scc1 L_qx")
        qreads()
        e("s_branch L_q")
        e("L_qx:")
        stamp("w", "qready")
    else:
        e("s_barrier")
        stamp("w", "qready")
        qreads()
        e("s_waitcnt lgkmcnt(0)")
    while nc < O0:
        lag = ni - nc
        if ni < N:
            if lag >= R:
                consume(nc); nc += 1
            pace(); issue(ni); ni += 1
            k = 0
            while nc < O0 and nc <= ni - 1 - Fof(ni - 1) and k < 2:
                consume(nc); nc += 1; k += 1
        else:
            consume(nc); nc += 1
    while ni < N:
        pace(); issue(ni); ni += 1
    stamp("w", "woissued")
    e("L_tail:")
    e("s_barrier")
    stamp("w", "oready")
    for k in range(3):
        e(f"ds_read_b128 {vr(vQ + 4 * k)}, v{vOR} offset:{16 * k}")
    e("s_waitcnt lgkmcnt(0)")
    for g in range(12):
        afrag(vQ + g)
        vm.wait(O0 + g)
        mfma(vACC, slot(O0 + g), g == 0)
    tag4(vA, vACC)
    e("s_mov_b32 exec_hi, 0")
    e(f"buffer_store_dwordx4 {vr(vA)}, v{vPUB}, s[{rWS}:{rWS + 3}], 0 offen sc1")
    e("s_mov_b64 exec, -1")
    e(f"s_cmp_eq_u32 s{sW}, 4")
    e("s_cbranch_scc1 L_reduce")
    stamp("w", "pub")

    def stamps_out(who):
        if not stamps:
            return
        base = 0 if who == "w" else 14
        e("s_waitcnt lgkmcnt(0)")
        e("s_lshl_b32 s3, s2, 8"); e("s_add_u32 s3, s3, 0x8000000")
        e(f"s_add_u32 s4, s{sWS}, s3"); e(f"s_addc_u32 s5, s{sWS + 1}, 0")
        for i in range(nst[who]):
            e(f"v_mov_b32 v{vA}, s{sST + 2 * i}"); e(f"v_mov_b32 v{vA + 1}, s{sST + 2 * i + 1}")
            e(f"global_store_dwordx2 v{vZ}, v[{vA}:{vA + 1}], s[4:5] offset:{8 * (base + i)}")
        if who == "s" and fb:
            e(f"v_mov_b32 v{vA}, s{sAUX}"); e(f"v_mov_b32 v{vA + 1}, s{sAUX + 1}")
            e(f"global_store_dwordx2 v{vZ}, v[{vA}:{vA + 1}], s[4:5] offset:{8 * 30}")
        if who == "w":
            e("s_getreg_b32 s6, hwreg(HW_REG_XCC_ID)"); e("s_getreg_b32 s7, hwreg(HW_REG_HW_ID)")
            e(f"v_mov_b32 v{vA}, s6"); e(f"v_mov_b32 v{vA + 1}, s7")
            e(f"global_store_dwordx2 v{vZ}, v[{vA}:{vA + 1}], s[4:5] offset:{8 * 31}")

    if stamps:
        e(f"s_cmp_lg_u32 s{sW}, 0"); e("s_cbranch_scc1 L_end")
        stamps_out("w")
    e("s_endpgm")

    vD = vSC
    vE1, vE2, vP1, vP2, vP3 = 44, 45, 46, 47, 48
    vG = 8
    vS = 12
    vOP = vACC + 4
    e("L_service:")
    e("s_nop 4")
    if prio:
        e("s_setprio 3")
    e(f"v_mov_b32 v{vZ}, 0")
    for k in range(4):
        e(f"ds_write_b32 v{vZ}, v{vZ} offset:{L_F + 4 * k}")
    e(f"ds_write_b32 v{vZ}, v{vZ} offset:{L_T + 4}")
    e("s_waitcnt lgkmcnt(0)")
    e("s_barrier")
    common_consts()
    e(f"s_lshl_b32 s9, s{sB}, 7")
    e(f"buffer_load_dword v{vT}, v{vZ}, s[{rWS}:{rWS + 3}], s9 offen sc1")
    if fb:
        e(f"v_bfe_u32 v{vT0}, v{vL}, 4, 1"); e(f"v_lshlrev_b32 v{vT0}, 7, v{vT0}")
        e(f"buffer_load_dword v{vPR}, v{vT0}, s[{rWS}:{rWS + 3}], 0 offen sc1")
    srd(rOUT, sOUT, None, 2560)
    if warm:
        srd(rV, sKV + 2, 5, 50331648)
        e(f"buffer_load_dword v{vSC}, v{vZ}, s[{rOUT}:{rOUT + 3}], 0 offen")
        e(f"buffer_load_dword v{vSC + 1}, v{vZ}, s[{rV}:{rV + 3}], 0 offen nt")
        e(f"buffer_load_dword v{vSC + 2}, v{vZ}, s[{rWO}:{rWO + 3}], 0 offen nt")
    e(f"s_mov_b32 s{sSA}, 0x0c0c0400"); e(f"s_mov_b32 s{sSB}, 0x04000c0c"); e(f"s_mov_b32 s{sMASK}, 0xffffff00")
    e(f"s_lshl_b32 s7, s{sHH}, 2"); e(f"s_add_u32 s8, s7, s{sS}")
    e(f"v_lshlrev_b32 v{vE1}, 4, v{vL}")
    e(f"v_lshrrev_b32 v{vT0}, 4, v{vL}"); e(f"v_and_b32 v{vT1}, 15, v{vL}")
    e(f"v_mul_u32_u24 v{vP1}, 768, v{vT0}"); e(f"v_lshl_add_u32 v{vP1}, v{vT1}, 4, v{vP1}")
    e(f"s_mul_i32 s3, s7, 768"); e(f"s_add_u32 s3, s3, {A1}"); e(f"v_add_u32 v{vP1}, s3, v{vP1}")
    e(f"v_lshlrev_b32 v{vP3}, 10, v{vT0}")
    e(f"s_lshl_b32 s3, s7, 10"); e(f"s_add_u32 s3, s3, {A2}"); e(f"v_add_u32 v{vP3}, s3, v{vP3}")
    e(f"v_min_u32 v{vT2}, 11, v{vT1}")
    e(f"s_mul_i32 s3, s{sS}, 192"); e(f"v_lshl_add_u32 v{vP2}, v{vT2}, 4, s3"); e(f"v_add_u32 v{vP2}, v{vP2}, v{vP3}")
    e(f"v_and_b32 v{vT3}, 1, v{vT0}"); e(f"v_lshlrev_b32 v{vT3}, 1, v{vT3}")
    e(f"v_lshrrev_b32 v{vT0}, 1, v{vT0}"); e(f"v_or_b32 v{vT3}, v{vT3}, v{vT0}")
    e(f"v_lshl_add_u32 v{vMX}, v{vT1}, 2, v{vT3}")
    e(f"v_lshlrev_b32 v{vMX}, 1, v{vMX}"); e(f"v_add_u32 v{vMX}, {L_Q}, v{vMX}")
    e(f"v_lshl_add_u32 v{vLS}, v{vT2}, 2, v{vT3}")
    e(f"v_lshlrev_b32 v{vLS}, 2, v{vLS}"); e(f"v_add_u32 v{vLS}, {L_O}, v{vLS}")
    e(f"s_mul_i32 s4, s8, 768"); e(f"s_add_u32 s4, s4, {A1}")
    e(f"s_lshl_b32 s5, s8, 10"); e(f"s_add_u32 s5, s5, {A2}")
    e(f"s_add_u32 s6, s4, {DY}"); e(f"s_add_u32 s7, s5, {DY}")
    e("s_waitcnt vmcnt(0)")
    e(f"v_and_b32 v{vT0}, 0x7f7f7f7f, v{vT}"); e(f"v_add_u32 v{vT0}, 0x01010101, v{vT0}")
    e(f"v_and_b32 v{vT}, 0x80808080, v{vT}"); e(f"v_xor_b32 v{vT}, v{vT}, v{vT0}")
    e(f"ds_write_b32 v{vZ}, v{vT} offset:{L_T}")
    if fb:
        e(f"v_and_b32 v{vT0}, 0x7f7f7f7f, v{vPR}"); e(f"v_add_u32 v{vT0}, 0x01010101, v{vT0}")
        e(f"v_and_b32 v{vPR}, 0x80808080, v{vPR}"); e(f"v_xor_b32 v{vPR}, v{vPR}, v{vT0}")
        e(f"v_and_b32 v{vPR}, s{sMASK}, v{vPR}")
    if pre:
        for r in range(4):
            e(f"v_not_b32 v{vA + r}, v{vT}")
        e(f"buffer_store_dwordx4 {vr(vA)}, v{vE1}, s[{rWS}:{rWS + 3}], s5 offen")
        e("s_mov_b32 exec_hi, 0xffff")
        e(f"buffer_store_dwordx4 {vr(vA)}, v{vE1}, s[{rWS}:{rWS + 3}], s4 offen")
        e("s_mov_b32 exec_hi, -1")
    if codepf:
        pass
    ldsspin("L_f1", L_F, vT0)
    stamp("s", "s.f1")
    for p in range(8):
        e(f"ds_read_b128 {vr(vD + 4 * p)}, v{vE1} offset:{p * 768}")
    for p in range(1, 8):
        e(f"s_waitcnt lgkmcnt({7 - p})")
        for r in range(4):
            e(f"v_add_f32 v{vD + r}, v{vD + r}, v{vD + 4 * p + r}")
    tag4(vA, vD)
    publish(vA, vE1, 4, 0, 0, 0 if xp else 1)
    stamp("s", "s.qpub")
    poll("L_p1", [f"buffer_load_dwordx4 {vr(vD + 4 * t)}, v{vP1}, s[{rWS}:{rWS + 3}], s{sPO} offen offset:{256 * t} sc1" for t in range(3)],
         [vD + 4 * t for t in range(3)], vT0, lambda: publish(vA, vE1, 4, 0, 0, 1))
    if xp:
        publish(vA, vE1, 4, 0, 0, 1)
    stamp("s", "s.qpoll")
    for t in range(3):
        treduce(vD + 4 * t)
    for t in range(3):
        e(f"v_cvt_pk_bf16_f32 v{vD + 4 * t}, v{vD + 4 * t}, v{vD + 4 * t}")
    for t in range(3):
        e(f"ds_write_b16 v{vMX}, v{vD + 4 * t} offset:{128 * t}")
    if qf:
        e(f"ds_write_b32 v{vZ}, v{vONE} offset:{L_T + 4}")
    else:
        e("s_waitcnt lgkmcnt(0)")
        e("s_barrier")
    for g in range(12):
        e(f"s_mov_b32 s{sOFF}, {(g // 4) * 5120}")
        e(f"buffer_load_dwordx4 {vr(slot(O0 + g))}, v{vWO}, s[{rWO}:{rWO + 3}], s{sOFF} offen offset:{(g % 4) * 1280} {fl}")
    if fb:
        e("s_and_b32 s3, s2, 7"); e("s_mul_i32 s3, s3, 4352"); e(f"s_add_u32 s3, s3, {A4}")
        e(f"s_lshr_b32 s{sK}, s2, 3")
        e(f"v_and_b32 v{vT0}, 31, v{vL}"); e(f"v_lshl_add_u32 v{vE2}, v{vT0}, 2, s3")
        e(f"s_lshl_b32 s{sSL}, s{sK}, 2"); e(f"s_add_u32 s{sSL}, s{sSL}, s3")
        e(f"s_mov_b32 s{sN}, 0")
        e(f"s_and_b32 s3, s{sK}, {(1 << IL) - 1}"); e(f"s_add_u32 s{sTH}, s3, {TH0}")
        e(f"s_mov_b32 s{sCc}, 0"); e(f"s_mov_b64 s[{sAUX}:{sAUX + 1}], 0")
        fbspin("L_f2", 1, vD, vE2)
    else:
        ldsspin("L_f2", L_F + 4, vT0)
    stamp("s", "s.f2")
    e(f"ds_read_b128 {vr(vS)}, v{vZ} offset:{L_ST}")
    e(f"ds_read_b128 {vr(vS + 4)}, v{vZ} offset:{L_ST + 16}")
    e("s_waitcnt lgkmcnt(0)")
    e(f"v_max_f32 v{vT0}, v{vS}, v{vS + 2}"); e(f"v_max3_f32 v{vT0}, v{vT0}, v{vS + 4}, v{vS + 6}")
    for w in range(4):
        e(f"v_sub_f32 v{vG + w}, v{vS + 2 * w}, v{vT0}")
    for w in range(4):
        e(f"v_exp_f32 v{vG + w}, v{vG + w}")
    e(f"v_mul_f32 v{vD + 2}, v{vG}, v{vS + 1}")
    for w in range(1, 4):
        e(f"v_fma_f32 v{vD + 2}, v{vG + w}, v{vS + 2 * w + 1}, v{vD + 2}")
    e(f"v_and_b32 v{vD}, s{sMASK}, v{vT0}"); e(f"v_sub_f32 v{vD + 1}, v{vT0}, v{vD}"); e(f"v_mov_b32 v{vD + 3}, 0")
    tag4(vA, vD)
    publish(vA, vZ, 5, 768, 1, 0 if xp else 1)
    poll("L_p2", [f"buffer_load_dwordx4 {vr(vD)}, v{vP3}, s[{rWS}:{rWS + 3}], s{sPO} offen offset:768 sc1"], [vD], vT0,
         lambda: publish(vA, vZ, 5, 768, 1, 1))
    if xp:
        publish(vA, vZ, 5, 768, 1, 1)
    stamp("s", "s.stpoll")
    e(f"v_add_f32 v{vD}, v{vD}, v{vD + 1}")
    e(f"v_mov_b32 v{vD + 1}, v{vD}")
    allrows("v_max_f32", vD + 1, vT0)
    e(f"v_sub_f32 v{vD}, v{vD}, v{vD + 1}"); e(f"v_exp_f32 v{vD}, v{vD}")
    e(f"v_mul_f32 v{vD}, v{vD}, v{vD + 2}")
    allrows("v_add_f32", vD, vT0)
    e(f"v_rcp_f32 v{vD}, v{vD}")
    for w in range(4):
        e(f"v_sub_f32 v{vG + w}, v{vS + 2 * w}, v{vD + 1}")
    for w in range(4):
        e(f"v_exp_f32 v{vG + w}, v{vG + w}")
    for w in range(4):
        e(f"v_mul_f32 v{vG + w}, v{vG + w}, v{vD}")
    if fb:
        fbspin("L_f3", 2, vD + 4, vE2)
    else:
        ldsspin("L_f3", L_F + 8, vT0)
    stamp("s", "s.f3")
    for p in range(8):
        e(f"ds_read_b128 {vr(vD + 4 * p)}, v{vE1} offset:{p * 768}")
    for w in range(4):
        e(f"s_waitcnt lgkmcnt({6 - 2 * w})")
        for r in range(4):
            e(f"v_add_f32 v{vD + 8 * w + r}, v{vD + 8 * w + r}, v{vD + 8 * w + 4 + r}")
        for r in range(4):
            if w == 0:
                e(f"v_mul_f32 v{vD + r}, v{vG}, v{vD + r}")
            else:
                e(f"v_fma_f32 v{vD + r}, v{vG + w}, v{vD + 8 * w + r}, v{vD + r}")
    tag4(vOP, vD)
    publish(vOP, vE1, 5, 0, 0, 0 if xp else 1)
    stamp("s", "s.opub")
    poll("L_p3", [f"buffer_load_dwordx4 {vr(vD)}, v{vP2}, s[{rWS}:{rWS + 3}], s{sPO} offen sc1"], [vD], vT0,
         lambda: publish(vOP, vE1, 5, 0, 0, 1))
    stamp("s", "s.opoll")
    treduce(vD)
    e(f"v_cvt_pk_bf16_f32 v{vD}, v{vD}, v{vD}")
    e(f"ds_write_b32 v{vLS}, v{vD}")
    e("s_waitcnt lgkmcnt(0)")
    if stamps:
        for i in range(nst["s"]):
            e(f"v_mov_b32 v{vSC + 2 * i}, s{sST + 2 * i}"); e(f"v_mov_b32 v{vSC + 2 * i + 1}, s{sST + 2 * i + 1}")
    e("s_branch L_tail")
    e("L_reduce:")
    e("s_nop 4")
    if xp:
        publish(vOP, vE1, 5, 0, 0, 1)
    if stamps:
        for i in range(nst["s"]):
            e(f"v_readfirstlane_b32 s{sST + 2 * i}, v{vSC + 2 * i}"); e(f"v_readfirstlane_b32 s{sST + 2 * i + 1}, v{vSC + 2 * i + 1}")
    stamp("s", "s.pub")
    e(f"s_cmp_ge_u32 s{sJB}, 80")
    e("s_cbranch_scc1 L_sdone")
    e(f"v_lshrrev_b32 v{vT0}, 1, v{vL}"); e(f"v_mul_u32_u24 v{vP1}, 2560, v{vT0}")
    e(f"v_and_b32 v{vT1}, 1, v{vL}"); e(f"v_lshl_add_u32 v{vP1}, v{vT1}, 4, v{vP1}")
    e(f"s_mul_i32 s3, s{sB}, {128 * 2560}"); e(f"s_lshl_b32 s4, s{sJB}, 5"); e("s_add_u32 s3, s3, s4"); e(f"s_add_u32 s3, s3, {A3}")
    e(f"v_add_u32 v{vP1}, s3, v{vP1}")
    for k in range(1, 4):
        e(f"s_mov_b32 s{4 + k}, {k * 32 * 2560}")
    e(f"v_bfe_u32 v{vT0}, v{vL}, 4, 1"); e(f"v_lshlrev_b32 v{vT0}, 1, v{vT0}")
    e(f"v_lshrrev_b32 v{vT2}, 5, v{vL}"); e(f"v_or_b32 v{vT0}, v{vT0}, v{vT2}")
    e(f"v_lshl_add_u32 v{vT0}, v{vT1}, 2, v{vT0}")
    e(f"s_mul_i32 s3, s{sB}, 640"); e(f"s_lshl_b32 s4, s{sJB}, 3"); e("s_add_u32 s3, s3, s4")
    e(f"v_add_u32 v{vP2}, s3, v{vT0}"); e(f"v_lshlrev_b32 v{vP2}, 1, v{vP2}")
    poll("L_p4", [f"buffer_load_dwordx4 {vr(vD + 4 * k)}, v{vP1}, s[{rWS}:{rWS + 3}], {'0' if k == 0 else 's' + str(4 + k)} offen sc1" for k in range(4)],
         [vD + 4 * k for k in range(4)], vT0)
    stamp("s", "s.fpoll")
    for r in range(4):
        e(f"v_add_f32 v{vD + r}, v{vD + r}, v{vD + 4 + r}")
        e(f"v_add_f32 v{vD + 8 + r}, v{vD + 8 + r}, v{vD + 12 + r}")
    for r in range(4):
        e(f"v_add_f32 v{vD + r}, v{vD + r}, v{vD + 8 + r}")
    treduce(vD)
    e(f"v_add_f32_dpp v{vD}, v{vD}, v{vD} quad_perm:[2,3,0,1] {DPPM}")
    e(f"v_add_f32_dpp v{vD}, v{vD}, v{vD} row_ror:4 {DPPM}")
    e(f"v_add_f32_dpp v{vD}, v{vD}, v{vD} row_ror:8 {DPPM}")
    e(f"v_cvt_pk_bf16_f32 v{vD}, v{vD}, v{vD}")
    e("s_mov_b32 exec_lo, 0x00030003"); e("s_mov_b32 exec_hi, 0x00030003")
    e(f"buffer_store_short v{vD}, v{vP2}, s[{rOUT}:{rOUT + 3}], 0 offen")
    e(f"s_cmp_lg_u32 s{sJB}, 0")
    e("s_cbranch_scc1 L_sdone")
    e("s_mov_b64 exec, 1")
    e(f"buffer_store_dword v{vT}, v{vZ}, s[{rWS}:{rWS + 3}], s9 offen sc1")
    e("L_sdone:")
    e("s_mov_b64 exec, -1")
    if stamps:
        e("s_waitcnt vmcnt(0)")
    stamp("s", "s.end")
    stamps_out("s")
    e("L_end:")
    e("s_endpgm")

    body, nops = resolve(L)
    nv = vRING + 4 * R
    out = [HDR.rstrip("\n"),
           f"; @launch grid=(256,1,1) block=(320,1,1) lds={LDS}"]
    if stamps:
        out.append("; @stamps " + ",".join(f"{i}={n}" for i, n in names))
    out += ['.amdgcn_target "amdgcn-amd-amdhsa--gfx950"', ".text", f".globl {KN}", ".p2align 8",
            f".type {KN},@function", f"{KN}:"]
    out += [("" if t.endswith(":") else "    ") + t for t in body]
    out += ['.section .rodata,"a"', ".p2align 6", f".amdhsa_kernel {KN}",
            f"  .amdhsa_next_free_vgpr {nv}", "  .amdhsa_next_free_sgpr 102",
            f"  .amdhsa_accum_offset {(nv + 3) // 4 * 4}",
            "  .amdhsa_group_segment_fixed_size 0", "  .amdhsa_kernarg_size 104",
            "  .amdhsa_user_sgpr_count 2", "  .amdhsa_user_sgpr_kernarg_segment_ptr 1",
            "  .amdhsa_system_sgpr_workgroup_id_x 1", ".end_amdhsa_kernel"]
    return "\n".join(out) + "\n", nops


if __name__ == "__main__":
    outp = sys.argv[1]
    kw = {}
    for a in sys.argv[2:]:
        k, v = a.split("=")
        kw[k] = int(v) if v.lstrip("-").isdigit() else v.replace("+", " ")
    s, nops = gen(**kw)
    open(outp, "w").write(s)
    print(outp, "lines", s.count("\n"), "nop states", nops)
```

```python
import sys, math, struct
from asmlib import resolve, VM

KN = "concat_heads__mha_block_cached__gqa_block_cached__decode_kernel"
HDR = open("concat_heads__mha_block_cached__gqa_block_cached__decode.s.ref").read().split("; Override launch")[0]

A1 = 4096
A2 = A1 + 256 * 768
A3 = A2 + 256 * 1024
A4 = A3 + 256 * 2560
AY = A4 + 256 * 4352
DY = AY - A1
WS_USED = AY + A3 - A1
L_P = 0
L_Q = 6144
L_T = 6528
L_F = 6544
L_ST = 6560
L_O = 6592
L_X = 7360
L_H = L_X + 516
LDS = 8448

sS, sHH, sB, sH, sW, sJB = 10, 11, 12, 13, 14, 15
sX, sMASK, sCNT = 16, 18, 19
sKV, sWW, sOUT, sWS = 20, 24, 28, 30
rX, rWQ, rK, rV, rWO, rWS, rOUT = 32, 36, 40, 44, 48, 52, 56
sOFF, sC = 60, 61
sSEL = 62
sSA, sSB = 66, 67
sROT = 100
sPO = 101
rDBG = 96
sRH = 98
sMIS = 99
sST = 68

vL, vKV, vWQ, vWO = 0, 1, 2, 3
vM = 4
vQ = 8
vACC = 20
vA = 32
vT = 36
vPW, vQR, vOR, vPUB = 37, 38, 39, 40
vMX, vLS, vNM = 41, 42, 43
vX = 44
vT0, vT1, vT2, vT3 = 49, 50, 51, 52
vZ, vONE, vPR = 53, 54, 55
vSC = 56
vRING = 88


def f2u(x):
    return struct.unpack("<I", struct.pack("<f", x))[0]


def gen(tb=0, ns='', pp=0, pth=8, dry=0, cs=0, sw=0, xc=0, H=99, FW=12, dp=0, fq=1, nost=0, lazy=0, xt=0, xd=0, xg=1, xb=18, XM=64, F=6, F0=6, F2=0, G2=99, rot=0, R=27, fl="nt", stamps=0, prio=1, codepf=0, pk=2, warm=0, qf=0, fb=0, FH=8, FH2=0, G3=99, TH0=48, THL=232, ksh=1, CM=4, bias=1, cb=0, xp=0, N0=32, IL=4, pre=0, nopoll=0, skip=0, dummy=0):
    L = []
    e = L.append
    names = []
    nst = {"w": 0, "s": 0}

    def stamp(who, name):
        if not stamps or name in ns.split() or (stamps == 2 and name in ("woissued", "oready", "pub")):
            return
        i = nst[who]
        assert i < 14
        nst[who] += 1
        e(f"s_memrealtime s[{sST + 2 * i}:{sST + 2 * i + 1}]")
        names.append((i + (0 if who == "w" else 14), name))

    def srd(d, base, off, size):
        if off is None:
            e(f"s_mov_b32 s{d}, s{base}"); e(f"s_mov_b32 s{d + 1}, s{base + 1}")
            e(f"s_mov_b32 s{d + 2}, {size}")
        else:
            e(f"s_add_u32 s{d}, s{base}, s{off}"); e(f"s_addc_u32 s{d + 1}, s{base + 1}, 0")
            e(f"s_sub_u32 s{d + 2}, {size}, s{off}")
        e(f"s_mov_b32 s{d + 3}, 0x20000")

    def slot(i):
        return vRING + 4 * (i % R)

    def vr(a, n=4):
        return f"v[{a}:{a + n - 1}]"

    DPPM = "row_mask:0xf bank_mask:0xf"

    def allrows(op, v, t):
        e(f"v_mov_b32 v{t}, v{v}")
        e(f"v_permlane16_swap_b32 v{v}, v{t}")
        e(f"{op} v{v}, v{v}, v{t}")
        e(f"v_mov_b32 v{t}, v{v}")
        e(f"v_permlane32_swap_b32 v{v}, v{t}")
        e(f"{op} v{v}, v{v}, v{t}")

    def treduce(d):
        e(f"v_permlane32_swap_b32 v{d}, v{d + 1}")
        e(f"v_permlane32_swap_b32 v{d + 2}, v{d + 3}")
        e(f"v_add_f32 v{d}, v{d}, v{d + 1}")
        e(f"v_add_f32 v{d + 2}, v{d + 2}, v{d + 3}")
        e(f"v_permlane16_swap_b32 v{d}, v{d + 2}")
        e(f"v_add_f32 v{d}, v{d}, v{d + 2}")

    def tag4(dst, src):
        for r in range(4):
            e(f"v_perm_b32 v{dst + r}, v{src + r}, v{vT}, s{sSEL + r}")

    def poll(label, loads, units, tmp, dual=None):
        e(f"s_mov_b32 s{sCNT}, {1 if nopoll >> (4 - int(label[-1])) & 1 else 400000}")
        if dual:
            e(f"s_mov_b32 s{sPO}, {0 if xp else DY}")
        e(f"{label}:")
        e("s_nop 1")
        for t in loads:
            if not skip >> (4 - int(label[-1])) & 1:
                e(t)
        e(f"s_sub_u32 s{sCNT}, s{sCNT}, 1")
        if dual and xp:
            e(f"s_cmp_lg_u32 s{sCNT}, {400000 - N0}"); e(f"s_cbranch_scc1 {label}_y")
            dual()
            e(f"{label}_y:")
            e(f"s_cmp_lt_u32 s{sCNT}, {400000 - N0}"); e(f"s_cselect_b32 s3, {DY}, 0"); e(f"s_xor_b32 s{sPO}, s{sPO}, s3")
        e("s_waitcnt vmcnt(0)")
        for k, u in enumerate(units):
            e(f"v_perm_b32 v{tmp}, v{u + 1}, v{u}, s{sSA}")
            e(f"v_perm_b32 v{tmp + 1}, v{u + 3}, v{u + 2}, s{sSB}")
            e(f"v_or_b32 v{tmp}, v{tmp}, v{tmp + 1}")
            if k == 0:
                e(f"v_xor_b32 v{tmp + 2}, v{tmp}, v{vT}")
            else:
                e(f"v_xor_b32 v{tmp}, v{tmp}, v{vT}")
                e(f"v_or_b32 v{tmp + 2}, v{tmp + 2}, v{tmp}")
        e(f"v_cmp_ne_u32 vcc, 0, v{tmp + 2}")
        e(f"s_cmp_eq_u32 s{sCNT}, 0")
        e(f"s_cbranch_scc1 {label}_x")
        e(f"s_cbranch_vccnz {label}")
        e(f"{label}_x:")
        for u in units:
            for r in range(4):
                e(f"v_and_b32 v{u + r}, s{sMASK}, v{u + r}")

    def ppoll(label, load, d, res, tmp):
        e(f"s_mov_b32 s{sCNT}, 4000000")
        e(f"v_not_b32 v{d}, v{vT}")
        e(f"{label}:")
        e(load)
        e("s_bcnt1_i32_b64 s3, exec")
        e(f"s_cmp_le_u32 s3, {pth}")
        e(f"s_cbranch_scc1 {label}_f")
        e("s_waitcnt vmcnt(0)")
        e(f"{label}_f:")
        e(f"s_waitcnt vmcnt({pp - 1})")
        for r in range(4):
            e(f"v_mov_b32 v{res + r}, v{d + r}")
        e(f"v_perm_b32 v{tmp}, v{res + 1}, v{res}, s{sSA}")
        e(f"v_perm_b32 v{tmp + 1}, v{res + 3}, v{res + 2}, s{sSB}")
        e(f"v_or_b32 v{tmp}, v{tmp}, v{tmp + 1}")
        e(f"v_cmp_ne_u32 vcc, v{tmp}, v{vT}")
        e(f"s_sub_u32 s{sCNT}, s{sCNT}, 1")
        e(f"s_cbranch_scc1 {label}_x")
        e("s_and_b64 exec, exec, vcc")
        e(f"s_cbranch_scc1 {label}")
        e(f"{label}_x:")
        e("s_mov_b64 exec, -1")
        for r in range(4):
            e(f"v_and_b32 v{res + r}, s{sMASK}, v{res + r}")

    def publish(src, vaddr, sx, off, one, y):
        o = f" offset:{off}" if off else ""
        e("s_mov_b64 exec, 1" if one else "s_mov_b32 exec_hi, 0xffff")
        e(f"buffer_store_dwordx4 {vr(src)}, v{vaddr}, s[{rWS}:{rWS + 3}], s{sx + 2 * y} offen{o}" + (" sc1" if y else ""))
        e("s_mov_b64 exec, -1")

    def ldsspin(label, off, tmp):
        e(f"s_mov_b32 s{sCNT}, 4000000")
        e(f"{label}:")
        e(f"ds_read_b32 v{tmp}, v{vZ} offset:{off}")
        e(f"s_sub_u32 s{sCNT}, s{sCNT}, 1")
        e("s_waitcnt lgkmcnt(0)")
        e(f"v_readfirstlane_b32 s3, v{tmp}")
        e(f"s_cmp_eq_u32 s{sCNT}, 0")
        e(f"s_cbranch_scc1 {label}_x")
        e("s_cmp_lt_u32 s3, 4")
        e(f"s_cbranch_scc1 {label}")
        e(f"{label}_x:")

    sN, sSL, sCc, sTH, sP, sK, sAUX = 32, 33, 34, 35, 36, 37, 38
    sD, sXL, sDL, sLEAD = 40, 41, 42, 43
    vLIM, vTX = 37, 38

    def fbspin(label, k, tmp, vad):
        e(f"s_mov_b32 s{sCNT}, 4000000")
        e(f"{label}:")
        e(f"ds_read_b128 {vr(tmp)}, v{vZ} offset:{L_F}")
        e(f"s_sub_u32 s{sCNT}, s{sCNT}, 1")
        e(f"s_cbranch_scc1 {label}_x")
        if k is None:
            e(f"s_cmp_eq_u32 s{sTH}, 0x7fffffff")
            e(f"s_cbranch_scc1 {label}_x")
        e("s_waitcnt lgkmcnt(0)")
        if k is not None:
            e(f"v_readfirstlane_b32 s3, v{tmp + k}")
        e(f"v_readfirstlane_b32 s{sP}, v{tmp + 3}")
        if k is not None:
            e("s_cmp_ge_u32 s3, 4")
            e(f"s_cbranch_scc1 {label}_x")
        e(f"s_sub_i32 s{sP}, s{sP}, s{sCc}")
        e(f"s_cmp_lt_i32 s{sP}, s{sTH}")
        e(f"s_cbranch_scc1 {label}")
        e(f"s_sub_i32 s{sK}, s{sP}, s{sTH}"); e(f"s_lshr_b32 s{sK}, s{sK}, {IL}"); e(f"s_add_u32 s{sK}, s{sK}, 1")
        e(f"s_add_u32 s{sN}, s{sN}, s{sK}")
        e(f"v_and_b32 v{tmp}, s{sMASK}, v{vT}"); e(f"v_or_b32 v{tmp + 1}, s{sN}, v{tmp}")
        e(f"buffer_load_dword v{tmp + 2}, v{vad}, s[{rWS}:{rWS + 3}], 0 offen sc1")
        e("s_mov_b64 exec, 1")
        if nost:
            e(f"buffer_load_dword v{tmp + 1}, v{vZ}, s[{rWS}:{rWS + 3}], s{sSL} offen sc1")
        else:
            e(f"buffer_store_dword v{tmp + 1}, v{vZ}, s[{rWS}:{rWS + 3}], s{sSL} offen")
        e("s_mov_b64 exec, -1")
        e(f"s_lshl_b32 s{sK}, s{sK}, {IL}"); e(f"s_add_u32 s{sTH}, s{sTH}, s{sK}")
        e(f"s_cmp_gt_i32 s{sTH}, {THL + (1 << IL) - 1}"); e(f"s_cselect_b32 s{sTH}, 0x7fffffff, s{sTH}")
        e("s_waitcnt vmcnt(1)")
        e(f"v_xor_b32 v{tmp + 2}, v{tmp + 2}, v{vPR}")
        e(f"v_cmp_gt_u32 vcc, {'v' + str(vLIM) if xd else 64}, v{tmp + 2}")
        e(f"v_cndmask_b32 v{tmp + 2}, 0, v{tmp + 2}, vcc")
        for m in ("quad_perm:[1,0,3,2]", "quad_perm:[2,3,0,1]", "row_half_mirror", "row_mirror"):
            e(f"v_add_u32_dpp v{tmp + 2}, v{tmp + 2}, v{tmp + 2} {m} {DPPM}")
        e(f"v_readlane_b32 s{sK}, v{tmp + 2}, 0"); e(f"v_readlane_b32 s3, v{tmp + 2}, 16")
        e(f"s_add_u32 s{sK}, s{sK}, s3")
        if xd:
            e(f"v_readlane_b32 s{sD}, v{tmp + 2}, 48")
            e(f"s_cmp_eq_u32 s{sLEAD}, 0"); e(f"s_cbranch_scc1 {label}_n")
            e(f"v_readlane_b32 s3, v{tmp + 2}, 32")
            e(f"v_or_b32 v{tmp}, s{sK}, v{vTX}")
            e("s_lshr_b32 s3, s3, 3"); e(f"s_add_u32 s3, s3, {2048 + xb}"); e(f"s_sub_u32 s3, s3, s{sK}")
            e(f"s_min_u32 s3, s3, {2048 + XM}"); e(f"s_max_u32 s3, s3, {2048 - XM}")
            e(f"s_and_b32 s{sD}, vcc_hi, 0xff"); e(f"s_cmp_eq_u32 s{sD}, 0xff")
            e(f"s_cselect_b32 s{sD}, s3, 2048")
            e(f"v_or_b32 v{tmp + 1}, s{sD}, v{vTX}")
            e("s_mov_b64 exec, 1")
            if xt != 2:
                e(f"buffer_store_dword v{tmp}, v{vZ}, s[{rWS}:{rWS + 3}], s{sXL} offen sc1")
            e(f"buffer_store_dword v{tmp + 1}, v{vZ}, s[{rWS}:{rWS + 3}], s{sDL} offen")
            e("s_mov_b64 exec, -1")
            e(f"{label}_n:")
            e(f"s_cmp_eq_u32 s{sD}, 0"); e(f"s_cselect_b32 s{sD}, 2048, s{sD}")
            e(f"s_sub_i32 s{sD}, s{sD}, 2048")
            if xg:
                e(f"s_ashr_i32 s{sD}, s{sD}, {xg}")
            e(f"s_add_i32 s{sK}, s{sK}, s{sD}")
        if tb:
            e(f"s_bitcmp1_b32 s2, 0"); e(f"s_cselect_b32 s3, {tb}, {-tb}"); e(f"s_add_i32 s{sK}, s{sK}, s3")
        if IL > 3:
            e(f"s_lshl_b32 s{sK}, s{sK}, {IL - 3}")
        e(f"s_lshl_b32 s3, s{sP}, 2")
        e(f"s_sub_i32 s3, s{sK}, s3")
        e(f"s_add_u32 s3, s3, {4 * TH0 - 2 + (2 << ksh) + cb}")
        e(f"s_ashr_i32 s3, s3, {2 + ksh}")
        e(f"s_min_i32 s3, s3, {CM}"); e(f"s_max_i32 s3, s3, {-CM}")
        e(f"s_sub_i32 s{sK}, s3, s{sCc}"); e(f"s_mov_b32 s{sCc}, s3")
        e(f"v_mov_b32 v{tmp}, s{sK}")
        e("s_mov_b64 exec, 1")
        e(f"ds_add_u32 v{vZ}, v{tmp} offset:{L_F + 12}")
        e("s_mov_b64 exec, -1")
        if stamps:
            e(f"s_lshl_b64 s[{sAUX}:{sAUX + 1}], s[{sAUX}:{sAUX + 1}], 5")
            e(f"s_and_b32 s{sAUX + 1}, s{sAUX + 1}, 0xfffffff")
            e("s_add_u32 s3, s3, 16"); e(f"s_or_b32 s{sAUX}, s{sAUX}, s3")
        e(f"s_branch {label}")
        e(f"{label}_x:")

    e("s_cmp_ge_u32 s2, 256"); e("s_cbranch_scc1 L_end")
    if stamps:
        e(f"s_memrealtime s[{sST}:{sST + 1}]")
        nst["w"] = 1; nst["s"] = 1
        names.append((0, "start")); names.append((14, "s.start"))
    e("s_and_b32 s3, s2, 7"); e("s_lshr_b32 s4, s2, 3"); e(f"s_and_b32 s{sS}, s4, 3")
    e("s_lshr_b32 s4, s4, 2"); e("s_lshl_b32 s4, s4, 3"); e(f"s_add_u32 s{sHH}, s4, s3")
    e(f"s_lshr_b32 s{sB}, s{sHH}, 5"); e(f"s_mul_i32 s7, s{sB}, 40")
    e("s_add_u32 s8, s0, s7"); e("s_addc_u32 s9, s1, 0")
    e(f"s_load_dwordx4 s[{sWW}:{sWW + 3}], s[8:9], 24")
    e(f"s_load_dwordx2 s[{sX}:{sX + 1}], s[8:9], 0")
    e(f"s_load_dwordx4 s[{sKV}:{sKV + 3}], s[8:9], 8")
    e(f"s_load_dwordx2 s[{sOUT}:{sOUT + 1}], s[0:1], 80")
    e(f"s_load_dwordx2 s[{sWS}:{sWS + 1}], s[0:1], 96")
    e(f"v_lshrrev_b32 v{vT0}, 6, v0")
    e(f"v_and_b32 v{vL}, 63, v0")
    e(f"v_readfirstlane_b32 s{sW}, v{vT0}")
    e(f"s_and_b32 s{sH}, s{sHH}, 31")
    e(f"s_lshl_b32 s{sJB}, s{sH}, 2"); e(f"s_add_u32 s{sJB}, s{sJB}, s{sS}")
    e(f"v_lshrrev_b32 v{vT0}, 3, v{vL}")
    e(f"v_and_b32 v{vT1}, 7, v{vL}")
    e(f"v_lshlrev_b32 v{vT2}, 4, v{vT1}")
    e(f"v_mul_u32_u24 v{vWQ}, 12288, v{vT0}"); e(f"v_add_u32 v{vWQ}, v{vWQ}, v{vT2}")
    e(f"v_mul_u32_u24 v{vKV}, 384, v{vT0}"); e(f"v_add_u32 v{vKV}, v{vKV}, v{vT2}")
    e(f"v_lshlrev_b32 v{vT3}, 1, v{vT0}")
    e(f"v_add_u32 v{vQR}, {L_Q}, v{vT2}")
    e(f"s_mul_i32 s3, s{sS}, 160"); e(f"s_mul_i32 s4, s{sW}, 40"); e("s_add_u32 s3, s3, s4")
    e("s_mul_i32 s4, s3, 12288"); e(f"s_mul_i32 s5, s{sH}, 384"); e("s_add_u32 s4, s4, s5")
    e("s_lshl_b32 s3, s3, 1")
    e(f"s_mul_i32 s5, s{sH}, 1572864"); e(f"s_mul_i32 s6, s{sS}, 393216"); e("s_add_u32 s5, s5, s6")
    e(f"s_mul_i32 s6, s{sW}, 3072"); e("s_add_u32 s5, s5, s6")
    if cs:
        a, b_, c_ = sSEL, sSEL + 1, sSEL + 2
        e(f"s_and_b32 s{a}, s{sS}, 1"); e(f"s_mul_i32 s{b_}, s{a}, 3"); e(f"s_bfe_u32 s{c_}, s{sW}, 0x10001"); e(f"s_add_u32 s{b_}, s{b_}, s{c_}")
        e(f"s_and_b32 s{c_}, s{sW}, 1"); e(f"s_cmp_eq_u32 s{sW}, 0"); e(f"s_cselect_b32 s{b_}, 2, s{b_}"); e(f"s_cselect_b32 s{sRH}, s{a}, s{c_}")
        e(f"s_lshr_b32 s{a}, s{sS}, 1"); e(f"s_mul_i32 s{a}, s{a}, 5"); e(f"s_add_u32 s{b_}, s{b_}, s{a}"); e(f"s_lshl_b32 s{b_}, s{b_}, 7")
        e(f"s_mul_i32 s6, s{sH}, 245760"); e(f"s_add_u32 s6, s6, s{b_}")
        e(f"s_mul_i32 s{a}, s{sRH}, 122880"); e(f"s_add_u32 s6, s6, s{a}")
    else:
        e(f"s_mul_i32 s6, s{sJB}, 61440"); e(f"s_lshl_b32 s7, s{sW}, 8"); e("s_add_u32 s6, s6, s7")
    e(f"s_cmp_eq_u32 s{sW}, 4")
    e("s_cbranch_scc1 L_service")

    def common_consts():
        e(f"v_and_b32 v{vT0}, 1, v{vL}"); e(f"v_lshlrev_b32 v{vT0}, 4, v{vT0}")
        e(f"v_mov_b32 v{vT1}, 0xffff"); e(f"v_lshlrev_b32 v{vT0}, v{vT0}, v{vT1}")
        e(f"v_bfe_u32 v{vT1}, v{vL}, 1, 2")
        for r in range(4):
            e(f"v_cmp_eq_u32 vcc, {r}, v{vT1}")
            e(f"v_cndmask_b32 v{vM + r}, 0, v{vT0}, vcc")
        if cs:
            e(f"v_lshrrev_b32 v{vT0}, 3, v{vL}"); e(f"v_and_b32 v{vT1}, 7, v{vL}")
            e(f"v_mul_u32_u24 v{vWO}, 15360, v{vT0}"); e(f"v_lshl_add_u32 v{vWO}, v{vT1}, 4, v{vWO}")
            e(f"s_mul_i32 s7, s{sRH}, 384"); e(f"s_add_u32 s7, s7, {L_O}")
            e(f"v_mul_u32_u24 v{vOR}, 48, v{vT0}"); e(f"v_add_u32 v{vOR}, s7, v{vOR}")
            e(f"v_bfe_u32 v{vT0}, v{vL}, 4, 1")
            e(f"v_lshlrev_b32 v{vPUB}, 5, v{vT1}"); e(f"v_lshl_add_u32 v{vPUB}, v{vT0}, 4, v{vPUB}")
            e(f"s_bfe_u32 s8, s{sW}, 0x10001")
            e(f"s_lshl_b32 s7, s{sS}, 1"); e("s_add_u32 s7, s7, s8"); e("s_lshl_b32 s7, s7, 5"); e(f"s_add_u32 s7, s7, s{sH}")
            e(f"s_lshr_b32 s9, s{sS}, 1"); e("s_lshl_b32 s9, s9, 5"); e(f"s_add_u32 s9, s9, s{sH}")
            e("s_lshl_b32 s9, s9, 1"); e(f"s_add_u32 s9, s9, s{sRH}"); e("s_add_u32 s9, s9, 256")
            e(f"s_cmp_eq_u32 s{sW}, 0"); e("s_cselect_b32 s7, s9, s7")
            e(f"s_mul_i32 s9, s{sB}, 384"); e("s_add_u32 s7, s7, s9"); e("s_lshl_b32 s7, s7, 8"); e(f"s_add_u32 s7, s7, {A3}")
            e(f"v_add_u32 v{vPUB}, s7, v{vPUB}")
        else:
            e(f"v_lshrrev_b32 v{vT0}, 4, v{vL}")
            e(f"v_and_b32 v{vT1}, 15, v{vL}")
            e(f"v_mul_u32_u24 v{vWO}, 15360, v{vT0}"); e(f"v_lshl_add_u32 v{vWO}, v{vT1}, 4, v{vWO}")
            e(f"v_mul_u32_u24 v{vOR}, 48, v{vT0}"); e(f"v_add_u32 v{vOR}, {L_O}, v{vOR}")
            e(f"v_lshlrev_b32 v{vPUB}, 5, v{vT1}"); e(f"v_lshl_add_u32 v{vPUB}, v{vT0}, 4, v{vPUB}")
            e(f"s_lshl_b32 s7, s{sB}, 7"); e(f"s_add_u32 s7, s7, s{sJB}"); e("s_mul_i32 s7, s7, 2560")
            e(f"s_lshl_b32 s8, s{sW}, 9"); e("s_add_u32 s7, s7, s8"); e(f"s_add_u32 s7, s7, {A3}")
            e(f"v_add_u32 v{vPUB}, s7, v{vPUB}")
        e(f"v_mov_b32 v{vZ}, 0"); e(f"v_mov_b32 v{vONE}, 1")
        for r in range(4):
            e(f"s_mov_b32 s{sSEL + r}, {0x07060500 + r}")
        srd(rWO, sWW + 2, 6, 7864320)
        srd(rWS, sWS, None, WS_USED)
        if cs:
            srd(rOUT, sOUT, None, 2560)

    vXA = vNM

    def pair_addr():
        e(f"s_bfe_u32 s3, s{sW}, 0x10001"); e("s_lshl_b32 s3, s3, 8"); e(f"s_add_u32 s3, s3, {L_X}")
        e(f"v_and_b32 v{vXA}, 255, v{vPUB}"); e(f"v_add_u32 v{vXA}, s3, v{vXA}")

    vm = VM(e)
    NQ, NK, NV, NO = 15, 96, 96, 12
    K0, V0, O0 = NQ, NQ + NK, NQ + NK + NV
    N = O0 + NO
    cur = [None]

    def setoff(v):
        if cur[0] != v:
            e(f"s_mov_b32 s{sOFF}, {v}")
            cur[0] = v

    def issue(i):
        d = vr(slot(i))
        if i < K0:
            g, t = divmod(i, 3)
            setoff(g * 8 * 12288)
            vm.issue(i, f"buffer_load_dwordx4 {d}, v{vWQ}, s[{rWQ}:{rWQ + 3}], s{sOFF} offen offset:{t * 128} {fl}")
        elif i < O0:
            r = rK if i < V0 else rV
            g, t = divmod(i - (K0 if i < V0 else V0), 3)
            if fb and t == 0 and i < V0 + 3 * G3:
                ga = (i - K0) // 3
                e("s_mov_b64 exec, 1")
                if ga > 0:
                    e("s_waitcnt lgkmcnt(0)")
                    e(f"v_cmp_lt_i32 vcc, {4 * (ga - 1) + bias}, v{vPR}")
                e(f"ds_add_rtn_u32 v{vPR}, v{vZ}, v{vONE} offset:{L_F + 12}")
                e("s_mov_b64 exec, -1")
            if not rot:
                setoff(g * 12288)
            elif t == 0:
                cur[0] = None
                if g == 0:
                    e(f"s_mov_b32 s{sOFF}, s{sROT}")
                else:
                    e(f"s_add_u32 s{sOFF}, s{sOFF}, 12288"); e(f"s_cmp_eq_u32 s{sOFF}, 393216")
                    e(f"s_cselect_b32 s{sOFF}, 0, s{sOFF}")
            vm.issue(i, f"buffer_load_dwordx4 {d}, v{vKV}, s[{r}:{r + 3}], s{sOFF} offen offset:{t * 128} {fl}")
        else:
            g = i - O0
            setoff((g // 4) * 5120)
            vm.issue(i, f"buffer_load_dwordx4 {d}, v{vWO}, s[{rWO}:{rWO + 3}], s{sOFF} offen offset:{(g % 4) * 1280} {fl}")

    def afrag(src):
        for r in range(4):
            e(f"v_and_b32 v{vA + r}, v{src}, v{vM + r}")

    def mfma(acc, b, first):
        c = "0" if first else vr(acc)
        e(f"v_mfma_f32_16x16x32_bf16 {vr(acc)}, {vr(vA)}, {vr(b)}, {c}")

    def partials_out(flag):
        e("s_mov_b32 exec_lo, 0x00ff00ff"); e("s_mov_b32 exec_hi, 0xff00ff00")
        for t in range(3):
            e(f"ds_write_b128 v{vPW}, {vr(vACC + 4 * t)} offset:{t * 256}")
        e("s_mov_b64 exec, 1")
        e(f"ds_add_u32 v{vZ}, v{vONE} offset:{flag}")
        e("s_mov_b64 exec, -1")

    def pcalc(g):
        s = vSC + g
        e(f"v_fma_f32 v{s}, v{s}, s{sC}, v{vNM}")
        e(f"v_exp_f32 v{s}, v{s}")
        if g == 0:
            e(f"v_mov_b32 v{vLS}, v{s}")
        else:
            e(f"v_add_f32 v{vLS}, v{vLS}, v{s}")
        e(f"v_cvt_pk_bf16_f32 v{s}, v{s}, v{s}")

    pend = []

    def red_steps(g):
        s = vSC + g
        st = [f"v_add_f32_dpp v{s}, v{s}, v{s} quad_perm:[1,0,3,2] {DPPM}",
              f"v_add_f32_dpp v{s}, v{s}, v{s} quad_perm:[2,3,0,1] {DPPM}",
              f"v_add_f32_dpp v{s}, v{s}, v{s} row_half_mirror {DPPM}"]
        st.append(f"v_mov_b32 v{vMX}, v{s}" if g == 0 else f"v_max_f32 v{vMX}, v{vMX}, v{s}")
        return st

    pdone = [0]

    def consume(i):
        vm.wait(i)
        b = slot(i)
        if i < K0:
            g, t = divmod(i, 3)
            if t == 0:
                e(f"v_lshl_or_b32 v{vT0}, v{vX + g}, 16, v{vX + g}")
                afrag(vT0)
            mfma(vACC + 4 * t, b, g == 0)
            if stamps == 2 and i in (0, 5, 11):
                stamp("w", f"wq{i}")
            if i == K0 - 1:
                partials_out(L_F)
                stamp("w", "qpart")
        elif i < V0:
            g, t = divmod(i - K0, 3)
            for r in range(4):
                e(f"v_dot2c_f32_bf16 v{vSC + g}, v{b + r}, v{vQ + 4 * t + r}")
                if r in (1, 3) and pend:
                    e(pend.pop(0))
            if t == 2:
                while pend:
                    e(pend.pop(0))
                pend.extend(red_steps(g))
            if i == V0 - 1:
                while pend:
                    e(pend.pop(0))
                e(f"v_max_f32_dpp v{vMX}, v{vMX}, v{vMX} row_ror:8 {DPPM}")
                allrows("v_max_f32", vMX, vT0)
                e(f"v_mul_f32 v{vMX}, s{sC}, v{vMX}")
                e(f"v_sub_f32 v{vNM}, 0, v{vMX}")
                for g2 in range(pk):
                    pcalc(g2)
                pdone[0] = pk
                stamp("w", "Kdone")
        elif i < O0:
            g, t = divmod(i - V0, 3)
            if t == 0:
                afrag(vSC + g)
            mfma(vACC + 4 * t, b, g == 0)
            if t < 2 and pdone[0] < 32:
                for _ in range((pk + 1 - t) // 2):
                    if pdone[0] < 32:
                        pcalc(pdone[0]); pdone[0] += 1
                if pdone[0] == 32:
                    pdone[0] = 33
                    e(f"v_add_f32_dpp v{vLS}, v{vLS}, v{vLS} row_ror:8 {DPPM}")
                    allrows("v_add_f32", vLS, vT0)
                    e(f"s_lshl_b32 s3, s{sW}, 3"); e(f"v_mov_b32 v{vT0}, s3")
                    e("s_mov_b64 exec, 1")
                    e(f"ds_write_b32 v{vT0}, v{vMX} offset:{L_ST}")
                    e(f"ds_write_b32 v{vT0}, v{vLS} offset:{L_ST + 4}")
                    e(f"ds_add_u32 v{vZ}, v{vONE} offset:{L_F + 4}")
                    e("s_mov_b64 exec, -1")
            if i == O0 - 1:
                partials_out(L_F + 8)
                stamp("w", "Vdone")

    e("s_waitcnt lgkmcnt(0)")
    if stamps == 2:
        stamp("w", "karg")
    srd(rX, sX, None, 1280)
    srd(rWQ, sWW, 4, 7864320)
    for g in range(5):
        vm.issue(("x", g), f"buffer_load_ushort v{vX + g}, v{vT3}, s[{rX}:{rX + 3}], s3 offen offset:{16 * g}")
    ni = 0
    while ni < F0:
        issue(ni); ni += 1
    if rot:
        ra, rb, rc = rot // 10000 % 100, rot // 100 % 100, rot % 100
        e(f"s_and_b32 s7, s{sHH}, 7"); e(f"s_mul_i32 s{sROT}, s7, {ra}")
        e(f"s_mul_i32 s7, s{sS}, {rb}"); e(f"s_add_u32 s{sROT}, s{sROT}, s7")
        e(f"s_lshr_b32 s7, s{sHH}, 3"); e(f"s_mul_i32 s7, s7, {rc}"); e(f"s_add_u32 s{sROT}, s{sROT}, s7")
        e(f"s_and_b32 s{sROT}, s{sROT}, 31"); e(f"s_mul_i32 s{sROT}, s{sROT}, 12288")
    srd(rK, sKV, 5, 50331648)
    srd(rV, sKV + 2, 5, 50331648)
    common_consts()
    e(f"v_lshrrev_b32 v{vT0}, 5, v{vL}"); e(f"v_mul_u32_u24 v{vPW}, 768, v{vT0}")
    e(f"v_and_b32 v{vT0}, 7, v{vL}"); e(f"v_lshl_add_u32 v{vPW}, v{vT0}, 5, v{vPW}")
    e(f"v_bfe_u32 v{vT0}, v{vL}, 4, 1"); e(f"v_lshl_add_u32 v{vPW}, v{vT0}, 4, v{vPW}")
    e(f"s_mul_i32 s7, s{sW}, 1536"); e(f"v_add_u32 v{vPW}, s7, v{vPW}")
    e(f"s_mov_b32 s{sC}, {f2u(192 ** -0.5 * math.log2(math.e)):#x}")
    for g in range(32):
        e(f"v_mov_b32 v{vSC + g}, 0")
    e("s_barrier")
    if stamps == 2:
        stamp("w", "B0")
    vm.wait(("x", 4))
    if stamps == 2:
        stamp("w", "xdone")
    nc = 0

    def Flo(i):
        return F2 if (F2 and i >= V0 + 3 * G2) else F

    def Fof(i):
        if fb and i >= K0 + 3:
            return FH2 if (FH2 and i >= V0 + 3 * G2) else FH
        return Flo(i)

    ncond = [0]

    def pace():
        j = ni - Fof(ni)
        if j >= 0:
            vm.wait(j)
        j = ni - Flo(ni)
        if fb and ni < V0 + 3 * G3 and j >= 0 and j in vm.q:
            ncond[0] += 1
            e(f"s_cbranch_vccnz L_c{ncond[0]}")
            e(f"s_waitcnt vmcnt({len(vm.q) - 1 - vm.q.index(j)}) ; cond")
            e(f"L_c{ncond[0]}:")

    if fb:
        e("s_mov_b64 vcc, 0")

    while nc < K0:
        if ni - nc <= F:
            pace(); issue(ni); ni += 1
        consume(nc); nc += 1
    def qreads():
        e(f"ds_read_b32 v{vT1}, v{vZ} offset:{L_T + 4}")
        for t in range(3):
            e(f"ds_read_b128 {vr(vQ + 4 * t)}, v{vQR} offset:{t * 128}")
        e(f"ds_read_b32 v{vT}, v{vZ} offset:{L_T}")

    while ni < K0 + R:
        if qf and ni == K0 + R - 1:
            qreads()
        pace(); issue(ni); ni += 1
    stamp("w", "ringfull")
    if qf:
        e(f"s_mov_b32 s{sCNT}, 4000000")
        e("L_q:")
        e("s_waitcnt lgkmcnt(0)")
        e(f"v_readfirstlane_b32 s3, v{vT1}")
        e(f"s_sub_u32 s{sCNT}, s{sCNT}, 1")
        e("s_cbranch_scc1 L_qx")
        e("s_cmp_lg_u32 s3, 0")
        e("s_cbranch_scc1 L_qx")
        qreads()
        e("s_branch L_q")
        e("L_qx:")
        stamp("w", "qready")
    else:
        e("s_barrier")
        stamp("w", "qready")
        qreads()
        e("s_waitcnt lgkmcnt(0)")
    NH = min(N, O0 + H)
    while nc < O0:
        lag = ni - nc
        if ni < NH:
            if lag >= R:
                consume(nc); nc += 1
            pace(); issue(ni); ni += 1
            k = 0
            while nc < O0 and nc <= ni - 1 - Fof(ni - 1) and k < 2:
                consume(nc); nc += 1; k += 1
        else:
            consume(nc); nc += 1
    while ni < NH:
        pace(); issue(ni); ni += 1
    if cs:
        pair_addr()
    if ni < N:
        e(f"s_mov_b32 s{sCNT}, 4000000")
        e("L_h:")
        e(f"ds_read_b32 v{vT0}, v{vZ} offset:{L_H}")
        e(f"s_sub_u32 s{sCNT}, s{sCNT}, 1")
        e("s_cbranch_scc1 L_hx")
        e("s_waitcnt lgkmcnt(0)")
        e(f"v_readfirstlane_b32 s3, v{vT0}")
        e("s_cmp_eq_u32 s3, 0")
        e("s_cbranch_scc1 L_h")
        e("L_hx:")
    while ni < N:
        if ni - FW >= 0:
            vm.wait(ni - FW)
        issue(ni); ni += 1
    stamp("w", "woissued")
    e("L_tail:")
    e("s_barrier")
    stamp("w", "oready")
    for k in range(3):
        e(f"ds_read_b128 {vr(vQ + 4 * k)}, v{vOR} offset:{16 * k}")
    e("s_waitcnt lgkmcnt(0)")
    if cs:
        AB = (vA, vT0 - 1)
        for g in range(13):
            if g < 12:
                for r in range(4):
                    e(f"v_and_b32 v{AB[g & 1] + r}, v{vQ + g}, v{vM + r}")
            if g:
                vm.wait(O0 + g - 1)
                e(f"v_mfma_f32_16x16x32_bf16 {vr(vACC)}, {vr(AB[(g - 1) & 1])}, {vr(slot(O0 + g - 1))}, {vr(vACC) if g > 1 else 0}")
        for r in range(4):
            e(f"v_permlane32_swap_b32 v{vACC + r}, v{vQ + r}")
        for r in range(4):
            e(f"v_add_f32_dpp v{vACC + r}, v{vQ + r}, v{vACC + r} row_ror:8 {DPPM}")
        e(f"s_cmp_eq_u32 s{sW}, 0"); e("s_cbranch_scc1 L_pub")
        e(f"s_bitcmp1_b32 s{sW}, 0"); e("s_cbranch_scc1 L_fin")
        e("s_mov_b64 exec, 0x00ff00ff")
        e(f"ds_write_b128 v{vXA}, {vr(vACC)}")
        e("s_mov_b64 exec, 1")
        e(f"ds_write_b32 v{vXA}, v{vONE} offset:512")
        e("s_mov_b64 exec, -1")
        e(f"s_cmp_eq_u32 s{sW}, 4")
        e("s_cbranch_scc1 L_reduce")
        e("s_endpgm")
        e("L_fin:")
        e(f"s_mov_b32 s{sCNT}, 4000000")
        e("L_fs:")
        e(f"ds_read_b32 v{vT0}, v{vXA} offset:512")
        e(f"ds_read_b128 {vr(vQ)}, v{vXA}")
        e(f"s_sub_u32 s{sCNT}, s{sCNT}, 1")
        e("s_cbranch_scc1 L_fx")
        e("s_waitcnt lgkmcnt(1)")
        e(f"v_readfirstlane_b32 s3, v{vT0}")
        e("s_cmp_eq_u32 s3, 0")
        e("s_cbranch_scc1 L_fs")
        e("L_fx:")
        e("s_waitcnt lgkmcnt(0)")
        for r in range(4):
            e(f"v_add_f32 v{vACC + r}, v{vACC + r}, v{vQ + r}")
        e("L_pub:")
        e("s_nop 1")
        tag4(vA, vACC)
        e("s_mov_b64 exec, 0x00ff00ff")
    else:
        for g in range(12):
            afrag(vQ + g)
            vm.wait(O0 + g)
            mfma(vACC, slot(O0 + g), g == 0)
        tag4(vA, vACC)
        e("s_mov_b32 exec_hi, 0")
    if fq > 1:
        e(f"v_and_b32 v{vT0}, 15, v{vL}"); e(f"s_lshl_b32 s3, s{sW}, 4"); e(f"v_add_u32 v{vT0}, s3, v{vT0}")
        e(f"s_and_b32 s3, s{sS}, {fq - 1}"); e(f"s_mul_i32 s3, s3, {80 // fq}")
        e(f"v_subrev_u32 v{vT0}, s3, v{vT0}")
        e(f"v_mov_b32 v{vT1}, {80 // fq}")
        e(f"v_cmp_lt_u32 vcc, v{vT0}, v{vT1}")
        e("s_and_b64 exec, exec, vcc")
    e(f"buffer_store_dwordx4 {vr(vA)}, v{vPUB}, s[{rWS}:{rWS + 3}], 0 offen sc1")
    e("s_mov_b64 exec, -1")
    if not cs:
        e(f"s_cmp_eq_u32 s{sW}, 4")
        e("s_cbranch_scc1 L_reduce")
    stamp("w", "pub")

    def stamps_out(who):
        if not stamps:
            return
        base = 0 if who == "w" else 14
        e("s_waitcnt lgkmcnt(0)")
        e("s_lshl_b32 s3, s2, 8"); e("s_add_u32 s3, s3, 0x8000000")
        e(f"s_add_u32 s4, s{sWS}, s3"); e(f"s_addc_u32 s5, s{sWS + 1}, 0")
        for i in range(nst[who]):
            e(f"v_mov_b32 v{vA}, s{sST + 2 * i}"); e(f"v_mov_b32 v{vA + 1}, s{sST + 2 * i + 1}")
            e(f"global_store_dwordx2 v{vZ}, v[{vA}:{vA + 1}], s[4:5] offset:{8 * (base + i)}")
        if who == "s" and fb:
            e(f"v_mov_b32 v{vA}, s{sAUX}"); e(f"v_mov_b32 v{vA + 1}, s{sAUX + 1}")
            e(f"global_store_dwordx2 v{vZ}, v[{vA}:{vA + 1}], s[4:5] offset:{8 * 30}")
        if who == "w":
            e("s_getreg_b32 s6, hwreg(HW_REG_XCC_ID)"); e("s_getreg_b32 s7, hwreg(HW_REG_HW_ID)")
            e(f"v_mov_b32 v{vA}, s6"); e(f"v_mov_b32 v{vA + 1}, s7")
            e(f"global_store_dwordx2 v{vZ}, v[{vA}:{vA + 1}], s[4:5] offset:{8 * 31}")

    if stamps:
        e(f"s_cmp_lg_u32 s{sW}, {sw}"); e("s_cbranch_scc1 L_end")
        stamps_out("w")
    e("s_endpgm")

    vD = vSC
    vE1, vE2, vP1, vP2, vP3 = 44, 45, 46, 47, 48
    vG = 8
    vS = 12
    vOP = vACC + 4
    vR1, vR2 = slot(N + 2), slot(N + 2) + 1
    vQY, vSY = slot(N), slot(N + 1)
    e("L_service:")
    e("s_nop 4")
    if prio:
        e("s_setprio 3")
    e(f"v_mov_b32 v{vZ}, 0")
    for k in range(4):
        e(f"ds_write_b32 v{vZ}, v{vZ} offset:{L_F + 4 * k}")
    e(f"ds_write_b32 v{vZ}, v{vZ} offset:{L_T + 4}")
    for o in (L_X + 512, L_X + 768, L_H):
        e(f"ds_write_b32 v{vZ}, v{vZ} offset:{o}")
    e("s_waitcnt lgkmcnt(0)")
    e("s_barrier")
    common_consts()
    e(f"s_lshl_b32 s9, s{sB}, 7")
    e(f"buffer_load_dword v{vT}, v{vZ}, s[{rWS}:{rWS + 3}], s9 offen sc1")
    if fb:
        e(f"v_lshrrev_b32 v{vT0}, 4, v{vL}"); e(f"v_cmp_eq_u32 vcc, 1, v{vT0}")
        e(f"v_mov_b32 v{vT0}, 128"); e(f"v_cndmask_b32 v{vT0}, 0, v{vT0}, vcc")
        e(f"buffer_load_dword v{vPR}, v{vT0}, s[{rWS}:{rWS + 3}], 0 offen sc1")
    if not cs:
        srd(rOUT, sOUT, None, 2560)
    if warm:
        srd(rV, sKV + 2, 5, 50331648)
        e(f"buffer_load_dword v{vSC}, v{vZ}, s[{rOUT}:{rOUT + 3}], 0 offen")
        e(f"buffer_load_dword v{vSC + 1}, v{vZ}, s[{rV}:{rV + 3}], 0 offen nt")
        e(f"buffer_load_dword v{vSC + 2}, v{vZ}, s[{rWO}:{rWO + 3}], 0 offen nt")
    e(f"s_mov_b32 s{sSA}, 0x0c0c0400"); e(f"s_mov_b32 s{sSB}, 0x04000c0c"); e(f"s_mov_b32 s{sMASK}, 0xffffff00")
    e(f"s_lshl_b32 s7, s{sHH}, 2"); e(f"s_add_u32 s8, s7, s{sS}")
    e(f"v_lshlrev_b32 v{vE1}, 4, v{vL}")
    e(f"v_lshrrev_b32 v{vT0}, 4, v{vL}"); e(f"v_and_b32 v{vT1}, 15, v{vL}")
    e(f"v_mul_u32_u24 v{vP1}, 768, v{vT0}"); e(f"v_lshl_add_u32 v{vP1}, v{vT1}, 4, v{vP1}")
    e(f"s_mul_i32 s3, s7, 768"); e(f"s_add_u32 s3, s3, {A1}"); e(f"v_add_u32 v{vP1}, s3, v{vP1}")
    e(f"v_lshlrev_b32 v{vP3}, 10, v{vT0}")
    e(f"s_lshl_b32 s3, s7, 10"); e(f"s_add_u32 s3, s3, {A2}"); e(f"v_add_u32 v{vP3}, s3, v{vP3}")
    if cs:
        e(f"v_mov_b32 v{vT2}, v{vT1}")
        e(f"v_lshl_add_u32 v{vP2}, v{vT2}, 4, v{vP3}")
    else:
        e(f"v_min_u32 v{vT2}, 11, v{vT1}")
        e(f"s_mul_i32 s3, s{sS}, 192"); e(f"v_lshl_add_u32 v{vP2}, v{vT2}, 4, s3"); e(f"v_add_u32 v{vP2}, v{vP2}, v{vP3}")
    e(f"v_and_b32 v{vT3}, 1, v{vT0}"); e(f"v_lshlrev_b32 v{vT3}, 1, v{vT3}")
    e(f"v_lshrrev_b32 v{vT0}, 1, v{vT0}"); e(f"v_or_b32 v{vT3}, v{vT3}, v{vT0}")
    e(f"v_lshl_add_u32 v{vMX}, v{vT1}, 2, v{vT3}")
    e(f"v_lshlrev_b32 v{vMX}, 1, v{vMX}"); e(f"v_add_u32 v{vMX}, {L_Q}, v{vMX}")
    e(f"v_lshl_add_u32 v{vLS}, v{vT2}, 2, v{vT3}")
    e(f"v_lshlrev_b32 v{vLS}, 2, v{vLS}"); e(f"v_add_u32 v{vLS}, {L_O}, v{vLS}")
    if cs:
        pair_addr()
        e(f"s_lshr_b32 s3, s{sJB}, 3")
        e(f"s_lshr_b32 s4, s{sJB}, 5"); e("s_mul_i32 s4, s4, 5"); e("s_bfe_u32 s5, s3, 0x10001"); e("s_mul_i32 s5, s5, 3")
        e("s_add_u32 s4, s4, s5"); e("s_and_b32 s5, s3, 1"); e("s_add_u32 s4, s4, s5"); e("s_lshl_b32 s4, s4, 6")
        e(f"s_and_b32 s5, s{sJB}, 7"); e("s_lshl_b32 s6, s5, 3"); e("s_add_u32 s4, s4, s6")
        e("s_lshl_b32 s3, s3, 13"); e("s_lshl_b32 s5, s5, 5"); e("s_add_u32 s3, s3, s5")
        e(f"s_bfe_u32 s5, s{sJB}, 0x10004"); e("s_mul_i32 s6, s5, 320"); e("s_add_u32 s6, s6, 128")
        e(f"s_and_b32 s7, s{sJB}, 15"); e(f"s_lshl_b32 s{sCNT}, s7, 2"); e(f"s_add_u32 s6, s6, s{sCNT}")
        e("s_lshl_b32 s5, s5, 14"); e("s_lshl_b32 s7, s7, 4"); e("s_add_u32 s5, s5, s7"); e("s_add_u32 s5, s5, 65536")
        e(f"s_cmp_lt_u32 s{sJB}, 64"); e("s_cselect_b32 s3, s3, s5"); e("s_cselect_b32 s4, s4, s6")
        e("s_cselect_b32 s5, 1, 0")
        e(f"s_mul_i32 s6, s{sB}, 98304"); e("s_add_u32 s3, s3, s6"); e(f"s_add_u32 s3, s3, {A3}")
        e(f"v_lshrrev_b32 v{vR1}, s5, v{vL}"); e(f"v_lshlrev_b32 v{vR1}, 8, v{vR1}")
        e(f"v_and_b32 v{vR2}, s5, v{vL}"); e(f"v_lshl_add_u32 v{vR1}, v{vR2}, 4, v{vR1}"); e(f"v_add_u32 v{vR1}, s3, v{vR1}")
        e(f"v_lshl_add_u32 v{vR2}, v{vR2}, 2, v{vT3}")
        e(f"s_mul_i32 s6, s{sB}, 640"); e("s_add_u32 s4, s4, s6")
        e(f"v_add_u32 v{vR2}, s4, v{vR2}"); e(f"v_lshlrev_b32 v{vR2}, 1, v{vR2}")
    e(f"s_mul_i32 s4, s8, 768"); e(f"s_add_u32 s4, s4, {A1}")
    e(f"s_lshl_b32 s5, s8, 10"); e(f"s_add_u32 s5, s5, {A2}")
    e(f"s_add_u32 s6, s4, {DY}"); e(f"s_add_u32 s7, s5, {DY}")
    e("s_waitcnt vmcnt(0)")
    e(f"v_and_b32 v{vT0}, 0x7f7f7f7f, v{vT}"); e(f"v_add_u32 v{vT0}, 0x01010101, v{vT0}")
    e(f"v_and_b32 v{vT}, 0x80808080, v{vT}"); e(f"v_xor_b32 v{vT}, v{vT}, v{vT0}")
    e(f"ds_write_b32 v{vZ}, v{vT} offset:{L_T}")
    if fb:
        e(f"v_and_b32 v{vT0}, 0x7f7f7f7f, v{vPR}"); e(f"v_add_u32 v{vT0}, 0x01010101, v{vT0}")
        e(f"v_and_b32 v{vPR}, 0x80808080, v{vPR}"); e(f"v_xor_b32 v{vPR}, v{vPR}, v{vT0}")
        e(f"v_and_b32 v{vPR}, s{sMASK}, v{vPR}")
        if xd:
            e(f"v_and_b32 v{vTX}, 0xfffff000, v{vPR}")
            e("s_mov_b32 exec_lo, 0")
            e(f"v_mov_b32 v{vPR}, v{vTX}")
            e("s_mov_b32 exec_lo, -1")
    if pre:
        for r in range(4):
            e(f"v_not_b32 v{vA + r}, v{vT}")
        e(f"buffer_store_dwordx4 {vr(vA)}, v{vE1}, s[{rWS}:{rWS + 3}], s5 offen")
        e("s_mov_b32 exec_hi, 0xffff")
        e(f"buffer_store_dwordx4 {vr(vA)}, v{vE1}, s[{rWS}:{rWS + 3}], s4 offen")
        e("s_mov_b32 exec_hi, -1")
    if codepf:
        pass
    ldsspin("L_f1", L_F, vT0)
    stamp("s", "s.f1")
    for p in range(8):
        e(f"ds_read_b128 {vr(vD + 4 * p)}, v{vE1} offset:{p * 768}")
    for p in range(1, 8):
        e(f"s_waitcnt lgkmcnt({7 - p})")
        for r in range(4):
            e(f"v_add_f32 v{vD + r}, v{vD + r}, v{vD + 4 * p + r}")
    def ypub(n):
        if n == 1 or lazy:
            publish(vQY, vE1, 4, 0, 0, 1)
        if n == 2 or (lazy and n > 2):
            publish(vSY, vZ, 5, 768, 1, 1)
        if n == 3:
            publish(vOP, vE1, 5, 0, 0, 1)

    tag4(vQY, vD)
    publish(vQY, vE1, 4, 0, 0, 0 if xp else 1)
    stamp("s", "s.qpub")
    poll("L_p1", [f"buffer_load_dwordx4 {vr(vD + 4 * t)}, v{vP1}, s[{rWS}:{rWS + 3}], s{sPO} offen offset:{256 * t} sc1" for t in range(3)],
         [vD + 4 * t for t in range(3)], vT0, lambda: ypub(1))
    if xp and not lazy:
        ypub(1)
    stamp("s", "s.qpoll")
    for t in range(3):
        treduce(vD + 4 * t)
    for t in range(3):
        e(f"v_cvt_pk_bf16_f32 v{vD + 4 * t}, v{vD + 4 * t}, v{vD + 4 * t}")
    for t in range(3):
        e(f"ds_write_b16 v{vMX}, v{vD + 4 * t} offset:{128 * t}")
    if qf:
        e(f"ds_write_b32 v{vZ}, v{vONE} offset:{L_T + 4}")
    else:
        e("s_waitcnt lgkmcnt(0)")
        e("s_barrier")
    for g in range(12):
        e(f"s_mov_b32 s{sOFF}, {(g // 4) * 5120}")
        e(f"buffer_load_dwordx4 {vr(slot(O0 + g))}, v{vWO}, s[{rWO}:{rWO + 3}], s{sOFF} offen offset:{(g % 4) * 1280} {fl}")
    if fb:
        e("s_and_b32 s3, s2, 7"); e("s_mul_i32 s3, s3, 4352"); e(f"s_add_u32 s3, s3, {A4}")
        e(f"s_lshr_b32 s{sK}, s2, 3")
        e(f"v_and_b32 v{vT0}, 31, v{vL}"); e(f"v_lshl_add_u32 v{vE2}, v{vT0}, 2, s3")
        e(f"s_lshl_b32 s{sSL}, s{sK}, 2"); e(f"s_add_u32 s{sSL}, s{sSL}, s3")
        if xd:
            e(f"s_add_u32 s{sDL}, s3, 128"); e(f"s_add_u32 s{sXL}, s3, {16 * 4352}")
            e(f"s_and_b32 s{sD}, s2, 7"); e(f"s_cmp_eq_u32 s{sD}, s{sK}"); e(f"s_cselect_b32 s{sLEAD}, 0xff, 0")
            e(f"v_mov_b32 v{vLIM}, 64")
            e("s_mov_b32 exec_lo, 0")
            e(f"v_mov_b32 v{vLIM}, 0"); e(f"v_mov_b32 v{vE2}, s{sDL}")
            e("s_mov_b32 exec_hi, 0x10000")
            e(f"v_mov_b32 v{vLIM}, 4096")
            e(f"s_mov_b32 exec_hi, s{sLEAD}")
            e(f"v_mov_b32 v{vLIM}, 4096")
            if xt != 1:
                e(f"v_mul_u32_u24 v{vE2}, 4352, v{vT0}"); e(f"v_add_u32 v{vE2}, {A4 + 16 * 4352}, v{vE2}")
            e("s_mov_b64 exec, -1")
        e(f"s_mov_b32 s{sN}, 0")
        e(f"s_and_b32 s3, s{sK}, {(1 << IL) - 1}"); e(f"s_add_u32 s{sTH}, s3, {TH0}")
        e(f"s_mov_b32 s{sCc}, 0"); e(f"s_mov_b64 s[{sAUX}:{sAUX + 1}], 0")
        fbspin("L_f2", 1, vD, vE2)
    else:
        ldsspin("L_f2", L_F + 4, vT0)
    stamp("s", "s.f2")
    e(f"ds_read_b128 {vr(vS)}, v{vZ} offset:{L_ST}")
    e(f"ds_read_b128 {vr(vS + 4)}, v{vZ} offset:{L_ST + 16}")
    e("s_waitcnt lgkmcnt(0)")
    e(f"v_max_f32 v{vT0}, v{vS}, v{vS + 2}"); e(f"v_max3_f32 v{vT0}, v{vT0}, v{vS + 4}, v{vS + 6}")
    for w in range(4):
        e(f"v_sub_f32 v{vG + w}, v{vS + 2 * w}, v{vT0}")
    for w in range(4):
        e(f"v_exp_f32 v{vG + w}, v{vG + w}")
    e(f"v_mul_f32 v{vD + 2}, v{vG}, v{vS + 1}")
    for w in range(1, 4):
        e(f"v_fma_f32 v{vD + 2}, v{vG + w}, v{vS + 2 * w + 1}, v{vD + 2}")
    e(f"v_and_b32 v{vD}, s{sMASK}, v{vT0}"); e(f"v_sub_f32 v{vD + 1}, v{vT0}, v{vD}")
    if xc:
        e(f"s_getreg_b32 s{sMIS}, hwreg(HW_REG_XCC_ID, 0, 16)"); e(f"s_lshl_b32 s{sMIS}, s{sMIS}, 8")
        e(f"v_mov_b32 v{vD + 3}, s{sMIS}")
    else:
        e(f"v_mov_b32 v{vD + 3}, 0")
    tag4(vSY, vD)
    publish(vSY, vZ, 5, 768, 1, 0 if xp else 1)
    if fb and dp:
        fbspin("L_f2b", None, vD + 4, vE2)
        e("s_waitcnt lgkmcnt(0)")
    poll("L_p2", [f"buffer_load_dwordx4 {vr(vD)}, v{vP3}, s[{rWS}:{rWS + 3}], s{sPO} offen offset:768 sc1"], [vD], vT0,
         lambda: ypub(2))
    if xp and not lazy:
        ypub(2)
    stamp("s", "s.stpoll")
    if xc:
        e(f"v_cmp_ne_u32 vcc, s{sMIS}, v{vD + 3}")
        e(f"s_or_b32 s{sMIS}, vcc_lo, vcc_hi")
    e(f"v_add_f32 v{vD}, v{vD}, v{vD + 1}")
    e(f"v_mov_b32 v{vD + 1}, v{vD}")
    allrows("v_max_f32", vD + 1, vT0)
    e(f"v_sub_f32 v{vD}, v{vD}, v{vD + 1}"); e(f"v_exp_f32 v{vD}, v{vD}")
    e(f"v_mul_f32 v{vD}, v{vD}, v{vD + 2}")
    allrows("v_add_f32", vD, vT0)
    e(f"v_rcp_f32 v{vD}, v{vD}")
    for w in range(4):
        e(f"v_sub_f32 v{vG + w}, v{vS + 2 * w}, v{vD + 1}")
    for w in range(4):
        e(f"v_exp_f32 v{vG + w}, v{vG + w}")
    for w in range(4):
        e(f"v_mul_f32 v{vG + w}, v{vG + w}, v{vD}")
    if fb and not dp:
        fbspin("L_f3", 2, vD + 4, vE2)
    else:
        ldsspin("L_f3", L_F + 8, vT0)
    stamp("s", "s.f3")
    for p in range(8):
        e(f"ds_read_b128 {vr(vD + 4 * p)}, v{vE1} offset:{p * 768}")
    for w in range(4):
        e(f"s_waitcnt lgkmcnt({6 - 2 * w})")
        for r in range(4):
            e(f"v_add_f32 v{vD + 8 * w + r}, v{vD + 8 * w + r}, v{vD + 8 * w + 4 + r}")
        for r in range(4):
            if w == 0:
                e(f"v_mul_f32 v{vD + r}, v{vG}, v{vD + r}")
            else:
                e(f"v_fma_f32 v{vD + r}, v{vG + w}, v{vD + 8 * w + r}, v{vD + r}")
    tag4(vOP, vD)
    publish(vOP, vE1, 5, 0, 0, 0 if xp else 1)
    if xc:
        e(f"s_cmp_eq_u32 s{sMIS}, 0"); e("s_cbranch_scc1 L_same")
        ypub(3)
        e("L_same:")
    stamp("s", "s.opub")
    nt_ = 3 if cs else 1
    poll("L_p3", [f"buffer_load_dwordx4 {vr(vD + 4 * t)}, v{vP2}, s[{rWS}:{rWS + 3}], s{sPO} offen offset:{256 * t} sc1" for t in range(nt_)]
         + ([f"ds_write_b32 v{vZ}, v{vONE} offset:{L_H}"] if H < 12 else []),
         [vD + 4 * t for t in range(nt_)], vT0, lambda: ypub(3))
    stamp("s", "s.opoll")
    for t in range(nt_):
        treduce(vD + 4 * t)
    for t in range(nt_):
        e(f"v_cvt_pk_bf16_f32 v{vD + 4 * t}, v{vD + 4 * t}, v{vD + 4 * t}")
    for t in range(nt_):
        e(f"ds_write_b32 v{vLS}, v{vD + 4 * t} offset:{256 * t}")
    e("s_waitcnt lgkmcnt(0)")
    if stamps:
        for i in range(nst["s"]):
            e(f"v_mov_b32 v{vSC + 2 * i}, s{sST + 2 * i}"); e(f"v_mov_b32 v{vSC + 2 * i + 1}, s{sST + 2 * i + 1}")
    e("s_branch L_tail")
    e("L_reduce:")
    e("s_nop 4")
    if xp and not xc:
        publish(vOP, vE1, 5, 0, 0, 1)
    if stamps:
        for i in range(nst["s"]):
            e(f"v_readfirstlane_b32 s{sST + 2 * i}, v{vSC + 2 * i}"); e(f"v_readfirstlane_b32 s{sST + 2 * i + 1}, v{vSC + 2 * i + 1}")
    stamp("s", "s.pub")
    if cs:
        e(f"s_cmp_ge_u32 s{sJB}, 96")
        e("s_cbranch_scc1 L_sdone")
        if pp:
            ppoll("L_p4", f"buffer_load_dwordx4 {vr(vD + 4)}, v{vR1}, s[{rWS}:{rWS + 3}], 0 offen sc1", vD + 4, vD, vT0)
        else:
            poll("L_p4", [f"buffer_load_dwordx4 {vr(vD)}, v{vR1}, s[{rWS}:{rWS + 3}], 0 offen sc1"], [vD], vT0)
        stamp("s", "s.fpoll")
        treduce(vD)
        e(f"v_add_f32_dpp v{vD}, v{vD}, v{vD} quad_perm:[2,3,0,1] {DPPM}")
        e(f"v_add_f32_dpp v{vD}, v{vD}, v{vD} row_ror:4 {DPPM}")
        e(f"v_add_f32_dpp v{vD}, v{vD}, v{vD} row_ror:8 {DPPM}")
        e("s_mov_b32 s3, 0x00030003")
        e(f"s_cmp_lt_u32 s{sJB}, 64")
        e("s_cbranch_scc1 L_r8")
        e("s_mov_b32 s3, 0x00010001")
        e(f"v_add_f32_dpp v{vD}, v{vD}, v{vD} quad_perm:[1,0,3,2] {DPPM}")
        e("L_r8:")
        e(f"v_cvt_pk_bf16_f32 v{vD}, v{vD}, v{vD}")
        e("s_mov_b32 exec_lo, s3"); e("s_mov_b32 exec_hi, s3")
        e(f"buffer_store_short v{vD}, v{vR2}, s[{rOUT}:{rOUT + 3}], 0 offen")
    else:
        e(f"s_cmp_ge_u32 s{sJB}, 80")
        e("s_cbranch_scc1 L_sdone")
        e(f"v_lshrrev_b32 v{vT0}, 1, v{vL}"); e(f"v_mul_u32_u24 v{vP1}, {2560 * fq}, v{vT0}")
        if fq > 1:
            e(f"s_mul_i32 s3, s{sJB}, {(1 << 16) // (80 // fq) + 1}"); e("s_lshr_b32 s3, s3, 16"); e("s_mul_i32 s3, s3, 2560")
            e(f"v_add_u32 v{vP1}, s3, v{vP1}")
        e(f"v_and_b32 v{vT1}, 1, v{vL}"); e(f"v_lshl_add_u32 v{vP1}, v{vT1}, 4, v{vP1}")
        e(f"s_mul_i32 s3, s{sB}, {128 * 2560}"); e(f"s_lshl_b32 s4, s{sJB}, 5"); e("s_add_u32 s3, s3, s4"); e(f"s_add_u32 s3, s3, {A3}")
        e(f"v_add_u32 v{vP1}, s3, v{vP1}")
        for k in range(1, 4):
            e(f"s_mov_b32 s{4 + k}, {k * 32 * 2560 * fq}")
        e(f"v_bfe_u32 v{vT0}, v{vL}, 4, 1"); e(f"v_lshlrev_b32 v{vT0}, 1, v{vT0}")
        e(f"v_lshrrev_b32 v{vT2}, 5, v{vL}"); e(f"v_or_b32 v{vT0}, v{vT0}, v{vT2}")
        e(f"v_lshl_add_u32 v{vT0}, v{vT1}, 2, v{vT0}")
        e(f"s_mul_i32 s3, s{sB}, 640"); e(f"s_lshl_b32 s4, s{sJB}, 3"); e("s_add_u32 s3, s3, s4")
        e(f"v_add_u32 v{vP2}, s3, v{vT0}"); e(f"v_lshlrev_b32 v{vP2}, 1, v{vP2}")
        poll("L_p4", [f"buffer_load_dwordx4 {vr(vD + 4 * k)}, v{vP1}, s[{rWS}:{rWS + 3}], {'0' if k == 0 else 's' + str(4 + k)} offen sc1" for k in range(4 // fq)],
             [vD + 4 * k for k in range(4 // fq)], vT0)
        stamp("s", "s.fpoll")
        for r in range(4):
            e(f"v_add_f32 v{vD + r}, v{vD + r}, v{vD + 4 + r}")
            e(f"v_add_f32 v{vD + 8 + r}, v{vD + 8 + r}, v{vD + 12 + r}")
        for r in range(4):
            e(f"v_add_f32 v{vD + r}, v{vD + r}, v{vD + 8 + r}")
        treduce(vD)
        e(f"v_add_f32_dpp v{vD}, v{vD}, v{vD} quad_perm:[2,3,0,1] {DPPM}")
        e(f"v_add_f32_dpp v{vD}, v{vD}, v{vD} row_ror:4 {DPPM}")
        e(f"v_add_f32_dpp v{vD}, v{vD}, v{vD} row_ror:8 {DPPM}")
        e(f"v_cvt_pk_bf16_f32 v{vD}, v{vD}, v{vD}")
        e("s_mov_b32 exec_lo, 0x00030003"); e("s_mov_b32 exec_hi, 0x00030003")
        e(f"buffer_store_short v{vD}, v{vP2}, s[{rOUT}:{rOUT + 3}], 0 offen")
    e(f"s_cmp_lg_u32 s{sJB}, 0")
    e("s_cbranch_scc1 L_sdone")
    e("s_mov_b64 exec, 1")
    e(f"buffer_store_dword v{vT}, v{vZ}, s[{rWS}:{rWS + 3}], s9 offen sc1")
    e("L_sdone:")
    e("s_mov_b64 exec, -1")
    if stamps:
        e("s_waitcnt vmcnt(0)")
    stamp("s", "s.end")
    stamps_out("s")
    e("L_end:")
    e("s_endpgm")

    body, nops = resolve(L)
    nv = vRING + 4 * R
    out = [HDR.rstrip("\n"),
           f"; @launch grid=(256,1,1) block=(320,1,1) lds={LDS}"]
    if stamps:
        out.append("; @stamps " + ",".join(f"{i}={n}" for i, n in names))
    out += ['.amdgcn_target "amdgcn-amd-amdhsa--gfx950"', ".text", f".globl {KN}", ".p2align 8",
            f".type {KN},@function", f"{KN}:"]
    out += [("" if t.endswith(":") else "    ") + t for t in body]
    out += ['.section .rodata,"a"', ".p2align 6", f".amdhsa_kernel {KN}",
            f"  .amdhsa_next_free_vgpr {nv}", "  .amdhsa_next_free_sgpr 102",
            f"  .amdhsa_accum_offset {(nv + 3) // 4 * 4}",
            "  .amdhsa_group_segment_fixed_size 0", "  .amdhsa_kernarg_size 104",
            "  .amdhsa_user_sgpr_count 2", "  .amdhsa_user_sgpr_kernarg_segment_ptr 1",
            "  .amdhsa_system_sgpr_workgroup_id_x 1", ".end_amdhsa_kernel"]
    return "\n".join(out) + "\n", nops


if __name__ == "__main__":
    outp = sys.argv[1]
    kw = {}
    for a in sys.argv[2:]:
        k, v = a.split("=")
        kw[k] = int(v) if v.lstrip("-").isdigit() else v.replace("+", " ")
    s, nops = gen(**kw)
    open(outp, "w").write(s)
    print(outp, "lines", s.count("\n"), "nop states", nops)
```

```python
import sys, math, struct
from asmlib import resolve, VM

KN = "concat_heads__mha_block_cached__gqa_block_cached__decode_kernel"
HDR = open("concat_heads__mha_block_cached__gqa_block_cached__decode.s.ref").read().split("; Override launch")[0]

A1 = 4096
A2 = A1 + 256 * 768
A3 = A2 + 256 * 1024
A4 = A3 + 256 * 2560
AY = A4 + 256 * 4352
DY = AY - A1
WS_USED = AY + A3 - A1
L_P = 0
L_Q = 6144
L_T = 6528
L_F = 6544
L_ST = 6560
L_O = 6592
L_X = 7360
L_H = L_X + 516
LDS = 8448

sS, sHH, sB, sH, sW, sJB = 10, 11, 12, 13, 14, 15
sX, sMASK, sCNT = 16, 18, 19
sKV, sWW, sOUT, sWS = 20, 24, 28, 30
rX, rWQ, rK, rV, rWO, rWS, rOUT = 32, 36, 40, 44, 48, 52, 56
sOFF, sC = 60, 61
sSEL = 62
sSA, sSB = 66, 67
sROT = 100
sPO = 101
rDBG = 96
sRH = 98
sMIS = 99
sST = 68

vL, vKV, vWQ, vWO = 0, 1, 2, 3
vM = 4
vQ = 8
vACC = 20
vA = 32
vT = 36
vPW, vQR, vOR, vPUB = 37, 38, 39, 40
vMX, vLS, vNM = 41, 42, 43
vX = 44
vT0, vT1, vT2, vT3 = 49, 50, 51, 52
vZ, vONE, vPR = 53, 54, 55
vSC = 56
vRING = 88


def f2u(x):
    return struct.unpack("<I", struct.pack("<f", x))[0]


def gen(xf=0, FL=0, cth=1, xs=0, xn=2, xdn=4, xdl=2, xa=1, xi=0, xsh=4, BM=20, tb=0, ns='', pp=0, pth=8, dry=0, cs=0, sw=0, xc=0, H=99, FW=12, dp=0, fq=1, nost=0, lazy=0, xt=0, xd=0, xg=1, xb=18, XM=64, F=6, F0=6, F2=0, G2=99, rot=0, R=27, fl="nt", stamps=0, prio=1, codepf=0, pk=2, warm=0, qf=0, fb=0, FH=8, FH2=0, G3=99, TH0=48, THL=232, ksh=1, CM=4, bias=1, cb=0, xp=0, N0=32, IL=4, pre=0, nopoll=0, skip=0, dummy=0):
    L = []
    e = L.append
    names = []
    nst = {"w": 0, "s": 0}

    def stamp(who, name):
        if not stamps or name in ns.split() or (stamps == 2 and name in ("woissued", "oready", "pub")):
            return
        i = nst[who]
        assert i < 14
        nst[who] += 1
        e(f"s_memrealtime s[{sST + 2 * i}:{sST + 2 * i + 1}]")
        names.append((i + (0 if who == "w" else 14), name))

    def srd(d, base, off, size):
        if off is None:
            e(f"s_mov_b32 s{d}, s{base}"); e(f"s_mov_b32 s{d + 1}, s{base + 1}")
            e(f"s_mov_b32 s{d + 2}, {size}")
        else:
            e(f"s_add_u32 s{d}, s{base}, s{off}"); e(f"s_addc_u32 s{d + 1}, s{base + 1}, 0")
            e(f"s_sub_u32 s{d + 2}, {size}, s{off}")
        e(f"s_mov_b32 s{d + 3}, 0x20000")

    def slot(i):
        return vRING + 4 * (i % R)

    def vr(a, n=4):
        return f"v[{a}:{a + n - 1}]"

    DPPM = "row_mask:0xf bank_mask:0xf"

    def allrows(op, v, t):
        e(f"v_mov_b32 v{t}, v{v}")
        e(f"v_permlane16_swap_b32 v{v}, v{t}")
        e(f"{op} v{v}, v{v}, v{t}")
        e(f"v_mov_b32 v{t}, v{v}")
        e(f"v_permlane32_swap_b32 v{v}, v{t}")
        e(f"{op} v{v}, v{v}, v{t}")

    def treduce(d):
        e(f"v_permlane32_swap_b32 v{d}, v{d + 1}")
        e(f"v_permlane32_swap_b32 v{d + 2}, v{d + 3}")
        e(f"v_add_f32 v{d}, v{d}, v{d + 1}")
        e(f"v_add_f32 v{d + 2}, v{d + 2}, v{d + 3}")
        e(f"v_permlane16_swap_b32 v{d}, v{d + 2}")
        e(f"v_add_f32 v{d}, v{d}, v{d + 2}")

    def tag4(dst, src):
        for r in range(4):
            e(f"v_perm_b32 v{dst + r}, v{src + r}, v{vT}, s{sSEL + r}")

    def poll(label, loads, units, tmp, dual=None):
        e(f"s_mov_b32 s{sCNT}, {1 if nopoll >> (4 - int(label[-1])) & 1 else 400000}")
        if dual:
            e(f"s_mov_b32 s{sPO}, {0 if xp else DY}")
        e(f"{label}:")
        e("s_nop 1")
        for t in loads:
            if not skip >> (4 - int(label[-1])) & 1:
                e(t)
        e(f"s_sub_u32 s{sCNT}, s{sCNT}, 1")
        if dual and xp:
            e(f"s_cmp_lg_u32 s{sCNT}, {400000 - N0}"); e(f"s_cbranch_scc1 {label}_y")
            dual()
            e(f"{label}_y:")
            e(f"s_cmp_lt_u32 s{sCNT}, {400000 - N0}"); e(f"s_cselect_b32 s3, {DY}, 0"); e(f"s_xor_b32 s{sPO}, s{sPO}, s3")
        e("s_waitcnt vmcnt(0)")
        for k, u in enumerate(units):
            e(f"v_perm_b32 v{tmp}, v{u + 1}, v{u}, s{sSA}")
            e(f"v_perm_b32 v{tmp + 1}, v{u + 3}, v{u + 2}, s{sSB}")
            e(f"v_or_b32 v{tmp}, v{tmp}, v{tmp + 1}")
            if k == 0:
                e(f"v_xor_b32 v{tmp + 2}, v{tmp}, v{vT}")
            else:
                e(f"v_xor_b32 v{tmp}, v{tmp}, v{vT}")
                e(f"v_or_b32 v{tmp + 2}, v{tmp + 2}, v{tmp}")
        e(f"v_cmp_ne_u32 vcc, 0, v{tmp + 2}")
        e(f"s_cmp_eq_u32 s{sCNT}, 0")
        e(f"s_cbranch_scc1 {label}_x")
        e(f"s_cbranch_vccnz {label}")
        e(f"{label}_x:")
        for u in units:
            for r in range(4):
                e(f"v_and_b32 v{u + r}, s{sMASK}, v{u + r}")

    def ppoll(label, load, bufs, res, tmp):
        def check(src):
            if src != res:
                for r in range(4):
                    e(f"v_mov_b32 v{res + r}, v{src + r}")
            e(f"v_perm_b32 v{tmp}, v{src + 1}, v{src}, s{sSA}")
            e(f"v_perm_b32 v{tmp + 1}, v{src + 3}, v{src + 2}, s{sSB}")
            e(f"v_or_b32 v{tmp}, v{tmp}, v{tmp + 1}")
            e(f"v_cmp_ne_u32 vcc, v{tmp}, v{vT}")
        n = len(bufs)
        e(f"s_mov_b32 s{sCNT}, 400000")
        e(f"{label}:")
        e(load(res))
        e("s_waitcnt vmcnt(0)")
        check(res)
        e(f"s_sub_u32 s{sCNT}, s{sCNT}, 1")
        e(f"s_cbranch_scc1 {label}_x")
        e("s_and_b64 exec, exec, vcc")
        e(f"s_cbranch_scc0 {label}_x")
        if n > 1:
            e("s_bcnt1_i32_b64 s3, exec")
            e(f"s_cmp_gt_u32 s3, {pth}")
        e(f"s_cbranch_scc1 {label}")
        if n > 1:
            for k in range(n - 1):
                e(load(bufs[k]))
            e(f"{label}_f:")
            for k in range(n):
                e(load(bufs[(k + n - 1) % n]))
                e(f"s_waitcnt vmcnt({n - 1})")
                check(bufs[k])
                e("s_and_b64 exec, exec, vcc")
                e(f"s_cbranch_scc0 {label}_x")
            e(f"s_sub_u32 s{sCNT}, s{sCNT}, 1")
            e(f"s_cbranch_scc0 {label}_f")
        e(f"{label}_x:")
        e("s_mov_b64 exec, -1")
        for r in range(4):
            e(f"v_and_b32 v{res + r}, s{sMASK}, v{res + r}")

    def publish(src, vaddr, sx, off, one, y):
        o = f" offset:{off}" if off else ""
        e("s_mov_b64 exec, 1" if one else "s_mov_b32 exec_hi, 0xffff")
        e(f"buffer_store_dwordx4 {vr(src)}, v{vaddr}, s[{rWS}:{rWS + 3}], s{sx + 2 * y} offen{o}" + (" sc1" if y else ""))
        e("s_mov_b64 exec, -1")

    def ldsspin(label, off, tmp):
        e(f"s_mov_b32 s{sCNT}, 4000000")
        e(f"{label}:")
        e(f"ds_read_b32 v{tmp}, v{vZ} offset:{off}")
        e(f"s_sub_u32 s{sCNT}, s{sCNT}, 1")
        e("s_waitcnt lgkmcnt(0)")
        e(f"v_readfirstlane_b32 s3, v{tmp}")
        e(f"s_cmp_eq_u32 s{sCNT}, 0")
        e(f"s_cbranch_scc1 {label}_x")
        e("s_cmp_lt_u32 s3, 4")
        e(f"s_cbranch_scc1 {label}")
        e(f"{label}_x:")

    sN, sSL, sCc, sTH, sP, sK, sAUX = 32, 33, 34, 35, 36, 37, 38
    sD, sXL, sDL, sLEAD = 40, 41, 42, 43
    vLIM, vTX = 37, 38
    sPUB, sRD, sXO, sBI, sTM, sINT, sXW = 40, 41, 42, 43, 44, 46, 47
    AX = A4 + 16 * 4352

    def fbspin(label, k, tmp, vad):
        e(f"s_mov_b32 s{sCNT}, 4000000")
        e(f"{label}:")
        e(f"ds_read_b128 {vr(tmp)}, v{vZ} offset:{L_F}")
        e(f"s_sub_u32 s{sCNT}, s{sCNT}, 1")
        e(f"s_cbranch_scc1 {label}_x")
        if k is None:
            e(f"s_cmp_eq_u32 s{sTH}, 0x7fffffff")
            e(f"s_cbranch_scc1 {label}_x")
        e("s_waitcnt lgkmcnt(0)")
        if k is not None:
            e(f"v_readfirstlane_b32 s3, v{tmp + k}")
        e(f"v_readfirstlane_b32 s{sP}, v{tmp + 3}")
        if k is not None:
            e("s_cmp_ge_u32 s3, 4")
            e(f"s_cbranch_scc1 {label}_x")
        e(f"s_sub_i32 s{sP}, s{sP}, s{sCc}")
        e(f"s_cmp_lt_i32 s{sP}, s{sTH}")
        e(f"s_cbranch_scc1 {label}")
        e(f"s_sub_i32 s{sK}, s{sP}, s{sTH}"); e(f"s_lshr_b32 s{sK}, s{sK}, {IL}"); e(f"s_add_u32 s{sK}, s{sK}, 1")
        e(f"s_add_u32 s{sN}, s{sN}, s{sK}")
        if xs:
            e(f"s_cmp_ge_u32 s{sN}, s{sPUB}"); e(f"s_cbranch_scc0 {label}_a")
            e(f"s_memrealtime s[{sTM}:{sTM + 1}]")
            e(f"{label}_a:")
        e(f"v_and_b32 v{tmp}, s{sMASK}, v{vT}"); e(f"v_or_b32 v{tmp + 1}, s{sN}, v{tmp}")
        e(f"buffer_load_dword v{tmp + 2}, v{vad}, s[{rWS}:{rWS + 3}], 0 offen sc1")
        e("s_mov_b64 exec, 1")
        if nost:
            e(f"buffer_load_dword v{tmp + 1}, v{vZ}, s[{rWS}:{rWS + 3}], s{sSL} offen sc1")
        else:
            e(f"buffer_store_dword v{tmp + 1}, v{vZ}, s[{rWS}:{rWS + 3}], s{sSL} offen")
        e("s_mov_b64 exec, -1")
        e(f"s_lshl_b32 s{sK}, s{sK}, {IL}"); e(f"s_add_u32 s{sTH}, s{sTH}, s{sK}")
        e(f"s_cmp_gt_i32 s{sTH}, {THL + (1 << IL) - 1}"); e(f"s_cselect_b32 s{sTH}, 0x7fffffff, s{sTH}")
        if xs:
            e(f"s_cmp_ge_u32 s{sN}, s{sRD}"); e(f"s_cbranch_scc0 {label}_b")
            e("s_mov_b64 exec, 0xff")
            e(f"buffer_load_dword v{tmp + 3}, v{vLIM}, s[{rWS}:{rWS + 3}], s{sXO} offen sc1")
            e(f"s_add_u32 s{sRD}, s{sRD}, {xdn}"); e(f"s_add_u32 s{sXO}, s{sXO}, 2048")
            e(f"s_cmp_ge_u32 s{sXO}, {AX + 2048 * xs}"); e(f"s_cselect_b32 s{sRD}, 0x7fffffff, s{sRD}")
            e("s_and_b32 s3, s2, 7")
            e("s_waitcnt vmcnt(0)")
            e(f"v_xor_b32 v{tmp + 3}, v{tmp + 3}, v{vTX}")
            e(f"v_cmp_gt_u32 vcc, 0x1000, v{tmp + 3}")
            e(f"v_readlane_b32 s3, v{tmp + 3}, s3")
            e("s_cmp_eq_u32 vcc_lo, 0xff"); e(f"s_cbranch_scc0 {label}_b")
            e(f"v_sub_u32 v{tmp + 3}, s3, v{tmp + 3}")
            e(f"v_bfe_i32 v{tmp + 3}, v{tmp + 3}, 0, 12")
            for m in ("quad_perm:[1,0,3,2]", "quad_perm:[2,3,0,1]", "row_half_mirror"):
                e(f"v_add_u32_dpp v{tmp + 3}, v{tmp + 3}, v{tmp + 3} {m} {DPPM}")
            e(f"v_readfirstlane_b32 s3, v{tmp + 3}")
            if xi:
                e(f"s_mul_i32 s{sBI}, s3, {xi}"); e(f"s_add_i32 s{sINT}, s{sINT}, s{sBI}")
                e(f"s_min_i32 s{sINT}, s{sINT}, {BM << xsh}"); e(f"s_max_i32 s{sINT}, s{sINT}, {-(BM << xsh)}")
                e(f"s_mul_i32 s3, s3, {xa}"); e(f"s_add_i32 s3, s3, s{sINT}")
            else:
                e(f"s_mul_i32 s3, s3, {xa}")
            e(f"s_ashr_i32 s3, s3, {xsh}")
            e(f"s_min_i32 s3, s3, {BM}"); e(f"s_max_i32 s{sBI}, s3, {-BM}")
            e(f"{label}_b:")
            e("s_mov_b64 exec, -1")
        e("s_waitcnt vmcnt(1)")
        e(f"v_xor_b32 v{tmp + 2}, v{tmp + 2}, v{vPR}")
        e(f"v_cmp_gt_u32 vcc, {'v' + str(vLIM) if xd else 64}, v{tmp + 2}")
        e(f"v_cndmask_b32 v{tmp + 2}, 0, v{tmp + 2}, vcc")
        for m in ("quad_perm:[1,0,3,2]", "quad_perm:[2,3,0,1]", "row_half_mirror", "row_mirror"):
            e(f"v_add_u32_dpp v{tmp + 2}, v{tmp + 2}, v{tmp + 2} {m} {DPPM}")
        e(f"v_readlane_b32 s{sK}, v{tmp + 2}, 0"); e(f"v_readlane_b32 s3, v{tmp + 2}, 16")
        e(f"s_add_u32 s{sK}, s{sK}, s3")
        if xd:
            e(f"v_readlane_b32 s{sD}, v{tmp + 2}, 48")
            e(f"s_cmp_eq_u32 s{sLEAD}, 0"); e(f"s_cbranch_scc1 {label}_n")
            e(f"v_readlane_b32 s3, v{tmp + 2}, 32")
            e(f"v_or_b32 v{tmp}, s{sK}, v{vTX}")
            e("s_lshr_b32 s3, s3, 3"); e(f"s_add_u32 s3, s3, {2048 + xb}"); e(f"s_sub_u32 s3, s3, s{sK}")
            e(f"s_min_u32 s3, s3, {2048 + XM}"); e(f"s_max_u32 s3, s3, {2048 - XM}")
            e(f"s_and_b32 s{sD}, vcc_hi, 0xff"); e(f"s_cmp_eq_u32 s{sD}, 0xff")
            e(f"s_cselect_b32 s{sD}, s3, 2048")
            e(f"v_or_b32 v{tmp + 1}, s{sD}, v{vTX}")
            if xf:
                e(f"v_lshlrev_b32 v{tmp + 3}, 2, v{vL}")
                e("s_mov_b32 exec_hi, 0")
                e(f"buffer_store_dword v{tmp}, v{tmp + 3}, s[{rWS}:{rWS + 3}], s{sXL} offen sc1")
            e("s_mov_b64 exec, 1")
            if xt != 2 and not xf:
                e(f"buffer_store_dword v{tmp}, v{vZ}, s[{rWS}:{rWS + 3}], s{sXL} offen sc1")
            e(f"buffer_store_dword v{tmp + 1}, v{vZ}, s[{rWS}:{rWS + 3}], s{sDL} offen")
            e("s_mov_b64 exec, -1")
            e(f"{label}_n:")
            e(f"s_cmp_eq_u32 s{sD}, 0"); e(f"s_cselect_b32 s{sD}, 2048, s{sD}")
            e(f"s_sub_i32 s{sD}, s{sD}, 2048")
            if xg:
                e(f"s_ashr_i32 s{sD}, s{sD}, {xg}")
            e(f"s_add_i32 s{sK}, s{sK}, s{sD}")
        if xs:
            e(f"s_cmp_ge_u32 s{sN}, s{sPUB}"); e(f"s_cbranch_scc0 {label}_c")
            e(f"s_mul_i32 s3, s{sK}, 43"); e("s_lshr_b32 s3, s3, 4")
            e("s_waitcnt lgkmcnt(0)")
            e(f"s_sub_u32 s3, s{sTM}, s3"); e("s_and_b32 s3, s3, 0xfff")
            e(f"v_or_b32 v{tmp}, s3, v{vTX}")
            if xf:
                e(f"v_lshlrev_b32 v{tmp + 3}, 2, v{vL}")
                e("s_mov_b32 exec_hi, 0")
                e(f"buffer_store_dword v{tmp}, v{tmp + 3}, s[{rWS}:{rWS + 3}], s{sXW} offen sc1")
            else:
                e("s_mov_b64 exec, 1")
                e(f"buffer_store_dword v{tmp}, v{vZ}, s[{rWS}:{rWS + 3}], s{sXW} offen sc1")
            e("s_mov_b64 exec, -1")
            e(f"s_mov_b32 s{sPUB}, 0x7fffffff")
            e(f"{label}_c:")
            e(f"s_add_i32 s{sK}, s{sK}, s{sBI}")
        if tb:
            e(f"s_bitcmp1_b32 s2, 0"); e(f"s_cselect_b32 s3, {tb}, {-tb}"); e(f"s_add_i32 s{sK}, s{sK}, s3")
        if IL > 3:
            e(f"s_lshl_b32 s{sK}, s{sK}, {IL - 3}")
        e(f"s_lshl_b32 s3, s{sP}, 2")
        e(f"s_sub_i32 s3, s{sK}, s3")
        e(f"s_add_u32 s3, s3, {4 * TH0 - 2 + (2 << ksh) + cb}")
        e(f"s_ashr_i32 s3, s3, {2 + ksh}")
        e(f"s_min_i32 s3, s3, {CM}"); e(f"s_max_i32 s3, s3, {-CM}")
        e(f"s_sub_i32 s{sK}, s3, s{sCc}"); e(f"s_mov_b32 s{sCc}, s3")
        e(f"v_mov_b32 v{tmp}, s{sK}")
        e("s_mov_b64 exec, 1")
        e(f"ds_add_u32 v{vZ}, v{tmp} offset:{L_F + 12}")
        e("s_mov_b64 exec, -1")
        if stamps:
            e(f"s_lshl_b64 s[{sAUX}:{sAUX + 1}], s[{sAUX}:{sAUX + 1}], 5")
            e(f"s_and_b32 s{sAUX + 1}, s{sAUX + 1}, 0xfffffff")
            e("s_add_u32 s3, s3, 16"); e(f"s_or_b32 s{sAUX}, s{sAUX}, s3")
        e(f"s_branch {label}")
        e(f"{label}_x:")

    e("s_cmp_ge_u32 s2, 256"); e("s_cbranch_scc1 L_end")
    if stamps:
        e(f"s_memrealtime s[{sST}:{sST + 1}]")
        nst["w"] = 1; nst["s"] = 1
        names.append((0, "start")); names.append((14, "s.start"))
    e("s_and_b32 s3, s2, 7"); e("s_lshr_b32 s4, s2, 3"); e(f"s_and_b32 s{sS}, s4, 3")
    e("s_lshr_b32 s4, s4, 2"); e("s_lshl_b32 s4, s4, 3"); e(f"s_add_u32 s{sHH}, s4, s3")
    e(f"s_lshr_b32 s{sB}, s{sHH}, 5"); e(f"s_mul_i32 s7, s{sB}, 40")
    e("s_add_u32 s8, s0, s7"); e("s_addc_u32 s9, s1, 0")
    e(f"s_load_dwordx4 s[{sWW}:{sWW + 3}], s[8:9], 24")
    e(f"s_load_dwordx2 s[{sX}:{sX + 1}], s[8:9], 0")
    e(f"s_load_dwordx4 s[{sKV}:{sKV + 3}], s[8:9], 8")
    e(f"s_load_dwordx2 s[{sOUT}:{sOUT + 1}], s[0:1], 80")
    e(f"s_load_dwordx2 s[{sWS}:{sWS + 1}], s[0:1], 96")
    e(f"v_lshrrev_b32 v{vT0}, 6, v0")
    e(f"v_and_b32 v{vL}, 63, v0")
    e(f"v_readfirstlane_b32 s{sW}, v{vT0}")
    e(f"s_and_b32 s{sH}, s{sHH}, 31")
    e(f"s_lshl_b32 s{sJB}, s{sH}, 2"); e(f"s_add_u32 s{sJB}, s{sJB}, s{sS}")
    e(f"v_lshrrev_b32 v{vT0}, 3, v{vL}")
    e(f"v_and_b32 v{vT1}, 7, v{vL}")
    e(f"v_lshlrev_b32 v{vT2}, 4, v{vT1}")
    e(f"v_mul_u32_u24 v{vWQ}, 12288, v{vT0}"); e(f"v_add_u32 v{vWQ}, v{vWQ}, v{vT2}")
    e(f"v_mul_u32_u24 v{vKV}, 384, v{vT0}"); e(f"v_add_u32 v{vKV}, v{vKV}, v{vT2}")
    e(f"v_lshlrev_b32 v{vT3}, 1, v{vT0}")
    e(f"v_add_u32 v{vQR}, {L_Q}, v{vT2}")
    e(f"s_mul_i32 s3, s{sS}, 160"); e(f"s_mul_i32 s4, s{sW}, 40"); e("s_add_u32 s3, s3, s4")
    e("s_mul_i32 s4, s3, 12288"); e(f"s_mul_i32 s5, s{sH}, 384"); e("s_add_u32 s4, s4, s5")
    e("s_lshl_b32 s3, s3, 1")
    e(f"s_mul_i32 s5, s{sH}, 1572864"); e(f"s_mul_i32 s6, s{sS}, 393216"); e("s_add_u32 s5, s5, s6")
    e(f"s_mul_i32 s6, s{sW}, 3072"); e("s_add_u32 s5, s5, s6")
    if cs:
        a, b_, c_ = sSEL, sSEL + 1, sSEL + 2
        e(f"s_and_b32 s{a}, s{sS}, 1"); e(f"s_mul_i32 s{b_}, s{a}, 3"); e(f"s_bfe_u32 s{c_}, s{sW}, 0x10001"); e(f"s_add_u32 s{b_}, s{b_}, s{c_}")
        e(f"s_and_b32 s{c_}, s{sW}, 1"); e(f"s_cmp_eq_u32 s{sW}, 0"); e(f"s_cselect_b32 s{b_}, 2, s{b_}"); e(f"s_cselect_b32 s{sRH}, s{a}, s{c_}")
        e(f"s_lshr_b32 s{a}, s{sS}, 1"); e(f"s_mul_i32 s{a}, s{a}, 5"); e(f"s_add_u32 s{b_}, s{b_}, s{a}"); e(f"s_lshl_b32 s{b_}, s{b_}, 7")
        e(f"s_mul_i32 s6, s{sH}, 245760"); e(f"s_add_u32 s6, s6, s{b_}")
        e(f"s_mul_i32 s{a}, s{sRH}, 122880"); e(f"s_add_u32 s6, s6, s{a}")
    else:
        e(f"s_mul_i32 s6, s{sJB}, 61440"); e(f"s_lshl_b32 s7, s{sW}, 8"); e("s_add_u32 s6, s6, s7")
    e(f"s_cmp_eq_u32 s{sW}, 4")
    e("s_cbranch_scc1 L_service")

    def common_consts():
        e(f"v_and_b32 v{vT0}, 1, v{vL}"); e(f"v_lshlrev_b32 v{vT0}, 4, v{vT0}")
        e(f"v_mov_b32 v{vT1}, 0xffff"); e(f"v_lshlrev_b32 v{vT0}, v{vT0}, v{vT1}")
        e(f"v_bfe_u32 v{vT1}, v{vL}, 1, 2")
        for r in range(4):
            e(f"v_cmp_eq_u32 vcc, {r}, v{vT1}")
            e(f"v_cndmask_b32 v{vM + r}, 0, v{vT0}, vcc")
        if cs:
            e(f"v_lshrrev_b32 v{vT0}, 3, v{vL}"); e(f"v_and_b32 v{vT1}, 7, v{vL}")
            e(f"v_mul_u32_u24 v{vWO}, 15360, v{vT0}"); e(f"v_lshl_add_u32 v{vWO}, v{vT1}, 4, v{vWO}")
            e(f"s_mul_i32 s7, s{sRH}, 384"); e(f"s_add_u32 s7, s7, {L_O}")
            e(f"v_mul_u32_u24 v{vOR}, 48, v{vT0}"); e(f"v_add_u32 v{vOR}, s7, v{vOR}")
            e(f"v_bfe_u32 v{vT0}, v{vL}, 4, 1")
            e(f"v_lshlrev_b32 v{vPUB}, 5, v{vT1}"); e(f"v_lshl_add_u32 v{vPUB}, v{vT0}, 4, v{vPUB}")
            e(f"s_bfe_u32 s8, s{sW}, 0x10001")
            e(f"s_lshl_b32 s7, s{sS}, 1"); e("s_add_u32 s7, s7, s8"); e("s_lshl_b32 s7, s7, 5"); e(f"s_add_u32 s7, s7, s{sH}")
            e(f"s_lshr_b32 s9, s{sS}, 1"); e("s_lshl_b32 s9, s9, 5"); e(f"s_add_u32 s9, s9, s{sH}")
            e("s_lshl_b32 s9, s9, 1"); e(f"s_add_u32 s9, s9, s{sRH}"); e("s_add_u32 s9, s9, 256")
            e(f"s_cmp_eq_u32 s{sW}, 0"); e("s_cselect_b32 s7, s9, s7")
            e(f"s_mul_i32 s9, s{sB}, 384"); e("s_add_u32 s7, s7, s9"); e("s_lshl_b32 s7, s7, 8"); e(f"s_add_u32 s7, s7, {A3}")
            e(f"v_add_u32 v{vPUB}, s7, v{vPUB}")
        else:
            e(f"v_lshrrev_b32 v{vT0}, 4, v{vL}")
            e(f"v_and_b32 v{vT1}, 15, v{vL}")
            e(f"v_mul_u32_u24 v{vWO}, 15360, v{vT0}"); e(f"v_lshl_add_u32 v{vWO}, v{vT1}, 4, v{vWO}")
            e(f"v_mul_u32_u24 v{vOR}, 48, v{vT0}"); e(f"v_add_u32 v{vOR}, {L_O}, v{vOR}")
            e(f"v_lshlrev_b32 v{vPUB}, 5, v{vT1}"); e(f"v_lshl_add_u32 v{vPUB}, v{vT0}, 4, v{vPUB}")
            e(f"s_lshl_b32 s7, s{sB}, 7"); e(f"s_add_u32 s7, s7, s{sJB}"); e("s_mul_i32 s7, s7, 2560")
            e(f"s_lshl_b32 s8, s{sW}, 9"); e("s_add_u32 s7, s7, s8"); e(f"s_add_u32 s7, s7, {A3}")
            e(f"v_add_u32 v{vPUB}, s7, v{vPUB}")
        e(f"v_mov_b32 v{vZ}, 0"); e(f"v_mov_b32 v{vONE}, 1")
        for r in range(4):
            e(f"s_mov_b32 s{sSEL + r}, {0x07060500 + r}")
        srd(rWO, sWW + 2, 6, 7864320)
        srd(rWS, sWS, None, WS_USED)
        if cs:
            srd(rOUT, sOUT, None, 2560)

    vXA = vNM

    def pair_addr():
        e(f"s_bfe_u32 s3, s{sW}, 0x10001"); e("s_lshl_b32 s3, s3, 8"); e(f"s_add_u32 s3, s3, {L_X}")
        e(f"v_and_b32 v{vXA}, 255, v{vPUB}"); e(f"v_add_u32 v{vXA}, s3, v{vXA}")

    vm = VM(e)
    NQ, NK, NV, NO = 15, 96, 96, 12
    K0, V0, O0 = NQ, NQ + NK, NQ + NK + NV
    N = O0 + NO
    cur = [None]

    def setoff(v):
        if cur[0] != v:
            e(f"s_mov_b32 s{sOFF}, {v}")
            cur[0] = v

    def issue(i):
        d = vr(slot(i))
        if i < K0:
            g, t = divmod(i, 3)
            setoff(g * 8 * 12288)
            vm.issue(i, f"buffer_load_dwordx4 {d}, v{vWQ}, s[{rWQ}:{rWQ + 3}], s{sOFF} offen offset:{t * 128} {fl}")
        elif i < O0:
            r = rK if i < V0 else rV
            g, t = divmod(i - (K0 if i < V0 else V0), 3)
            if fb and t == 0 and i < V0 + 3 * G3:
                ga = (i - K0) // 3
                e("s_mov_b64 exec, 1")
                if ga > 0:
                    e("s_waitcnt lgkmcnt(0)")
                    e(f"v_cmp_lt_i32 vcc, {4 * (ga - 1) + bias}, v{vPR}")
                e(f"ds_add_rtn_u32 v{vPR}, v{vZ}, v{vONE} offset:{L_F + 12}")
                e("s_mov_b64 exec, -1")
            if not rot:
                setoff(g * 12288)
            elif t == 0:
                cur[0] = None
                if g == 0:
                    e(f"s_mov_b32 s{sOFF}, s{sROT}")
                else:
                    e(f"s_add_u32 s{sOFF}, s{sOFF}, 12288"); e(f"s_cmp_eq_u32 s{sOFF}, 393216")
                    e(f"s_cselect_b32 s{sOFF}, 0, s{sOFF}")
            vm.issue(i, f"buffer_load_dwordx4 {d}, v{vKV}, s[{r}:{r + 3}], s{sOFF} offen offset:{t * 128} {fl}")
        else:
            g = i - O0
            setoff((g // 4) * 5120)
            vm.issue(i, f"buffer_load_dwordx4 {d}, v{vWO}, s[{rWO}:{rWO + 3}], s{sOFF} offen offset:{(g % 4) * 1280} {fl}")

    def afrag(src):
        for r in range(4):
            e(f"v_and_b32 v{vA + r}, v{src}, v{vM + r}")

    def mfma(acc, b, first):
        c = "0" if first else vr(acc)
        e(f"v_mfma_f32_16x16x32_bf16 {vr(acc)}, {vr(vA)}, {vr(b)}, {c}")

    def partials_out(flag):
        e("s_mov_b32 exec_lo, 0x00ff00ff"); e("s_mov_b32 exec_hi, 0xff00ff00")
        for t in range(3):
            e(f"ds_write_b128 v{vPW}, {vr(vACC + 4 * t)} offset:{t * 256}")
        e("s_mov_b64 exec, 1")
        e(f"ds_add_u32 v{vZ}, v{vONE} offset:{flag}")
        e("s_mov_b64 exec, -1")

    def pcalc(g):
        s = vSC + g
        e(f"v_fma_f32 v{s}, v{s}, s{sC}, v{vNM}")
        e(f"v_exp_f32 v{s}, v{s}")
        if g == 0:
            e(f"v_mov_b32 v{vLS}, v{s}")
        else:
            e(f"v_add_f32 v{vLS}, v{vLS}, v{s}")
        e(f"v_cvt_pk_bf16_f32 v{s}, v{s}, v{s}")

    pend = []

    def red_steps(g):
        s = vSC + g
        st = [f"v_add_f32_dpp v{s}, v{s}, v{s} quad_perm:[1,0,3,2] {DPPM}",
              f"v_add_f32_dpp v{s}, v{s}, v{s} quad_perm:[2,3,0,1] {DPPM}",
              f"v_add_f32_dpp v{s}, v{s}, v{s} row_half_mirror {DPPM}"]
        st.append(f"v_mov_b32 v{vMX}, v{s}" if g == 0 else f"v_max_f32 v{vMX}, v{vMX}, v{s}")
        return st

    pdone = [0]

    def consume(i):
        vm.wait(i)
        b = slot(i)
        if i < K0:
            g, t = divmod(i, 3)
            if t == 0:
                e(f"v_lshl_or_b32 v{vT0}, v{vX + g}, 16, v{vX + g}")
                afrag(vT0)
            mfma(vACC + 4 * t, b, g == 0)
            if stamps == 2 and i in (0, 5, 11):
                stamp("w", f"wq{i}")
            if i == K0 - 1:
                partials_out(L_F)
                stamp("w", "qpart")
        elif i < V0:
            g, t = divmod(i - K0, 3)
            for r in range(4):
                e(f"v_dot2c_f32_bf16 v{vSC + g}, v{b + r}, v{vQ + 4 * t + r}")
                if r in (1, 3) and pend:
                    e(pend.pop(0))
            if t == 2:
                while pend:
                    e(pend.pop(0))
                pend.extend(red_steps(g))
            if i == V0 - 1:
                while pend:
                    e(pend.pop(0))
                e(f"v_max_f32_dpp v{vMX}, v{vMX}, v{vMX} row_ror:8 {DPPM}")
                allrows("v_max_f32", vMX, vT0)
                e(f"v_mul_f32 v{vMX}, s{sC}, v{vMX}")
                e(f"v_sub_f32 v{vNM}, 0, v{vMX}")
                for g2 in range(pk):
                    pcalc(g2)
                pdone[0] = pk
                stamp("w", "Kdone")
        elif i < O0:
            g, t = divmod(i - V0, 3)
            if t == 0:
                afrag(vSC + g)
            mfma(vACC + 4 * t, b, g == 0)
            if t < 2 and pdone[0] < 32:
                for _ in range((pk + 1 - t) // 2):
                    if pdone[0] < 32:
                        pcalc(pdone[0]); pdone[0] += 1
                if pdone[0] == 32:
                    pdone[0] = 33
                    e(f"v_add_f32_dpp v{vLS}, v{vLS}, v{vLS} row_ror:8 {DPPM}")
                    allrows("v_add_f32", vLS, vT0)
                    e(f"s_lshl_b32 s3, s{sW}, 3"); e(f"v_mov_b32 v{vT0}, s3")
                    e("s_mov_b64 exec, 1")
                    e(f"ds_write_b32 v{vT0}, v{vMX} offset:{L_ST}")
                    e(f"ds_write_b32 v{vT0}, v{vLS} offset:{L_ST + 4}")
                    e(f"ds_add_u32 v{vZ}, v{vONE} offset:{L_F + 4}")
                    e("s_mov_b64 exec, -1")
            if i == O0 - 1:
                partials_out(L_F + 8)
                stamp("w", "Vdone")

    e("s_waitcnt lgkmcnt(0)")
    if stamps == 2:
        stamp("w", "karg")
    srd(rX, sX, None, 1280)
    srd(rWQ, sWW, 4, 7864320)
    for g in range(5):
        vm.issue(("x", g), f"buffer_load_ushort v{vX + g}, v{vT3}, s[{rX}:{rX + 3}], s3 offen offset:{16 * g}")
    ni = 0
    while ni < F0:
        issue(ni); ni += 1
    if rot:
        ra, rb, rc = rot // 10000 % 100, rot // 100 % 100, rot % 100
        e(f"s_and_b32 s7, s{sHH}, 7"); e(f"s_mul_i32 s{sROT}, s7, {ra}")
        e(f"s_mul_i32 s7, s{sS}, {rb}"); e(f"s_add_u32 s{sROT}, s{sROT}, s7")
        e(f"s_lshr_b32 s7, s{sHH}, 3"); e(f"s_mul_i32 s7, s7, {rc}"); e(f"s_add_u32 s{sROT}, s{sROT}, s7")
        e(f"s_and_b32 s{sROT}, s{sROT}, 31"); e(f"s_mul_i32 s{sROT}, s{sROT}, 12288")
    srd(rK, sKV, 5, 50331648)
    srd(rV, sKV + 2, 5, 50331648)
    common_consts()
    e(f"v_lshrrev_b32 v{vT0}, 5, v{vL}"); e(f"v_mul_u32_u24 v{vPW}, 768, v{vT0}")
    e(f"v_and_b32 v{vT0}, 7, v{vL}"); e(f"v_lshl_add_u32 v{vPW}, v{vT0}, 5, v{vPW}")
    e(f"v_bfe_u32 v{vT0}, v{vL}, 4, 1"); e(f"v_lshl_add_u32 v{vPW}, v{vT0}, 4, v{vPW}")
    e(f"s_mul_i32 s7, s{sW}, 1536"); e(f"v_add_u32 v{vPW}, s7, v{vPW}")
    e(f"s_mov_b32 s{sC}, {f2u(192 ** -0.5 * math.log2(math.e)):#x}")
    for g in range(32):
        e(f"v_mov_b32 v{vSC + g}, 0")
    e("s_barrier")
    if stamps == 2:
        stamp("w", "B0")
    vm.wait(("x", 4))
    if stamps == 2:
        stamp("w", "xdone")
    nc = 0

    def Flo(i):
        return F2 if (F2 and i >= V0 + 3 * G2) else F

    def Fof(i):
        if fb and i >= K0 + 3:
            return FH2 if (FH2 and i >= V0 + 3 * G2) else FH
        return Flo(i)

    ncond = [0]

    def pace():
        j = ni - Fof(ni)
        if j >= 0:
            vm.wait(j)
        j = ni - Flo(ni)
        if fb and ni < V0 + 3 * G3 and j >= 0 and j in vm.q:
            ncond[0] += 1
            e(f"s_cbranch_vccnz L_c{ncond[0]}")
            e(f"s_waitcnt vmcnt({len(vm.q) - 1 - vm.q.index(j)}) ; cond")
            e(f"L_c{ncond[0]}:")

    if fb:
        e("s_mov_b64 vcc, 0")

    while nc < K0:
        if ni - nc <= F:
            pace(); issue(ni); ni += 1
        consume(nc); nc += 1
    def qreads():
        e(f"ds_read_b32 v{vT1}, v{vZ} offset:{L_T + 4}")
        for t in range(3):
            e(f"ds_read_b128 {vr(vQ + 4 * t)}, v{vQR} offset:{t * 128}")
        e(f"ds_read_b32 v{vT}, v{vZ} offset:{L_T}")

    while ni < K0 + R:
        if qf and ni == K0 + R - 1:
            qreads()
        pace(); issue(ni); ni += 1
    stamp("w", "ringfull")
    if qf:
        e(f"s_mov_b32 s{sCNT}, 4000000")
        e("L_q:")
        e("s_waitcnt lgkmcnt(0)")
        e(f"v_readfirstlane_b32 s3, v{vT1}")
        e(f"s_sub_u32 s{sCNT}, s{sCNT}, 1")
        e("s_cbranch_scc1 L_qx")
        e("s_cmp_lg_u32 s3, 0")
        e("s_cbranch_scc1 L_qx")
        qreads()
        e("s_branch L_q")
        e("L_qx:")
        stamp("w", "qready")
    else:
        e("s_barrier")
        stamp("w", "qready")
        qreads()
        e("s_waitcnt lgkmcnt(0)")
    NH = min(N, O0 + H)
    while nc < O0:
        lag = ni - nc
        if ni < NH:
            if lag >= R:
                consume(nc); nc += 1
            pace(); issue(ni); ni += 1
            k = 0
            while nc < O0 and nc <= ni - 1 - Fof(ni - 1) and k < 2:
                consume(nc); nc += 1; k += 1
        else:
            consume(nc); nc += 1
    while ni < NH:
        pace(); issue(ni); ni += 1
    if cs:
        pair_addr()
    if ni < N:
        e(f"s_mov_b32 s{sCNT}, 4000000")
        e("L_h:")
        e(f"ds_read_b32 v{vT0}, v{vZ} offset:{L_H}")
        e(f"s_sub_u32 s{sCNT}, s{sCNT}, 1")
        e("s_cbranch_scc1 L_hx")
        e("s_waitcnt lgkmcnt(0)")
        e(f"v_readfirstlane_b32 s3, v{vT0}")
        e("s_cmp_eq_u32 s3, 0")
        e("s_cbranch_scc1 L_h")
        e("L_hx:")
    if FL:
        e("s_cmp_eq_u32 s3, 2")
    while ni < N:
        if ni - FW >= 0:
            vm.wait(ni - FW)
        if FL and ni - FL in vm.q:
            e(f"s_cbranch_scc1 L_w{ni}")
            e(f"s_waitcnt vmcnt({len(vm.q) - 1 - vm.q.index(ni - FL)}) ; cond")
            e(f"L_w{ni}:")
        issue(ni); ni += 1
    stamp("w", "woissued")
    e("L_tail:")
    e("s_barrier")
    stamp("w", "oready")
    for k in range(3):
        e(f"ds_read_b128 {vr(vQ + 4 * k)}, v{vOR} offset:{16 * k}")
    e("s_waitcnt lgkmcnt(0)")
    if cs:
        AB = (vA, vT0 - 1)
        for g in range(13):
            if g < 12:
                for r in range(4):
                    e(f"v_and_b32 v{AB[g & 1] + r}, v{vQ + g}, v{vM + r}")
            if g:
                vm.wait(O0 + g - 1)
                e(f"v_mfma_f32_16x16x32_bf16 {vr(vACC)}, {vr(AB[(g - 1) & 1])}, {vr(slot(O0 + g - 1))}, {vr(vACC) if g > 1 else 0}")
        for r in range(4):
            e(f"v_permlane32_swap_b32 v{vACC + r}, v{vQ + r}")
        for r in range(4):
            e(f"v_add_f32_dpp v{vACC + r}, v{vQ + r}, v{vACC + r} row_ror:8 {DPPM}")
        e(f"s_cmp_eq_u32 s{sW}, 0"); e("s_cbranch_scc1 L_pub")
        e(f"s_bitcmp1_b32 s{sW}, 0"); e("s_cbranch_scc1 L_fin")
        e("s_mov_b64 exec, 0x00ff00ff")
        e(f"ds_write_b128 v{vXA}, {vr(vACC)}")
        e("s_mov_b64 exec, 1")
        e(f"ds_write_b32 v{vXA}, v{vONE} offset:512")
        e("s_mov_b64 exec, -1")
        e(f"s_cmp_eq_u32 s{sW}, 4")
        e("s_cbranch_scc1 L_reduce")
        e("s_endpgm")
        e("L_fin:")
        e(f"s_mov_b32 s{sCNT}, 4000000")
        e("L_fs:")
        e(f"ds_read_b32 v{vT0}, v{vXA} offset:512")
        e(f"ds_read_b128 {vr(vQ)}, v{vXA}")
        e(f"s_sub_u32 s{sCNT}, s{sCNT}, 1")
        e("s_cbranch_scc1 L_fx")
        e("s_waitcnt lgkmcnt(1)")
        e(f"v_readfirstlane_b32 s3, v{vT0}")
        e("s_cmp_eq_u32 s3, 0")
        e("s_cbranch_scc1 L_fs")
        e("L_fx:")
        e("s_waitcnt lgkmcnt(0)")
        for r in range(4):
            e(f"v_add_f32 v{vACC + r}, v{vACC + r}, v{vQ + r}")
        e("L_pub:")
        e("s_nop 1")
        tag4(vA, vACC)
        e("s_mov_b64 exec, 0x00ff00ff")
    else:
        for g in range(12):
            afrag(vQ + g)
            vm.wait(O0 + g)
            mfma(vACC, slot(O0 + g), g == 0)
        tag4(vA, vACC)
        e("s_mov_b32 exec_hi, 0")
    if fq > 1:
        e(f"v_and_b32 v{vT0}, 15, v{vL}"); e(f"s_lshl_b32 s3, s{sW}, 4"); e(f"v_add_u32 v{vT0}, s3, v{vT0}")
        e(f"s_and_b32 s3, s{sS}, {fq - 1}"); e(f"s_mul_i32 s3, s3, {80 // fq}")
        e(f"v_subrev_u32 v{vT0}, s3, v{vT0}")
        e(f"v_mov_b32 v{vT1}, {80 // fq}")
        e(f"v_cmp_lt_u32 vcc, v{vT0}, v{vT1}")
        e("s_and_b64 exec, exec, vcc")
    e(f"buffer_store_dwordx4 {vr(vA)}, v{vPUB}, s[{rWS}:{rWS + 3}], 0 offen sc1")
    e("s_mov_b64 exec, -1")
    if not cs:
        e(f"s_cmp_eq_u32 s{sW}, 4")
        e("s_cbranch_scc1 L_reduce")
    stamp("w", "pub")

    def stamps_out(who):
        if not stamps:
            return
        base = 0 if who == "w" else 14
        e("s_waitcnt lgkmcnt(0)")
        e("s_lshl_b32 s3, s2, 8"); e("s_add_u32 s3, s3, 0x8000000")
        e(f"s_add_u32 s4, s{sWS}, s3"); e(f"s_addc_u32 s5, s{sWS + 1}, 0")
        for i in range(nst[who]):
            e(f"v_mov_b32 v{vA}, s{sST + 2 * i}"); e(f"v_mov_b32 v{vA + 1}, s{sST + 2 * i + 1}")
            e(f"global_store_dwordx2 v{vZ}, v[{vA}:{vA + 1}], s[4:5] offset:{8 * (base + i)}")
        if who == "s" and fb:
            e(f"v_mov_b32 v{vA}, s{sAUX}"); e(f"v_mov_b32 v{vA + 1}, s{sAUX + 1}")
            e(f"global_store_dwordx2 v{vZ}, v[{vA}:{vA + 1}], s[4:5] offset:{8 * 30}")
        if who == "w":
            e("s_getreg_b32 s6, hwreg(HW_REG_XCC_ID)"); e("s_getreg_b32 s7, hwreg(HW_REG_HW_ID)")
            e(f"v_mov_b32 v{vA}, s6"); e(f"v_mov_b32 v{vA + 1}, s7")
            e(f"global_store_dwordx2 v{vZ}, v[{vA}:{vA + 1}], s[4:5] offset:{8 * 31}")

    if stamps:
        e(f"s_cmp_lg_u32 s{sW}, {sw}"); e("s_cbranch_scc1 L_end")
        stamps_out("w")
    e("s_endpgm")

    vD = vSC
    vE1, vE2, vP1, vP2, vP3 = 44, 45, 46, 47, 48
    vG = 8
    vS = 12
    vOP = vACC + 4
    vR1, vR2 = slot(N + 2), slot(N + 2) + 1
    vQY, vSY = slot(N), slot(N + 1)
    e("L_service:")
    e("s_nop 4")
    if prio:
        e("s_setprio 3")
    e(f"v_mov_b32 v{vZ}, 0")
    for k in range(4):
        e(f"ds_write_b32 v{vZ}, v{vZ} offset:{L_F + 4 * k}")
    e(f"ds_write_b32 v{vZ}, v{vZ} offset:{L_T + 4}")
    for o in (L_X + 512, L_X + 768, L_H):
        e(f"ds_write_b32 v{vZ}, v{vZ} offset:{o}")
    e("s_waitcnt lgkmcnt(0)")
    e("s_barrier")
    common_consts()
    e(f"s_lshl_b32 s9, s{sB}, 7")
    e(f"buffer_load_dword v{vT}, v{vZ}, s[{rWS}:{rWS + 3}], s9 offen sc1")
    if fb:
        e(f"v_lshrrev_b32 v{vT0}, 4, v{vL}"); e(f"v_cmp_eq_u32 vcc, 1, v{vT0}")
        e(f"v_mov_b32 v{vT0}, 128"); e(f"v_cndmask_b32 v{vT0}, 0, v{vT0}, vcc")
        e(f"buffer_load_dword v{vPR}, v{vT0}, s[{rWS}:{rWS + 3}], 0 offen sc1")
    if not cs:
        srd(rOUT, sOUT, None, 2560)
    if warm:
        srd(rV, sKV + 2, 5, 50331648)
        e(f"buffer_load_dword v{vSC}, v{vZ}, s[{rOUT}:{rOUT + 3}], 0 offen")
        e(f"buffer_load_dword v{vSC + 1}, v{vZ}, s[{rV}:{rV + 3}], 0 offen nt")
        e(f"buffer_load_dword v{vSC + 2}, v{vZ}, s[{rWO}:{rWO + 3}], 0 offen nt")
    e(f"s_mov_b32 s{sSA}, 0x0c0c0400"); e(f"s_mov_b32 s{sSB}, 0x04000c0c"); e(f"s_mov_b32 s{sMASK}, 0xffffff00")
    e(f"s_lshl_b32 s7, s{sHH}, 2"); e(f"s_add_u32 s8, s7, s{sS}")
    e(f"v_lshlrev_b32 v{vE1}, 4, v{vL}")
    e(f"v_lshrrev_b32 v{vT0}, 4, v{vL}"); e(f"v_and_b32 v{vT1}, 15, v{vL}")
    e(f"v_mul_u32_u24 v{vP1}, 768, v{vT0}"); e(f"v_lshl_add_u32 v{vP1}, v{vT1}, 4, v{vP1}")
    e(f"s_mul_i32 s3, s7, 768"); e(f"s_add_u32 s3, s3, {A1}"); e(f"v_add_u32 v{vP1}, s3, v{vP1}")
    e(f"v_lshlrev_b32 v{vP3}, 10, v{vT0}")
    e(f"s_lshl_b32 s3, s7, 10"); e(f"s_add_u32 s3, s3, {A2}"); e(f"v_add_u32 v{vP3}, s3, v{vP3}")
    if cs:
        e(f"v_mov_b32 v{vT2}, v{vT1}")
        e(f"v_lshl_add_u32 v{vP2}, v{vT2}, 4, v{vP3}")
    else:
        e(f"v_min_u32 v{vT2}, 11, v{vT1}")
        e(f"s_mul_i32 s3, s{sS}, 192"); e(f"v_lshl_add_u32 v{vP2}, v{vT2}, 4, s3"); e(f"v_add_u32 v{vP2}, v{vP2}, v{vP3}")
    e(f"v_and_b32 v{vT3}, 1, v{vT0}"); e(f"v_lshlrev_b32 v{vT3}, 1, v{vT3}")
    e(f"v_lshrrev_b32 v{vT0}, 1, v{vT0}"); e(f"v_or_b32 v{vT3}, v{vT3}, v{vT0}")
    e(f"v_lshl_add_u32 v{vMX}, v{vT1}, 2, v{vT3}")
    e(f"v_lshlrev_b32 v{vMX}, 1, v{vMX}"); e(f"v_add_u32 v{vMX}, {L_Q}, v{vMX}")
    e(f"v_lshl_add_u32 v{vLS}, v{vT2}, 2, v{vT3}")
    e(f"v_lshlrev_b32 v{vLS}, 2, v{vLS}"); e(f"v_add_u32 v{vLS}, {L_O}, v{vLS}")
    if cs:
        pair_addr()
        e(f"s_lshr_b32 s3, s{sJB}, 3")
        e(f"s_lshr_b32 s4, s{sJB}, 5"); e("s_mul_i32 s4, s4, 5"); e("s_bfe_u32 s5, s3, 0x10001"); e("s_mul_i32 s5, s5, 3")
        e("s_add_u32 s4, s4, s5"); e("s_and_b32 s5, s3, 1"); e("s_add_u32 s4, s4, s5"); e("s_lshl_b32 s4, s4, 6")
        e(f"s_and_b32 s5, s{sJB}, 7"); e("s_lshl_b32 s6, s5, 3"); e("s_add_u32 s4, s4, s6")
        e("s_lshl_b32 s3, s3, 13"); e("s_lshl_b32 s5, s5, 5"); e("s_add_u32 s3, s3, s5")
        e(f"s_bfe_u32 s5, s{sJB}, 0x10004"); e("s_mul_i32 s6, s5, 320"); e("s_add_u32 s6, s6, 128")
        e(f"s_and_b32 s7, s{sJB}, 15"); e(f"s_lshl_b32 s{sCNT}, s7, 2"); e(f"s_add_u32 s6, s6, s{sCNT}")
        e("s_lshl_b32 s5, s5, 14"); e("s_lshl_b32 s7, s7, 4"); e("s_add_u32 s5, s5, s7"); e("s_add_u32 s5, s5, 65536")
        e(f"s_cmp_lt_u32 s{sJB}, 64"); e("s_cselect_b32 s3, s3, s5"); e("s_cselect_b32 s4, s4, s6")
        e("s_cselect_b32 s5, 1, 0")
        e(f"s_mul_i32 s6, s{sB}, 98304"); e("s_add_u32 s3, s3, s6"); e(f"s_add_u32 s3, s3, {A3}")
        e(f"v_lshrrev_b32 v{vR1}, s5, v{vL}"); e(f"v_lshlrev_b32 v{vR1}, 8, v{vR1}")
        e(f"v_and_b32 v{vR2}, s5, v{vL}"); e(f"v_lshl_add_u32 v{vR1}, v{vR2}, 4, v{vR1}"); e(f"v_add_u32 v{vR1}, s3, v{vR1}")
        e(f"v_lshl_add_u32 v{vR2}, v{vR2}, 2, v{vT3}")
        e(f"s_mul_i32 s6, s{sB}, 640"); e("s_add_u32 s4, s4, s6")
        e(f"v_add_u32 v{vR2}, s4, v{vR2}"); e(f"v_lshlrev_b32 v{vR2}, 1, v{vR2}")
    e(f"s_mul_i32 s4, s8, 768"); e(f"s_add_u32 s4, s4, {A1}")
    e(f"s_lshl_b32 s5, s8, 10"); e(f"s_add_u32 s5, s5, {A2}")
    e(f"s_add_u32 s6, s4, {DY}"); e(f"s_add_u32 s7, s5, {DY}")
    e("s_waitcnt vmcnt(0)")
    e(f"v_and_b32 v{vT0}, 0x7f7f7f7f, v{vT}"); e(f"v_add_u32 v{vT0}, 0x01010101, v{vT0}")
    e(f"v_and_b32 v{vT}, 0x80808080, v{vT}"); e(f"v_xor_b32 v{vT}, v{vT}, v{vT0}")
    e(f"ds_write_b32 v{vZ}, v{vT} offset:{L_T}")
    if fb:
        e(f"v_and_b32 v{vT0}, 0x7f7f7f7f, v{vPR}"); e(f"v_add_u32 v{vT0}, 0x01010101, v{vT0}")
        e(f"v_and_b32 v{vPR}, 0x80808080, v{vPR}"); e(f"v_xor_b32 v{vPR}, v{vPR}, v{vT0}")
        e(f"v_and_b32 v{vPR}, s{sMASK}, v{vPR}")
        if xs:
            e(f"v_and_b32 v{vTX}, 0xfffff000, v{vPR}")
        if xd:
            e(f"v_and_b32 v{vTX}, 0xfffff000, v{vPR}")
            e("s_mov_b32 exec_lo, 0")
            e(f"v_mov_b32 v{vPR}, v{vTX}")
            e("s_mov_b32 exec_lo, -1")
    if pre:
        for r in range(4):
            e(f"v_not_b32 v{vA + r}, v{vT}")
        e(f"buffer_store_dwordx4 {vr(vA)}, v{vE1}, s[{rWS}:{rWS + 3}], s5 offen")
        e("s_mov_b32 exec_hi, 0xffff")
        e(f"buffer_store_dwordx4 {vr(vA)}, v{vE1}, s[{rWS}:{rWS + 3}], s4 offen")
        e("s_mov_b32 exec_hi, -1")
    if codepf:
        pass
    ldsspin("L_f1", L_F, vT0)
    stamp("s", "s.f1")
    for p in range(8):
        e(f"ds_read_b128 {vr(vD + 4 * p)}, v{vE1} offset:{p * 768}")
    for p in range(1, 8):
        e(f"s_waitcnt lgkmcnt({7 - p})")
        for r in range(4):
            e(f"v_add_f32 v{vD + r}, v{vD + r}, v{vD + 4 * p + r}")
    def ypub(n):
        if n == 1 or lazy:
            publish(vQY, vE1, 4, 0, 0, 1)
        if n == 2 or (lazy and n > 2):
            publish(vSY, vZ, 5, 768, 1, 1)
        if n == 3:
            publish(vOP, vE1, 5, 0, 0, 1)

    tag4(vQY, vD)
    publish(vQY, vE1, 4, 0, 0, 0 if xp else 1)
    stamp("s", "s.qpub")
    poll("L_p1", [f"buffer_load_dwordx4 {vr(vD + 4 * t)}, v{vP1}, s[{rWS}:{rWS + 3}], s{sPO} offen offset:{256 * t} sc1" for t in range(3)],
         [vD + 4 * t for t in range(3)], vT0, lambda: ypub(1))
    if xp and not lazy:
        ypub(1)
    stamp("s", "s.qpoll")
    for t in range(3):
        treduce(vD + 4 * t)
    for t in range(3):
        e(f"v_cvt_pk_bf16_f32 v{vD + 4 * t}, v{vD + 4 * t}, v{vD + 4 * t}")
    for t in range(3):
        e(f"ds_write_b16 v{vMX}, v{vD + 4 * t} offset:{128 * t}")
    if qf:
        e(f"ds_write_b32 v{vZ}, v{vONE} offset:{L_T + 4}")
    else:
        e("s_waitcnt lgkmcnt(0)")
        e("s_barrier")
    for g in range(12):
        e(f"s_mov_b32 s{sOFF}, {(g // 4) * 5120}")
        e(f"buffer_load_dwordx4 {vr(slot(O0 + g))}, v{vWO}, s[{rWO}:{rWO + 3}], s{sOFF} offen offset:{(g % 4) * 1280} {fl}")
    if fb:
        e("s_and_b32 s3, s2, 7"); e("s_mul_i32 s3, s3, 4352"); e(f"s_add_u32 s3, s3, {A4}")
        e(f"s_lshr_b32 s{sK}, s2, 3")
        e(f"v_and_b32 v{vT0}, 31, v{vL}"); e(f"v_lshl_add_u32 v{vE2}, v{vT0}, 2, s3")
        e(f"s_lshl_b32 s{sSL}, s{sK}, 2"); e(f"s_add_u32 s{sSL}, s{sSL}, s3")
        if xd:
            e(f"s_add_u32 s{sDL}, s3, 128"); e(f"s_add_u32 s{sXL}, s3, {16 * 4352}")
            e(f"s_and_b32 s{sD}, s2, 7"); e(f"s_cmp_eq_u32 s{sD}, s{sK}"); e(f"s_cselect_b32 s{sLEAD}, 0xff, 0")
            e(f"v_mov_b32 v{vLIM}, 64")
            e("s_mov_b32 exec_lo, 0")
            e(f"v_mov_b32 v{vLIM}, 0"); e(f"v_mov_b32 v{vE2}, s{sDL}")
            e("s_mov_b32 exec_hi, 0x10000")
            e(f"v_mov_b32 v{vLIM}, 4096")
            e(f"s_mov_b32 exec_hi, s{sLEAD}")
            e(f"v_mov_b32 v{vLIM}, 4096")
            if xt != 1:
                e(f"v_mul_u32_u24 v{vE2}, 4352, v{vT0}"); e(f"v_add_u32 v{vE2}, {A4 + 16 * 4352}, v{vE2}")
            e("s_mov_b64 exec, -1")
        if xs:
            e(f"s_mul_i32 s{sPUB}, s{sK}, {xdn}"); e(f"s_add_u32 s{sPUB}, s{sPUB}, {xn}")
            e(f"s_cmp_lt_u32 s{sK}, {xs}"); e(f"s_cselect_b32 s{sPUB}, s{sPUB}, 0x7fffffff")
            e(f"s_mov_b32 s{sRD}, {xn + xdl}"); e(f"s_mov_b32 s{sXO}, {AX}")
            e(f"s_mov_b32 s{sBI}, 0"); e(f"s_mov_b32 s{sINT}, 0")
            e(f"s_and_b32 s{sXW}, s2, 63"); e(f"s_lshl_b32 s{sXW}, s{sXW}, 8"); e(f"s_add_u32 s{sXW}, s{sXW}, {AX}")
            e(f"v_lshlrev_b32 v{vLIM}, 8, v{vL}")
        e(f"s_mov_b32 s{sN}, 0")
        e(f"s_and_b32 s3, s{sK}, {(1 << IL) - 1}"); e(f"s_add_u32 s{sTH}, s3, {TH0}")
        e(f"s_mov_b32 s{sCc}, 0"); e(f"s_mov_b64 s[{sAUX}:{sAUX + 1}], 0")
        fbspin("L_f2", 1, vD, vE2)
    else:
        ldsspin("L_f2", L_F + 4, vT0)
    stamp("s", "s.f2")
    e(f"ds_read_b128 {vr(vS)}, v{vZ} offset:{L_ST}")
    e(f"ds_read_b128 {vr(vS + 4)}, v{vZ} offset:{L_ST + 16}")
    e("s_waitcnt lgkmcnt(0)")
    e(f"v_max_f32 v{vT0}, v{vS}, v{vS + 2}"); e(f"v_max3_f32 v{vT0}, v{vT0}, v{vS + 4}, v{vS + 6}")
    for w in range(4):
        e(f"v_sub_f32 v{vG + w}, v{vS + 2 * w}, v{vT0}")
    for w in range(4):
        e(f"v_exp_f32 v{vG + w}, v{vG + w}")
    e(f"v_mul_f32 v{vD + 2}, v{vG}, v{vS + 1}")
    for w in range(1, 4):
        e(f"v_fma_f32 v{vD + 2}, v{vG + w}, v{vS + 2 * w + 1}, v{vD + 2}")
    e(f"v_and_b32 v{vD}, s{sMASK}, v{vT0}"); e(f"v_sub_f32 v{vD + 1}, v{vT0}, v{vD}")
    if xc:
        e(f"s_getreg_b32 s{sMIS}, hwreg(HW_REG_XCC_ID, 0, 16)"); e(f"s_lshl_b32 s{sMIS}, s{sMIS}, 8")
        e(f"v_mov_b32 v{vD + 3}, s{sMIS}")
    else:
        e(f"v_mov_b32 v{vD + 3}, 0")
    tag4(vSY, vD)
    publish(vSY, vZ, 5, 768, 1, 0 if xp else 1)
    if fb and dp:
        fbspin("L_f2b", None, vD + 4, vE2)
        e("s_waitcnt lgkmcnt(0)")
    poll("L_p2", [f"buffer_load_dwordx4 {vr(vD)}, v{vP3}, s[{rWS}:{rWS + 3}], s{sPO} offen offset:768 sc1"], [vD], vT0,
         lambda: ypub(2))
    if xp and not lazy:
        ypub(2)
    stamp("s", "s.stpoll")
    if xc:
        e(f"v_cmp_ne_u32 vcc, s{sMIS}, v{vD + 3}")
        e(f"s_or_b32 s{sMIS}, vcc_lo, vcc_hi")
    e(f"v_add_f32 v{vD}, v{vD}, v{vD + 1}")
    e(f"v_mov_b32 v{vD + 1}, v{vD}")
    allrows("v_max_f32", vD + 1, vT0)
    e(f"v_sub_f32 v{vD}, v{vD}, v{vD + 1}"); e(f"v_exp_f32 v{vD}, v{vD}")
    e(f"v_mul_f32 v{vD}, v{vD}, v{vD + 2}")
    allrows("v_add_f32", vD, vT0)
    e(f"v_rcp_f32 v{vD}, v{vD}")
    for w in range(4):
        e(f"v_sub_f32 v{vG + w}, v{vS + 2 * w}, v{vD + 1}")
    for w in range(4):
        e(f"v_exp_f32 v{vG + w}, v{vG + w}")
    for w in range(4):
        e(f"v_mul_f32 v{vG + w}, v{vG + w}, v{vD}")
    if fb and not dp:
        fbspin("L_f3", 2, vD + 4, vE2)
    else:
        ldsspin("L_f3", L_F + 8, vT0)
    stamp("s", "s.f3")
    for p in range(8):
        e(f"ds_read_b128 {vr(vD + 4 * p)}, v{vE1} offset:{p * 768}")
    for w in range(4):
        e(f"s_waitcnt lgkmcnt({6 - 2 * w})")
        for r in range(4):
            e(f"v_add_f32 v{vD + 8 * w + r}, v{vD + 8 * w + r}, v{vD + 8 * w + 4 + r}")
        for r in range(4):
            if w == 0:
                e(f"v_mul_f32 v{vD + r}, v{vG}, v{vD + r}")
            else:
                e(f"v_fma_f32 v{vD + r}, v{vG + w}, v{vD + 8 * w + r}, v{vD + r}")
    tag4(vOP, vD)
    publish(vOP, vE1, 5, 0, 0, 0 if xp else 1)
    if xc:
        e(f"s_cmp_eq_u32 s{sMIS}, 0"); e("s_cbranch_scc1 L_same")
        ypub(3)
        e("L_same:")
    stamp("s", "s.opub")
    nt_ = 3 if cs else 1
    if FL:
        e(f"s_cmp_ge_i32 s{sCc}, {cth}"); e("s_cselect_b32 s3, 2, 1"); e(f"v_mov_b32 v{vONE}, s3")
    poll("L_p3", [f"buffer_load_dwordx4 {vr(vD + 4 * t)}, v{vP2}, s[{rWS}:{rWS + 3}], s{sPO} offen offset:{256 * t} sc1" for t in range(nt_)]
         + ([f"ds_write_b32 v{vZ}, v{vONE} offset:{L_H}"] if H < 12 else []),
         [vD + 4 * t for t in range(nt_)], vT0, lambda: ypub(3))
    stamp("s", "s.opoll")
    for t in range(nt_):
        treduce(vD + 4 * t)
    for t in range(nt_):
        e(f"v_cvt_pk_bf16_f32 v{vD + 4 * t}, v{vD + 4 * t}, v{vD + 4 * t}")
    for t in range(nt_):
        e(f"ds_write_b32 v{vLS}, v{vD + 4 * t} offset:{256 * t}")
    e("s_waitcnt lgkmcnt(0)")
    if stamps:
        for i in range(nst["s"]):
            e(f"v_mov_b32 v{vSC + 2 * i}, s{sST + 2 * i}"); e(f"v_mov_b32 v{vSC + 2 * i + 1}, s{sST + 2 * i + 1}")
    e("s_branch L_tail")
    e("L_reduce:")
    e("s_nop 4")
    if xp and not xc:
        publish(vOP, vE1, 5, 0, 0, 1)
    if stamps:
        for i in range(nst["s"]):
            e(f"v_readfirstlane_b32 s{sST + 2 * i}, v{vSC + 2 * i}"); e(f"v_readfirstlane_b32 s{sST + 2 * i + 1}, v{vSC + 2 * i + 1}")
    stamp("s", "s.pub")
    if cs:
        e(f"s_cmp_ge_u32 s{sJB}, 96")
        e("s_cbranch_scc1 L_sdone")
        if pp:
            ppoll("L_p4", lambda d: f"buffer_load_dwordx4 {vr(d)}, v{vR1}, s[{rWS}:{rWS + 3}], 0 offen sc1",
                  [slot(O0 + k) for k in range(pp)], vD, vT0)
        else:
            poll("L_p4", [f"buffer_load_dwordx4 {vr(vD)}, v{vR1}, s[{rWS}:{rWS + 3}], 0 offen sc1"], [vD], vT0)
        stamp("s", "s.fpoll")
        treduce(vD)
        e(f"v_add_f32_dpp v{vD}, v{vD}, v{vD} quad_perm:[2,3,0,1] {DPPM}")
        e(f"v_add_f32_dpp v{vD}, v{vD}, v{vD} row_ror:4 {DPPM}")
        e(f"v_add_f32_dpp v{vD}, v{vD}, v{vD} row_ror:8 {DPPM}")
        e("s_mov_b32 s3, 0x00030003")
        e(f"s_cmp_lt_u32 s{sJB}, 64")
        e("s_cbranch_scc1 L_r8")
        e("s_mov_b32 s3, 0x00010001")
        e(f"v_add_f32_dpp v{vD}, v{vD}, v{vD} quad_perm:[1,0,3,2] {DPPM}")
        e("L_r8:")
        e(f"v_cvt_pk_bf16_f32 v{vD}, v{vD}, v{vD}")
        e("s_mov_b32 exec_lo, s3"); e("s_mov_b32 exec_hi, s3")
        e(f"buffer_store_short v{vD}, v{vR2}, s[{rOUT}:{rOUT + 3}], 0 offen")
    else:
        e(f"s_cmp_ge_u32 s{sJB}, 80")
        e("s_cbranch_scc1 L_sdone")
        e(f"v_lshrrev_b32 v{vT0}, 1, v{vL}"); e(f"v_mul_u32_u24 v{vP1}, {2560 * fq}, v{vT0}")
        if fq > 1:
            e(f"s_mul_i32 s3, s{sJB}, {(1 << 16) // (80 // fq) + 1}"); e("s_lshr_b32 s3, s3, 16"); e("s_mul_i32 s3, s3, 2560")
            e(f"v_add_u32 v{vP1}, s3, v{vP1}")
        e(f"v_and_b32 v{vT1}, 1, v{vL}"); e(f"v_lshl_add_u32 v{vP1}, v{vT1}, 4, v{vP1}")
        e(f"s_mul_i32 s3, s{sB}, {128 * 2560}"); e(f"s_lshl_b32 s4, s{sJB}, 5"); e("s_add_u32 s3, s3, s4"); e(f"s_add_u32 s3, s3, {A3}")
        e(f"v_add_u32 v{vP1}, s3, v{vP1}")
        for k in range(1, 4):
            e(f"s_mov_b32 s{4 + k}, {k * 32 * 2560 * fq}")
        e(f"v_bfe_u32 v{vT0}, v{vL}, 4, 1"); e(f"v_lshlrev_b32 v{vT0}, 1, v{vT0}")
        e(f"v_lshrrev_b32 v{vT2}, 5, v{vL}"); e(f"v_or_b32 v{vT0}, v{vT0}, v{vT2}")
        e(f"v_lshl_add_u32 v{vT0}, v{vT1}, 2, v{vT0}")
        e(f"s_mul_i32 s3, s{sB}, 640"); e(f"s_lshl_b32 s4, s{sJB}, 3"); e("s_add_u32 s3, s3, s4")
        e(f"v_add_u32 v{vP2}, s3, v{vT0}"); e(f"v_lshlrev_b32 v{vP2}, 1, v{vP2}")
        poll("L_p4", [f"buffer_load_dwordx4 {vr(vD + 4 * k)}, v{vP1}, s[{rWS}:{rWS + 3}], {'0' if k == 0 else 's' + str(4 + k)} offen sc1" for k in range(4 // fq)],
             [vD + 4 * k for k in range(4 // fq)], vT0)
        stamp("s", "s.fpoll")
        for r in range(4):
            e(f"v_add_f32 v{vD + r}, v{vD + r}, v{vD + 4 + r}")
            e(f"v_add_f32 v{vD + 8 + r}, v{vD + 8 + r}, v{vD + 12 + r}")
        for r in range(4):
            e(f"v_add_f32 v{vD + r}, v{vD + r}, v{vD + 8 + r}")
        treduce(vD)
        e(f"v_add_f32_dpp v{vD}, v{vD}, v{vD} quad_perm:[2,3,0,1] {DPPM}")
        e(f"v_add_f32_dpp v{vD}, v{vD}, v{vD} row_ror:4 {DPPM}")
        e(f"v_add_f32_dpp v{vD}, v{vD}, v{vD} row_ror:8 {DPPM}")
        e(f"v_cvt_pk_bf16_f32 v{vD}, v{vD}, v{vD}")
        e("s_mov_b32 exec_lo, 0x00030003"); e("s_mov_b32 exec_hi, 0x00030003")
        e(f"buffer_store_short v{vD}, v{vP2}, s[{rOUT}:{rOUT + 3}], 0 offen")
    e(f"s_cmp_lg_u32 s{sJB}, 0")
    e("s_cbranch_scc1 L_sdone")
    e("s_mov_b64 exec, 1")
    e(f"buffer_store_dword v{vT}, v{vZ}, s[{rWS}:{rWS + 3}], s9 offen sc1")
    e("L_sdone:")
    e("s_mov_b64 exec, -1")
    if stamps:
        e("s_waitcnt vmcnt(0)")
    stamp("s", "s.end")
    stamps_out("s")
    e("L_end:")
    e("s_endpgm")

    body, nops = resolve(L)
    nv = vRING + 4 * R
    out = [HDR.rstrip("\n"),
           f"; @launch grid=(256,1,1) block=(320,1,1) lds={LDS}"]
    if stamps:
        out.append("; @stamps " + ",".join(f"{i}={n}" for i, n in names))
    out += ['.amdgcn_target "amdgcn-amd-amdhsa--gfx950"', ".text", f".globl {KN}", ".p2align 8",
            f".type {KN},@function", f"{KN}:"]
    out += [("" if t.endswith(":") else "    ") + t for t in body]
    out += ['.section .rodata,"a"', ".p2align 6", f".amdhsa_kernel {KN}",
            f"  .amdhsa_next_free_vgpr {nv}", "  .amdhsa_next_free_sgpr 102",
            f"  .amdhsa_accum_offset {(nv + 3) // 4 * 4}",
            "  .amdhsa_group_segment_fixed_size 0", "  .amdhsa_kernarg_size 104",
            "  .amdhsa_user_sgpr_count 2", "  .amdhsa_user_sgpr_kernarg_segment_ptr 1",
            "  .amdhsa_system_sgpr_workgroup_id_x 1", ".end_amdhsa_kernel"]
    return "\n".join(out) + "\n", nops


if __name__ == "__main__":
    outp = sys.argv[1]
    kw = {}
    for a in sys.argv[2:]:
        k, v = a.split("=")
        kw[k] = int(v) if v.lstrip("-").isdigit() else v.replace("+", " ")
    s, nops = gen(**kw)
    open(outp, "w").write(s)
    print(outp, "lines", s.count("\n"), "nop states", nops)
```

```python
import sys, math, struct
from asmlib import resolve, VM

KN = "concat_heads__mha_block_cached__gqa_block_cached__decode_kernel"
HDR = open("concat_heads__mha_block_cached__gqa_block_cached__decode.s.ref").read().split("; Override launch")[0]

A1 = 4096
A2 = A1 + 256 * 768
A3 = A2 + 256 * 1024
A4 = A3 + 256 * 2560
AY = A4 + 256 * 4352
DY = AY - A1
WS_USED = AY + A3 - A1
L_P = 0
L_Q = 6144
L_T = 6528
L_F = 6544
L_ST = 6560
L_O = 6592
L_X = 7360
L_H = L_X + 516
LDS = 8448

sS, sHH, sB, sH, sW, sJB = 10, 11, 12, 13, 14, 15
sX, sMASK, sCNT = 16, 18, 19
sKV, sWW, sOUT, sWS = 20, 24, 28, 30
rX, rWQ, rK, rV, rWO, rWS, rOUT = 32, 36, 40, 44, 48, 52, 56
sOFF, sC = 60, 61
sSEL = 62
sSA, sSB = 66, 67
sROT = 100
sPO = 101
rDBG = 96
sRH = 98
sMIS = 99
sST = 68

vL, vKV, vWQ, vWO = 0, 1, 2, 3
vM = 4
vQ = 8
vACC = 20
vA = 32
vT = 36
vPW, vQR, vOR, vPUB = 37, 38, 39, 40
vMX, vLS, vNM = 41, 42, 43
vX = 44
vT0, vT1, vT2, vT3 = 49, 50, 51, 52
vZ, vONE, vPR = 53, 54, 55
vSC = 56
vRING = 88


def f2u(x):
    return struct.unpack("<I", struct.pack("<f", x))[0]


def gen(probe=0, amp=10, qd=0, op=0, osl=0, mp=0, xf=0, FL=0, cth=1, xs=0, xn=2, xdn=4, xdl=2, xa=1, xi=0, xsh=4, BM=20, tb=0, ns='', pp=0, pth=8, dry=0, cs=0, sw=0, xc=0, H=99, FW=12, dp=0, fq=1, nost=0, lazy=0, xt=0, xd=0, xg=1, xb=18, XM=64, F=6, F0=6, F2=0, G2=99, rot=0, R=27, fl="nt", stamps=0, prio=1, codepf=0, pk=2, warm=0, qf=0, fb=0, FH=8, FH2=0, G3=99, TH0=48, THL=232, ksh=1, CM=4, bias=1, cb=0, xp=0, N0=32, IL=4, pre=0, nopoll=0, skip=0, dummy=0):
    L = []
    e = L.append
    names = []
    nst = {"w": 0, "s": 0}

    def stamp(who, name):
        if not stamps or name in ns.split() or (stamps == 2 and name in ("woissued", "oready", "pub")):
            return
        i = nst[who]
        assert i < 14
        nst[who] += 1
        e(f"s_memrealtime s[{sST + 2 * i}:{sST + 2 * i + 1}]")
        names.append((i + (0 if who == "w" else 14), name))

    def srd(d, base, off, size):
        if off is None:
            e(f"s_mov_b32 s{d}, s{base}"); e(f"s_mov_b32 s{d + 1}, s{base + 1}")
            e(f"s_mov_b32 s{d + 2}, {size}")
        else:
            e(f"s_add_u32 s{d}, s{base}, s{off}"); e(f"s_addc_u32 s{d + 1}, s{base + 1}, 0")
            e(f"s_sub_u32 s{d + 2}, {size}, s{off}")
        e(f"s_mov_b32 s{d + 3}, 0x20000")

    def slot(i):
        return vRING + 4 * (i % R)

    def vr(a, n=4):
        return f"v[{a}:{a + n - 1}]"

    DPPM = "row_mask:0xf bank_mask:0xf"

    def allrows(op, v, t):
        e(f"v_mov_b32 v{t}, v{v}")
        e(f"v_permlane16_swap_b32 v{v}, v{t}")
        e(f"{op} v{v}, v{v}, v{t}")
        e(f"v_mov_b32 v{t}, v{v}")
        e(f"v_permlane32_swap_b32 v{v}, v{t}")
        e(f"{op} v{v}, v{v}, v{t}")

    def treduce(d):
        e(f"v_permlane32_swap_b32 v{d}, v{d + 1}")
        e(f"v_permlane32_swap_b32 v{d + 2}, v{d + 3}")
        e(f"v_add_f32 v{d}, v{d}, v{d + 1}")
        e(f"v_add_f32 v{d + 2}, v{d + 2}, v{d + 3}")
        e(f"v_permlane16_swap_b32 v{d}, v{d + 2}")
        e(f"v_add_f32 v{d}, v{d}, v{d + 2}")

    def tag4(dst, src):
        for r in range(4):
            e(f"v_perm_b32 v{dst + r}, v{src + r}, v{vT}, s{sSEL + r}")

    def poll(label, loads, units, tmp, dual=None):
        e(f"s_mov_b32 s{sCNT}, {1 if nopoll >> (4 - int(label[-1])) & 1 else 400000}")
        if dual:
            e(f"s_mov_b32 s{sPO}, {0 if xp else DY}")
        e(f"{label}:")
        e("s_nop 1")
        for t in loads:
            if not skip >> (4 - int(label[-1])) & 1:
                e(t)
        e(f"s_sub_u32 s{sCNT}, s{sCNT}, 1")
        if dual and xp:
            e(f"s_cmp_lg_u32 s{sCNT}, {400000 - N0}"); e(f"s_cbranch_scc1 {label}_y")
            dual()
            e(f"{label}_y:")
            e(f"s_cmp_lt_u32 s{sCNT}, {400000 - N0}"); e(f"s_cselect_b32 s3, {DY}, 0"); e(f"s_xor_b32 s{sPO}, s{sPO}, s3")
        e("s_waitcnt vmcnt(0)")
        for k, u in enumerate(units):
            e(f"v_perm_b32 v{tmp}, v{u + 1}, v{u}, s{sSA}")
            e(f"v_perm_b32 v{tmp + 1}, v{u + 3}, v{u + 2}, s{sSB}")
            e(f"v_or_b32 v{tmp}, v{tmp}, v{tmp + 1}")
            if k == 0:
                e(f"v_xor_b32 v{tmp + 2}, v{tmp}, v{vT}")
            else:
                e(f"v_xor_b32 v{tmp}, v{tmp}, v{vT}")
                e(f"v_or_b32 v{tmp + 2}, v{tmp + 2}, v{tmp}")
        e(f"v_cmp_ne_u32 vcc, 0, v{tmp + 2}")
        e(f"s_cmp_eq_u32 s{sCNT}, 0")
        e(f"s_cbranch_scc1 {label}_x")
        e(f"s_cbranch_vccnz {label}")
        e(f"{label}_x:")
        for u in units:
            for r in range(4):
                e(f"v_and_b32 v{u + r}, s{sMASK}, v{u + r}")

    def ppoll(label, load, bufs, res, tmp):
        def check(src):
            if src != res:
                for r in range(4):
                    e(f"v_mov_b32 v{res + r}, v{src + r}")
            e(f"v_perm_b32 v{tmp}, v{src + 1}, v{src}, s{sSA}")
            e(f"v_perm_b32 v{tmp + 1}, v{src + 3}, v{src + 2}, s{sSB}")
            e(f"v_or_b32 v{tmp}, v{tmp}, v{tmp + 1}")
            e(f"v_cmp_ne_u32 vcc, v{tmp}, v{vT}")
        n = len(bufs)
        e(f"s_mov_b32 s{sCNT}, 400000")
        e(f"{label}:")
        e(load(res))
        e("s_waitcnt vmcnt(0)")
        check(res)
        e(f"s_sub_u32 s{sCNT}, s{sCNT}, 1")
        e(f"s_cbranch_scc1 {label}_x")
        e("s_and_b64 exec, exec, vcc")
        e(f"s_cbranch_scc0 {label}_x")
        if n > 1:
            e("s_bcnt1_i32_b64 s3, exec")
            e(f"s_cmp_gt_u32 s3, {pth}")
        e(f"s_cbranch_scc1 {label}")
        if n > 1:
            for k in range(n - 1):
                e(load(bufs[k]))
            e(f"{label}_f:")
            for k in range(n):
                e(load(bufs[(k + n - 1) % n]))
                e(f"s_waitcnt vmcnt({n - 1})")
                check(bufs[k])
                e("s_and_b64 exec, exec, vcc")
                e(f"s_cbranch_scc0 {label}_x")
            e(f"s_sub_u32 s{sCNT}, s{sCNT}, 1")
            e(f"s_cbranch_scc0 {label}_f")
        e(f"{label}_x:")
        e("s_mov_b64 exec, -1")
        for r in range(4):
            e(f"v_and_b32 v{res + r}, s{sMASK}, v{res + r}")

    def mpoll(label, loads, units, tmp, first=()):
        e(f"s_mov_b32 s{sCNT}, 400000")
        e(f"s_mov_b32 s{sPO}, {DY}")
        for t in loads:
            e(t)
        for t in first:
            e(t)
        e(f"{label}:")
        e("s_waitcnt vmcnt(0)")
        for k, u in enumerate(units):
            e(f"v_perm_b32 v{tmp}, v{u + 1}, v{u}, s{sSA}")
            e(f"v_perm_b32 v{tmp + 1}, v{u + 3}, v{u + 2}, s{sSB}")
            e(f"v_or_b32 v{tmp}, v{tmp}, v{tmp + 1}")
            if k == 0:
                e(f"v_xor_b32 v{tmp + 2}, v{tmp}, v{vT}")
            else:
                e(f"v_xor_b32 v{tmp}, v{tmp}, v{vT}")
                e(f"v_or_b32 v{tmp + 2}, v{tmp + 2}, v{tmp}")
        e(f"v_cmp_ne_u32 vcc, 0, v{tmp + 2}")
        e(f"s_sub_u32 s{sCNT}, s{sCNT}, 1")
        e(f"s_cbranch_scc1 {label}_x")
        e("s_and_b64 exec, exec, vcc")
        e(f"s_cbranch_scc0 {label}_x")
        if osl:
            e(f"s_sleep {osl}")
        for t in loads:
            e(t)
        e(f"s_branch {label}")
        e(f"{label}_x:")
        e("s_mov_b64 exec, -1")
        for u in units:
            for r in range(4):
                e(f"v_and_b32 v{u + r}, s{sMASK}, v{u + r}")

    def publish(src, vaddr, sx, off, one, y):
        o = f" offset:{off}" if off else ""
        e("s_mov_b64 exec, 1" if one else "s_mov_b32 exec_hi, 0xffff")
        e(f"buffer_store_dwordx4 {vr(src)}, v{vaddr}, s[{rWS}:{rWS + 3}], s{sx + 2 * y} offen{o}" + (" sc1" if y else ""))
        e("s_mov_b64 exec, -1")

    def ldsspin(label, off, tmp):
        e(f"s_mov_b32 s{sCNT}, 4000000")
        e(f"{label}:")
        e(f"ds_read_b32 v{tmp}, v{vZ} offset:{off}")
        e(f"s_sub_u32 s{sCNT}, s{sCNT}, 1")
        e("s_waitcnt lgkmcnt(0)")
        e(f"v_readfirstlane_b32 s3, v{tmp}")
        e(f"s_cmp_eq_u32 s{sCNT}, 0")
        e(f"s_cbranch_scc1 {label}_x")
        e("s_cmp_lt_u32 s3, 4")
        e(f"s_cbranch_scc1 {label}")
        e(f"{label}_x:")

    sN, sSL, sCc, sTH, sP, sK, sAUX = 32, 33, 34, 35, 36, 37, 38
    sD, sXL, sDL, sLEAD = 40, 41, 42, 43
    vLIM, vTX = 37, 38
    sPUB, sRD, sXO, sBI, sTM, sINT, sXW = 40, 41, 42, 43, 44, 46, 47
    AX = A4 + 16 * 4352

    def fbspin(label, k, tmp, vad):
        e(f"s_mov_b32 s{sCNT}, 4000000")
        e(f"{label}:")
        e(f"ds_read_b128 {vr(tmp)}, v{vZ} offset:{L_F}")
        e(f"s_sub_u32 s{sCNT}, s{sCNT}, 1")
        e(f"s_cbranch_scc1 {label}_x")
        if k is None:
            e(f"s_cmp_eq_u32 s{sTH}, 0x7fffffff")
            e(f"s_cbranch_scc1 {label}_x")
        e("s_waitcnt lgkmcnt(0)")
        if k is not None:
            e(f"v_readfirstlane_b32 s3, v{tmp + k}")
        e(f"v_readfirstlane_b32 s{sP}, v{tmp + 3}")
        if k is not None:
            e("s_cmp_ge_u32 s3, 4")
            e(f"s_cbranch_scc1 {label}_x")
        e(f"s_sub_i32 s{sP}, s{sP}, s{sCc}")
        e(f"s_cmp_lt_i32 s{sP}, s{sTH}")
        e(f"s_cbranch_scc1 {label}")
        e(f"s_sub_i32 s{sK}, s{sP}, s{sTH}"); e(f"s_lshr_b32 s{sK}, s{sK}, {IL}"); e(f"s_add_u32 s{sK}, s{sK}, 1")
        e(f"s_add_u32 s{sN}, s{sN}, s{sK}")
        if xs:
            e(f"s_cmp_ge_u32 s{sN}, s{sPUB}"); e(f"s_cbranch_scc0 {label}_a")
            e(f"s_memrealtime s[{sTM}:{sTM + 1}]")
            e(f"{label}_a:")
        e(f"v_and_b32 v{tmp}, s{sMASK}, v{vT}"); e(f"v_or_b32 v{tmp + 1}, s{sN}, v{tmp}")
        e(f"buffer_load_dword v{tmp + 2}, v{vad}, s[{rWS}:{rWS + 3}], 0 offen sc1")
        e("s_mov_b64 exec, 1")
        if nost:
            e(f"buffer_load_dword v{tmp + 1}, v{vZ}, s[{rWS}:{rWS + 3}], s{sSL} offen sc1")
        else:
            e(f"buffer_store_dword v{tmp + 1}, v{vZ}, s[{rWS}:{rWS + 3}], s{sSL} offen")
        e("s_mov_b64 exec, -1")
        e(f"s_lshl_b32 s{sK}, s{sK}, {IL}"); e(f"s_add_u32 s{sTH}, s{sTH}, s{sK}")
        e(f"s_cmp_gt_i32 s{sTH}, {THL + (1 << IL) - 1}"); e(f"s_cselect_b32 s{sTH}, 0x7fffffff, s{sTH}")
        if xs:
            e(f"s_cmp_ge_u32 s{sN}, s{sRD}"); e(f"s_cbranch_scc0 {label}_b")
            e("s_mov_b64 exec, 0xff")
            e(f"buffer_load_dword v{tmp + 3}, v{vLIM}, s[{rWS}:{rWS + 3}], s{sXO} offen sc1")
            e(f"s_add_u32 s{sRD}, s{sRD}, {xdn}"); e(f"s_add_u32 s{sXO}, s{sXO}, 2048")
            e(f"s_cmp_ge_u32 s{sXO}, {AX + 2048 * xs}"); e(f"s_cselect_b32 s{sRD}, 0x7fffffff, s{sRD}")
            e("s_and_b32 s3, s2, 7")
            e("s_waitcnt vmcnt(0)")
            e(f"v_xor_b32 v{tmp + 3}, v{tmp + 3}, v{vTX}")
            e(f"v_cmp_gt_u32 vcc, 0x1000, v{tmp + 3}")
            e(f"v_readlane_b32 s3, v{tmp + 3}, s3")
            e("s_cmp_eq_u32 vcc_lo, 0xff"); e(f"s_cbranch_scc0 {label}_b")
            e(f"v_sub_u32 v{tmp + 3}, s3, v{tmp + 3}")
            e(f"v_bfe_i32 v{tmp + 3}, v{tmp + 3}, 0, 12")
            for m in ("quad_perm:[1,0,3,2]", "quad_perm:[2,3,0,1]", "row_half_mirror"):
                e(f"v_add_u32_dpp v{tmp + 3}, v{tmp + 3}, v{tmp + 3} {m} {DPPM}")
            e(f"v_readfirstlane_b32 s3, v{tmp + 3}")
            if xi:
                e(f"s_mul_i32 s{sBI}, s3, {xi}"); e(f"s_add_i32 s{sINT}, s{sINT}, s{sBI}")
                e(f"s_min_i32 s{sINT}, s{sINT}, {BM << xsh}"); e(f"s_max_i32 s{sINT}, s{sINT}, {-(BM << xsh)}")
                e(f"s_mul_i32 s3, s3, {xa}"); e(f"s_add_i32 s3, s3, s{sINT}")
            else:
                e(f"s_mul_i32 s3, s3, {xa}")
            e(f"s_ashr_i32 s3, s3, {xsh}")
            e(f"s_min_i32 s3, s3, {BM}"); e(f"s_max_i32 s{sBI}, s3, {-BM}")
            e(f"{label}_b:")
            e("s_mov_b64 exec, -1")
        e("s_waitcnt vmcnt(1)")
        e(f"v_xor_b32 v{tmp + 2}, v{tmp + 2}, v{vPR}")
        e(f"v_cmp_gt_u32 vcc, {'v' + str(vLIM) if xd else 64}, v{tmp + 2}")
        e(f"v_cndmask_b32 v{tmp + 2}, 0, v{tmp + 2}, vcc")
        for m in ("quad_perm:[1,0,3,2]", "quad_perm:[2,3,0,1]", "row_half_mirror", "row_mirror"):
            e(f"v_add_u32_dpp v{tmp + 2}, v{tmp + 2}, v{tmp + 2} {m} {DPPM}")
        e(f"v_readlane_b32 s{sK}, v{tmp + 2}, 0"); e(f"v_readlane_b32 s3, v{tmp + 2}, 16")
        e(f"s_add_u32 s{sK}, s{sK}, s3")
        if xd:
            e(f"v_readlane_b32 s{sD}, v{tmp + 2}, 48")
            e(f"s_cmp_eq_u32 s{sLEAD}, 0"); e(f"s_cbranch_scc1 {label}_n")
            e(f"v_readlane_b32 s3, v{tmp + 2}, 32")
            e(f"v_or_b32 v{tmp}, s{sK}, v{vTX}")
            e("s_lshr_b32 s3, s3, 3"); e(f"s_add_u32 s3, s3, {2048 + xb}"); e(f"s_sub_u32 s3, s3, s{sK}")
            e(f"s_min_u32 s3, s3, {2048 + XM}"); e(f"s_max_u32 s3, s3, {2048 - XM}")
            e(f"s_and_b32 s{sD}, vcc_hi, 0xff"); e(f"s_cmp_eq_u32 s{sD}, 0xff")
            e(f"s_cselect_b32 s{sD}, s3, 2048")
            e(f"v_or_b32 v{tmp + 1}, s{sD}, v{vTX}")
            if xf:
                e(f"v_lshlrev_b32 v{tmp + 3}, 2, v{vL}")
                e("s_mov_b32 exec_hi, 0")
                e(f"buffer_store_dword v{tmp}, v{tmp + 3}, s[{rWS}:{rWS + 3}], s{sXL} offen sc1")
            e("s_mov_b64 exec, 1")
            if xt != 2 and not xf:
                e(f"buffer_store_dword v{tmp}, v{vZ}, s[{rWS}:{rWS + 3}], s{sXL} offen sc1")
            e(f"buffer_store_dword v{tmp + 1}, v{vZ}, s[{rWS}:{rWS + 3}], s{sDL} offen")
            e("s_mov_b64 exec, -1")
            e(f"{label}_n:")
            e(f"s_cmp_eq_u32 s{sD}, 0"); e(f"s_cselect_b32 s{sD}, 2048, s{sD}")
            e(f"s_sub_i32 s{sD}, s{sD}, 2048")
            if xg:
                e(f"s_ashr_i32 s{sD}, s{sD}, {xg}")
            e(f"s_add_i32 s{sK}, s{sK}, s{sD}")
        if xs:
            e(f"s_cmp_ge_u32 s{sN}, s{sPUB}"); e(f"s_cbranch_scc0 {label}_c")
            e(f"s_mul_i32 s3, s{sK}, 43"); e("s_lshr_b32 s3, s3, 4")
            e("s_waitcnt lgkmcnt(0)")
            e(f"s_sub_u32 s3, s{sTM}, s3"); e("s_and_b32 s3, s3, 0xfff")
            e(f"v_or_b32 v{tmp}, s3, v{vTX}")
            if xf:
                e(f"v_lshlrev_b32 v{tmp + 3}, 2, v{vL}")
                e("s_mov_b32 exec_hi, 0")
                e(f"buffer_store_dword v{tmp}, v{tmp + 3}, s[{rWS}:{rWS + 3}], s{sXW} offen sc1")
            else:
                e("s_mov_b64 exec, 1")
                e(f"buffer_store_dword v{tmp}, v{vZ}, s[{rWS}:{rWS + 3}], s{sXW} offen sc1")
            e("s_mov_b64 exec, -1")
            e(f"s_mov_b32 s{sPUB}, 0x7fffffff")
            e(f"{label}_c:")
            e(f"s_add_i32 s{sK}, s{sK}, s{sBI}")
        if tb:
            e(f"s_bitcmp1_b32 s2, 0"); e(f"s_cselect_b32 s3, {tb}, {-tb}"); e(f"s_add_i32 s{sK}, s{sK}, s3")
        if IL > 3:
            e(f"s_lshl_b32 s{sK}, s{sK}, {IL - 3}")
        e(f"s_lshl_b32 s3, s{sP}, 2")
        e(f"s_sub_i32 s3, s{sK}, s3")
        e(f"s_add_u32 s3, s3, {4 * TH0 - 2 + (2 << ksh) + cb}")
        e(f"s_ashr_i32 s3, s3, {2 + ksh}")
        e(f"s_min_i32 s3, s3, {CM}"); e(f"s_max_i32 s3, s3, {-CM}")
        e(f"s_sub_i32 s{sK}, s3, s{sCc}"); e(f"s_mov_b32 s{sCc}, s3")
        e(f"v_mov_b32 v{tmp}, s{sK}")
        e("s_mov_b64 exec, 1")
        e(f"ds_add_u32 v{vZ}, v{tmp} offset:{L_F + 12}")
        e("s_mov_b64 exec, -1")
        if stamps:
            e(f"s_lshl_b64 s[{sAUX}:{sAUX + 1}], s[{sAUX}:{sAUX + 1}], 5")
            e(f"s_and_b32 s{sAUX + 1}, s{sAUX + 1}, 0xfffffff")
            e("s_add_u32 s3, s3, 16"); e(f"s_or_b32 s{sAUX}, s{sAUX}, s3")
        e(f"s_branch {label}")
        e(f"{label}_x:")

    e("s_cmp_ge_u32 s2, 256"); e("s_cbranch_scc1 L_end")
    if stamps:
        e(f"s_memrealtime s[{sST}:{sST + 1}]")
        nst["w"] = 1; nst["s"] = 1
        names.append((0, "start")); names.append((14, "s.start"))
    if mp:
        e(f"s_and_b32 s{sS}, s2, 3"); e("s_lshr_b32 s4, s2, 3"); e("s_bfe_u32 s3, s2, 0x10002")
        e("s_lshl_b32 s3, s3, 5"); e(f"s_add_u32 s{sHH}, s4, s3")
    else:
        e("s_and_b32 s3, s2, 7"); e("s_lshr_b32 s4, s2, 3"); e(f"s_and_b32 s{sS}, s4, 3")
        e("s_lshr_b32 s4, s4, 2"); e("s_lshl_b32 s4, s4, 3"); e(f"s_add_u32 s{sHH}, s4, s3")
    e(f"s_lshr_b32 s{sB}, s{sHH}, 5"); e(f"s_mul_i32 s7, s{sB}, 40")
    e("s_add_u32 s8, s0, s7"); e("s_addc_u32 s9, s1, 0")
    e(f"s_load_dwordx4 s[{sWW}:{sWW + 3}], s[8:9], 24")
    e(f"s_load_dwordx2 s[{sX}:{sX + 1}], s[8:9], 0")
    e(f"s_load_dwordx4 s[{sKV}:{sKV + 3}], s[8:9], 8")
    e(f"s_load_dwordx2 s[{sOUT}:{sOUT + 1}], s[0:1], 80")
    e(f"s_load_dwordx2 s[{sWS}:{sWS + 1}], s[0:1], 96")
    e(f"v_lshrrev_b32 v{vT0}, 6, v0")
    e(f"v_and_b32 v{vL}, 63, v0")
    e(f"v_readfirstlane_b32 s{sW}, v{vT0}")
    e(f"s_and_b32 s{sH}, s{sHH}, 31")
    e(f"s_lshl_b32 s{sJB}, s{sH}, 2"); e(f"s_add_u32 s{sJB}, s{sJB}, s{sS}")
    e(f"v_lshrrev_b32 v{vT0}, 3, v{vL}")
    e(f"v_and_b32 v{vT1}, 7, v{vL}")
    e(f"v_lshlrev_b32 v{vT2}, 4, v{vT1}")
    e(f"v_mul_u32_u24 v{vWQ}, 12288, v{vT0}"); e(f"v_add_u32 v{vWQ}, v{vWQ}, v{vT2}")
    e(f"v_mul_u32_u24 v{vKV}, 384, v{vT0}"); e(f"v_add_u32 v{vKV}, v{vKV}, v{vT2}")
    e(f"v_lshlrev_b32 v{vT3}, 1, v{vT0}")
    e(f"v_add_u32 v{vQR}, {L_Q}, v{vT2}")
    e(f"s_mul_i32 s3, s{sS}, 160"); e(f"s_mul_i32 s4, s{sW}, 40"); e("s_add_u32 s3, s3, s4")
    e("s_mul_i32 s4, s3, 12288"); e(f"s_mul_i32 s5, s{sH}, 384"); e("s_add_u32 s4, s4, s5")
    e("s_lshl_b32 s3, s3, 1")
    e(f"s_mul_i32 s5, s{sH}, 1572864"); e(f"s_mul_i32 s6, s{sS}, 393216"); e("s_add_u32 s5, s5, s6")
    e(f"s_mul_i32 s6, s{sW}, 3072"); e("s_add_u32 s5, s5, s6")
    if cs:
        a, b_, c_ = sSEL, sSEL + 1, sSEL + 2
        e(f"s_and_b32 s{a}, s{sS}, 1"); e(f"s_mul_i32 s{b_}, s{a}, 3"); e(f"s_bfe_u32 s{c_}, s{sW}, 0x10001"); e(f"s_add_u32 s{b_}, s{b_}, s{c_}")
        e(f"s_and_b32 s{c_}, s{sW}, 1"); e(f"s_cmp_eq_u32 s{sW}, 0"); e(f"s_cselect_b32 s{b_}, 2, s{b_}"); e(f"s_cselect_b32 s{sRH}, s{a}, s{c_}")
        e(f"s_lshr_b32 s{a}, s{sS}, 1"); e(f"s_mul_i32 s{a}, s{a}, 5"); e(f"s_add_u32 s{b_}, s{b_}, s{a}"); e(f"s_lshl_b32 s{b_}, s{b_}, 7")
        e(f"s_mul_i32 s6, s{sH}, 245760"); e(f"s_add_u32 s6, s6, s{b_}")
        e(f"s_mul_i32 s{a}, s{sRH}, 122880"); e(f"s_add_u32 s6, s6, s{a}")
    else:
        e(f"s_mul_i32 s6, s{sJB}, 61440"); e(f"s_lshl_b32 s7, s{sW}, 8"); e("s_add_u32 s6, s6, s7")
    e(f"s_cmp_eq_u32 s{sW}, 4")
    e("s_cbranch_scc1 L_service")

    def common_consts():
        e(f"v_and_b32 v{vT0}, 1, v{vL}"); e(f"v_lshlrev_b32 v{vT0}, 4, v{vT0}")
        e(f"v_mov_b32 v{vT1}, 0xffff"); e(f"v_lshlrev_b32 v{vT0}, v{vT0}, v{vT1}")
        e(f"v_bfe_u32 v{vT1}, v{vL}, 1, 2")
        for r in range(4):
            e(f"v_cmp_eq_u32 vcc, {r}, v{vT1}")
            e(f"v_cndmask_b32 v{vM + r}, 0, v{vT0}, vcc")
        if cs:
            e(f"v_lshrrev_b32 v{vT0}, 3, v{vL}"); e(f"v_and_b32 v{vT1}, 7, v{vL}")
            e(f"v_mul_u32_u24 v{vWO}, 15360, v{vT0}"); e(f"v_lshl_add_u32 v{vWO}, v{vT1}, 4, v{vWO}")
            e(f"s_mul_i32 s7, s{sRH}, 384"); e(f"s_add_u32 s7, s7, {L_O}")
            e(f"v_mul_u32_u24 v{vOR}, 48, v{vT0}"); e(f"v_add_u32 v{vOR}, s7, v{vOR}")
            e(f"v_bfe_u32 v{vT0}, v{vL}, 4, 1")
            e(f"v_lshlrev_b32 v{vPUB}, 5, v{vT1}"); e(f"v_lshl_add_u32 v{vPUB}, v{vT0}, 4, v{vPUB}")
            e(f"s_bfe_u32 s8, s{sW}, 0x10001")
            e(f"s_lshl_b32 s7, s{sS}, 1"); e("s_add_u32 s7, s7, s8"); e("s_lshl_b32 s7, s7, 5"); e(f"s_add_u32 s7, s7, s{sH}")
            e(f"s_lshr_b32 s9, s{sS}, 1"); e("s_lshl_b32 s9, s9, 5"); e(f"s_add_u32 s9, s9, s{sH}")
            e("s_lshl_b32 s9, s9, 1"); e(f"s_add_u32 s9, s9, s{sRH}"); e("s_add_u32 s9, s9, 256")
            e(f"s_cmp_eq_u32 s{sW}, 0"); e("s_cselect_b32 s7, s9, s7")
            e(f"s_mul_i32 s9, s{sB}, 384"); e("s_add_u32 s7, s7, s9"); e("s_lshl_b32 s7, s7, 8"); e(f"s_add_u32 s7, s7, {A3}")
            e(f"v_add_u32 v{vPUB}, s7, v{vPUB}")
        else:
            e(f"v_lshrrev_b32 v{vT0}, 4, v{vL}")
            e(f"v_and_b32 v{vT1}, 15, v{vL}")
            e(f"v_mul_u32_u24 v{vWO}, 15360, v{vT0}"); e(f"v_lshl_add_u32 v{vWO}, v{vT1}, 4, v{vWO}")
            e(f"v_mul_u32_u24 v{vOR}, 48, v{vT0}"); e(f"v_add_u32 v{vOR}, {L_O}, v{vOR}")
            e(f"v_lshlrev_b32 v{vPUB}, 5, v{vT1}"); e(f"v_lshl_add_u32 v{vPUB}, v{vT0}, 4, v{vPUB}")
            e(f"s_lshl_b32 s7, s{sB}, 7"); e(f"s_add_u32 s7, s7, s{sJB}"); e("s_mul_i32 s7, s7, 2560")
            e(f"s_lshl_b32 s8, s{sW}, 9"); e("s_add_u32 s7, s7, s8"); e(f"s_add_u32 s7, s7, {A3}")
            e(f"v_add_u32 v{vPUB}, s7, v{vPUB}")
        e(f"v_mov_b32 v{vZ}, 0"); e(f"v_mov_b32 v{vONE}, 1")
        for r in range(4):
            e(f"s_mov_b32 s{sSEL + r}, {0x07060500 + r}")
        srd(rWO, sWW + 2, 6, 7864320)
        srd(rWS, sWS, None, WS_USED)
        if cs:
            srd(rOUT, sOUT, None, 2560)

    vXA = vNM

    def pair_addr():
        e(f"s_bfe_u32 s3, s{sW}, 0x10001"); e("s_lshl_b32 s3, s3, 8"); e(f"s_add_u32 s3, s3, {L_X}")
        e(f"v_and_b32 v{vXA}, 255, v{vPUB}"); e(f"v_add_u32 v{vXA}, s3, v{vXA}")

    vm = VM(e)
    NQ, NK, NV, NO = 15, 96, 96, 12
    K0, V0, O0 = NQ, NQ + NK, NQ + NK + NV
    N = O0 + NO
    cur = [None]

    def setoff(v):
        if cur[0] != v:
            e(f"s_mov_b32 s{sOFF}, {v}")
            cur[0] = v

    def issue(i):
        d = vr(slot(i))
        if i < K0:
            g, t = divmod(i, 3)
            setoff(g * 8 * 12288)
            vm.issue(i, f"buffer_load_dwordx4 {d}, v{vWQ}, s[{rWQ}:{rWQ + 3}], s{sOFF} offen offset:{t * 128} {fl}")
        elif i < O0:
            r = rK if i < V0 else rV
            g, t = divmod(i - (K0 if i < V0 else V0), 3)
            if fb and t == 0 and i < V0 + 3 * G3:
                ga = (i - K0) // 3
                e("s_mov_b64 exec, 1")
                if ga > 0:
                    e("s_waitcnt lgkmcnt(0)")
                    e(f"v_cmp_lt_i32 vcc, {4 * (ga - 1) + bias}, v{vPR}")
                e(f"ds_add_rtn_u32 v{vPR}, v{vZ}, v{vONE} offset:{L_F + 12}")
                e("s_mov_b64 exec, -1")
            if not rot:
                setoff(g * 12288)
            elif t == 0:
                cur[0] = None
                if g == 0:
                    e(f"s_mov_b32 s{sOFF}, s{sROT}")
                else:
                    e(f"s_add_u32 s{sOFF}, s{sOFF}, 12288"); e(f"s_cmp_eq_u32 s{sOFF}, 393216")
                    e(f"s_cselect_b32 s{sOFF}, 0, s{sOFF}")
            vm.issue(i, f"buffer_load_dwordx4 {d}, v{vKV}, s[{r}:{r + 3}], s{sOFF} offen offset:{t * 128} {fl}")
        else:
            g = i - O0
            setoff((g // 4) * 5120)
            vm.issue(i, f"buffer_load_dwordx4 {d}, v{vWO}, s[{rWO}:{rWO + 3}], s{sOFF} offen offset:{(g % 4) * 1280} {fl}")

    def afrag(src):
        for r in range(4):
            e(f"v_and_b32 v{vA + r}, v{src}, v{vM + r}")

    def mfma(acc, b, first):
        c = "0" if first else vr(acc)
        e(f"v_mfma_f32_16x16x32_bf16 {vr(acc)}, {vr(vA)}, {vr(b)}, {c}")

    def partials_out(flag):
        e("s_mov_b32 exec_lo, 0x00ff00ff"); e("s_mov_b32 exec_hi, 0xff00ff00")
        for t in range(3):
            e(f"ds_write_b128 v{vPW}, {vr(vACC + 4 * t)} offset:{t * 256}")
        e("s_mov_b64 exec, 1")
        e(f"ds_add_u32 v{vZ}, v{vONE} offset:{flag}")
        e("s_mov_b64 exec, -1")

    def pcalc(g):
        s = vSC + g
        e(f"v_fma_f32 v{s}, v{s}, s{sC}, v{vNM}")
        e(f"v_exp_f32 v{s}, v{s}")
        if g == 0:
            e(f"v_mov_b32 v{vLS}, v{s}")
        else:
            e(f"v_add_f32 v{vLS}, v{vLS}, v{s}")
        e(f"v_cvt_pk_bf16_f32 v{s}, v{s}, v{s}")

    pend = []

    def red_steps(g):
        s = vSC + g
        st = [f"v_add_f32_dpp v{s}, v{s}, v{s} quad_perm:[1,0,3,2] {DPPM}",
              f"v_add_f32_dpp v{s}, v{s}, v{s} quad_perm:[2,3,0,1] {DPPM}",
              f"v_add_f32_dpp v{s}, v{s}, v{s} row_half_mirror {DPPM}"]
        st.append(f"v_mov_b32 v{vMX}, v{s}" if g == 0 else f"v_max_f32 v{vMX}, v{vMX}, v{s}")
        return st

    pdone = [0]

    def consume(i):
        vm.wait(i)
        b = slot(i)
        if i < K0:
            g, t = divmod(i, 3)
            if t == 0:
                e(f"v_lshl_or_b32 v{vT0}, v{vX + g}, 16, v{vX + g}")
                afrag(vT0)
            mfma(vACC + 4 * t, b, g == 0)
            if stamps == 2 and i in (0, 5, 11):
                stamp("w", f"wq{i}")
            if i == K0 - 1:
                partials_out(L_F)
                stamp("w", "qpart")
        elif i < V0:
            g, t = divmod(i - K0, 3)
            for r in range(4):
                e(f"v_dot2c_f32_bf16 v{vSC + g}, v{b + r}, v{vQ + 4 * t + r}")
                if r in (1, 3) and pend:
                    e(pend.pop(0))
            if t == 2:
                while pend:
                    e(pend.pop(0))
                pend.extend(red_steps(g))
            if i == V0 - 1:
                while pend:
                    e(pend.pop(0))
                e(f"v_max_f32_dpp v{vMX}, v{vMX}, v{vMX} row_ror:8 {DPPM}")
                allrows("v_max_f32", vMX, vT0)
                e(f"v_mul_f32 v{vMX}, s{sC}, v{vMX}")
                e(f"v_sub_f32 v{vNM}, 0, v{vMX}")
                for g2 in range(pk):
                    pcalc(g2)
                pdone[0] = pk
                stamp("w", "Kdone")
        elif i < O0:
            g, t = divmod(i - V0, 3)
            if t == 0:
                afrag(vSC + g)
            mfma(vACC + 4 * t, b, g == 0)
            if t < 2 and pdone[0] < 32:
                for _ in range((pk + 1 - t) // 2):
                    if pdone[0] < 32:
                        pcalc(pdone[0]); pdone[0] += 1
                if pdone[0] == 32:
                    pdone[0] = 33
                    e(f"v_add_f32_dpp v{vLS}, v{vLS}, v{vLS} row_ror:8 {DPPM}")
                    allrows("v_add_f32", vLS, vT0)
                    e(f"s_lshl_b32 s3, s{sW}, 3"); e(f"v_mov_b32 v{vT0}, s3")
                    e("s_mov_b64 exec, 1")
                    e(f"ds_write_b32 v{vT0}, v{vMX} offset:{L_ST}")
                    e(f"ds_write_b32 v{vT0}, v{vLS} offset:{L_ST + 4}")
                    e(f"ds_add_u32 v{vZ}, v{vONE} offset:{L_F + 4}")
                    e("s_mov_b64 exec, -1")
            if i == O0 - 1:
                partials_out(L_F + 8)
                stamp("w", "Vdone")

    e("s_waitcnt lgkmcnt(0)")
    if stamps == 2:
        stamp("w", "karg")
    srd(rX, sX, None, 1280)
    srd(rWQ, sWW, 4, 7864320)
    for g in range(5):
        vm.issue(("x", g), f"buffer_load_ushort v{vX + g}, v{vT3}, s[{rX}:{rX + 3}], s3 offen offset:{16 * g}")
    ni = 0
    while ni < F0:
        issue(ni); ni += 1
    if rot:
        ra, rb, rc = rot // 10000 % 100, rot // 100 % 100, rot % 100
        e(f"s_and_b32 s7, s{sHH}, 7"); e(f"s_mul_i32 s{sROT}, s7, {ra}")
        e(f"s_mul_i32 s7, s{sS}, {rb}"); e(f"s_add_u32 s{sROT}, s{sROT}, s7")
        e(f"s_lshr_b32 s7, s{sHH}, 3"); e(f"s_mul_i32 s7, s7, {rc}"); e(f"s_add_u32 s{sROT}, s{sROT}, s7")
        e(f"s_and_b32 s{sROT}, s{sROT}, 31"); e(f"s_mul_i32 s{sROT}, s{sROT}, 12288")
    srd(rK, sKV, 5, 50331648)
    srd(rV, sKV + 2, 5, 50331648)
    common_consts()
    e(f"v_lshrrev_b32 v{vT0}, 5, v{vL}"); e(f"v_mul_u32_u24 v{vPW}, 768, v{vT0}")
    e(f"v_and_b32 v{vT0}, 7, v{vL}"); e(f"v_lshl_add_u32 v{vPW}, v{vT0}, 5, v{vPW}")
    e(f"v_bfe_u32 v{vT0}, v{vL}, 4, 1"); e(f"v_lshl_add_u32 v{vPW}, v{vT0}, 4, v{vPW}")
    e(f"s_mul_i32 s7, s{sW}, 1536"); e(f"v_add_u32 v{vPW}, s7, v{vPW}")
    e(f"s_mov_b32 s{sC}, {f2u(192 ** -0.5 * math.log2(math.e)):#x}")
    for g in range(32):
        e(f"v_mov_b32 v{vSC + g}, 0")
    e("s_barrier")
    if stamps == 2:
        stamp("w", "B0")
    vm.wait(("x", 4))
    if stamps == 2:
        stamp("w", "xdone")
    nc = 0

    def Flo(i):
        return F2 if (F2 and i >= V0 + 3 * G2) else F

    def Fof(i):
        if fb and i >= K0 + 3:
            return FH2 if (FH2 and i >= V0 + 3 * G2) else FH
        return Flo(i)

    ncond = [0]

    def pace():
        j = ni - Fof(ni)
        if j >= 0:
            vm.wait(j)
        j = ni - Flo(ni)
        if fb and ni < V0 + 3 * G3 and j >= 0 and j in vm.q:
            ncond[0] += 1
            e(f"s_cbranch_vccnz L_c{ncond[0]}")
            e(f"s_waitcnt vmcnt({len(vm.q) - 1 - vm.q.index(j)}) ; cond")
            e(f"L_c{ncond[0]}:")

    if fb:
        e("s_mov_b64 vcc, 0")

    while nc < K0:
        if ni - nc <= F:
            pace(); issue(ni); ni += 1
        consume(nc); nc += 1
    def qreads():
        e(f"ds_read_b32 v{vT1}, v{vZ} offset:{L_T + 4}")
        for t in range(3):
            e(f"ds_read_b128 {vr(vQ + 4 * t)}, v{vQR} offset:{t * 128}")
        e(f"ds_read_b32 v{vT}, v{vZ} offset:{L_T}")

    while ni < K0 + R:
        if qf and ni == K0 + R - 1:
            qreads()
        pace(); issue(ni); ni += 1
    stamp("w", "ringfull")
    if qf:
        e(f"s_mov_b32 s{sCNT}, 4000000")
        e("L_q:")
        e("s_waitcnt lgkmcnt(0)")
        e(f"v_readfirstlane_b32 s3, v{vT1}")
        e(f"s_sub_u32 s{sCNT}, s{sCNT}, 1")
        e("s_cbranch_scc1 L_qx")
        e("s_cmp_lg_u32 s3, 0")
        e("s_cbranch_scc1 L_qx")
        qreads()
        e("s_branch L_q")
        e("L_qx:")
        stamp("w", "qready")
    else:
        e("s_barrier")
        stamp("w", "qready")
        qreads()
        e("s_waitcnt lgkmcnt(0)")
    NH = min(N, O0 + H)
    while nc < O0:
        lag = ni - nc
        if ni < NH:
            if lag >= R:
                consume(nc); nc += 1
            pace(); issue(ni); ni += 1
            k = 0
            while nc < O0 and nc <= ni - 1 - Fof(ni - 1) and k < 2:
                consume(nc); nc += 1; k += 1
        else:
            consume(nc); nc += 1
    while ni < NH:
        pace(); issue(ni); ni += 1
    if cs:
        pair_addr()
    if ni < N:
        e(f"s_mov_b32 s{sCNT}, 4000000")
        e("L_h:")
        e(f"ds_read_b32 v{vT0}, v{vZ} offset:{L_H}")
        e(f"s_sub_u32 s{sCNT}, s{sCNT}, 1")
        e("s_cbranch_scc1 L_hx")
        e("s_waitcnt lgkmcnt(0)")
        e(f"v_readfirstlane_b32 s3, v{vT0}")
        e("s_cmp_eq_u32 s3, 0")
        e("s_cbranch_scc1 L_h")
        e("L_hx:")
    if FL:
        e("s_cmp_eq_u32 s3, 2")
    while ni < N:
        if ni - FW >= 0:
            vm.wait(ni - FW)
        if FL and ni - FL in vm.q:
            e(f"s_cbranch_scc1 L_w{ni}")
            e(f"s_waitcnt vmcnt({len(vm.q) - 1 - vm.q.index(ni - FL)}) ; cond")
            e(f"L_w{ni}:")
        issue(ni); ni += 1
    stamp("w", "woissued")
    e("L_tail:")
    e("s_barrier")
    stamp("w", "oready")
    for k in range(3):
        e(f"ds_read_b128 {vr(vQ + 4 * k)}, v{vOR} offset:{16 * k}")
    e("s_waitcnt lgkmcnt(0)")
    if cs:
        AB = (vA, vT0 - 1)
        for g in range(13):
            if g < 12:
                for r in range(4):
                    e(f"v_and_b32 v{AB[g & 1] + r}, v{vQ + g}, v{vM + r}")
            if g:
                vm.wait(O0 + g - 1)
                e(f"v_mfma_f32_16x16x32_bf16 {vr(vACC)}, {vr(AB[(g - 1) & 1])}, {vr(slot(O0 + g - 1))}, {vr(vACC) if g > 1 else 0}")
        for r in range(4):
            e(f"v_permlane32_swap_b32 v{vACC + r}, v{vQ + r}")
        for r in range(4):
            e(f"v_add_f32_dpp v{vACC + r}, v{vQ + r}, v{vACC + r} row_ror:8 {DPPM}")
        e(f"s_cmp_eq_u32 s{sW}, 0"); e("s_cbranch_scc1 L_pub")
        e(f"s_bitcmp1_b32 s{sW}, 0"); e("s_cbranch_scc1 L_fin")
        e("s_mov_b64 exec, 0x00ff00ff")
        e(f"ds_write_b128 v{vXA}, {vr(vACC)}")
        e("s_mov_b64 exec, 1")
        e(f"ds_write_b32 v{vXA}, v{vONE} offset:512")
        e("s_mov_b64 exec, -1")
        e(f"s_cmp_eq_u32 s{sW}, 4")
        e("s_cbranch_scc1 L_reduce")
        e("s_endpgm")
        e("L_fin:")
        e(f"s_mov_b32 s{sCNT}, 4000000")
        e("L_fs:")
        e(f"ds_read_b32 v{vT0}, v{vXA} offset:512")
        e(f"ds_read_b128 {vr(vQ)}, v{vXA}")
        e(f"s_sub_u32 s{sCNT}, s{sCNT}, 1")
        e("s_cbranch_scc1 L_fx")
        e("s_waitcnt lgkmcnt(1)")
        e(f"v_readfirstlane_b32 s3, v{vT0}")
        e("s_cmp_eq_u32 s3, 0")
        e("s_cbranch_scc1 L_fs")
        e("L_fx:")
        e("s_waitcnt lgkmcnt(0)")
        for r in range(4):
            e(f"v_add_f32 v{vACC + r}, v{vACC + r}, v{vQ + r}")
        e("L_pub:")
        e("s_nop 1")
        tag4(vA, vACC)
        e("s_mov_b64 exec, 0x00ff00ff")
    else:
        for g in range(12):
            afrag(vQ + g)
            vm.wait(O0 + g)
            mfma(vACC, slot(O0 + g), g == 0)
        tag4(vA, vACC)
        e("s_mov_b32 exec_hi, 0")
    if fq > 1:
        e(f"v_and_b32 v{vT0}, 15, v{vL}"); e(f"s_lshl_b32 s3, s{sW}, 4"); e(f"v_add_u32 v{vT0}, s3, v{vT0}")
        e(f"s_and_b32 s3, s{sS}, {fq - 1}"); e(f"s_mul_i32 s3, s3, {80 // fq}")
        e(f"v_subrev_u32 v{vT0}, s3, v{vT0}")
        e(f"v_mov_b32 v{vT1}, {80 // fq}")
        e(f"v_cmp_lt_u32 vcc, v{vT0}, v{vT1}")
        e("s_and_b64 exec, exec, vcc")
    e(f"buffer_store_dwordx4 {vr(vA)}, v{vPUB}, s[{rWS}:{rWS + 3}], 0 offen sc1")
    e("s_mov_b64 exec, -1")
    if not cs:
        e(f"s_cmp_eq_u32 s{sW}, 4")
        e("s_cbranch_scc1 L_reduce")
    stamp("w", "pub")

    def stamps_out(who):
        if not stamps:
            return
        base = 0 if who == "w" else 14
        e("s_waitcnt lgkmcnt(0)")
        e("s_lshl_b32 s3, s2, 8"); e("s_add_u32 s3, s3, 0x8000000")
        e(f"s_add_u32 s4, s{sWS}, s3"); e(f"s_addc_u32 s5, s{sWS + 1}, 0")
        for i in range(nst[who]):
            e(f"v_mov_b32 v{vA}, s{sST + 2 * i}"); e(f"v_mov_b32 v{vA + 1}, s{sST + 2 * i + 1}")
            e(f"global_store_dwordx2 v{vZ}, v[{vA}:{vA + 1}], s[4:5] offset:{8 * (base + i)}")
        if who == "s" and fb:
            e(f"v_mov_b32 v{vA}, s{sAUX}"); e(f"v_mov_b32 v{vA + 1}, s{sAUX + 1}")
            e(f"global_store_dwordx2 v{vZ}, v[{vA}:{vA + 1}], s[4:5] offset:{8 * 30}")
        if who == "w":
            e("s_getreg_b32 s6, hwreg(HW_REG_XCC_ID)"); e("s_getreg_b32 s7, hwreg(HW_REG_HW_ID)")
            e(f"v_mov_b32 v{vA}, s6"); e(f"v_mov_b32 v{vA + 1}, s7")
            e(f"global_store_dwordx2 v{vZ}, v[{vA}:{vA + 1}], s[4:5] offset:{8 * 31}")

    if stamps:
        e(f"s_cmp_lg_u32 s{sW}, {sw}"); e("s_cbranch_scc1 L_end")
        stamps_out("w")
    e("s_endpgm")

    vD = vSC
    vE1, vE2, vP1, vP2, vP3 = 44, 45, 46, 47, 48
    vG = 8
    vS = 12
    vOP = vACC + 4
    vR1, vR2 = slot(N + 2), slot(N + 2) + 1
    vQY, vSY = slot(N), slot(N + 1)
    e("L_service:")
    if probe:
        e("s_memrealtime s[68:69]")
    e("s_nop 4")
    if prio:
        e("s_setprio 3")
    e(f"v_mov_b32 v{vZ}, 0")
    for k in range(4):
        e(f"ds_write_b32 v{vZ}, v{vZ} offset:{L_F + 4 * k}")
    e(f"ds_write_b32 v{vZ}, v{vZ} offset:{L_T + 4}")
    for o in (L_X + 512, L_X + 768, L_H):
        e(f"ds_write_b32 v{vZ}, v{vZ} offset:{o}")
    e("s_waitcnt lgkmcnt(0)")
    e("s_barrier")
    common_consts()
    e(f"s_lshl_b32 s9, s{sB}, 7")
    e(f"buffer_load_dword v{vT}, v{vZ}, s[{rWS}:{rWS + 3}], s9 offen sc1")
    if probe:
        e("s_getreg_b32 s70, hwreg(HW_REG_XCC_ID, 0, 3)"); e("s_lshl_b32 s71, s68, 3"); e("s_or_b32 s71, s71, s70")
        e("s_lshl_b32 s70, s2, 2"); e("s_add_u32 s70, s70, 1024")
        e(f"v_mov_b32 v{vT0}, s71")
        e("s_mov_b64 exec, 1")
        e(f"buffer_store_dword v{vT0}, v{vZ}, s[{rWS}:{rWS + 3}], s70 offen sc1")
        e("s_mov_b64 exec, -1")
    if fb:
        e(f"v_lshrrev_b32 v{vT0}, 4, v{vL}"); e(f"v_cmp_eq_u32 vcc, 1, v{vT0}")
        e(f"v_mov_b32 v{vT0}, 128"); e(f"v_cndmask_b32 v{vT0}, 0, v{vT0}, vcc")
        e(f"buffer_load_dword v{vPR}, v{vT0}, s[{rWS}:{rWS + 3}], 0 offen sc1")
    if not cs:
        srd(rOUT, sOUT, None, 2560)
    if warm:
        srd(rV, sKV + 2, 5, 50331648)
        e(f"buffer_load_dword v{vSC}, v{vZ}, s[{rOUT}:{rOUT + 3}], 0 offen")
        e(f"buffer_load_dword v{vSC + 1}, v{vZ}, s[{rV}:{rV + 3}], 0 offen nt")
        e(f"buffer_load_dword v{vSC + 2}, v{vZ}, s[{rWO}:{rWO + 3}], 0 offen nt")
    e(f"s_mov_b32 s{sSA}, 0x0c0c0400"); e(f"s_mov_b32 s{sSB}, 0x04000c0c"); e(f"s_mov_b32 s{sMASK}, 0xffffff00")
    e(f"s_lshl_b32 s7, s{sHH}, 2"); e(f"s_add_u32 s8, s7, s{sS}")
    e(f"v_lshlrev_b32 v{vE1}, 4, v{vL}")
    e(f"v_lshrrev_b32 v{vT0}, 4, v{vL}"); e(f"v_and_b32 v{vT1}, 15, v{vL}")
    e(f"v_mul_u32_u24 v{vP1}, 768, v{vT0}"); e(f"v_lshl_add_u32 v{vP1}, v{vT1}, 4, v{vP1}")
    e(f"s_mul_i32 s3, s7, 768"); e(f"s_add_u32 s3, s3, {A1}"); e(f"v_add_u32 v{vP1}, s3, v{vP1}")
    e(f"v_lshlrev_b32 v{vP3}, 10, v{vT0}")
    e(f"s_lshl_b32 s3, s7, 10"); e(f"s_add_u32 s3, s3, {A2}"); e(f"v_add_u32 v{vP3}, s3, v{vP3}")
    if cs:
        e(f"v_mov_b32 v{vT2}, v{vT1}")
        e(f"v_lshl_add_u32 v{vP2}, v{vT2}, 4, v{vP3}")
    else:
        e(f"v_min_u32 v{vT2}, 11, v{vT1}")
        e(f"s_mul_i32 s3, s{sS}, 192"); e(f"v_lshl_add_u32 v{vP2}, v{vT2}, 4, s3"); e(f"v_add_u32 v{vP2}, v{vP2}, v{vP3}")
    e(f"v_and_b32 v{vT3}, 1, v{vT0}"); e(f"v_lshlrev_b32 v{vT3}, 1, v{vT3}")
    e(f"v_lshrrev_b32 v{vT0}, 1, v{vT0}"); e(f"v_or_b32 v{vT3}, v{vT3}, v{vT0}")
    e(f"v_lshl_add_u32 v{vMX}, v{vT1}, 2, v{vT3}")
    e(f"v_lshlrev_b32 v{vMX}, 1, v{vMX}"); e(f"v_add_u32 v{vMX}, {L_Q}, v{vMX}")
    e(f"v_lshl_add_u32 v{vLS}, v{vT2}, 2, v{vT3}")
    e(f"v_lshlrev_b32 v{vLS}, 2, v{vLS}"); e(f"v_add_u32 v{vLS}, {L_O}, v{vLS}")
    if cs:
        pair_addr()
        e(f"s_lshr_b32 s3, s{sJB}, 3")
        e(f"s_lshr_b32 s4, s{sJB}, 5"); e("s_mul_i32 s4, s4, 5"); e("s_bfe_u32 s5, s3, 0x10001"); e("s_mul_i32 s5, s5, 3")
        e("s_add_u32 s4, s4, s5"); e("s_and_b32 s5, s3, 1"); e("s_add_u32 s4, s4, s5"); e("s_lshl_b32 s4, s4, 6")
        e(f"s_and_b32 s5, s{sJB}, 7"); e("s_lshl_b32 s6, s5, 3"); e("s_add_u32 s4, s4, s6")
        e("s_lshl_b32 s3, s3, 13"); e("s_lshl_b32 s5, s5, 5"); e("s_add_u32 s3, s3, s5")
        e(f"s_bfe_u32 s5, s{sJB}, 0x10004"); e("s_mul_i32 s6, s5, 320"); e("s_add_u32 s6, s6, 128")
        e(f"s_and_b32 s7, s{sJB}, 15"); e(f"s_lshl_b32 s{sCNT}, s7, 2"); e(f"s_add_u32 s6, s6, s{sCNT}")
        e("s_lshl_b32 s5, s5, 14"); e("s_lshl_b32 s7, s7, 4"); e("s_add_u32 s5, s5, s7"); e("s_add_u32 s5, s5, 65536")
        e(f"s_cmp_lt_u32 s{sJB}, 64"); e("s_cselect_b32 s3, s3, s5"); e("s_cselect_b32 s4, s4, s6")
        e("s_cselect_b32 s5, 1, 0")
        e(f"s_mul_i32 s6, s{sB}, 98304"); e("s_add_u32 s3, s3, s6"); e(f"s_add_u32 s3, s3, {A3}")
        e(f"v_lshrrev_b32 v{vR1}, s5, v{vL}"); e(f"v_lshlrev_b32 v{vR1}, 8, v{vR1}")
        e(f"v_and_b32 v{vR2}, s5, v{vL}"); e(f"v_lshl_add_u32 v{vR1}, v{vR2}, 4, v{vR1}"); e(f"v_add_u32 v{vR1}, s3, v{vR1}")
        e(f"v_lshl_add_u32 v{vR2}, v{vR2}, 2, v{vT3}")
        e(f"s_mul_i32 s6, s{sB}, 640"); e("s_add_u32 s4, s4, s6")
        e(f"v_add_u32 v{vR2}, s4, v{vR2}"); e(f"v_lshlrev_b32 v{vR2}, 1, v{vR2}")
    e(f"s_mul_i32 s4, s8, 768"); e(f"s_add_u32 s4, s4, {A1}")
    e(f"s_lshl_b32 s5, s8, 10"); e(f"s_add_u32 s5, s5, {A2}")
    e(f"s_add_u32 s6, s4, {DY}"); e(f"s_add_u32 s7, s5, {DY}")
    e("s_waitcnt vmcnt(0)")
    e(f"v_and_b32 v{vT0}, 0x7f7f7f7f, v{vT}"); e(f"v_add_u32 v{vT0}, 0x01010101, v{vT0}")
    e(f"v_and_b32 v{vT}, 0x80808080, v{vT}"); e(f"v_xor_b32 v{vT}, v{vT}, v{vT0}")
    e(f"ds_write_b32 v{vZ}, v{vT} offset:{L_T}")
    if fb:
        e(f"v_and_b32 v{vT0}, 0x7f7f7f7f, v{vPR}"); e(f"v_add_u32 v{vT0}, 0x01010101, v{vT0}")
        e(f"v_and_b32 v{vPR}, 0x80808080, v{vPR}"); e(f"v_xor_b32 v{vPR}, v{vPR}, v{vT0}")
        e(f"v_and_b32 v{vPR}, s{sMASK}, v{vPR}")
        if xs:
            e(f"v_and_b32 v{vTX}, 0xfffff000, v{vPR}")
        if xd:
            e(f"v_and_b32 v{vTX}, 0xfffff000, v{vPR}")
            e("s_mov_b32 exec_lo, 0")
            e(f"v_mov_b32 v{vPR}, v{vTX}")
            e("s_mov_b32 exec_lo, -1")
    if pre:
        for r in range(4):
            e(f"v_not_b32 v{vA + r}, v{vT}")
        e(f"buffer_store_dwordx4 {vr(vA)}, v{vE1}, s[{rWS}:{rWS + 3}], s5 offen")
        e("s_mov_b32 exec_hi, 0xffff")
        e(f"buffer_store_dwordx4 {vr(vA)}, v{vE1}, s[{rWS}:{rWS + 3}], s4 offen")
        e("s_mov_b32 exec_hi, -1")
    if codepf:
        pass
    ldsspin("L_f1", L_F, vT0)
    stamp("s", "s.f1")
    for p in range(8):
        e(f"ds_read_b128 {vr(vD + 4 * p)}, v{vE1} offset:{p * 768}")
    for p in range(1, 8):
        e(f"s_waitcnt lgkmcnt({7 - p})")
        for r in range(4):
            e(f"v_add_f32 v{vD + r}, v{vD + r}, v{vD + 4 * p + r}")
    def ypub(n):
        if n == 1 or lazy:
            publish(vQY, vE1, 4, 0, 0, 1)
        if n == 2 or (lazy and n > 2):
            publish(vSY, vZ, 5, 768, 1, 1)
        if n == 3:
            publish(vOP, vE1, 5, 0, 0, 1)

    tag4(vQY, vD)
    publish(vQY, vE1, 4, 0, 0, 0 if xp else 1)
    stamp("s", "s.qpub")
    if qd:
        e(f"s_mov_b32 s{sCNT}, 4000000")
        e("L_qd:")
        e(f"ds_read_b32 v{vT0}, v{vZ} offset:{L_F + 12}")
        e(f"s_sub_u32 s{sCNT}, s{sCNT}, 1")
        e("s_cbranch_scc1 L_qdx")
        e("s_waitcnt lgkmcnt(0)")
        e(f"v_readfirstlane_b32 s3, v{vT0}")
        e(f"s_cmp_lt_u32 s3, {qd}")
        e("s_cbranch_scc1 L_qd")
        e("L_qdx:")
    l1 = [f"buffer_load_dwordx4 {vr(vD + 4 * t)}, v{vP1}, s[{rWS}:{rWS + 3}], s{sPO} offen offset:{256 * t} sc1" for t in range(3)]
    if op & 1:
        mpoll("L_p1", l1, [vD + 4 * t for t in range(3)], vT0)
    else:
        poll("L_p1", l1, [vD + 4 * t for t in range(3)], vT0, lambda: ypub(1))
    if xp and not lazy:
        ypub(1)
    stamp("s", "s.qpoll")
    for t in range(3):
        treduce(vD + 4 * t)
    for t in range(3):
        e(f"v_cvt_pk_bf16_f32 v{vD + 4 * t}, v{vD + 4 * t}, v{vD + 4 * t}")
    for t in range(3):
        e(f"ds_write_b16 v{vMX}, v{vD + 4 * t} offset:{128 * t}")
    if qf:
        e(f"ds_write_b32 v{vZ}, v{vONE} offset:{L_T + 4}")
    else:
        e("s_waitcnt lgkmcnt(0)")
        e("s_barrier")
    for g in range(12):
        e(f"s_mov_b32 s{sOFF}, {(g // 4) * 5120}")
        e(f"buffer_load_dwordx4 {vr(slot(O0 + g))}, v{vWO}, s[{rWO}:{rWO + 3}], s{sOFF} offen offset:{(g % 4) * 1280} {fl}")
    if fb:
        e("s_and_b32 s3, s2, 7"); e("s_mul_i32 s3, s3, 4352"); e(f"s_add_u32 s3, s3, {A4}")
        e(f"s_lshr_b32 s{sK}, s2, 3")
        e(f"v_and_b32 v{vT0}, 31, v{vL}"); e(f"v_lshl_add_u32 v{vE2}, v{vT0}, 2, s3")
        e(f"s_lshl_b32 s{sSL}, s{sK}, 2"); e(f"s_add_u32 s{sSL}, s{sSL}, s3")
        if xd:
            e(f"s_add_u32 s{sDL}, s3, 128"); e(f"s_add_u32 s{sXL}, s3, {16 * 4352}")
            e(f"s_and_b32 s{sD}, s2, 7"); e(f"s_cmp_eq_u32 s{sD}, s{sK}"); e(f"s_cselect_b32 s{sLEAD}, 0xff, 0")
            e(f"v_mov_b32 v{vLIM}, 64")
            e("s_mov_b32 exec_lo, 0")
            e(f"v_mov_b32 v{vLIM}, 0"); e(f"v_mov_b32 v{vE2}, s{sDL}")
            e("s_mov_b32 exec_hi, 0x10000")
            e(f"v_mov_b32 v{vLIM}, 4096")
            e(f"s_mov_b32 exec_hi, s{sLEAD}")
            e(f"v_mov_b32 v{vLIM}, 4096")
            if xt != 1:
                e(f"v_mul_u32_u24 v{vE2}, 4352, v{vT0}"); e(f"v_add_u32 v{vE2}, {A4 + 16 * 4352}, v{vE2}")
            e("s_mov_b64 exec, -1")
        if xs:
            e(f"s_mul_i32 s{sPUB}, s{sK}, {xdn}"); e(f"s_add_u32 s{sPUB}, s{sPUB}, {xn}")
            e(f"s_cmp_lt_u32 s{sK}, {xs}"); e(f"s_cselect_b32 s{sPUB}, s{sPUB}, 0x7fffffff")
            e(f"s_mov_b32 s{sRD}, {xn + xdl}"); e(f"s_mov_b32 s{sXO}, {AX}")
            e(f"s_mov_b32 s{sBI}, 0"); e(f"s_mov_b32 s{sINT}, 0")
            e(f"s_and_b32 s{sXW}, s2, 63"); e(f"s_lshl_b32 s{sXW}, s{sXW}, 8"); e(f"s_add_u32 s{sXW}, s{sXW}, {AX}")
            e(f"v_lshlrev_b32 v{vLIM}, 8, v{vL}")
        e(f"s_mov_b32 s{sN}, 0")
        e(f"s_and_b32 s3, s{sK}, {(1 << IL) - 1}"); e(f"s_add_u32 s{sTH}, s3, {TH0}")
        e(f"s_mov_b32 s{sCc}, 0"); e(f"s_mov_b64 s[{sAUX}:{sAUX + 1}], 0")
        fbspin("L_f2", 1, vD, vE2)
    else:
        ldsspin("L_f2", L_F + 4, vT0)
    stamp("s", "s.f2")
    e(f"ds_read_b128 {vr(vS)}, v{vZ} offset:{L_ST}")
    e(f"ds_read_b128 {vr(vS + 4)}, v{vZ} offset:{L_ST + 16}")
    e("s_waitcnt lgkmcnt(0)")
    e(f"v_max_f32 v{vT0}, v{vS}, v{vS + 2}"); e(f"v_max3_f32 v{vT0}, v{vT0}, v{vS + 4}, v{vS + 6}")
    for w in range(4):
        e(f"v_sub_f32 v{vG + w}, v{vS + 2 * w}, v{vT0}")
    for w in range(4):
        e(f"v_exp_f32 v{vG + w}, v{vG + w}")
    e(f"v_mul_f32 v{vD + 2}, v{vG}, v{vS + 1}")
    for w in range(1, 4):
        e(f"v_fma_f32 v{vD + 2}, v{vG + w}, v{vS + 2 * w + 1}, v{vD + 2}")
    e(f"v_and_b32 v{vD}, s{sMASK}, v{vT0}"); e(f"v_sub_f32 v{vD + 1}, v{vT0}, v{vD}")
    if xc:
        e(f"s_getreg_b32 s{sMIS}, hwreg(HW_REG_XCC_ID, 0, 16)"); e(f"s_lshl_b32 s{sMIS}, s{sMIS}, 8")
        e(f"v_mov_b32 v{vD + 3}, s{sMIS}")
    else:
        e(f"v_mov_b32 v{vD + 3}, 0")
    tag4(vSY, vD)
    publish(vSY, vZ, 5, 768, 1, 0 if xp else 1)
    if fb and dp:
        fbspin("L_f2b", None, vD + 4, vE2)
        e("s_waitcnt lgkmcnt(0)")
    poll("L_p2", [f"buffer_load_dwordx4 {vr(vD)}, v{vP3}, s[{rWS}:{rWS + 3}], s{sPO} offen offset:768 sc1"], [vD], vT0,
         lambda: ypub(2))
    if xp and not lazy:
        ypub(2)
    stamp("s", "s.stpoll")
    if xc:
        e(f"v_cmp_ne_u32 vcc, s{sMIS}, v{vD + 3}")
        e(f"s_or_b32 s{sMIS}, vcc_lo, vcc_hi")
    e(f"v_add_f32 v{vD}, v{vD}, v{vD + 1}")
    e(f"v_mov_b32 v{vD + 1}, v{vD}")
    allrows("v_max_f32", vD + 1, vT0)
    e(f"v_sub_f32 v{vD}, v{vD}, v{vD + 1}"); e(f"v_exp_f32 v{vD}, v{vD}")
    e(f"v_mul_f32 v{vD}, v{vD}, v{vD + 2}")
    allrows("v_add_f32", vD, vT0)
    e(f"v_rcp_f32 v{vD}, v{vD}")
    for w in range(4):
        e(f"v_sub_f32 v{vG + w}, v{vS + 2 * w}, v{vD + 1}")
    for w in range(4):
        e(f"v_exp_f32 v{vG + w}, v{vG + w}")
    for w in range(4):
        e(f"v_mul_f32 v{vG + w}, v{vG + w}, v{vD}")
    if fb and not dp:
        fbspin("L_f3", 2, vD + 4, vE2)
    else:
        ldsspin("L_f3", L_F + 8, vT0)
    stamp("s", "s.f3")
    for p in range(8):
        e(f"ds_read_b128 {vr(vD + 4 * p)}, v{vE1} offset:{p * 768}")
    for w in range(4):
        e(f"s_waitcnt lgkmcnt({6 - 2 * w})")
        for r in range(4):
            e(f"v_add_f32 v{vD + 8 * w + r}, v{vD + 8 * w + r}, v{vD + 8 * w + 4 + r}")
        for r in range(4):
            if w == 0:
                e(f"v_mul_f32 v{vD + r}, v{vG}, v{vD + r}")
            else:
                e(f"v_fma_f32 v{vD + r}, v{vG + w}, v{vD + 8 * w + r}, v{vD + r}")
    tag4(vOP, vD)
    publish(vOP, vE1, 5, 0, 0, 0 if xp else 1)
    if xc:
        e(f"s_cmp_eq_u32 s{sMIS}, 0"); e("s_cbranch_scc1 L_same")
        ypub(3)
        e("L_same:")
    stamp("s", "s.opub")
    nt_ = 3 if cs else 1
    if FL:
        e(f"s_cmp_ge_i32 s{sCc}, {cth}"); e("s_cselect_b32 s3, 2, 1"); e(f"v_mov_b32 v{vONE}, s3")
    l3 = [f"buffer_load_dwordx4 {vr(vD + 4 * t)}, v{vP2}, s[{rWS}:{rWS + 3}], s{sPO} offen offset:{256 * t} sc1" for t in range(nt_)]
    h3 = [f"ds_write_b32 v{vZ}, v{vONE} offset:{L_H}"] if H < 12 else []
    if op & 4:
        mpoll("L_p3", l3, [vD + 4 * t for t in range(nt_)], vT0, h3)
    else:
        poll("L_p3", l3 + h3, [vD + 4 * t for t in range(nt_)], vT0, lambda: ypub(3))
    stamp("s", "s.opoll")
    for t in range(nt_):
        treduce(vD + 4 * t)
    for t in range(nt_):
        e(f"v_cvt_pk_bf16_f32 v{vD + 4 * t}, v{vD + 4 * t}, v{vD + 4 * t}")
    for t in range(nt_):
        e(f"ds_write_b32 v{vLS}, v{vD + 4 * t} offset:{256 * t}")
    e("s_waitcnt lgkmcnt(0)")
    if stamps:
        for i in range(nst["s"]):
            e(f"v_mov_b32 v{vSC + 2 * i}, s{sST + 2 * i}"); e(f"v_mov_b32 v{vSC + 2 * i + 1}, s{sST + 2 * i + 1}")
    e("s_branch L_tail")
    e("L_reduce:")
    e("s_nop 4")
    if xp and not xc:
        publish(vOP, vE1, 5, 0, 0, 1)
    if stamps:
        for i in range(nst["s"]):
            e(f"v_readfirstlane_b32 s{sST + 2 * i}, v{vSC + 2 * i}"); e(f"v_readfirstlane_b32 s{sST + 2 * i + 1}, v{vSC + 2 * i + 1}")
    stamp("s", "s.pub")
    if cs:
        e(f"s_cmp_ge_u32 s{sJB}, 96")
        e("s_cbranch_scc1 L_sdone")
        if pp:
            ppoll("L_p4", lambda d: f"buffer_load_dwordx4 {vr(d)}, v{vR1}, s[{rWS}:{rWS + 3}], 0 offen sc1",
                  [slot(O0 + k) for k in range(pp)], vD, vT0)
        else:
            poll("L_p4", [f"buffer_load_dwordx4 {vr(vD)}, v{vR1}, s[{rWS}:{rWS + 3}], 0 offen sc1"], [vD], vT0)
        stamp("s", "s.fpoll")
        treduce(vD)
        e(f"v_add_f32_dpp v{vD}, v{vD}, v{vD} quad_perm:[2,3,0,1] {DPPM}")
        e(f"v_add_f32_dpp v{vD}, v{vD}, v{vD} row_ror:4 {DPPM}")
        e(f"v_add_f32_dpp v{vD}, v{vD}, v{vD} row_ror:8 {DPPM}")
        e("s_mov_b32 s3, 0x00030003")
        e(f"s_cmp_lt_u32 s{sJB}, 64")
        e("s_cbranch_scc1 L_r8")
        e("s_mov_b32 s3, 0x00010001")
        e(f"v_add_f32_dpp v{vD}, v{vD}, v{vD} quad_perm:[1,0,3,2] {DPPM}")
        e("L_r8:")
        e(f"v_cvt_pk_bf16_f32 v{vD}, v{vD}, v{vD}")
        e("s_mov_b32 exec_lo, s3"); e("s_mov_b32 exec_hi, s3")
        e(f"buffer_store_short v{vD}, v{vR2}, s[{rOUT}:{rOUT + 3}], 0 offen")
    else:
        e(f"s_cmp_ge_u32 s{sJB}, 80")
        e("s_cbranch_scc1 L_sdone")
        e(f"v_lshrrev_b32 v{vT0}, 1, v{vL}"); e(f"v_mul_u32_u24 v{vP1}, {2560 * fq}, v{vT0}")
        if fq > 1:
            e(f"s_mul_i32 s3, s{sJB}, {(1 << 16) // (80 // fq) + 1}"); e("s_lshr_b32 s3, s3, 16"); e("s_mul_i32 s3, s3, 2560")
            e(f"v_add_u32 v{vP1}, s3, v{vP1}")
        e(f"v_and_b32 v{vT1}, 1, v{vL}"); e(f"v_lshl_add_u32 v{vP1}, v{vT1}, 4, v{vP1}")
        e(f"s_mul_i32 s3, s{sB}, {128 * 2560}"); e(f"s_lshl_b32 s4, s{sJB}, 5"); e("s_add_u32 s3, s3, s4"); e(f"s_add_u32 s3, s3, {A3}")
        e(f"v_add_u32 v{vP1}, s3, v{vP1}")
        for k in range(1, 4):
            e(f"s_mov_b32 s{4 + k}, {k * 32 * 2560 * fq}")
        e(f"v_bfe_u32 v{vT0}, v{vL}, 4, 1"); e(f"v_lshlrev_b32 v{vT0}, 1, v{vT0}")
        e(f"v_lshrrev_b32 v{vT2}, 5, v{vL}"); e(f"v_or_b32 v{vT0}, v{vT0}, v{vT2}")
        e(f"v_lshl_add_u32 v{vT0}, v{vT1}, 2, v{vT0}")
        e(f"s_mul_i32 s3, s{sB}, 640"); e(f"s_lshl_b32 s4, s{sJB}, 3"); e("s_add_u32 s3, s3, s4")
        e(f"v_add_u32 v{vP2}, s3, v{vT0}"); e(f"v_lshlrev_b32 v{vP2}, 1, v{vP2}")
        poll("L_p4", [f"buffer_load_dwordx4 {vr(vD + 4 * k)}, v{vP1}, s[{rWS}:{rWS + 3}], {'0' if k == 0 else 's' + str(4 + k)} offen sc1" for k in range(4 // fq)],
             [vD + 4 * k for k in range(4 // fq)], vT0)
        stamp("s", "s.fpoll")
        for r in range(4):
            e(f"v_add_f32 v{vD + r}, v{vD + r}, v{vD + 4 + r}")
            e(f"v_add_f32 v{vD + 8 + r}, v{vD + 8 + r}, v{vD + 12 + r}")
        for r in range(4):
            e(f"v_add_f32 v{vD + r}, v{vD + r}, v{vD + 8 + r}")
        treduce(vD)
        e(f"v_add_f32_dpp v{vD}, v{vD}, v{vD} quad_perm:[2,3,0,1] {DPPM}")
        e(f"v_add_f32_dpp v{vD}, v{vD}, v{vD} row_ror:4 {DPPM}")
        e(f"v_add_f32_dpp v{vD}, v{vD}, v{vD} row_ror:8 {DPPM}")
        e(f"v_cvt_pk_bf16_f32 v{vD}, v{vD}, v{vD}")
        e("s_mov_b32 exec_lo, 0x00030003"); e("s_mov_b32 exec_hi, 0x00030003")
        e(f"buffer_store_short v{vD}, v{vP2}, s[{rOUT}:{rOUT + 3}], 0 offen")
    e(f"s_cmp_lg_u32 s{sJB}, 0")
    e("s_cbranch_scc1 L_sdone")
    e("s_mov_b64 exec, 1")
    e(f"buffer_store_dword v{vT}, v{vZ}, s[{rWS}:{rWS + 3}], s9 offen sc1")
    if probe:
        e("s_memrealtime s[72:73]")
        e("s_mov_b64 exec, -1")
        e(f"s_cmp_lg_u32 s{sB}, 0"); e("s_cbranch_scc1 L_sdone")
        e(f"v_lshlrev_b32 v{vT0}, 4, v{vL}")
        e(f"buffer_load_dwordx4 {vr(vA)}, v{vT0}, s[{rWS}:{rWS + 3}], 0 offen offset:1024 sc1")
        e("s_waitcnt vmcnt(0) lgkmcnt(0)")
        e("s_lshl_b32 s74, s68, 3")
        e("s_mov_b32 s75, 0x7fffffff"); e("s_mov_b32 s76, 0x80000000"); e("s_mov_b32 s77, 0"); e("s_mov_b32 s78, 0"); e("s_mov_b32 s79, 0")
        e("L_pr:")
        for r in range(4):
            e(f"v_readlane_b32 s80, v{vA + r}, s79")
            e("s_nop 3")
            e("s_and_b32 s81, s80, 7"); e("s_andn2_b32 s80, s80, 7"); e("s_sub_u32 s80, s80, s74"); e("s_ashr_i32 s80, s80, 3")
            e("s_min_i32 s75, s75, s80"); e("s_max_i32 s76, s76, s80"); e("s_add_i32 s77, s77, s80")
            e("s_sub_i32 s82, 0, s80"); e("s_cmp_ge_u32 s81, 4"); e("s_cselect_b32 s80, s80, s82"); e("s_add_i32 s78, s78, s80")
        e("s_add_u32 s79, s79, 1"); e("s_cmp_lt_u32 s79, 64"); e("s_cbranch_scc1 L_pr")
        if probe == 1:
            e("s_ashr_i32 s77, s77, 8"); e("s_sub_i32 s80, s76, s77")
        elif probe == 2:
            e("s_ashr_i32 s78, s78, 7"); e("s_add_i32 s80, s78, 100")
        elif probe == 3:
            e("s_sub_u32 s80, s72, s68"); e("s_sub_i32 s80, s80, s75"); e("s_sub_i32 s80, s80, 3200")
        elif probe == 4:
            e("s_sub_u32 s80, s72, s68"); e("s_sub_i32 s80, s80, s76"); e("s_sub_i32 s80, s80, 3200")
        else:
            e("s_mov_b32 s80, 0")
        e(f"s_mul_i32 s80, s80, {amp}"); e("s_max_i32 s80, s80, 0"); e("s_min_i32 s80, s80, 8000"); e("s_add_u32 s80, s80, 1000")
        e("L_ps:")
        e("s_memrealtime s[82:83]"); e("s_waitcnt lgkmcnt(0)"); e("s_sub_u32 s82, s82, s72")
        e("s_cmp_lt_u32 s82, s80"); e("s_cbranch_scc1 L_ps")
    e("L_sdone:")
    e("s_mov_b64 exec, -1")
    if stamps:
        e("s_waitcnt vmcnt(0)")
    stamp("s", "s.end")
    stamps_out("s")
    e("L_end:")
    e("s_endpgm")

    body, nops = resolve(L)
    nv = vRING + 4 * R
    out = [HDR.rstrip("\n"),
           f"; @launch grid=(256,1,1) block=(320,1,1) lds={LDS}"]
    if stamps:
        out.append("; @stamps " + ",".join(f"{i}={n}" for i, n in names))
    out += ['.amdgcn_target "amdgcn-amd-amdhsa--gfx950"', ".text", f".globl {KN}", ".p2align 8",
            f".type {KN},@function", f"{KN}:"]
    out += [("" if t.endswith(":") else "    ") + t for t in body]
    out += ['.section .rodata,"a"', ".p2align 6", f".amdhsa_kernel {KN}",
            f"  .amdhsa_next_free_vgpr {nv}", "  .amdhsa_next_free_sgpr 102",
            f"  .amdhsa_accum_offset {(nv + 3) // 4 * 4}",
            "  .amdhsa_group_segment_fixed_size 0", "  .amdhsa_kernarg_size 104",
            "  .amdhsa_user_sgpr_count 2", "  .amdhsa_user_sgpr_kernarg_segment_ptr 1",
            "  .amdhsa_system_sgpr_workgroup_id_x 1", ".end_amdhsa_kernel"]
    return "\n".join(out) + "\n", nops


if __name__ == "__main__":
    outp = sys.argv[1]
    kw = {}
    for a in sys.argv[2:]:
        k, v = a.split("=")
        kw[k] = int(v) if v.lstrip("-").isdigit() else v.replace("+", " ")
    s, nops = gen(**kw)
    open(outp, "w").write(s)
    print(outp, "lines", s.count("\n"), "nop states", nops)
```

```python
import sys, math, struct
from asmlib import resolve, VM

KN = "concat_heads__mha_block_cached__gqa_block_cached__decode_kernel"
HDR = open("concat_heads__mha_block_cached__gqa_block_cached__decode.s.ref").read().split("; Override launch")[0]

A1 = 4096
A2 = A1 + 256 * 768
A3 = A2 + 256 * 1024
A4 = A3 + 256 * 2560
AY = A4 + 256 * 4352
DY = AY - A1
WS_USED = AY + A3 - A1
L_P = 0
L_Q = 6144
L_T = 6528
L_F = 6544
L_ST = 6560
L_O = 6592
L_X = 7360
L_H = L_X + 516
LDS = 8448

sS, sHH, sB, sH, sW, sJB = 10, 11, 12, 13, 14, 15
sX, sMASK, sCNT = 16, 18, 19
sKV, sWW, sOUT, sWS = 20, 24, 28, 30
rX, rWQ, rK, rV, rWO, rWS, rOUT = 32, 36, 40, 44, 48, 52, 56
sOFF, sC = 60, 61
sSEL = 62
sSA, sSB = 66, 67
sROT = 100
sPO = 101
rDBG = 96
sRH = 98
sMIS = 99
sST = 68

vL, vKV, vWQ, vWO = 0, 1, 2, 3
vM = 4
vQ = 8
vACC = 20
vA = 32
vT = 36
vPW, vQR, vOR, vPUB = 37, 38, 39, 40
vMX, vLS, vNM = 41, 42, 43
vX = 44
vT0, vT1, vT2, vT3 = 49, 50, 51, 52
vZ, vONE, vPR = 53, 54, 55
vSC = 56
vRING = 88


def f2u(x):
    return struct.unpack("<I", struct.pack("<f", x))[0]


def gen(te=0, xo=0, FX=0, FX2=0, XT=3, GX=0, RT=0, PF=250, probe=0, amp=10, qd=0, op=0, osl=0, mp=0, xf=0, FL=0, cth=1, xs=0, xn=2, xdn=4, xdl=2, xa=1, xi=0, xsh=4, BM=20, tb=0, ns='', pp=0, pth=8, dry=0, cs=0, sw=0, xc=0, H=99, FW=12, dp=0, fq=1, nost=0, lazy=0, xt=0, xd=0, xg=1, xb=18, XM=64, F=6, F0=6, F2=0, G2=99, rot=0, R=27, fl="nt", stamps=0, prio=1, codepf=0, pk=2, warm=0, qf=0, fb=0, FH=8, FH2=0, G3=99, TH0=48, THL=232, ksh=1, CM=4, bias=1, cb=0, xp=0, N0=32, IL=4, pre=0, nopoll=0, skip=0, dummy=0):
    L = []
    e = L.append
    names = []
    nst = {"w": 0, "s": 0}

    def stamp(who, name):
        if not stamps or name in ns.split() or (stamps == 2 and name in ("woissued", "oready", "pub")):
            return
        i = nst[who]
        assert i < 14
        nst[who] += 1
        e(f"s_memrealtime s[{sST + 2 * i}:{sST + 2 * i + 1}]")
        names.append((i + (0 if who == "w" else 14), name))

    def srd(d, base, off, size):
        if off is None:
            e(f"s_mov_b32 s{d}, s{base}"); e(f"s_mov_b32 s{d + 1}, s{base + 1}")
            e(f"s_mov_b32 s{d + 2}, {size}")
        else:
            e(f"s_add_u32 s{d}, s{base}, s{off}"); e(f"s_addc_u32 s{d + 1}, s{base + 1}, 0")
            e(f"s_sub_u32 s{d + 2}, {size}, s{off}")
        e(f"s_mov_b32 s{d + 3}, 0x20000")

    def slot(i):
        return vRING + 4 * (i % R)

    def vr(a, n=4):
        return f"v[{a}:{a + n - 1}]"

    DPPM = "row_mask:0xf bank_mask:0xf"

    def allrows(op, v, t):
        e(f"v_mov_b32 v{t}, v{v}")
        e(f"v_permlane16_swap_b32 v{v}, v{t}")
        e(f"{op} v{v}, v{v}, v{t}")
        e(f"v_mov_b32 v{t}, v{v}")
        e(f"v_permlane32_swap_b32 v{v}, v{t}")
        e(f"{op} v{v}, v{v}, v{t}")

    def treduce(d):
        e(f"v_permlane32_swap_b32 v{d}, v{d + 1}")
        e(f"v_permlane32_swap_b32 v{d + 2}, v{d + 3}")
        e(f"v_add_f32 v{d}, v{d}, v{d + 1}")
        e(f"v_add_f32 v{d + 2}, v{d + 2}, v{d + 3}")
        e(f"v_permlane16_swap_b32 v{d}, v{d + 2}")
        e(f"v_add_f32 v{d}, v{d}, v{d + 2}")

    def tag4(dst, src):
        for r in range(4):
            e(f"v_perm_b32 v{dst + r}, v{src + r}, v{vT}, s{sSEL + r}")

    def poll(label, loads, units, tmp, dual=None):
        e(f"s_mov_b32 s{sCNT}, {1 if nopoll >> (4 - int(label[-1])) & 1 else 400000}")
        if dual:
            e(f"s_mov_b32 s{sPO}, {0 if xp else DY}")
        e(f"{label}:")
        e("s_nop 1")
        for t in loads:
            if not skip >> (4 - int(label[-1])) & 1:
                e(t)
        e(f"s_sub_u32 s{sCNT}, s{sCNT}, 1")
        if dual and xp:
            e(f"s_cmp_lg_u32 s{sCNT}, {400000 - N0}"); e(f"s_cbranch_scc1 {label}_y")
            dual()
            e(f"{label}_y:")
            e(f"s_cmp_lt_u32 s{sCNT}, {400000 - N0}"); e(f"s_cselect_b32 s3, {DY}, 0"); e(f"s_xor_b32 s{sPO}, s{sPO}, s3")
        e("s_waitcnt vmcnt(0)")
        for k, u in enumerate(units):
            e(f"v_perm_b32 v{tmp}, v{u + 1}, v{u}, s{sSA}")
            e(f"v_perm_b32 v{tmp + 1}, v{u + 3}, v{u + 2}, s{sSB}")
            e(f"v_or_b32 v{tmp}, v{tmp}, v{tmp + 1}")
            if k == 0:
                e(f"v_xor_b32 v{tmp + 2}, v{tmp}, v{vT}")
            else:
                e(f"v_xor_b32 v{tmp}, v{tmp}, v{vT}")
                e(f"v_or_b32 v{tmp + 2}, v{tmp + 2}, v{tmp}")
        e(f"v_cmp_ne_u32 vcc, 0, v{tmp + 2}")
        e(f"s_cmp_eq_u32 s{sCNT}, 0")
        e(f"s_cbranch_scc1 {label}_x")
        e(f"s_cbranch_vccnz {label}")
        e(f"{label}_x:")
        for u in units:
            for r in range(4):
                e(f"v_and_b32 v{u + r}, s{sMASK}, v{u + r}")

    def ppoll(label, load, bufs, res, tmp):
        def check(src):
            if src != res:
                for r in range(4):
                    e(f"v_mov_b32 v{res + r}, v{src + r}")
            e(f"v_perm_b32 v{tmp}, v{src + 1}, v{src}, s{sSA}")
            e(f"v_perm_b32 v{tmp + 1}, v{src + 3}, v{src + 2}, s{sSB}")
            e(f"v_or_b32 v{tmp}, v{tmp}, v{tmp + 1}")
            e(f"v_cmp_ne_u32 vcc, v{tmp}, v{vT}")
        n = len(bufs)
        e(f"s_mov_b32 s{sCNT}, 400000")
        e(f"{label}:")
        e(load(res))
        e("s_waitcnt vmcnt(0)")
        check(res)
        e(f"s_sub_u32 s{sCNT}, s{sCNT}, 1")
        e(f"s_cbranch_scc1 {label}_x")
        e("s_and_b64 exec, exec, vcc")
        e(f"s_cbranch_scc0 {label}_x")
        if n > 1:
            e("s_bcnt1_i32_b64 s3, exec")
            e(f"s_cmp_gt_u32 s3, {pth}")
        e(f"s_cbranch_scc1 {label}")
        if n > 1:
            for k in range(n - 1):
                e(load(bufs[k]))
            e(f"{label}_f:")
            for k in range(n):
                e(load(bufs[(k + n - 1) % n]))
                e(f"s_waitcnt vmcnt({n - 1})")
                check(bufs[k])
                e("s_and_b64 exec, exec, vcc")
                e(f"s_cbranch_scc0 {label}_x")
            e(f"s_sub_u32 s{sCNT}, s{sCNT}, 1")
            e(f"s_cbranch_scc0 {label}_f")
        e(f"{label}_x:")
        e("s_mov_b64 exec, -1")
        for r in range(4):
            e(f"v_and_b32 v{res + r}, s{sMASK}, v{res + r}")

    def mpoll(label, loads, units, tmp, first=()):
        e(f"s_mov_b32 s{sCNT}, 400000")
        e(f"s_mov_b32 s{sPO}, {DY}")
        for t in loads:
            e(t)
        for t in first:
            e(t)
        e(f"{label}:")
        e("s_waitcnt vmcnt(0)")
        for k, u in enumerate(units):
            e(f"v_perm_b32 v{tmp}, v{u + 1}, v{u}, s{sSA}")
            e(f"v_perm_b32 v{tmp + 1}, v{u + 3}, v{u + 2}, s{sSB}")
            e(f"v_or_b32 v{tmp}, v{tmp}, v{tmp + 1}")
            if k == 0:
                e(f"v_xor_b32 v{tmp + 2}, v{tmp}, v{vT}")
            else:
                e(f"v_xor_b32 v{tmp}, v{tmp}, v{vT}")
                e(f"v_or_b32 v{tmp + 2}, v{tmp + 2}, v{tmp}")
        e(f"v_cmp_ne_u32 vcc, 0, v{tmp + 2}")
        e(f"s_sub_u32 s{sCNT}, s{sCNT}, 1")
        e(f"s_cbranch_scc1 {label}_x")
        e("s_and_b64 exec, exec, vcc")
        e(f"s_cbranch_scc0 {label}_x")
        if osl:
            e(f"s_sleep {osl}")
        for t in loads:
            e(t)
        e(f"s_branch {label}")
        e(f"{label}_x:")
        e("s_mov_b64 exec, -1")
        for u in units:
            for r in range(4):
                e(f"v_and_b32 v{u + r}, s{sMASK}, v{u + r}")

    def publish(src, vaddr, sx, off, one, y):
        o = f" offset:{off}" if off else ""
        e("s_mov_b64 exec, 1" if one else "s_mov_b32 exec_hi, 0xffff")
        e(f"buffer_store_dwordx4 {vr(src)}, v{vaddr}, s[{rWS}:{rWS + 3}], s{sx + 2 * y} offen{o}" + (" sc1" if y else ""))
        e("s_mov_b64 exec, -1")

    def ldsspin(label, off, tmp):
        e(f"s_mov_b32 s{sCNT}, 4000000")
        e(f"{label}:")
        e(f"ds_read_b32 v{tmp}, v{vZ} offset:{off}")
        e(f"s_sub_u32 s{sCNT}, s{sCNT}, 1")
        e("s_waitcnt lgkmcnt(0)")
        e(f"v_readfirstlane_b32 s3, v{tmp}")
        e(f"s_cmp_eq_u32 s{sCNT}, 0")
        e(f"s_cbranch_scc1 {label}_x")
        e("s_cmp_lt_u32 s3, 4")
        e(f"s_cbranch_scc1 {label}")
        e(f"{label}_x:")

    sN, sSL, sCc, sTH, sP, sK, sAUX = 32, 33, 34, 35, 36, 37, 38
    sD, sXL, sDL, sLEAD = 40, 41, 42, 43
    vLIM, vTX = 37, 38
    sPUB, sRD, sXO, sBI, sTM, sINT, sXW = 40, 41, 42, 43, 44, 46, 47
    AX = A4 + 16 * 4352

    def fbspin(label, k, tmp, vad):
        e(f"s_mov_b32 s{sCNT}, 4000000")
        e(f"{label}:")
        e(f"ds_read_b128 {vr(tmp)}, v{vZ} offset:{L_F}")
        e(f"s_sub_u32 s{sCNT}, s{sCNT}, 1")
        e(f"s_cbranch_scc1 {label}_x")
        if k is None:
            e(f"s_cmp_eq_u32 s{sTH}, 0x7fffffff")
            e(f"s_cbranch_scc1 {label}_x")
        e("s_waitcnt lgkmcnt(0)")
        if k is not None:
            e(f"v_readfirstlane_b32 s3, v{tmp + k}")
        e(f"v_readfirstlane_b32 s{sP}, v{tmp + 3}")
        if k is not None:
            e("s_cmp_ge_u32 s3, 4")
            e(f"s_cbranch_scc1 {label}_x")
        e(f"s_sub_i32 s{sP}, s{sP}, s{sCc}")
        e(f"s_cmp_lt_i32 s{sP}, s{sTH}")
        e(f"s_cbranch_scc1 {label}")
        e(f"s_sub_i32 s{sK}, s{sP}, s{sTH}"); e(f"s_lshr_b32 s{sK}, s{sK}, {IL}"); e(f"s_add_u32 s{sK}, s{sK}, 1")
        e(f"s_add_u32 s{sN}, s{sN}, s{sK}")
        if xs:
            e(f"s_cmp_ge_u32 s{sN}, s{sPUB}"); e(f"s_cbranch_scc0 {label}_a")
            e(f"s_memrealtime s[{sTM}:{sTM + 1}]")
            e(f"{label}_a:")
        e(f"v_and_b32 v{tmp}, s{sMASK}, v{vT}"); e(f"v_or_b32 v{tmp + 1}, s{sN}, v{tmp}")
        e(f"buffer_load_dword v{tmp + 2}, v{vad}, s[{rWS}:{rWS + 3}], 0 offen sc1")
        e("s_mov_b64 exec, 1")
        if nost:
            e(f"buffer_load_dword v{tmp + 1}, v{vZ}, s[{rWS}:{rWS + 3}], s{sSL} offen sc1")
        else:
            e(f"buffer_store_dword v{tmp + 1}, v{vZ}, s[{rWS}:{rWS + 3}], s{sSL} offen")
        e("s_mov_b64 exec, -1")
        e(f"s_lshl_b32 s{sK}, s{sK}, {IL}"); e(f"s_add_u32 s{sTH}, s{sTH}, s{sK}")
        e(f"s_cmp_gt_i32 s{sTH}, {THL + (1 << IL) - 1}"); e(f"s_cselect_b32 s{sTH}, 0x7fffffff, s{sTH}")
        if xs:
            e(f"s_cmp_ge_u32 s{sN}, s{sRD}"); e(f"s_cbranch_scc0 {label}_b")
            e("s_mov_b64 exec, 0xff")
            e(f"buffer_load_dword v{tmp + 3}, v{vLIM}, s[{rWS}:{rWS + 3}], s{sXO} offen sc1")
            e(f"s_add_u32 s{sRD}, s{sRD}, {xdn}"); e(f"s_add_u32 s{sXO}, s{sXO}, 2048")
            e(f"s_cmp_ge_u32 s{sXO}, {AX + 2048 * xs}"); e(f"s_cselect_b32 s{sRD}, 0x7fffffff, s{sRD}")
            e("s_and_b32 s3, s2, 7")
            e("s_waitcnt vmcnt(0)")
            e(f"v_xor_b32 v{tmp + 3}, v{tmp + 3}, v{vTX}")
            e(f"v_cmp_gt_u32 vcc, 0x1000, v{tmp + 3}")
            e(f"v_readlane_b32 s3, v{tmp + 3}, s3")
            e("s_cmp_eq_u32 vcc_lo, 0xff"); e(f"s_cbranch_scc0 {label}_b")
            e(f"v_sub_u32 v{tmp + 3}, s3, v{tmp + 3}")
            e(f"v_bfe_i32 v{tmp + 3}, v{tmp + 3}, 0, 12")
            for m in ("quad_perm:[1,0,3,2]", "quad_perm:[2,3,0,1]", "row_half_mirror"):
                e(f"v_add_u32_dpp v{tmp + 3}, v{tmp + 3}, v{tmp + 3} {m} {DPPM}")
            e(f"v_readfirstlane_b32 s3, v{tmp + 3}")
            if xi:
                e(f"s_mul_i32 s{sBI}, s3, {xi}"); e(f"s_add_i32 s{sINT}, s{sINT}, s{sBI}")
                e(f"s_min_i32 s{sINT}, s{sINT}, {BM << xsh}"); e(f"s_max_i32 s{sINT}, s{sINT}, {-(BM << xsh)}")
                e(f"s_mul_i32 s3, s3, {xa}"); e(f"s_add_i32 s3, s3, s{sINT}")
            else:
                e(f"s_mul_i32 s3, s3, {xa}")
            e(f"s_ashr_i32 s3, s3, {xsh}")
            e(f"s_min_i32 s3, s3, {BM}"); e(f"s_max_i32 s{sBI}, s3, {-BM}")
            e(f"{label}_b:")
            e("s_mov_b64 exec, -1")
        e("s_waitcnt vmcnt(1)")
        e(f"v_xor_b32 v{tmp + 2}, v{tmp + 2}, v{vPR}")
        e(f"v_cmp_gt_u32 vcc, {'v' + str(vLIM) if xd else 64}, v{tmp + 2}")
        e(f"v_cndmask_b32 v{tmp + 2}, 0, v{tmp + 2}, vcc")
        for m in ("quad_perm:[1,0,3,2]", "quad_perm:[2,3,0,1]", "row_half_mirror", "row_mirror"):
            e(f"v_add_u32_dpp v{tmp + 2}, v{tmp + 2}, v{tmp + 2} {m} {DPPM}")
        e(f"v_readlane_b32 s{sK}, v{tmp + 2}, 0"); e(f"v_readlane_b32 s3, v{tmp + 2}, 16")
        e(f"s_add_u32 s{sK}, s{sK}, s3")
        if xd:
            e(f"v_readlane_b32 s{sD}, v{tmp + 2}, 48")
            e(f"s_cmp_eq_u32 s{sLEAD}, 0"); e(f"s_cbranch_scc1 {label}_n")
            e(f"v_readlane_b32 s3, v{tmp + 2}, 32")
            e(f"v_or_b32 v{tmp}, s{sK}, v{vTX}")
            e("s_lshr_b32 s3, s3, 3"); e(f"s_add_u32 s3, s3, {2048 + xb}"); e(f"s_sub_u32 s3, s3, s{sK}")
            e(f"s_min_u32 s3, s3, {2048 + XM}"); e(f"s_max_u32 s3, s3, {2048 - XM}")
            e(f"s_and_b32 s{sD}, vcc_hi, 0xff"); e(f"s_cmp_eq_u32 s{sD}, 0xff")
            e(f"s_cselect_b32 s{sD}, s3, 2048")
            e(f"v_or_b32 v{tmp + 1}, s{sD}, v{vTX}")
            if xf:
                e(f"v_lshlrev_b32 v{tmp + 3}, 2, v{vL}")
                e("s_mov_b32 exec_hi, 0")
                e(f"buffer_store_dword v{tmp}, v{tmp + 3}, s[{rWS}:{rWS + 3}], s{sXL} offen sc1")
            e("s_mov_b64 exec, 1")
            if xt != 2 and not xf:
                e(f"buffer_store_dword v{tmp}, v{vZ}, s[{rWS}:{rWS + 3}], s{sXL} offen sc1")
            e(f"buffer_store_dword v{tmp + 1}, v{vZ}, s[{rWS}:{rWS + 3}], s{sDL} offen")
            e("s_mov_b64 exec, -1")
            e(f"{label}_n:")
            e(f"s_cmp_eq_u32 s{sD}, 0"); e(f"s_cselect_b32 s{sD}, 2048, s{sD}")
            e(f"s_sub_i32 s{sD}, s{sD}, 2048")
            if xg:
                e(f"s_ashr_i32 s{sD}, s{sD}, {xg}")
            e(f"s_add_i32 s{sK}, s{sK}, s{sD}")
        if xs:
            e(f"s_cmp_ge_u32 s{sN}, s{sPUB}"); e(f"s_cbranch_scc0 {label}_c")
            e(f"s_mul_i32 s3, s{sK}, 43"); e("s_lshr_b32 s3, s3, 4")
            e("s_waitcnt lgkmcnt(0)")
            e(f"s_sub_u32 s3, s{sTM}, s3"); e("s_and_b32 s3, s3, 0xfff")
            e(f"v_or_b32 v{tmp}, s3, v{vTX}")
            if xf:
                e(f"v_lshlrev_b32 v{tmp + 3}, 2, v{vL}")
                e("s_mov_b32 exec_hi, 0")
                e(f"buffer_store_dword v{tmp}, v{tmp + 3}, s[{rWS}:{rWS + 3}], s{sXW} offen sc1")
            else:
                e("s_mov_b64 exec, 1")
                e(f"buffer_store_dword v{tmp}, v{vZ}, s[{rWS}:{rWS + 3}], s{sXW} offen sc1")
            e("s_mov_b64 exec, -1")
            e(f"s_mov_b32 s{sPUB}, 0x7fffffff")
            e(f"{label}_c:")
            e(f"s_add_i32 s{sK}, s{sK}, s{sBI}")
        if tb:
            e(f"s_add_i32 s{sK}, s{sK}, s{sBI}")
        if IL > 3:
            e(f"s_lshl_b32 s{sK}, s{sK}, {IL - 3}")
        e(f"s_lshl_b32 s3, s{sP}, 2")
        e(f"s_sub_i32 s3, s{sK}, s3")
        e(f"s_add_u32 s3, s3, {4 * TH0 - 2 + (2 << ksh) + cb}")
        e(f"s_ashr_i32 s3, s3, {2 + ksh}")
        e(f"s_min_i32 s3, s3, {CM}"); e(f"s_max_i32 s3, s3, {-CM}")
        e(f"s_sub_i32 s{sK}, s3, s{sCc}"); e(f"s_mov_b32 s{sCc}, s3")
        e(f"v_mov_b32 v{tmp}, s{sK}")
        e("s_mov_b64 exec, 1")
        e(f"ds_add_u32 v{vZ}, v{tmp} offset:{L_F + 12}")
        e("s_mov_b64 exec, -1")
        if stamps:
            e(f"s_lshl_b64 s[{sAUX}:{sAUX + 1}], s[{sAUX}:{sAUX + 1}], 5")
            e(f"s_and_b32 s{sAUX + 1}, s{sAUX + 1}, 0xfffffff")
            e("s_add_u32 s3, s3, 16"); e(f"s_or_b32 s{sAUX}, s{sAUX}, s3")
        e(f"s_branch {label}")
        e(f"{label}_x:")

    e("s_cmp_ge_u32 s2, 256"); e("s_cbranch_scc1 L_end")
    if stamps:
        e(f"s_memrealtime s[{sST}:{sST + 1}]")
        nst["w"] = 1; nst["s"] = 1
        names.append((0, "start")); names.append((14, "s.start"))
    if mp:
        e(f"s_and_b32 s{sS}, s2, 3"); e("s_lshr_b32 s4, s2, 3"); e("s_bfe_u32 s3, s2, 0x10002")
        e("s_lshl_b32 s3, s3, 5"); e(f"s_add_u32 s{sHH}, s4, s3")
    else:
        if xo:
            e(f"s_add_u32 s3, s2, {xo}"); e("s_and_b32 s3, s3, 7")
        else:
            e("s_and_b32 s3, s2, 7")
        e("s_lshr_b32 s4, s2, 3"); e(f"s_and_b32 s{sS}, s4, 3")
        e("s_lshr_b32 s4, s4, 2"); e("s_lshl_b32 s4, s4, 3"); e(f"s_add_u32 s{sHH}, s4, s3")
    e(f"s_lshr_b32 s{sB}, s{sHH}, 5"); e(f"s_mul_i32 s7, s{sB}, 40")
    e("s_add_u32 s8, s0, s7"); e("s_addc_u32 s9, s1, 0")
    e(f"s_load_dwordx4 s[{sWW}:{sWW + 3}], s[8:9], 24")
    e(f"s_load_dwordx2 s[{sX}:{sX + 1}], s[8:9], 0")
    e(f"s_load_dwordx4 s[{sKV}:{sKV + 3}], s[8:9], 8")
    e(f"s_load_dwordx2 s[{sOUT}:{sOUT + 1}], s[0:1], 80")
    e(f"s_load_dwordx2 s[{sWS}:{sWS + 1}], s[0:1], 96")
    e(f"v_lshrrev_b32 v{vT0}, 6, v0")
    e(f"v_and_b32 v{vL}, 63, v0")
    e(f"v_readfirstlane_b32 s{sW}, v{vT0}")
    e(f"s_and_b32 s{sH}, s{sHH}, 31")
    e(f"s_lshl_b32 s{sJB}, s{sH}, 2"); e(f"s_add_u32 s{sJB}, s{sJB}, s{sS}")
    e(f"v_lshrrev_b32 v{vT0}, 3, v{vL}")
    e(f"v_and_b32 v{vT1}, 7, v{vL}")
    e(f"v_lshlrev_b32 v{vT2}, 4, v{vT1}")
    e(f"v_mul_u32_u24 v{vWQ}, 12288, v{vT0}"); e(f"v_add_u32 v{vWQ}, v{vWQ}, v{vT2}")
    e(f"v_mul_u32_u24 v{vKV}, 384, v{vT0}"); e(f"v_add_u32 v{vKV}, v{vKV}, v{vT2}")
    e(f"v_lshlrev_b32 v{vT3}, 1, v{vT0}")
    e(f"v_add_u32 v{vQR}, {L_Q}, v{vT2}")
    e(f"s_mul_i32 s3, s{sS}, 160"); e(f"s_mul_i32 s4, s{sW}, 40"); e("s_add_u32 s3, s3, s4")
    e("s_mul_i32 s4, s3, 12288"); e(f"s_mul_i32 s5, s{sH}, 384"); e("s_add_u32 s4, s4, s5")
    e("s_lshl_b32 s3, s3, 1")
    e(f"s_mul_i32 s5, s{sH}, 1572864"); e(f"s_mul_i32 s6, s{sS}, 393216"); e("s_add_u32 s5, s5, s6")
    e(f"s_mul_i32 s6, s{sW}, 3072"); e("s_add_u32 s5, s5, s6")
    if cs:
        a, b_, c_ = sSEL, sSEL + 1, sSEL + 2
        e(f"s_and_b32 s{a}, s{sS}, 1"); e(f"s_mul_i32 s{b_}, s{a}, 3"); e(f"s_bfe_u32 s{c_}, s{sW}, 0x10001"); e(f"s_add_u32 s{b_}, s{b_}, s{c_}")
        e(f"s_and_b32 s{c_}, s{sW}, 1"); e(f"s_cmp_eq_u32 s{sW}, 0"); e(f"s_cselect_b32 s{b_}, 2, s{b_}"); e(f"s_cselect_b32 s{sRH}, s{a}, s{c_}")
        e(f"s_lshr_b32 s{a}, s{sS}, 1"); e(f"s_mul_i32 s{a}, s{a}, 5"); e(f"s_add_u32 s{b_}, s{b_}, s{a}"); e(f"s_lshl_b32 s{b_}, s{b_}, 7")
        e(f"s_mul_i32 s6, s{sH}, 245760"); e(f"s_add_u32 s6, s6, s{b_}")
        e(f"s_mul_i32 s{a}, s{sRH}, 122880"); e(f"s_add_u32 s6, s6, s{a}")
    else:
        e(f"s_mul_i32 s6, s{sJB}, 61440"); e(f"s_lshl_b32 s7, s{sW}, 8"); e("s_add_u32 s6, s6, s7")
    e(f"s_cmp_eq_u32 s{sW}, 4")
    e("s_cbranch_scc1 L_service")

    def common_consts():
        e(f"v_and_b32 v{vT0}, 1, v{vL}"); e(f"v_lshlrev_b32 v{vT0}, 4, v{vT0}")
        e(f"v_mov_b32 v{vT1}, 0xffff"); e(f"v_lshlrev_b32 v{vT0}, v{vT0}, v{vT1}")
        e(f"v_bfe_u32 v{vT1}, v{vL}, 1, 2")
        for r in range(4):
            e(f"v_cmp_eq_u32 vcc, {r}, v{vT1}")
            e(f"v_cndmask_b32 v{vM + r}, 0, v{vT0}, vcc")
        if cs:
            e(f"v_lshrrev_b32 v{vT0}, 3, v{vL}"); e(f"v_and_b32 v{vT1}, 7, v{vL}")
            e(f"v_mul_u32_u24 v{vWO}, 15360, v{vT0}"); e(f"v_lshl_add_u32 v{vWO}, v{vT1}, 4, v{vWO}")
            e(f"s_mul_i32 s7, s{sRH}, 384"); e(f"s_add_u32 s7, s7, {L_O}")
            e(f"v_mul_u32_u24 v{vOR}, 48, v{vT0}"); e(f"v_add_u32 v{vOR}, s7, v{vOR}")
            e(f"v_bfe_u32 v{vT0}, v{vL}, 4, 1")
            e(f"v_lshlrev_b32 v{vPUB}, 5, v{vT1}"); e(f"v_lshl_add_u32 v{vPUB}, v{vT0}, 4, v{vPUB}")
            e(f"s_bfe_u32 s8, s{sW}, 0x10001")
            e(f"s_lshl_b32 s7, s{sS}, 1"); e("s_add_u32 s7, s7, s8"); e("s_lshl_b32 s7, s7, 5"); e(f"s_add_u32 s7, s7, s{sH}")
            e(f"s_lshr_b32 s9, s{sS}, 1"); e("s_lshl_b32 s9, s9, 5"); e(f"s_add_u32 s9, s9, s{sH}")
            e("s_lshl_b32 s9, s9, 1"); e(f"s_add_u32 s9, s9, s{sRH}"); e("s_add_u32 s9, s9, 256")
            e(f"s_cmp_eq_u32 s{sW}, 0"); e("s_cselect_b32 s7, s9, s7")
            e(f"s_mul_i32 s9, s{sB}, 384"); e("s_add_u32 s7, s7, s9"); e("s_lshl_b32 s7, s7, 8"); e(f"s_add_u32 s7, s7, {A3}")
            e(f"v_add_u32 v{vPUB}, s7, v{vPUB}")
        else:
            e(f"v_lshrrev_b32 v{vT0}, 4, v{vL}")
            e(f"v_and_b32 v{vT1}, 15, v{vL}")
            e(f"v_mul_u32_u24 v{vWO}, 15360, v{vT0}"); e(f"v_lshl_add_u32 v{vWO}, v{vT1}, 4, v{vWO}")
            e(f"v_mul_u32_u24 v{vOR}, 48, v{vT0}"); e(f"v_add_u32 v{vOR}, {L_O}, v{vOR}")
            e(f"v_lshlrev_b32 v{vPUB}, 5, v{vT1}"); e(f"v_lshl_add_u32 v{vPUB}, v{vT0}, 4, v{vPUB}")
            e(f"s_lshl_b32 s7, s{sB}, 7"); e(f"s_add_u32 s7, s7, s{sJB}"); e("s_mul_i32 s7, s7, 2560")
            e(f"s_lshl_b32 s8, s{sW}, 9"); e("s_add_u32 s7, s7, s8"); e(f"s_add_u32 s7, s7, {A3}")
            e(f"v_add_u32 v{vPUB}, s7, v{vPUB}")
        e(f"v_mov_b32 v{vZ}, 0"); e(f"v_mov_b32 v{vONE}, 1")
        for r in range(4):
            e(f"s_mov_b32 s{sSEL + r}, {0x07060500 + r}")
        srd(rWO, sWW + 2, 6, 7864320)
        srd(rWS, sWS, None, WS_USED)
        if cs:
            srd(rOUT, sOUT, None, 2560)

    vXA = vNM

    def pair_addr():
        e(f"s_bfe_u32 s3, s{sW}, 0x10001"); e("s_lshl_b32 s3, s3, 8"); e(f"s_add_u32 s3, s3, {L_X}")
        e(f"v_and_b32 v{vXA}, 255, v{vPUB}"); e(f"v_add_u32 v{vXA}, s3, v{vXA}")

    vm = VM(e)
    NQ, NK, NV, NO = 15, 96, 96, 12
    K0, V0, O0 = NQ, NQ + NK, NQ + NK + NV
    N = O0 + NO
    cur = [None]

    def setoff(v):
        if cur[0] != v:
            e(f"s_mov_b32 s{sOFF}, {v}")
            cur[0] = v

    def issue(i):
        d = vr(slot(i))
        if i < K0:
            g, t = divmod(i, 3)
            setoff(g * 8 * 12288)
            vm.issue(i, f"buffer_load_dwordx4 {d}, v{vWQ}, s[{rWQ}:{rWQ + 3}], s{sOFF} offen offset:{t * 128} {fl}")
        elif i < O0:
            r = rK if i < V0 else rV
            g, t = divmod(i - (K0 if i < V0 else V0), 3)
            if fb and t == 0 and i < V0 + 3 * G3:
                ga = (i - K0) // 3
                e("s_mov_b64 exec, 1")
                if ga > 0:
                    e("s_waitcnt lgkmcnt(0)")
                    e(f"v_cmp_lt_i32 vcc, {4 * (ga - 1) + bias}, v{vPR}")
                    if FX and ga >= GX:
                        e(f"v_readfirstlane_b32 s8, v{vPR}")
                e(f"ds_add_rtn_u32 v{vPR}, v{vZ}, v{vONE} offset:{L_F + 12}")
                e("s_mov_b64 exec, -1")
            if not rot:
                setoff(g * 12288)
            elif t == 0:
                cur[0] = None
                if g == 0:
                    e(f"s_mov_b32 s{sOFF}, s{sROT}")
                else:
                    e(f"s_add_u32 s{sOFF}, s{sOFF}, 12288"); e(f"s_cmp_eq_u32 s{sOFF}, 393216")
                    e(f"s_cselect_b32 s{sOFF}, 0, s{sOFF}")
                if FX and (i - K0) // 3 >= max(GX, 1):
                    e(f"s_cmp_gt_i32 s8, {4 * ((i - K0) // 3 - 1) + bias + XT}")
            vm.issue(i, f"buffer_load_dwordx4 {d}, v{vKV}, s[{r}:{r + 3}], s{sOFF} offen offset:{t * 128} {fl}")
        else:
            g = i - O0
            setoff((g // 4) * 5120)
            vm.issue(i, f"buffer_load_dwordx4 {d}, v{vWO}, s[{rWO}:{rWO + 3}], s{sOFF} offen offset:{(g % 4) * 1280} {fl}")

    def afrag(src):
        for r in range(4):
            e(f"v_and_b32 v{vA + r}, v{src}, v{vM + r}")

    def mfma(acc, b, first):
        c = "0" if first else vr(acc)
        e(f"v_mfma_f32_16x16x32_bf16 {vr(acc)}, {vr(vA)}, {vr(b)}, {c}")

    def partials_out(flag):
        e("s_mov_b32 exec_lo, 0x00ff00ff"); e("s_mov_b32 exec_hi, 0xff00ff00")
        for t in range(3):
            e(f"ds_write_b128 v{vPW}, {vr(vACC + 4 * t)} offset:{t * 256}")
        e("s_mov_b64 exec, 1")
        e(f"ds_add_u32 v{vZ}, v{vONE} offset:{flag}")
        e("s_mov_b64 exec, -1")

    def pcalc(g):
        s = vSC + g
        e(f"v_fma_f32 v{s}, v{s}, s{sC}, v{vNM}")
        e(f"v_exp_f32 v{s}, v{s}")
        if g == 0:
            e(f"v_mov_b32 v{vLS}, v{s}")
        else:
            e(f"v_add_f32 v{vLS}, v{vLS}, v{s}")
        e(f"v_cvt_pk_bf16_f32 v{s}, v{s}, v{s}")

    pend = []

    def red_steps(g):
        s = vSC + g
        st = [f"v_add_f32_dpp v{s}, v{s}, v{s} quad_perm:[1,0,3,2] {DPPM}",
              f"v_add_f32_dpp v{s}, v{s}, v{s} quad_perm:[2,3,0,1] {DPPM}",
              f"v_add_f32_dpp v{s}, v{s}, v{s} row_half_mirror {DPPM}"]
        st.append(f"v_mov_b32 v{vMX}, v{s}" if g == 0 else f"v_max_f32 v{vMX}, v{vMX}, v{s}")
        return st

    pdone = [0]

    def consume(i):
        vm.wait(i)
        b = slot(i)
        if i < K0:
            g, t = divmod(i, 3)
            if t == 0:
                e(f"v_lshl_or_b32 v{vT0}, v{vX + g}, 16, v{vX + g}")
                afrag(vT0)
            mfma(vACC + 4 * t, b, g == 0)
            if stamps == 2 and i in (0, 5, 11):
                stamp("w", f"wq{i}")
            if i == K0 - 1:
                partials_out(L_F)
                stamp("w", "qpart")
        elif i < V0:
            g, t = divmod(i - K0, 3)
            for r in range(4):
                e(f"v_dot2c_f32_bf16 v{vSC + g}, v{b + r}, v{vQ + 4 * t + r}")
                if r in (1, 3) and pend:
                    e(pend.pop(0))
            if t == 2:
                while pend:
                    e(pend.pop(0))
                pend.extend(red_steps(g))
            if i == V0 - 1:
                while pend:
                    e(pend.pop(0))
                e(f"v_max_f32_dpp v{vMX}, v{vMX}, v{vMX} row_ror:8 {DPPM}")
                allrows("v_max_f32", vMX, vT0)
                e(f"v_mul_f32 v{vMX}, s{sC}, v{vMX}")
                e(f"v_sub_f32 v{vNM}, 0, v{vMX}")
                for g2 in range(pk):
                    pcalc(g2)
                pdone[0] = pk
                stamp("w", "Kdone")
        elif i < O0:
            g, t = divmod(i - V0, 3)
            if stamps == 3 and t == 2 and g in (16, 22, 26, 29):
                stamp("w", f"v{g}")
            if t == 0:
                afrag(vSC + g)
            mfma(vACC + 4 * t, b, g == 0)
            if t < 2 and pdone[0] < 32:
                for _ in range((pk + 1 - t) // 2):
                    if pdone[0] < 32:
                        pcalc(pdone[0]); pdone[0] += 1
                if pdone[0] == 32:
                    pdone[0] = 33
                    e(f"v_add_f32_dpp v{vLS}, v{vLS}, v{vLS} row_ror:8 {DPPM}")
                    allrows("v_add_f32", vLS, vT0)
                    e(f"s_lshl_b32 s3, s{sW}, 3"); e(f"v_mov_b32 v{vT0}, s3")
                    e("s_mov_b64 exec, 1")
                    e(f"ds_write_b32 v{vT0}, v{vMX} offset:{L_ST}")
                    e(f"ds_write_b32 v{vT0}, v{vLS} offset:{L_ST + 4}")
                    e(f"ds_add_u32 v{vZ}, v{vONE} offset:{L_F + 4}")
                    e("s_mov_b64 exec, -1")
            if i == O0 - 1:
                partials_out(L_F + 8)
                stamp("w", "Vdone")

    e("s_waitcnt lgkmcnt(0)")
    if stamps == 2:
        stamp("w", "karg")
    srd(rX, sX, None, 1280)
    srd(rWQ, sWW, 4, 7864320)
    for g in range(5):
        vm.issue(("x", g), f"buffer_load_ushort v{vX + g}, v{vT3}, s[{rX}:{rX + 3}], s3 offen offset:{16 * g}")
    ni = 0
    while ni < F0:
        issue(ni); ni += 1
    if rot:
        ra, rb, rc = rot // 10000 % 100, rot // 100 % 100, rot % 100
        e(f"s_and_b32 s7, s{sHH}, 7"); e(f"s_mul_i32 s{sROT}, s7, {ra}")
        e(f"s_mul_i32 s7, s{sS}, {rb}"); e(f"s_add_u32 s{sROT}, s{sROT}, s7")
        e(f"s_lshr_b32 s7, s{sHH}, 3"); e(f"s_mul_i32 s7, s7, {rc}"); e(f"s_add_u32 s{sROT}, s{sROT}, s7")
        e(f"s_and_b32 s{sROT}, s{sROT}, 31"); e(f"s_mul_i32 s{sROT}, s{sROT}, 12288")
    srd(rK, sKV, 5, 50331648)
    srd(rV, sKV + 2, 5, 50331648)
    common_consts()
    e(f"v_lshrrev_b32 v{vT0}, 5, v{vL}"); e(f"v_mul_u32_u24 v{vPW}, 768, v{vT0}")
    e(f"v_and_b32 v{vT0}, 7, v{vL}"); e(f"v_lshl_add_u32 v{vPW}, v{vT0}, 5, v{vPW}")
    e(f"v_bfe_u32 v{vT0}, v{vL}, 4, 1"); e(f"v_lshl_add_u32 v{vPW}, v{vT0}, 4, v{vPW}")
    e(f"s_mul_i32 s7, s{sW}, 1536"); e(f"v_add_u32 v{vPW}, s7, v{vPW}")
    e(f"s_mov_b32 s{sC}, {f2u(192 ** -0.5 * math.log2(math.e)):#x}")
    for g in range(32):
        e(f"v_mov_b32 v{vSC + g}, 0")
    e("s_barrier")
    if stamps == 2:
        stamp("w", "B0")
    vm.wait(("x", 4))
    if stamps == 2:
        stamp("w", "xdone")
    nc = 0

    def Flo(i):
        return F2 if (F2 and i >= V0 + 3 * G2) else F

    def Fmid(i):
        if fb and i >= K0 + 3:
            return FH2 if (FH2 and i >= V0 + 3 * G2) else FH
        return Flo(i)

    def Fof(i):
        if FX and i > K0 + 3 * max(GX, 1):
            return FX2 if (FX2 and i >= V0 + 3 * G2) else FX
        return Fmid(i)

    ncond = [0]

    def pace():
        j = ni - Fof(ni)
        if j >= 0:
            vm.wait(j)
        jm = ni - Fmid(ni)
        j = ni - Flo(ni)
        if fb and ni < V0 + 3 * G3 and j >= 0 and j in vm.q:
            ncond[0] += 1
            if jm in vm.q and jm < j:
                e(f"s_cbranch_scc1 L_c{ncond[0]}")
                e(f"s_waitcnt vmcnt({len(vm.q) - 1 - vm.q.index(jm)}) ; cond")
                e(f"s_cbranch_vccnz L_c{ncond[0]} ; cond")
            else:
                e(f"s_cbranch_vccnz L_c{ncond[0]}")
            e(f"s_waitcnt vmcnt({len(vm.q) - 1 - vm.q.index(j)}) ; cond")
            e(f"L_c{ncond[0]}:")

    if fb:
        e("s_mov_b64 vcc, 0")

    while nc < K0:
        if ni - nc <= F:
            pace(); issue(ni); ni += 1
        consume(nc); nc += 1
    def qreads():
        e(f"ds_read_b32 v{vT1}, v{vZ} offset:{L_T + 4}")
        for t in range(3):
            e(f"ds_read_b128 {vr(vQ + 4 * t)}, v{vQR} offset:{t * 128}")
        e(f"ds_read_b32 v{vT}, v{vZ} offset:{L_T}")

    while ni < K0 + R:
        if qf and ni == K0 + R - 1:
            qreads()
        pace(); issue(ni); ni += 1
    stamp("w", "ringfull")
    if qf:
        e(f"s_mov_b32 s{sCNT}, 4000000")
        e("L_q:")
        e("s_waitcnt lgkmcnt(0)")
        e(f"v_readfirstlane_b32 s3, v{vT1}")
        e(f"s_sub_u32 s{sCNT}, s{sCNT}, 1")
        e("s_cbranch_scc1 L_qx")
        e("s_cmp_lg_u32 s3, 0")
        e("s_cbranch_scc1 L_qx")
        qreads()
        e("s_branch L_q")
        e("L_qx:")
        stamp("w", "qready")
    else:
        e("s_barrier")
        stamp("w", "qready")
        qreads()
        e("s_waitcnt lgkmcnt(0)")
    NH = min(N, O0 + H)
    while nc < O0:
        lag = ni - nc
        if ni < NH:
            if lag >= R:
                consume(nc); nc += 1
            pace(); issue(ni); ni += 1
            k = 0
            while nc < O0 and nc <= ni - 1 - Fof(ni - 1) and k < 2:
                consume(nc); nc += 1; k += 1
        else:
            consume(nc); nc += 1
    while ni < NH:
        pace(); issue(ni); ni += 1
    if cs:
        pair_addr()
    if ni < N:
        e(f"s_mov_b32 s{sCNT}, 4000000")
        e("L_h:")
        e(f"ds_read_b32 v{vT0}, v{vZ} offset:{L_H}")
        e(f"s_sub_u32 s{sCNT}, s{sCNT}, 1")
        e("s_cbranch_scc1 L_hx")
        e("s_waitcnt lgkmcnt(0)")
        e(f"v_readfirstlane_b32 s3, v{vT0}")
        e("s_cmp_eq_u32 s3, 0")
        e("s_cbranch_scc1 L_h")
        e("L_hx:")
        if stamps == 3:
            stamp("w", "hgo")
    if FL:
        e("s_cmp_eq_u32 s3, 2")
    while ni < N:
        if ni - FW >= 0:
            vm.wait(ni - FW)
            if stamps == 3 and ni - FW - O0 in (1, 3):
                stamp("w", f"wa{ni - FW - O0}")
        if FL and ni - FL in vm.q:
            e(f"s_cbranch_scc1 L_w{ni}")
            e(f"s_waitcnt vmcnt({len(vm.q) - 1 - vm.q.index(ni - FL)}) ; cond")
            e(f"L_w{ni}:")
        issue(ni); ni += 1
    stamp("w", "woissued")
    e("L_tail:")
    e("s_barrier")
    stamp("w", "oready")
    for k in range(3):
        e(f"ds_read_b128 {vr(vQ + 4 * k)}, v{vOR} offset:{16 * k}")
    e("s_waitcnt lgkmcnt(0)")
    if cs:
        AB = (vA, vT0 - 1)
        for g in range(13):
            if g < 12:
                for r in range(4):
                    e(f"v_and_b32 v{AB[g & 1] + r}, v{vQ + g}, v{vM + r}")
            if g:
                vm.wait(O0 + g - 1)
                if stamps == 3 and g - 1 in (8, 11):
                    stamp("w", f"wa{g - 1}")
                e(f"v_mfma_f32_16x16x32_bf16 {vr(vACC)}, {vr(AB[(g - 1) & 1])}, {vr(slot(O0 + g - 1))}, {vr(vACC) if g > 1 else 0}")
        for r in range(4):
            e(f"v_permlane32_swap_b32 v{vACC + r}, v{vQ + r}")
        for r in range(4):
            e(f"v_add_f32_dpp v{vACC + r}, v{vQ + r}, v{vACC + r} row_ror:8 {DPPM}")
        e(f"s_cmp_eq_u32 s{sW}, 0"); e("s_cbranch_scc1 L_pub")
        e(f"s_bitcmp1_b32 s{sW}, 0"); e("s_cbranch_scc1 L_fin")
        e("s_mov_b64 exec, 0x00ff00ff")
        e(f"ds_write_b128 v{vXA}, {vr(vACC)}")
        e("s_mov_b64 exec, 1")
        e(f"ds_write_b32 v{vXA}, v{vONE} offset:512")
        e("s_mov_b64 exec, -1")
        e(f"s_cmp_eq_u32 s{sW}, 4")
        e("s_cbranch_scc1 L_reduce")
        e("s_endpgm")
        e("L_fin:")
        e(f"s_mov_b32 s{sCNT}, 4000000")
        e("L_fs:")
        e(f"ds_read_b32 v{vT0}, v{vXA} offset:512")
        e(f"ds_read_b128 {vr(vQ)}, v{vXA}")
        e(f"s_sub_u32 s{sCNT}, s{sCNT}, 1")
        e("s_cbranch_scc1 L_fx")
        e("s_waitcnt lgkmcnt(1)")
        e(f"v_readfirstlane_b32 s3, v{vT0}")
        e("s_cmp_eq_u32 s3, 0")
        e("s_cbranch_scc1 L_fs")
        e("L_fx:")
        e("s_waitcnt lgkmcnt(0)")
        for r in range(4):
            e(f"v_add_f32 v{vACC + r}, v{vACC + r}, v{vQ + r}")
        e("L_pub:")
        e("s_nop 1")
        tag4(vA, vACC)
        e("s_mov_b64 exec, 0x00ff00ff")
    else:
        for g in range(12):
            afrag(vQ + g)
            vm.wait(O0 + g)
            mfma(vACC, slot(O0 + g), g == 0)
        tag4(vA, vACC)
        e("s_mov_b32 exec_hi, 0")
    if fq > 1:
        e(f"v_and_b32 v{vT0}, 15, v{vL}"); e(f"s_lshl_b32 s3, s{sW}, 4"); e(f"v_add_u32 v{vT0}, s3, v{vT0}")
        e(f"s_and_b32 s3, s{sS}, {fq - 1}"); e(f"s_mul_i32 s3, s3, {80 // fq}")
        e(f"v_subrev_u32 v{vT0}, s3, v{vT0}")
        e(f"v_mov_b32 v{vT1}, {80 // fq}")
        e(f"v_cmp_lt_u32 vcc, v{vT0}, v{vT1}")
        e("s_and_b64 exec, exec, vcc")
    e(f"buffer_store_dwordx4 {vr(vA)}, v{vPUB}, s[{rWS}:{rWS + 3}], 0 offen sc1")
    e("s_mov_b64 exec, -1")
    if not cs:
        e(f"s_cmp_eq_u32 s{sW}, 4")
        e("s_cbranch_scc1 L_reduce")
    stamp("w", "pub")

    def stamps_out(who):
        if not stamps:
            return
        base = 0 if who == "w" else 14
        e("s_waitcnt lgkmcnt(0)")
        e("s_lshl_b32 s3, s2, 8"); e("s_add_u32 s3, s3, 0x8000000")
        e(f"s_add_u32 s4, s{sWS}, s3"); e(f"s_addc_u32 s5, s{sWS + 1}, 0")
        for i in range(nst[who]):
            e(f"v_mov_b32 v{vA}, s{sST + 2 * i}"); e(f"v_mov_b32 v{vA + 1}, s{sST + 2 * i + 1}")
            e(f"global_store_dwordx2 v{vZ}, v[{vA}:{vA + 1}], s[4:5] offset:{8 * (base + i)}")
        if who == "s" and fb:
            e(f"v_mov_b32 v{vA}, s{sAUX}"); e(f"v_mov_b32 v{vA + 1}, s{sAUX + 1}")
            e(f"global_store_dwordx2 v{vZ}, v[{vA}:{vA + 1}], s[4:5] offset:{8 * 30}")
        if who == "w":
            e("s_getreg_b32 s6, hwreg(HW_REG_XCC_ID)"); e("s_getreg_b32 s7, hwreg(HW_REG_HW_ID)")
            e(f"v_mov_b32 v{vA}, s6"); e(f"v_mov_b32 v{vA + 1}, s7")
            e(f"global_store_dwordx2 v{vZ}, v[{vA}:{vA + 1}], s[4:5] offset:{8 * 31}")

    if stamps:
        e(f"s_cmp_lg_u32 s{sW}, {sw}"); e("s_cbranch_scc1 L_end")
        stamps_out("w")
    e("s_endpgm")

    vD = vSC
    vE1, vE2, vP1, vP2, vP3 = 44, 45, 46, 47, 48
    vG = 8
    vS = 12
    vOP = vACC + 4
    vR1, vR2 = slot(N + 2), slot(N + 2) + 1
    vQY, vSY = slot(N), slot(N + 1)
    e("L_service:")
    if probe:
        e("s_memrealtime s[68:69]")
    e("s_nop 4")
    if prio:
        e("s_setprio 3")
    e(f"v_mov_b32 v{vZ}, 0")
    for k in range(4):
        e(f"ds_write_b32 v{vZ}, v{vZ} offset:{L_F + 4 * k}")
    e(f"ds_write_b32 v{vZ}, v{vZ} offset:{L_T + 4}")
    for o in (L_X + 512, L_X + 768, L_H):
        e(f"ds_write_b32 v{vZ}, v{vZ} offset:{o}")
    e("s_waitcnt lgkmcnt(0)")
    e("s_barrier")
    common_consts()
    e(f"s_lshl_b32 s9, s{sB}, 7")
    e(f"buffer_load_dword v{vT}, v{vZ}, s[{rWS}:{rWS + 3}], s9 offen sc1")
    if probe:
        e("s_getreg_b32 s70, hwreg(HW_REG_XCC_ID, 0, 3)"); e("s_lshl_b32 s71, s68, 3"); e("s_or_b32 s71, s71, s70")
        e("s_lshl_b32 s70, s2, 2"); e("s_add_u32 s70, s70, 1024")
        e(f"v_mov_b32 v{vT0}, s71")
        e("s_mov_b64 exec, 1")
        e(f"buffer_store_dword v{vT0}, v{vZ}, s[{rWS}:{rWS + 3}], s70 offen sc1")
        e("s_mov_b64 exec, -1")
    if fb:
        e(f"v_lshrrev_b32 v{vT0}, 4, v{vL}"); e(f"v_cmp_eq_u32 vcc, 1, v{vT0}")
        e(f"v_mov_b32 v{vT0}, 128"); e(f"v_cndmask_b32 v{vT0}, 0, v{vT0}, vcc")
        e(f"buffer_load_dword v{vPR}, v{vT0}, s[{rWS}:{rWS + 3}], 0 offen sc1")
    if not cs:
        srd(rOUT, sOUT, None, 2560)
    if warm:
        srd(rV, sKV + 2, 5, 50331648)
        e(f"buffer_load_dword v{vSC}, v{vZ}, s[{rOUT}:{rOUT + 3}], 0 offen")
        e(f"buffer_load_dword v{vSC + 1}, v{vZ}, s[{rV}:{rV + 3}], 0 offen nt")
        e(f"buffer_load_dword v{vSC + 2}, v{vZ}, s[{rWO}:{rWO + 3}], 0 offen nt")
    e(f"s_mov_b32 s{sSA}, 0x0c0c0400"); e(f"s_mov_b32 s{sSB}, 0x04000c0c"); e(f"s_mov_b32 s{sMASK}, 0xffffff00")
    e(f"s_lshl_b32 s7, s{sHH}, 2"); e(f"s_add_u32 s8, s7, s{sS}")
    e(f"v_lshlrev_b32 v{vE1}, 4, v{vL}")
    e(f"v_lshrrev_b32 v{vT0}, 4, v{vL}"); e(f"v_and_b32 v{vT1}, 15, v{vL}")
    e(f"v_mul_u32_u24 v{vP1}, 768, v{vT0}"); e(f"v_lshl_add_u32 v{vP1}, v{vT1}, 4, v{vP1}")
    e(f"s_mul_i32 s3, s7, 768"); e(f"s_add_u32 s3, s3, {A1}"); e(f"v_add_u32 v{vP1}, s3, v{vP1}")
    e(f"v_lshlrev_b32 v{vP3}, 10, v{vT0}")
    e(f"s_lshl_b32 s3, s7, 10"); e(f"s_add_u32 s3, s3, {A2}"); e(f"v_add_u32 v{vP3}, s3, v{vP3}")
    if cs:
        e(f"v_mov_b32 v{vT2}, v{vT1}")
        e(f"v_lshl_add_u32 v{vP2}, v{vT2}, 4, v{vP3}")
    else:
        e(f"v_min_u32 v{vT2}, 11, v{vT1}")
        e(f"s_mul_i32 s3, s{sS}, 192"); e(f"v_lshl_add_u32 v{vP2}, v{vT2}, 4, s3"); e(f"v_add_u32 v{vP2}, v{vP2}, v{vP3}")
    e(f"v_and_b32 v{vT3}, 1, v{vT0}"); e(f"v_lshlrev_b32 v{vT3}, 1, v{vT3}")
    e(f"v_lshrrev_b32 v{vT0}, 1, v{vT0}"); e(f"v_or_b32 v{vT3}, v{vT3}, v{vT0}")
    e(f"v_lshl_add_u32 v{vMX}, v{vT1}, 2, v{vT3}")
    e(f"v_lshlrev_b32 v{vMX}, 1, v{vMX}"); e(f"v_add_u32 v{vMX}, {L_Q}, v{vMX}")
    e(f"v_lshl_add_u32 v{vLS}, v{vT2}, 2, v{vT3}")
    e(f"v_lshlrev_b32 v{vLS}, 2, v{vLS}"); e(f"v_add_u32 v{vLS}, {L_O}, v{vLS}")
    if cs:
        pair_addr()
        e(f"s_lshr_b32 s3, s{sJB}, 3")
        e(f"s_lshr_b32 s4, s{sJB}, 5"); e("s_mul_i32 s4, s4, 5"); e("s_bfe_u32 s5, s3, 0x10001"); e("s_mul_i32 s5, s5, 3")
        e("s_add_u32 s4, s4, s5"); e("s_and_b32 s5, s3, 1"); e("s_add_u32 s4, s4, s5"); e("s_lshl_b32 s4, s4, 6")
        e(f"s_and_b32 s5, s{sJB}, 7"); e("s_lshl_b32 s6, s5, 3"); e("s_add_u32 s4, s4, s6")
        e("s_lshl_b32 s3, s3, 13"); e("s_lshl_b32 s5, s5, 5"); e("s_add_u32 s3, s3, s5")
        e(f"s_bfe_u32 s5, s{sJB}, 0x10004"); e("s_mul_i32 s6, s5, 320"); e("s_add_u32 s6, s6, 128")
        e(f"s_and_b32 s7, s{sJB}, 15"); e(f"s_lshl_b32 s{sCNT}, s7, 2"); e(f"s_add_u32 s6, s6, s{sCNT}")
        e("s_lshl_b32 s5, s5, 14"); e("s_lshl_b32 s7, s7, 4"); e("s_add_u32 s5, s5, s7"); e("s_add_u32 s5, s5, 65536")
        e(f"s_cmp_lt_u32 s{sJB}, 64"); e("s_cselect_b32 s3, s3, s5"); e("s_cselect_b32 s4, s4, s6")
        e("s_cselect_b32 s5, 1, 0")
        e(f"s_mul_i32 s6, s{sB}, 98304"); e("s_add_u32 s3, s3, s6"); e(f"s_add_u32 s3, s3, {A3}")
        e(f"v_lshrrev_b32 v{vR1}, s5, v{vL}"); e(f"v_lshlrev_b32 v{vR1}, 8, v{vR1}")
        e(f"v_and_b32 v{vR2}, s5, v{vL}"); e(f"v_lshl_add_u32 v{vR1}, v{vR2}, 4, v{vR1}"); e(f"v_add_u32 v{vR1}, s3, v{vR1}")
        e(f"v_lshl_add_u32 v{vR2}, v{vR2}, 2, v{vT3}")
        e(f"s_mul_i32 s6, s{sB}, 640"); e("s_add_u32 s4, s4, s6")
        e(f"v_add_u32 v{vR2}, s4, v{vR2}"); e(f"v_lshlrev_b32 v{vR2}, 1, v{vR2}")
    e(f"s_mul_i32 s4, s8, 768"); e(f"s_add_u32 s4, s4, {A1}")
    e(f"s_lshl_b32 s5, s8, 10"); e(f"s_add_u32 s5, s5, {A2}")
    e(f"s_add_u32 s6, s4, {DY}"); e(f"s_add_u32 s7, s5, {DY}")
    e("s_waitcnt vmcnt(0)")
    e(f"v_and_b32 v{vT0}, 0x7f7f7f7f, v{vT}"); e(f"v_add_u32 v{vT0}, 0x01010101, v{vT0}")
    e(f"v_and_b32 v{vT}, 0x80808080, v{vT}"); e(f"v_xor_b32 v{vT}, v{vT}, v{vT0}")
    e(f"ds_write_b32 v{vZ}, v{vT} offset:{L_T}")
    if fb:
        e(f"v_and_b32 v{vT0}, 0x7f7f7f7f, v{vPR}"); e(f"v_add_u32 v{vT0}, 0x01010101, v{vT0}")
        e(f"v_and_b32 v{vPR}, 0x80808080, v{vPR}"); e(f"v_xor_b32 v{vPR}, v{vPR}, v{vT0}")
        e(f"v_and_b32 v{vPR}, s{sMASK}, v{vPR}")
        if xs:
            e(f"v_and_b32 v{vTX}, 0xfffff000, v{vPR}")
        if xd:
            e(f"v_and_b32 v{vTX}, 0xfffff000, v{vPR}")
            e("s_mov_b32 exec_lo, 0")
            e(f"v_mov_b32 v{vPR}, v{vTX}")
            e("s_mov_b32 exec_lo, -1")
    if pre:
        for r in range(4):
            e(f"v_not_b32 v{vA + r}, v{vT}")
        e(f"buffer_store_dwordx4 {vr(vA)}, v{vE1}, s[{rWS}:{rWS + 3}], s5 offen")
        e("s_mov_b32 exec_hi, 0xffff")
        e(f"buffer_store_dwordx4 {vr(vA)}, v{vE1}, s[{rWS}:{rWS + 3}], s4 offen")
        e("s_mov_b32 exec_hi, -1")
    if codepf:
        pass
    ldsspin("L_f1", L_F, vT0)
    stamp("s", "s.f1")
    for p in range(8):
        e(f"ds_read_b128 {vr(vD + 4 * p)}, v{vE1} offset:{p * 768}")
    for p in range(1, 8):
        e(f"s_waitcnt lgkmcnt({7 - p})")
        for r in range(4):
            e(f"v_add_f32 v{vD + r}, v{vD + r}, v{vD + 4 * p + r}")
    def ypub(n):
        if n == 1 or lazy:
            publish(vQY, vE1, 4, 0, 0, 1)
        if n == 2 or (lazy and n > 2):
            publish(vSY, vZ, 5, 768, 1, 1)
        if n == 3:
            publish(vOP, vE1, 5, 0, 0, 1)

    tag4(vQY, vD)
    publish(vQY, vE1, 4, 0, 0, 0 if xp else 1)
    stamp("s", "s.qpub")
    if qd:
        e(f"s_mov_b32 s{sCNT}, 4000000")
        e("L_qd:")
        e(f"ds_read_b32 v{vT0}, v{vZ} offset:{L_F + 12}")
        e(f"s_sub_u32 s{sCNT}, s{sCNT}, 1")
        e("s_cbranch_scc1 L_qdx")
        e("s_waitcnt lgkmcnt(0)")
        e(f"v_readfirstlane_b32 s3, v{vT0}")
        e(f"s_cmp_lt_u32 s3, {qd}")
        e("s_cbranch_scc1 L_qd")
        e("L_qdx:")
    l1 = [f"buffer_load_dwordx4 {vr(vD + 4 * t)}, v{vP1}, s[{rWS}:{rWS + 3}], s{sPO} offen offset:{256 * t} sc1" for t in range(3)]
    if op & 1:
        mpoll("L_p1", l1, [vD + 4 * t for t in range(3)], vT0)
    else:
        poll("L_p1", l1, [vD + 4 * t for t in range(3)], vT0, lambda: ypub(1))
    if xp and not lazy:
        ypub(1)
    stamp("s", "s.qpoll")
    for t in range(3):
        treduce(vD + 4 * t)
    for t in range(3):
        e(f"v_cvt_pk_bf16_f32 v{vD + 4 * t}, v{vD + 4 * t}, v{vD + 4 * t}")
    for t in range(3):
        e(f"ds_write_b16 v{vMX}, v{vD + 4 * t} offset:{128 * t}")
    if qf:
        e(f"ds_write_b32 v{vZ}, v{vONE} offset:{L_T + 4}")
    else:
        e("s_waitcnt lgkmcnt(0)")
        e("s_barrier")
    for g in range(12):
        e(f"s_mov_b32 s{sOFF}, {(g // 4) * 5120}")
        e(f"buffer_load_dwordx4 {vr(slot(O0 + g))}, v{vWO}, s[{rWO}:{rWO + 3}], s{sOFF} offen offset:{(g % 4) * 1280} {fl}")
    if fb:
        e("s_and_b32 s3, s2, 7"); e("s_mul_i32 s3, s3, 4352"); e(f"s_add_u32 s3, s3, {A4}")
        e(f"s_lshr_b32 s{sK}, s2, 3")
        e(f"v_and_b32 v{vT0}, 31, v{vL}"); e(f"v_lshl_add_u32 v{vE2}, v{vT0}, 2, s3")
        e(f"s_lshl_b32 s{sSL}, s{sK}, 2"); e(f"s_add_u32 s{sSL}, s{sSL}, s3")
        if xd:
            e(f"s_add_u32 s{sDL}, s3, 128"); e(f"s_add_u32 s{sXL}, s3, {16 * 4352}")
            e(f"s_and_b32 s{sD}, s2, 7"); e(f"s_cmp_eq_u32 s{sD}, s{sK}"); e(f"s_cselect_b32 s{sLEAD}, 0xff, 0")
            e(f"v_mov_b32 v{vLIM}, 64")
            e("s_mov_b32 exec_lo, 0")
            e(f"v_mov_b32 v{vLIM}, 0"); e(f"v_mov_b32 v{vE2}, s{sDL}")
            e("s_mov_b32 exec_hi, 0x10000")
            e(f"v_mov_b32 v{vLIM}, 4096")
            e(f"s_mov_b32 exec_hi, s{sLEAD}")
            e(f"v_mov_b32 v{vLIM}, 4096")
            if xt != 1:
                e(f"v_mul_u32_u24 v{vE2}, 4352, v{vT0}"); e(f"v_add_u32 v{vE2}, {A4 + 16 * 4352}, v{vE2}")
            e("s_mov_b64 exec, -1")
        if xs:
            e(f"s_mul_i32 s{sPUB}, s{sK}, {xdn}"); e(f"s_add_u32 s{sPUB}, s{sPUB}, {xn}")
            e(f"s_cmp_lt_u32 s{sK}, {xs}"); e(f"s_cselect_b32 s{sPUB}, s{sPUB}, 0x7fffffff")
            e(f"s_mov_b32 s{sRD}, {xn + xdl}"); e(f"s_mov_b32 s{sXO}, {AX}")
            e(f"s_mov_b32 s{sBI}, 0"); e(f"s_mov_b32 s{sINT}, 0")
            e(f"s_and_b32 s{sXW}, s2, 63"); e(f"s_lshl_b32 s{sXW}, s{sXW}, 8"); e(f"s_add_u32 s{sXW}, s{sXW}, {AX}")
            e(f"v_lshlrev_b32 v{vLIM}, 8, v{vL}")
        if tb:
            e("s_getreg_b32 s3, hwreg(HW_REG_XCC_ID, 0, 1)"); e("s_cmp_eq_u32 s3, 1")
            e(f"s_cselect_b32 s{sBI}, {tb - te}, {-tb - te}")
        e(f"s_mov_b32 s{sN}, 0")
        e(f"s_and_b32 s3, s{sK}, {(1 << IL) - 1}"); e(f"s_add_u32 s{sTH}, s3, {TH0}")
        e(f"s_mov_b32 s{sCc}, 0"); e(f"s_mov_b64 s[{sAUX}:{sAUX + 1}], 0")
        fbspin("L_f2", 1, vD, vE2)
    else:
        ldsspin("L_f2", L_F + 4, vT0)
    stamp("s", "s.f2")
    e(f"ds_read_b128 {vr(vS)}, v{vZ} offset:{L_ST}")
    e(f"ds_read_b128 {vr(vS + 4)}, v{vZ} offset:{L_ST + 16}")
    e("s_waitcnt lgkmcnt(0)")
    e(f"v_max_f32 v{vT0}, v{vS}, v{vS + 2}"); e(f"v_max3_f32 v{vT0}, v{vT0}, v{vS + 4}, v{vS + 6}")
    for w in range(4):
        e(f"v_sub_f32 v{vG + w}, v{vS + 2 * w}, v{vT0}")
    for w in range(4):
        e(f"v_exp_f32 v{vG + w}, v{vG + w}")
    e(f"v_mul_f32 v{vD + 2}, v{vG}, v{vS + 1}")
    for w in range(1, 4):
        e(f"v_fma_f32 v{vD + 2}, v{vG + w}, v{vS + 2 * w + 1}, v{vD + 2}")
    e(f"v_and_b32 v{vD}, s{sMASK}, v{vT0}"); e(f"v_sub_f32 v{vD + 1}, v{vT0}, v{vD}")
    if xc:
        e(f"s_getreg_b32 s{sMIS}, hwreg(HW_REG_XCC_ID, 0, 16)"); e(f"s_lshl_b32 s{sMIS}, s{sMIS}, 8")
        e(f"v_mov_b32 v{vD + 3}, s{sMIS}")
    else:
        e(f"v_mov_b32 v{vD + 3}, 0")
    tag4(vSY, vD)
    publish(vSY, vZ, 5, 768, 1, 0 if xp else 1)
    if fb and dp:
        fbspin("L_f2b", None, vD + 4, vE2)
        e("s_waitcnt lgkmcnt(0)")
    poll("L_p2", [f"buffer_load_dwordx4 {vr(vD)}, v{vP3}, s[{rWS}:{rWS + 3}], s{sPO} offen offset:768 sc1"], [vD], vT0,
         lambda: ypub(2))
    if xp and not lazy:
        ypub(2)
    stamp("s", "s.stpoll")
    if xc:
        e(f"v_cmp_ne_u32 vcc, s{sMIS}, v{vD + 3}")
        e(f"s_or_b32 s{sMIS}, vcc_lo, vcc_hi")
    e(f"v_add_f32 v{vD}, v{vD}, v{vD + 1}")
    e(f"v_mov_b32 v{vD + 1}, v{vD}")
    allrows("v_max_f32", vD + 1, vT0)
    e(f"v_sub_f32 v{vD}, v{vD}, v{vD + 1}"); e(f"v_exp_f32 v{vD}, v{vD}")
    e(f"v_mul_f32 v{vD}, v{vD}, v{vD + 2}")
    allrows("v_add_f32", vD, vT0)
    e(f"v_rcp_f32 v{vD}, v{vD}")
    for w in range(4):
        e(f"v_sub_f32 v{vG + w}, v{vS + 2 * w}, v{vD + 1}")
    for w in range(4):
        e(f"v_exp_f32 v{vG + w}, v{vG + w}")
    for w in range(4):
        e(f"v_mul_f32 v{vG + w}, v{vG + w}, v{vD}")
    if RT:
        fbspin("L_f3a", None, vD + 4, vE2)
        e(f"s_mov_b32 s{sCNT}, 4000000")
        e("L_f3b:")
        e(f"ds_read_b32 v{vT0}, v{vZ} offset:{L_F + 12}")
        e(f"s_sub_u32 s{sCNT}, s{sCNT}, 1")
        e("s_cbranch_scc1 L_f3bx")
        e("s_waitcnt lgkmcnt(0)")
        e(f"v_readfirstlane_b32 s3, v{vT0}")
        e(f"s_sub_i32 s3, s3, s{sCc}")
        e(f"s_cmp_lt_i32 s3, {PF}")
        e("s_cbranch_scc1 L_f3b")
        e("L_f3bx:")
        e(f"v_and_b32 v{vT0}, s{sMASK}, v{vT}")
        e(f"buffer_load_dword v{vT1}, v{vE2}, s[{rWS}:{rWS + 3}], 0 offen offset:128 sc1")
        e("s_mov_b64 exec, 1")
        e(f"buffer_store_dword v{vT0}, v{vZ}, s[{rWS}:{rWS + 3}], s{sSL} offen offset:128")
        e("s_mov_b64 exec, -1")
        e("s_waitcnt vmcnt(1)")
        e(f"v_cmp_eq_u32 vcc, v{vT1}, v{vPR}")
        e("s_bcnt1_i32_b32 s3, vcc_lo")
        e(f"s_cmp_ge_u32 s3, {RT}"); e("s_cselect_b32 s3, 2, 1"); e(f"v_mov_b32 v{vONE}, s3")
        if stamps:
            e(f"s_lshl_b64 s[{sAUX}:{sAUX + 1}], s[{sAUX}:{sAUX + 1}], 5")
            e(f"s_and_b32 s{sAUX + 1}, s{sAUX + 1}, 0xfffffff")
            e("s_bcnt1_i32_b32 s3, vcc_lo"); e("s_min_u32 s3, s3, 31"); e(f"s_or_b32 s{sAUX}, s{sAUX}, s3")
        ldsspin("L_f3", L_F + 8, vT0)
    elif fb and not dp:
        fbspin("L_f3", 2, vD + 4, vE2)
    else:
        ldsspin("L_f3", L_F + 8, vT0)
    stamp("s", "s.f3")
    for p in range(8):
        e(f"ds_read_b128 {vr(vD + 4 * p)}, v{vE1} offset:{p * 768}")
    for w in range(4):
        e(f"s_waitcnt lgkmcnt({6 - 2 * w})")
        for r in range(4):
            e(f"v_add_f32 v{vD + 8 * w + r}, v{vD + 8 * w + r}, v{vD + 8 * w + 4 + r}")
        for r in range(4):
            if w == 0:
                e(f"v_mul_f32 v{vD + r}, v{vG}, v{vD + r}")
            else:
                e(f"v_fma_f32 v{vD + r}, v{vG + w}, v{vD + 8 * w + r}, v{vD + r}")
    tag4(vOP, vD)
    publish(vOP, vE1, 5, 0, 0, 0 if xp else 1)
    if xc:
        e(f"s_cmp_eq_u32 s{sMIS}, 0"); e("s_cbranch_scc1 L_same")
        ypub(3)
        e("L_same:")
    stamp("s", "s.opub")
    nt_ = 3 if cs else 1
    if FL and not RT:
        e(f"s_cmp_ge_i32 s{sCc}, {cth}"); e("s_cselect_b32 s3, 2, 1"); e(f"v_mov_b32 v{vONE}, s3")
    l3 = [f"buffer_load_dwordx4 {vr(vD + 4 * t)}, v{vP2}, s[{rWS}:{rWS + 3}], s{sPO} offen offset:{256 * t} sc1" for t in range(nt_)]
    h3 = [f"ds_write_b32 v{vZ}, v{vONE} offset:{L_H}"] if H < 12 else []
    if op & 4:
        mpoll("L_p3", l3, [vD + 4 * t for t in range(nt_)], vT0, h3)
    else:
        poll("L_p3", l3 + h3, [vD + 4 * t for t in range(nt_)], vT0, lambda: ypub(3))
    stamp("s", "s.opoll")
    for t in range(nt_):
        treduce(vD + 4 * t)
    for t in range(nt_):
        e(f"v_cvt_pk_bf16_f32 v{vD + 4 * t}, v{vD + 4 * t}, v{vD + 4 * t}")
    for t in range(nt_):
        e(f"ds_write_b32 v{vLS}, v{vD + 4 * t} offset:{256 * t}")
    e("s_waitcnt lgkmcnt(0)")
    if stamps:
        for i in range(nst["s"]):
            e(f"v_mov_b32 v{vSC + 2 * i}, s{sST + 2 * i}"); e(f"v_mov_b32 v{vSC + 2 * i + 1}, s{sST + 2 * i + 1}")
    e("s_branch L_tail")
    e("L_reduce:")
    e("s_nop 4")
    if xp and not xc:
        publish(vOP, vE1, 5, 0, 0, 1)
    if stamps:
        for i in range(nst["s"]):
            e(f"v_readfirstlane_b32 s{sST + 2 * i}, v{vSC + 2 * i}"); e(f"v_readfirstlane_b32 s{sST + 2 * i + 1}, v{vSC + 2 * i + 1}")
    stamp("s", "s.pub")
    if cs:
        e(f"s_cmp_ge_u32 s{sJB}, 96")
        e("s_cbranch_scc1 L_sdone")
        if pp:
            ppoll("L_p4", lambda d: f"buffer_load_dwordx4 {vr(d)}, v{vR1}, s[{rWS}:{rWS + 3}], 0 offen sc1",
                  [slot(O0 + k) for k in range(pp)], vD, vT0)
        else:
            poll("L_p4", [f"buffer_load_dwordx4 {vr(vD)}, v{vR1}, s[{rWS}:{rWS + 3}], 0 offen sc1"], [vD], vT0)
        stamp("s", "s.fpoll")
        treduce(vD)
        e(f"v_add_f32_dpp v{vD}, v{vD}, v{vD} quad_perm:[2,3,0,1] {DPPM}")
        e(f"v_add_f32_dpp v{vD}, v{vD}, v{vD} row_ror:4 {DPPM}")
        e(f"v_add_f32_dpp v{vD}, v{vD}, v{vD} row_ror:8 {DPPM}")
        e("s_mov_b32 s3, 0x00030003")
        e(f"s_cmp_lt_u32 s{sJB}, 64")
        e("s_cbranch_scc1 L_r8")
        e("s_mov_b32 s3, 0x00010001")
        e(f"v_add_f32_dpp v{vD}, v{vD}, v{vD} quad_perm:[1,0,3,2] {DPPM}")
        e("L_r8:")
        e(f"v_cvt_pk_bf16_f32 v{vD}, v{vD}, v{vD}")
        e("s_mov_b32 exec_lo, s3"); e("s_mov_b32 exec_hi, s3")
        e(f"buffer_store_short v{vD}, v{vR2}, s[{rOUT}:{rOUT + 3}], 0 offen")
    else:
        e(f"s_cmp_ge_u32 s{sJB}, 80")
        e("s_cbranch_scc1 L_sdone")
        e(f"v_lshrrev_b32 v{vT0}, 1, v{vL}"); e(f"v_mul_u32_u24 v{vP1}, {2560 * fq}, v{vT0}")
        if fq > 1:
            e(f"s_mul_i32 s3, s{sJB}, {(1 << 16) // (80 // fq) + 1}"); e("s_lshr_b32 s3, s3, 16"); e("s_mul_i32 s3, s3, 2560")
            e(f"v_add_u32 v{vP1}, s3, v{vP1}")
        e(f"v_and_b32 v{vT1}, 1, v{vL}"); e(f"v_lshl_add_u32 v{vP1}, v{vT1}, 4, v{vP1}")
        e(f"s_mul_i32 s3, s{sB}, {128 * 2560}"); e(f"s_lshl_b32 s4, s{sJB}, 5"); e("s_add_u32 s3, s3, s4"); e(f"s_add_u32 s3, s3, {A3}")
        e(f"v_add_u32 v{vP1}, s3, v{vP1}")
        for k in range(1, 4):
            e(f"s_mov_b32 s{4 + k}, {k * 32 * 2560 * fq}")
        e(f"v_bfe_u32 v{vT0}, v{vL}, 4, 1"); e(f"v_lshlrev_b32 v{vT0}, 1, v{vT0}")
        e(f"v_lshrrev_b32 v{vT2}, 5, v{vL}"); e(f"v_or_b32 v{vT0}, v{vT0}, v{vT2}")
        e(f"v_lshl_add_u32 v{vT0}, v{vT1}, 2, v{vT0}")
        e(f"s_mul_i32 s3, s{sB}, 640"); e(f"s_lshl_b32 s4, s{sJB}, 3"); e("s_add_u32 s3, s3, s4")
        e(f"v_add_u32 v{vP2}, s3, v{vT0}"); e(f"v_lshlrev_b32 v{vP2}, 1, v{vP2}")
        poll("L_p4", [f"buffer_load_dwordx4 {vr(vD + 4 * k)}, v{vP1}, s[{rWS}:{rWS + 3}], {'0' if k == 0 else 's' + str(4 + k)} offen sc1" for k in range(4 // fq)],
             [vD + 4 * k for k in range(4 // fq)], vT0)
        stamp("s", "s.fpoll")
        for r in range(4):
            e(f"v_add_f32 v{vD + r}, v{vD + r}, v{vD + 4 + r}")
            e(f"v_add_f32 v{vD + 8 + r}, v{vD + 8 + r}, v{vD + 12 + r}")
        for r in range(4):
            e(f"v_add_f32 v{vD + r}, v{vD + r}, v{vD + 8 + r}")
        treduce(vD)
        e(f"v_add_f32_dpp v{vD}, v{vD}, v{vD} quad_perm:[2,3,0,1] {DPPM}")
        e(f"v_add_f32_dpp v{vD}, v{vD}, v{vD} row_ror:4 {DPPM}")
        e(f"v_add_f32_dpp v{vD}, v{vD}, v{vD} row_ror:8 {DPPM}")
        e(f"v_cvt_pk_bf16_f32 v{vD}, v{vD}, v{vD}")
        e("s_mov_b32 exec_lo, 0x00030003"); e("s_mov_b32 exec_hi, 0x00030003")
        e(f"buffer_store_short v{vD}, v{vP2}, s[{rOUT}:{rOUT + 3}], 0 offen")
    e(f"s_cmp_lg_u32 s{sJB}, 0")
    e("s_cbranch_scc1 L_pb" if probe >= 6 else "s_cbranch_scc1 L_sdone")
    e("s_mov_b64 exec, 1")
    e(f"buffer_store_dword v{vT}, v{vZ}, s[{rWS}:{rWS + 3}], s9 offen sc1")
    if probe:
        e("L_pb:")
        e("s_memrealtime s[72:73]")
        e("s_mov_b64 exec, -1")
        if probe < 6:
            e(f"s_cmp_lg_u32 s{sB}, 0"); e("s_cbranch_scc1 L_sdone")
        e(f"v_lshlrev_b32 v{vT0}, 4, v{vL}")
        e(f"buffer_load_dwordx4 {vr(vA)}, v{vT0}, s[{rWS}:{rWS + 3}], 0 offen offset:1024 sc1")
        e("s_waitcnt vmcnt(0) lgkmcnt(0)")
        e("s_lshl_b32 s74, s68, 3")
        e("s_mov_b32 s75, 0x7fffffff"); e("s_mov_b32 s76, 0x80000000"); e("s_mov_b32 s77, 0"); e("s_mov_b32 s78, 0"); e("s_mov_b32 s79, 0")
        e("L_pr:")
        for r in range(4):
            e(f"v_readlane_b32 s80, v{vA + r}, s79")
            e("s_nop 3")
            e("s_and_b32 s81, s80, 7"); e("s_andn2_b32 s80, s80, 7"); e("s_sub_u32 s80, s80, s74"); e("s_ashr_i32 s80, s80, 3")
            e("s_min_i32 s75, s75, s80"); e("s_max_i32 s76, s76, s80"); e("s_add_i32 s77, s77, s80")
            e("s_sub_i32 s82, 0, s80"); e("s_cmp_ge_u32 s81, 4"); e("s_cselect_b32 s80, s80, s82"); e("s_add_i32 s78, s78, s80")
        e("s_add_u32 s79, s79, 1"); e("s_cmp_lt_u32 s79, 64"); e("s_cbranch_scc1 L_pr")
        if probe == 1:
            e("s_ashr_i32 s77, s77, 8"); e("s_sub_i32 s80, s76, s77")
        elif probe == 2:
            e("s_ashr_i32 s78, s78, 7"); e("s_add_i32 s80, s78, 100")
        elif probe == 7:
            e("s_ashr_i32 s77, s77, 8")
            e("s_sub_u32 s80, s72, s68"); e("s_sub_i32 s80, s80, s77"); e("s_sub_i32 s80, s80, 3200")
        elif probe in (3, 6):
            e("s_sub_u32 s80, s72, s68"); e("s_sub_i32 s80, s80, s75"); e("s_sub_i32 s80, s80, 3200")
        elif probe == 4:
            e("s_sub_u32 s80, s72, s68"); e("s_sub_i32 s80, s80, s76"); e("s_sub_i32 s80, s80, 3200")
        else:
            e("s_mov_b32 s80, 0")
        e(f"s_mul_i32 s80, s80, {amp}"); e("s_max_i32 s80, s80, 0"); e("s_min_i32 s80, s80, 8000"); e("s_add_u32 s80, s80, 1000")
        e("L_ps:")
        e("s_memrealtime s[82:83]"); e("s_waitcnt lgkmcnt(0)"); e("s_sub_u32 s82, s82, s72")
        e("s_cmp_lt_u32 s82, s80"); e("s_cbranch_scc1 L_ps")
    e("L_sdone:")
    e("s_mov_b64 exec, -1")
    if stamps:
        e("s_waitcnt vmcnt(0)")
    stamp("s", "s.end")
    stamps_out("s")
    e("L_end:")
    e("s_endpgm")

    body, nops = resolve(L)
    nv = vRING + 4 * R
    out = [HDR.rstrip("\n"),
           f"; @launch grid=(256,1,1) block=(320,1,1) lds={LDS}"]
    if stamps:
        out.append("; @stamps " + ",".join(f"{i}={n}" for i, n in names))
    out += ['.amdgcn_target "amdgcn-amd-amdhsa--gfx950"', ".text", f".globl {KN}", ".p2align 8",
            f".type {KN},@function", f"{KN}:"]
    out += [("" if t.endswith(":") else "    ") + t for t in body]
    out += ['.section .rodata,"a"', ".p2align 6", f".amdhsa_kernel {KN}",
            f"  .amdhsa_next_free_vgpr {nv}", "  .amdhsa_next_free_sgpr 102",
            f"  .amdhsa_accum_offset {(nv + 3) // 4 * 4}",
            "  .amdhsa_group_segment_fixed_size 0", "  .amdhsa_kernarg_size 104",
            "  .amdhsa_user_sgpr_count 2", "  .amdhsa_user_sgpr_kernarg_segment_ptr 1",
            "  .amdhsa_system_sgpr_workgroup_id_x 1", ".end_amdhsa_kernel"]
    return "\n".join(out) + "\n", nops


if __name__ == "__main__":
    outp = sys.argv[1]
    kw = {}
    for a in sys.argv[2:]:
        k, v = a.split("=")
        kw[k] = int(v) if v.lstrip("-").isdigit() else v.replace("+", " ")
    s, nops = gen(**kw)
    open(outp, "w").write(s)
    print(outp, "lines", s.count("\n"), "nop states", nops)
```

```python
import sys, math, struct
from asmlib import resolve, VM

KN = "concat_heads__mha_block_cached__gqa_block_cached__decode_kernel"
HDR = open("concat_heads__mha_block_cached__gqa_block_cached__decode.s.ref").read().split("; Override launch")[0]

A1 = 4096
A2 = A1 + 256 * 768
A3 = A2 + 256 * 1024
A4 = A3 + 256 * 2560
AY = A4 + 256 * 4352
DY = AY - A1
WS_USED = AY + A3 - A1
AA = (WS_USED + 4095) // 4096 * 4096
L_P = 0
L_Q = 6144
L_T = 6528
L_F = 6544
L_ST = 6560
L_O = 6592
L_X = 7360
L_H = L_X + 516
L_S = L_X + 528
LDS = 8448

sS, sHH, sB, sH, sW, sJB = 10, 11, 12, 13, 14, 15
sX, sMASK, sCNT = 16, 18, 19
sKV, sWW, sOUT, sWS = 20, 24, 28, 30
rX, rWQ, rK, rV, rWO, rWS, rOUT = 32, 36, 40, 44, 48, 52, 56
sOFF, sC = 60, 61
sSEL = 62
sSA, sSB = 66, 67
sROT = 100
sPO = 101
rDBG = 96
sLN = 96
sRH = 98
sMIS = 99
sST = 68

vL, vKV, vWQ, vWO = 0, 1, 2, 3
vM = 4
vQ = 8
vACC = 20
vA = 32
vT = 36
vPW, vQR, vOR, vPUB = 37, 38, 39, 40
vMX, vLS, vNM = 41, 42, 43
vX = 44
vT0, vT1, vT2, vT3 = 49, 50, 51, 52
vZ, vONE, vPR = 53, 54, 55
vSC = 56
vRING = 88


def f2u(x):
    return struct.unpack("<I", struct.pack("<f", x))[0]


def gen(EH=99, FE=14, at=0, ast=34816, acs=4352, asc=0, SB=34, SM=13, nraw=0, te=0, xo=0, FX=0, FX2=0, XT=3, GX=0, RT=0, PF=250, probe=0, amp=10, qd=0, op=0, osl=0, mp=0, xf=0, FL=0, cth=1, xs=0, xn=2, xdn=4, xdl=2, xa=1, xi=0, xsh=4, BM=20, tb=0, ns='', pp=0, pth=8, dry=0, cs=0, sw=0, xc=0, H=99, FW=12, dp=0, fq=1, nost=0, lazy=0, xt=0, xd=0, xg=1, xb=18, XM=64, F=6, F0=6, F2=0, G2=99, rot=0, R=27, fl="nt", stamps=0, prio=1, codepf=0, pk=2, warm=0, qf=0, fb=0, FH=8, FH2=0, G3=99, TH0=48, THL=232, ksh=1, CM=4, bias=1, cb=0, xp=0, N0=32, IL=4, pre=0, nopoll=0, skip=0, dummy=0):
    L = []
    e = L.append
    names = []
    nst = {"w": 0, "s": 0}

    def stamp(who, name):
        if not stamps or name in ns.split() or (stamps == 2 and name in ("woissued", "oready", "pub")):
            return
        for j, nm in names:
            if nm == name:
                j -= 0 if who == "w" else 14
                e(f"s_memrealtime s[{sST + 2 * j}:{sST + 2 * j + 1}]")
                return
        i = nst[who]
        assert i < 14
        nst[who] += 1
        e(f"s_memrealtime s[{sST + 2 * i}:{sST + 2 * i + 1}]")
        names.append((i + (0 if who == "w" else 14), name))

    def srd(d, base, off, size):
        if off is None:
            e(f"s_mov_b32 s{d}, s{base}"); e(f"s_mov_b32 s{d + 1}, s{base + 1}")
            e(f"s_mov_b32 s{d + 2}, {size}")
        else:
            e(f"s_add_u32 s{d}, s{base}, s{off}"); e(f"s_addc_u32 s{d + 1}, s{base + 1}, 0")
            e(f"s_sub_u32 s{d + 2}, {size}, s{off}")
        e(f"s_mov_b32 s{d + 3}, 0x20000")

    def slot(i):
        return vRING + 4 * (i % R)

    def vr(a, n=4):
        return f"v[{a}:{a + n - 1}]"

    DPPM = "row_mask:0xf bank_mask:0xf"

    def allrows(op, v, t):
        e(f"v_mov_b32 v{t}, v{v}")
        e(f"v_permlane16_swap_b32 v{v}, v{t}")
        e(f"{op} v{v}, v{v}, v{t}")
        e(f"v_mov_b32 v{t}, v{v}")
        e(f"v_permlane32_swap_b32 v{v}, v{t}")
        e(f"{op} v{v}, v{v}, v{t}")

    def treduce(d):
        e(f"v_permlane32_swap_b32 v{d}, v{d + 1}")
        e(f"v_permlane32_swap_b32 v{d + 2}, v{d + 3}")
        e(f"v_add_f32 v{d}, v{d}, v{d + 1}")
        e(f"v_add_f32 v{d + 2}, v{d + 2}, v{d + 3}")
        e(f"v_permlane16_swap_b32 v{d}, v{d + 2}")
        e(f"v_add_f32 v{d}, v{d}, v{d + 2}")

    def tag4(dst, src):
        for r in range(4):
            e(f"v_perm_b32 v{dst + r}, v{src + r}, v{vT}, s{sSEL + r}")

    def poll(label, loads, units, tmp, dual=None):
        e(f"s_mov_b32 s{sCNT}, {1 if nopoll >> (4 - int(label[-1])) & 1 else 400000}")
        if dual:
            e(f"s_mov_b32 s{sPO}, {0 if xp else DY}")
        e(f"{label}:")
        e("s_nop 1")
        for t in loads:
            if not skip >> (4 - int(label[-1])) & 1:
                e(t)
        e(f"s_sub_u32 s{sCNT}, s{sCNT}, 1")
        if dual and xp:
            e(f"s_cmp_lg_u32 s{sCNT}, {400000 - N0}"); e(f"s_cbranch_scc1 {label}_y")
            dual()
            e(f"{label}_y:")
            e(f"s_cmp_lt_u32 s{sCNT}, {400000 - N0}"); e(f"s_cselect_b32 s3, {DY}, 0"); e(f"s_xor_b32 s{sPO}, s{sPO}, s3")
        e("s_waitcnt vmcnt(0)")
        for k, u in enumerate(units):
            e(f"v_perm_b32 v{tmp}, v{u + 1}, v{u}, s{sSA}")
            e(f"v_perm_b32 v{tmp + 1}, v{u + 3}, v{u + 2}, s{sSB}")
            e(f"v_or_b32 v{tmp}, v{tmp}, v{tmp + 1}")
            if k == 0:
                e(f"v_xor_b32 v{tmp + 2}, v{tmp}, v{vT}")
            else:
                e(f"v_xor_b32 v{tmp}, v{tmp}, v{vT}")
                e(f"v_or_b32 v{tmp + 2}, v{tmp + 2}, v{tmp}")
        e(f"v_cmp_ne_u32 vcc, 0, v{tmp + 2}")
        e(f"s_cmp_eq_u32 s{sCNT}, 0")
        e(f"s_cbranch_scc1 {label}_x")
        e(f"s_cbranch_vccnz {label}")
        e(f"{label}_x:")
        for u in units:
            for r in range(4):
                e(f"v_and_b32 v{u + r}, s{sMASK}, v{u + r}")

    def ppoll(label, load, bufs, res, tmp):
        def check(src):
            if src != res:
                for r in range(4):
                    e(f"v_mov_b32 v{res + r}, v{src + r}")
            e(f"v_perm_b32 v{tmp}, v{src + 1}, v{src}, s{sSA}")
            e(f"v_perm_b32 v{tmp + 1}, v{src + 3}, v{src + 2}, s{sSB}")
            e(f"v_or_b32 v{tmp}, v{tmp}, v{tmp + 1}")
            e(f"v_cmp_ne_u32 vcc, v{tmp}, v{vT}")
        n = len(bufs)
        e(f"s_mov_b32 s{sCNT}, 400000")
        e(f"{label}:")
        e(load(res))
        e("s_waitcnt vmcnt(0)")
        check(res)
        e(f"s_sub_u32 s{sCNT}, s{sCNT}, 1")
        e(f"s_cbranch_scc1 {label}_x")
        e("s_and_b64 exec, exec, vcc")
        e(f"s_cbranch_scc0 {label}_x")
        if n > 1:
            e("s_bcnt1_i32_b64 s3, exec")
            e(f"s_cmp_gt_u32 s3, {pth}")
        e(f"s_cbranch_scc1 {label}")
        if n > 1:
            for k in range(n - 1):
                e(load(bufs[k]))
            e(f"{label}_f:")
            for k in range(n):
                e(load(bufs[(k + n - 1) % n]))
                e(f"s_waitcnt vmcnt({n - 1})")
                check(bufs[k])
                e("s_and_b64 exec, exec, vcc")
                e(f"s_cbranch_scc0 {label}_x")
            e(f"s_sub_u32 s{sCNT}, s{sCNT}, 1")
            e(f"s_cbranch_scc0 {label}_f")
        e(f"{label}_x:")
        e("s_mov_b64 exec, -1")
        for r in range(4):
            e(f"v_and_b32 v{res + r}, s{sMASK}, v{res + r}")

    def mpoll(label, loads, units, tmp, first=()):
        e(f"s_mov_b32 s{sCNT}, 400000")
        e(f"s_mov_b32 s{sPO}, {DY}")
        for t in loads:
            e(t)
        for t in first:
            e(t)
        e(f"{label}:")
        e("s_waitcnt vmcnt(0)")
        for k, u in enumerate(units):
            e(f"v_perm_b32 v{tmp}, v{u + 1}, v{u}, s{sSA}")
            e(f"v_perm_b32 v{tmp + 1}, v{u + 3}, v{u + 2}, s{sSB}")
            e(f"v_or_b32 v{tmp}, v{tmp}, v{tmp + 1}")
            if k == 0:
                e(f"v_xor_b32 v{tmp + 2}, v{tmp}, v{vT}")
            else:
                e(f"v_xor_b32 v{tmp}, v{tmp}, v{vT}")
                e(f"v_or_b32 v{tmp + 2}, v{tmp + 2}, v{tmp}")
        e(f"v_cmp_ne_u32 vcc, 0, v{tmp + 2}")
        e(f"s_sub_u32 s{sCNT}, s{sCNT}, 1")
        e(f"s_cbranch_scc1 {label}_x")
        e("s_and_b64 exec, exec, vcc")
        e(f"s_cbranch_scc0 {label}_x")
        if osl:
            e(f"s_sleep {osl}")
        for t in loads:
            e(t)
        e(f"s_branch {label}")
        e(f"{label}_x:")
        e("s_mov_b64 exec, -1")
        for u in units:
            for r in range(4):
                e(f"v_and_b32 v{u + r}, s{sMASK}, v{u + r}")

    def publish(src, vaddr, sx, off, one, y):
        o = f" offset:{off}" if off else ""
        e("s_mov_b64 exec, 1" if one else "s_mov_b32 exec_hi, 0xffff")
        e(f"buffer_store_dwordx4 {vr(src)}, v{vaddr}, s[{rWS}:{rWS + 3}], s{sx + 2 * y} offen{o}" + (" sc1" if y else ""))
        e("s_mov_b64 exec, -1")

    def ldsspin(label, off, tmp):
        e(f"s_mov_b32 s{sCNT}, 4000000")
        e(f"{label}:")
        e(f"ds_read_b32 v{tmp}, v{vZ} offset:{off}")
        e(f"s_sub_u32 s{sCNT}, s{sCNT}, 1")
        e("s_waitcnt lgkmcnt(0)")
        e(f"v_readfirstlane_b32 s3, v{tmp}")
        e(f"s_cmp_eq_u32 s{sCNT}, 0")
        e(f"s_cbranch_scc1 {label}_x")
        e("s_cmp_lt_u32 s3, 4")
        e(f"s_cbranch_scc1 {label}")
        e(f"{label}_x:")

    sN, sSL, sCc, sTH, sP, sK, sAUX = 32, 33, 34, 35, 36, 37, 38
    sD, sXL, sDL, sLEAD = 40, 41, 42, 43
    vLIM, vTX = 37, 38
    sPUB, sRD, sXO, sBI, sTM, sINT, sXW = 40, 41, 42, 43, 44, 46, 47
    AX = A4 + 16 * 4352

    def fbspin(label, k, tmp, vad):
        e(f"s_mov_b32 s{sCNT}, 4000000")
        e(f"{label}:")
        e(f"ds_read_b128 {vr(tmp)}, v{vZ} offset:{L_F}")
        e(f"s_sub_u32 s{sCNT}, s{sCNT}, 1")
        e(f"s_cbranch_scc1 {label}_x")
        if k is None:
            e(f"s_cmp_eq_u32 s{sTH}, 0x7fffffff")
            e(f"s_cbranch_scc1 {label}_x")
        e("s_waitcnt lgkmcnt(0)")
        if k is not None:
            e(f"v_readfirstlane_b32 s3, v{tmp + k}")
        e(f"v_readfirstlane_b32 s{sP}, v{tmp + 3}")
        if k is not None:
            e("s_cmp_ge_u32 s3, 4")
            e(f"s_cbranch_scc1 {label}_x")
        e(f"s_sub_i32 s{sP}, s{sP}, s{sCc}")
        e(f"s_cmp_lt_i32 s{sP}, s{sTH}")
        e(f"s_cbranch_scc1 {label}")
        e(f"s_sub_i32 s{sK}, s{sP}, s{sTH}"); e(f"s_lshr_b32 s{sK}, s{sK}, {IL}"); e(f"s_add_u32 s{sK}, s{sK}, 1")
        e(f"s_add_u32 s{sN}, s{sN}, s{sK}")
        if xs:
            e(f"s_cmp_ge_u32 s{sN}, s{sPUB}"); e(f"s_cbranch_scc0 {label}_a")
            e(f"s_memrealtime s[{sTM}:{sTM + 1}]")
            e(f"{label}_a:")
        e(f"v_and_b32 v{tmp}, s{sMASK}, v{vT}"); e(f"v_or_b32 v{tmp + 1}, s{sN}, v{tmp}")
        e(f"buffer_load_dword v{tmp + 2}, v{vad}, s[{rWS}:{rWS + 3}], 0 offen sc1")
        e("s_mov_b64 exec, 1")
        if nost:
            e(f"buffer_load_dword v{tmp + 1}, v{vZ}, s[{rWS}:{rWS + 3}], s{sSL} offen sc1")
        else:
            e(f"buffer_store_dword v{tmp + 1}, v{vZ}, s[{rWS}:{rWS + 3}], s{sSL} offen")
        e("s_mov_b64 exec, -1")
        e(f"s_lshl_b32 s{sK}, s{sK}, {IL}"); e(f"s_add_u32 s{sTH}, s{sTH}, s{sK}")
        e(f"s_cmp_gt_i32 s{sTH}, {THL + (1 << IL) - 1}"); e(f"s_cselect_b32 s{sTH}, 0x7fffffff, s{sTH}")
        if xs:
            e(f"s_cmp_ge_u32 s{sN}, s{sRD}"); e(f"s_cbranch_scc0 {label}_b")
            e("s_mov_b64 exec, 0xff")
            e(f"buffer_load_dword v{tmp + 3}, v{vLIM}, s[{rWS}:{rWS + 3}], s{sXO} offen sc1")
            e(f"s_add_u32 s{sRD}, s{sRD}, {xdn}"); e(f"s_add_u32 s{sXO}, s{sXO}, 2048")
            e(f"s_cmp_ge_u32 s{sXO}, {AX + 2048 * xs}"); e(f"s_cselect_b32 s{sRD}, 0x7fffffff, s{sRD}")
            e("s_and_b32 s3, s2, 7")
            e("s_waitcnt vmcnt(0)")
            e(f"v_xor_b32 v{tmp + 3}, v{tmp + 3}, v{vTX}")
            e(f"v_cmp_gt_u32 vcc, 0x1000, v{tmp + 3}")
            e(f"v_readlane_b32 s3, v{tmp + 3}, s3")
            e("s_cmp_eq_u32 vcc_lo, 0xff"); e(f"s_cbranch_scc0 {label}_b")
            e(f"v_sub_u32 v{tmp + 3}, s3, v{tmp + 3}")
            e(f"v_bfe_i32 v{tmp + 3}, v{tmp + 3}, 0, 12")
            for m in ("quad_perm:[1,0,3,2]", "quad_perm:[2,3,0,1]", "row_half_mirror"):
                e(f"v_add_u32_dpp v{tmp + 3}, v{tmp + 3}, v{tmp + 3} {m} {DPPM}")
            e(f"v_readfirstlane_b32 s3, v{tmp + 3}")
            if xi:
                e(f"s_mul_i32 s{sBI}, s3, {xi}"); e(f"s_add_i32 s{sINT}, s{sINT}, s{sBI}")
                e(f"s_min_i32 s{sINT}, s{sINT}, {BM << xsh}"); e(f"s_max_i32 s{sINT}, s{sINT}, {-(BM << xsh)}")
                e(f"s_mul_i32 s3, s3, {xa}"); e(f"s_add_i32 s3, s3, s{sINT}")
            else:
                e(f"s_mul_i32 s3, s3, {xa}")
            e(f"s_ashr_i32 s3, s3, {xsh}")
            e(f"s_min_i32 s3, s3, {BM}"); e(f"s_max_i32 s{sBI}, s3, {-BM}")
            e(f"{label}_b:")
            e("s_mov_b64 exec, -1")
        e("s_waitcnt vmcnt(1)")
        e(f"v_xor_b32 v{tmp + 2}, v{tmp + 2}, v{vPR}")
        e(f"v_cmp_gt_u32 vcc, {'v' + str(vLIM) if xd else 64}, v{tmp + 2}")
        e(f"v_cndmask_b32 v{tmp + 2}, 0, v{tmp + 2}, vcc")
        for m in ("quad_perm:[1,0,3,2]", "quad_perm:[2,3,0,1]", "row_half_mirror", "row_mirror"):
            e(f"v_add_u32_dpp v{tmp + 2}, v{tmp + 2}, v{tmp + 2} {m} {DPPM}")
        e(f"v_readlane_b32 s{sK}, v{tmp + 2}, 0"); e(f"v_readlane_b32 s3, v{tmp + 2}, 16")
        e(f"s_add_u32 s{sK}, s{sK}, s3")
        if xd:
            e(f"v_readlane_b32 s{sD}, v{tmp + 2}, 48")
            e(f"s_cmp_eq_u32 s{sLEAD}, 0"); e(f"s_cbranch_scc1 {label}_n")
            e(f"v_readlane_b32 s3, v{tmp + 2}, 32")
            e(f"v_or_b32 v{tmp}, s{sK}, v{vTX}")
            e("s_lshr_b32 s3, s3, 3"); e(f"s_add_u32 s3, s3, {2048 + xb}"); e(f"s_sub_u32 s3, s3, s{sK}")
            e(f"s_min_u32 s3, s3, {2048 + XM}"); e(f"s_max_u32 s3, s3, {2048 - XM}")
            e(f"s_and_b32 s{sD}, vcc_hi, 0xff"); e(f"s_cmp_eq_u32 s{sD}, 0xff")
            e(f"s_cselect_b32 s{sD}, s3, 2048")
            e(f"v_or_b32 v{tmp + 1}, s{sD}, v{vTX}")
            if xf:
                e(f"v_lshlrev_b32 v{tmp + 3}, 2, v{vL}")
                e("s_mov_b32 exec_hi, 0")
                e(f"buffer_store_dword v{tmp}, v{tmp + 3}, s[{rWS}:{rWS + 3}], s{sXL} offen sc1")
            e("s_mov_b64 exec, 1")
            if xt != 2 and not xf:
                e(f"buffer_store_dword v{tmp}, v{vZ}, s[{rWS}:{rWS + 3}], s{sXL} offen sc1")
            e(f"buffer_store_dword v{tmp + 1}, v{vZ}, s[{rWS}:{rWS + 3}], s{sDL} offen")
            e("s_mov_b64 exec, -1")
            e(f"{label}_n:")
            e(f"s_cmp_eq_u32 s{sD}, 0"); e(f"s_cselect_b32 s{sD}, 2048, s{sD}")
            e(f"s_sub_i32 s{sD}, s{sD}, 2048")
            if xg:
                e(f"s_ashr_i32 s{sD}, s{sD}, {xg}")
            e(f"s_add_i32 s{sK}, s{sK}, s{sD}")
        if xs:
            e(f"s_cmp_ge_u32 s{sN}, s{sPUB}"); e(f"s_cbranch_scc0 {label}_c")
            e(f"s_mul_i32 s3, s{sK}, 43"); e("s_lshr_b32 s3, s3, 4")
            e("s_waitcnt lgkmcnt(0)")
            e(f"s_sub_u32 s3, s{sTM}, s3"); e("s_and_b32 s3, s3, 0xfff")
            e(f"v_or_b32 v{tmp}, s3, v{vTX}")
            if xf:
                e(f"v_lshlrev_b32 v{tmp + 3}, 2, v{vL}")
                e("s_mov_b32 exec_hi, 0")
                e(f"buffer_store_dword v{tmp}, v{tmp + 3}, s[{rWS}:{rWS + 3}], s{sXW} offen sc1")
            else:
                e("s_mov_b64 exec, 1")
                e(f"buffer_store_dword v{tmp}, v{vZ}, s[{rWS}:{rWS + 3}], s{sXW} offen sc1")
            e("s_mov_b64 exec, -1")
            e(f"s_mov_b32 s{sPUB}, 0x7fffffff")
            e(f"{label}_c:")
            e(f"s_add_i32 s{sK}, s{sK}, s{sBI}")
        if tb:
            e(f"s_add_i32 s{sK}, s{sK}, s{sBI}")
        if IL > 3:
            e(f"s_lshl_b32 s{sK}, s{sK}, {IL - 3}")
        e(f"s_lshl_b32 s3, s{sP}, 2")
        e(f"s_sub_i32 s3, s{sK}, s3")
        e(f"s_add_u32 s3, s3, {4 * TH0 - 2 + (2 << ksh) + cb}")
        e(f"s_ashr_i32 s3, s3, {2 + ksh}")
        e(f"s_min_i32 s3, s3, {CM}"); e(f"s_max_i32 s3, s3, {-CM}")
        e(f"s_sub_i32 s{sK}, s3, s{sCc}"); e(f"s_mov_b32 s{sCc}, s3")
        e(f"v_mov_b32 v{tmp}, s{sK}")
        e("s_mov_b64 exec, 1")
        e(f"ds_add_u32 v{vZ}, v{tmp} offset:{L_F + 12}")
        e("s_mov_b64 exec, -1")
        if stamps:
            e(f"s_lshl_b64 s[{sAUX}:{sAUX + 1}], s[{sAUX}:{sAUX + 1}], 5")
            e(f"s_and_b32 s{sAUX + 1}, s{sAUX + 1}, 0xfffffff")
            e("s_add_u32 s3, s3, 16"); e(f"s_or_b32 s{sAUX}, s{sAUX}, s3")
        e(f"s_branch {label}")
        e(f"{label}_x:")

    e("s_cmp_ge_u32 s2, 256"); e("s_cbranch_scc1 L_end")
    if stamps:
        e(f"s_memrealtime s[{sST}:{sST + 1}]")
        nst["w"] = 1; nst["s"] = 1
        names.append((0, "start")); names.append((14, "s.start"))
    if mp:
        e(f"s_and_b32 s{sS}, s2, 3"); e("s_lshr_b32 s4, s2, 3"); e("s_bfe_u32 s3, s2, 0x10002")
        e("s_lshl_b32 s3, s3, 5"); e(f"s_add_u32 s{sHH}, s4, s3")
    else:
        if xo:
            e(f"s_add_u32 s3, s2, {xo}"); e("s_and_b32 s3, s3, 7")
        else:
            e("s_and_b32 s3, s2, 7")
        e("s_lshr_b32 s4, s2, 3"); e(f"s_and_b32 s{sS}, s4, 3")
        e("s_lshr_b32 s4, s4, 2"); e("s_lshl_b32 s4, s4, 3"); e(f"s_add_u32 s{sHH}, s4, s3")
    e(f"s_lshr_b32 s{sB}, s{sHH}, 5"); e(f"s_mul_i32 s7, s{sB}, 40")
    e("s_add_u32 s8, s0, s7"); e("s_addc_u32 s9, s1, 0")
    e(f"s_load_dwordx4 s[{sWW}:{sWW + 3}], s[8:9], 24")
    e(f"s_load_dwordx2 s[{sX}:{sX + 1}], s[8:9], 0")
    e(f"s_load_dwordx4 s[{sKV}:{sKV + 3}], s[8:9], 8")
    e(f"s_load_dwordx2 s[{sOUT}:{sOUT + 1}], s[0:1], 80")
    e(f"s_load_dwordx2 s[{sWS}:{sWS + 1}], s[0:1], 96")
    e(f"v_lshrrev_b32 v{vT0}, 6, v0")
    e(f"v_and_b32 v{vL}, 63, v0")
    e(f"v_readfirstlane_b32 s{sW}, v{vT0}")
    e(f"s_and_b32 s{sH}, s{sHH}, 31")
    e(f"s_lshl_b32 s{sJB}, s{sH}, 2"); e(f"s_add_u32 s{sJB}, s{sJB}, s{sS}")
    e(f"v_lshrrev_b32 v{vT0}, 3, v{vL}")
    e(f"v_and_b32 v{vT1}, 7, v{vL}")
    e(f"v_lshlrev_b32 v{vT2}, 4, v{vT1}")
    e(f"v_mul_u32_u24 v{vWQ}, 12288, v{vT0}"); e(f"v_add_u32 v{vWQ}, v{vWQ}, v{vT2}")
    e(f"v_mul_u32_u24 v{vKV}, 384, v{vT0}"); e(f"v_add_u32 v{vKV}, v{vKV}, v{vT2}")
    e(f"v_lshlrev_b32 v{vT3}, 1, v{vT0}")
    e(f"v_add_u32 v{vQR}, {L_Q}, v{vT2}")
    e(f"s_mul_i32 s3, s{sS}, 160"); e(f"s_mul_i32 s4, s{sW}, 40"); e("s_add_u32 s3, s3, s4")
    e("s_mul_i32 s4, s3, 12288"); e(f"s_mul_i32 s5, s{sH}, 384"); e("s_add_u32 s4, s4, s5")
    e("s_lshl_b32 s3, s3, 1")
    e(f"s_mul_i32 s5, s{sH}, 1572864"); e(f"s_mul_i32 s6, s{sS}, 393216"); e("s_add_u32 s5, s5, s6")
    e(f"s_mul_i32 s6, s{sW}, 3072"); e("s_add_u32 s5, s5, s6")
    if cs:
        a, b_, c_ = sSEL, sSEL + 1, sSEL + 2
        e(f"s_and_b32 s{a}, s{sS}, 1"); e(f"s_mul_i32 s{b_}, s{a}, 3"); e(f"s_bfe_u32 s{c_}, s{sW}, 0x10001"); e(f"s_add_u32 s{b_}, s{b_}, s{c_}")
        e(f"s_and_b32 s{c_}, s{sW}, 1"); e(f"s_cmp_eq_u32 s{sW}, 0"); e(f"s_cselect_b32 s{b_}, 2, s{b_}"); e(f"s_cselect_b32 s{sRH}, s{a}, s{c_}")
        e(f"s_lshr_b32 s{a}, s{sS}, 1"); e(f"s_mul_i32 s{a}, s{a}, 5"); e(f"s_add_u32 s{b_}, s{b_}, s{a}"); e(f"s_lshl_b32 s{b_}, s{b_}, 7")
        if at:
            e(f"s_mov_b32 s{sLN}, s{b_}")
        e(f"s_mul_i32 s6, s{sH}, 245760"); e(f"s_add_u32 s6, s6, s{b_}")
        e(f"s_mul_i32 s{a}, s{sRH}, 122880"); e(f"s_add_u32 s6, s6, s{a}")
    else:
        e(f"s_mul_i32 s6, s{sJB}, 61440"); e(f"s_lshl_b32 s7, s{sW}, 8"); e("s_add_u32 s6, s6, s7")
    e(f"s_cmp_eq_u32 s{sW}, 4")
    e("s_cbranch_scc1 L_service")

    def common_consts():
        e(f"v_and_b32 v{vT0}, 1, v{vL}"); e(f"v_lshlrev_b32 v{vT0}, 4, v{vT0}")
        e(f"v_mov_b32 v{vT1}, 0xffff"); e(f"v_lshlrev_b32 v{vT0}, v{vT0}, v{vT1}")
        e(f"v_bfe_u32 v{vT1}, v{vL}, 1, 2")
        for r in range(4):
            e(f"v_cmp_eq_u32 vcc, {r}, v{vT1}")
            e(f"v_cndmask_b32 v{vM + r}, 0, v{vT0}, vcc")
        if cs:
            e(f"v_lshrrev_b32 v{vT0}, 3, v{vL}"); e(f"v_and_b32 v{vT1}, 7, v{vL}")
            e(f"v_mul_u32_u24 v{vWO}, 15360, v{vT0}"); e(f"v_lshl_add_u32 v{vWO}, v{vT1}, 4, v{vWO}")
            e(f"s_mul_i32 s7, s{sRH}, 384"); e(f"s_add_u32 s7, s7, {L_O}")
            e(f"v_mul_u32_u24 v{vOR}, 48, v{vT0}"); e(f"v_add_u32 v{vOR}, s7, v{vOR}")
        if cs and at:
            e(f"v_mul_u32_u24 v{vPUB}, {acs}, v{vT0}"); e(f"v_lshl_add_u32 v{vPUB}, v{vT1}, 3, v{vPUB}")
            e(f"s_lshr_b32 s7, s{sLN}, 7"); e(f"s_mul_i32 s8, s{sB}, 10"); e("s_add_u32 s7, s7, s8")
            e(f"s_mul_i32 s7, s7, {ast}"); e(f"s_add_u32 s7, s7, {AA}")
            e(f"v_add_u32 v{vPUB}, s7, v{vPUB}")
        elif cs:
            e(f"v_bfe_u32 v{vT0}, v{vL}, 4, 1")
            e(f"v_lshlrev_b32 v{vPUB}, 5, v{vT1}"); e(f"v_lshl_add_u32 v{vPUB}, v{vT0}, 4, v{vPUB}")
            e(f"s_bfe_u32 s8, s{sW}, 0x10001")
            e(f"s_lshl_b32 s7, s{sS}, 1"); e("s_add_u32 s7, s7, s8"); e("s_lshl_b32 s7, s7, 5"); e(f"s_add_u32 s7, s7, s{sH}")
            e(f"s_lshr_b32 s9, s{sS}, 1"); e("s_lshl_b32 s9, s9, 5"); e(f"s_add_u32 s9, s9, s{sH}")
            e("s_lshl_b32 s9, s9, 1"); e(f"s_add_u32 s9, s9, s{sRH}"); e("s_add_u32 s9, s9, 256")
            e(f"s_cmp_eq_u32 s{sW}, 0"); e("s_cselect_b32 s7, s9, s7")
            e(f"s_mul_i32 s9, s{sB}, 384"); e("s_add_u32 s7, s7, s9"); e("s_lshl_b32 s7, s7, 8"); e(f"s_add_u32 s7, s7, {A3}")
            e(f"v_add_u32 v{vPUB}, s7, v{vPUB}")
        else:
            e(f"v_lshrrev_b32 v{vT0}, 4, v{vL}")
            e(f"v_and_b32 v{vT1}, 15, v{vL}")
            e(f"v_mul_u32_u24 v{vWO}, 15360, v{vT0}"); e(f"v_lshl_add_u32 v{vWO}, v{vT1}, 4, v{vWO}")
            e(f"v_mul_u32_u24 v{vOR}, 48, v{vT0}"); e(f"v_add_u32 v{vOR}, {L_O}, v{vOR}")
            e(f"v_lshlrev_b32 v{vPUB}, 5, v{vT1}"); e(f"v_lshl_add_u32 v{vPUB}, v{vT0}, 4, v{vPUB}")
            e(f"s_lshl_b32 s7, s{sB}, 7"); e(f"s_add_u32 s7, s7, s{sJB}"); e("s_mul_i32 s7, s7, 2560")
            e(f"s_lshl_b32 s8, s{sW}, 9"); e("s_add_u32 s7, s7, s8"); e(f"s_add_u32 s7, s7, {A3}")
            e(f"v_add_u32 v{vPUB}, s7, v{vPUB}")
        e(f"v_mov_b32 v{vZ}, 0"); e(f"v_mov_b32 v{vONE}, 1")
        for r in range(4):
            e(f"s_mov_b32 s{sSEL + r}, {0x07060500 + r}")
        srd(rWO, sWW + 2, 6, 7864320)
        srd(rWS, sWS, None, AA + 20 * ast if at else WS_USED)
        if cs:
            srd(rOUT, sOUT, None, 2560)

    vXA = vNM

    vFX = vACC + 8

    def pair_addr():
        if at:
            e(f"v_and_b32 v{vT0}, 7, v{vL}"); e(f"v_lshlrev_b32 v{vXA}, 4, v{vT0}")
            e(f"v_bfe_u32 v{vT0}, v{vL}, 4, 1"); e(f"v_lshl_add_u32 v{vXA}, v{vT0}, 3, v{vXA}")
            e(f"v_lshrrev_b32 v{vT0}, 5, v{vL}"); e(f"v_lshl_add_u32 v{vXA}, v{vT0}, 2, v{vXA}")
            e(f"v_bfe_u32 v{vT0}, v{vL}, 3, 1"); e(f"v_lshl_add_u32 v{vXA}, v{vT0}, 1, v{vXA}")
            e(f"s_mul_i32 s3, s{sB}, 1280"); e(f"s_add_u32 s3, s3, s{sLN}")
            e(f"v_add_u32 v{vXA}, s3, v{vXA}")
            return
        e(f"s_bfe_u32 s3, s{sW}, 0x10001"); e("s_lshl_b32 s3, s3, 8"); e(f"s_add_u32 s3, s3, {L_X}")
        e(f"v_and_b32 v{vXA}, 255, v{vPUB}"); e(f"v_add_u32 v{vXA}, s3, v{vXA}")

    vm = VM(e)
    NQ, NK, NV, NO = 15, 96, 96, 12
    K0, V0, O0 = NQ, NQ + NK, NQ + NK + NV
    N = O0 + NO
    cur = [None]

    def setoff(v):
        if cur[0] != v:
            e(f"s_mov_b32 s{sOFF}, {v}")
            cur[0] = v

    def issue(i):
        d = vr(slot(i))
        if i < K0:
            g, t = divmod(i, 3)
            setoff(g * 8 * 12288)
            vm.issue(i, f"buffer_load_dwordx4 {d}, v{vWQ}, s[{rWQ}:{rWQ + 3}], s{sOFF} offen offset:{t * 128} {fl}")
        elif i < O0:
            r = rK if i < V0 else rV
            g, t = divmod(i - (K0 if i < V0 else V0), 3)
            if fb and t == 0 and i < V0 + 3 * G3:
                ga = (i - K0) // 3
                e("s_mov_b64 exec, 1")
                if ga > 0:
                    e("s_waitcnt lgkmcnt(0)")
                    e(f"v_cmp_lt_i32 vcc, {4 * (ga - 1) + bias}, v{vPR}")
                    if FX and ga >= GX:
                        e(f"v_readfirstlane_b32 s8, v{vPR}")
                e(f"ds_add_rtn_u32 v{vPR}, v{vZ}, v{vONE} offset:{L_F + 12}")
                e("s_mov_b64 exec, -1")
            if not rot:
                setoff(g * 12288)
            elif t == 0:
                cur[0] = None
                if g == 0:
                    e(f"s_mov_b32 s{sOFF}, s{sROT}")
                else:
                    e(f"s_add_u32 s{sOFF}, s{sOFF}, 12288"); e(f"s_cmp_eq_u32 s{sOFF}, 393216")
                    e(f"s_cselect_b32 s{sOFF}, 0, s{sOFF}")
                if FX and (i - K0) // 3 >= max(GX, 1):
                    e(f"s_cmp_gt_i32 s8, {4 * ((i - K0) // 3 - 1) + bias + XT}")
            vm.issue(i, f"buffer_load_dwordx4 {d}, v{vKV}, s[{r}:{r + 3}], s{sOFF} offen offset:{t * 128} {fl}")
        else:
            g = i - O0
            setoff((g // 4) * 5120)
            vm.issue(i, f"buffer_load_dwordx4 {d}, v{vWO}, s[{rWO}:{rWO + 3}], s{sOFF} offen offset:{(g % 4) * 1280} {fl}")

    def afrag(src):
        for r in range(4):
            e(f"v_and_b32 v{vA + r}, v{src}, v{vM + r}")

    def mfma(acc, b, first):
        c = "0" if first else vr(acc)
        e(f"v_mfma_f32_16x16x32_bf16 {vr(acc)}, {vr(vA)}, {vr(b)}, {c}")

    def partials_out(flag):
        e("s_mov_b32 exec_lo, 0x00ff00ff"); e("s_mov_b32 exec_hi, 0xff00ff00")
        for t in range(3):
            e(f"ds_write_b128 v{vPW}, {vr(vACC + 4 * t)} offset:{t * 256}")
        e("s_mov_b64 exec, 1")
        e(f"ds_add_u32 v{vZ}, v{vONE} offset:{flag}")
        e("s_mov_b64 exec, -1")

    def pcalc(g):
        s = vSC + g
        e(f"v_fma_f32 v{s}, v{s}, s{sC}, v{vNM}")
        e(f"v_exp_f32 v{s}, v{s}")
        if g == 0:
            e(f"v_mov_b32 v{vLS}, v{s}")
        else:
            e(f"v_add_f32 v{vLS}, v{vLS}, v{s}")
        e(f"v_cvt_pk_bf16_f32 v{s}, v{s}, v{s}")

    pend = []

    def red_steps(g):
        s = vSC + g
        st = [f"v_add_f32_dpp v{s}, v{s}, v{s} quad_perm:[1,0,3,2] {DPPM}",
              f"v_add_f32_dpp v{s}, v{s}, v{s} quad_perm:[2,3,0,1] {DPPM}",
              f"v_add_f32_dpp v{s}, v{s}, v{s} row_half_mirror {DPPM}"]
        st.append(f"v_mov_b32 v{vMX}, v{s}" if g == 0 else f"v_max_f32 v{vMX}, v{vMX}, v{s}")
        return st

    pdone = [0]

    def consume(i):
        vm.wait(i)
        b = slot(i)
        if i < K0:
            g, t = divmod(i, 3)
            if t == 0:
                e(f"v_lshl_or_b32 v{vT0}, v{vX + g}, 16, v{vX + g}")
                afrag(vT0)
            mfma(vACC + 4 * t, b, g == 0)
            if stamps == 2 and i in (0, 5, 11):
                stamp("w", f"wq{i}")
            if i == K0 - 1:
                partials_out(L_F)
                stamp("w", "qpart")
        elif i < V0:
            g, t = divmod(i - K0, 3)
            for r in range(4):
                e(f"v_dot2c_f32_bf16 v{vSC + g}, v{b + r}, v{vQ + 4 * t + r}")
                if r in (1, 3) and pend:
                    e(pend.pop(0))
            if t == 2:
                while pend:
                    e(pend.pop(0))
                pend.extend(red_steps(g))
            if i == V0 - 1:
                while pend:
                    e(pend.pop(0))
                e(f"v_max_f32_dpp v{vMX}, v{vMX}, v{vMX} row_ror:8 {DPPM}")
                allrows("v_max_f32", vMX, vT0)
                e(f"v_mul_f32 v{vMX}, s{sC}, v{vMX}")
                e(f"v_sub_f32 v{vNM}, 0, v{vMX}")
                for g2 in range(pk):
                    pcalc(g2)
                pdone[0] = pk
                stamp("w", "Kdone")
        elif i < O0:
            g, t = divmod(i - V0, 3)
            if stamps == 3 and t == 2 and g in (16, 22, 26, 29):
                stamp("w", f"v{g}")
            if t == 0:
                afrag(vSC + g)
            mfma(vACC + 4 * t, b, g == 0)
            if t < 2 and pdone[0] < 32:
                for _ in range((pk + 1 - t) // 2):
                    if pdone[0] < 32:
                        pcalc(pdone[0]); pdone[0] += 1
                if pdone[0] == 32:
                    pdone[0] = 33
                    e(f"v_add_f32_dpp v{vLS}, v{vLS}, v{vLS} row_ror:8 {DPPM}")
                    allrows("v_add_f32", vLS, vT0)
                    e(f"s_lshl_b32 s3, s{sW}, 3"); e(f"v_mov_b32 v{vT0}, s3")
                    e("s_mov_b64 exec, 1")
                    e(f"ds_write_b32 v{vT0}, v{vMX} offset:{L_ST}")
                    e(f"ds_write_b32 v{vT0}, v{vLS} offset:{L_ST + 4}")
                    e(f"ds_add_u32 v{vZ}, v{vONE} offset:{L_F + 4}")
                    e("s_mov_b64 exec, -1")
            if i == O0 - 1:
                partials_out(L_F + 8)
                stamp("w", "Vdone")

    e("s_waitcnt lgkmcnt(0)")
    if stamps == 2:
        stamp("w", "karg")
    srd(rX, sX, None, 1280)
    srd(rWQ, sWW, 4, 7864320)
    for g in range(5):
        vm.issue(("x", g), f"buffer_load_ushort v{vX + g}, v{vT3}, s[{rX}:{rX + 3}], s3 offen offset:{16 * g}")
    ni = 0
    while ni < F0:
        issue(ni); ni += 1
    if rot:
        ra, rb, rc = rot // 10000 % 100, rot // 100 % 100, rot % 100
        e(f"s_and_b32 s7, s{sHH}, 7"); e(f"s_mul_i32 s{sROT}, s7, {ra}")
        e(f"s_mul_i32 s7, s{sS}, {rb}"); e(f"s_add_u32 s{sROT}, s{sROT}, s7")
        e(f"s_lshr_b32 s7, s{sHH}, 3"); e(f"s_mul_i32 s7, s7, {rc}"); e(f"s_add_u32 s{sROT}, s{sROT}, s7")
        e(f"s_and_b32 s{sROT}, s{sROT}, 31"); e(f"s_mul_i32 s{sROT}, s{sROT}, 12288")
    srd(rK, sKV, 5, 50331648)
    srd(rV, sKV + 2, 5, 50331648)
    common_consts()
    e(f"v_lshrrev_b32 v{vT0}, 5, v{vL}"); e(f"v_mul_u32_u24 v{vPW}, 768, v{vT0}")
    e(f"v_and_b32 v{vT0}, 7, v{vL}"); e(f"v_lshl_add_u32 v{vPW}, v{vT0}, 5, v{vPW}")
    e(f"v_bfe_u32 v{vT0}, v{vL}, 4, 1"); e(f"v_lshl_add_u32 v{vPW}, v{vT0}, 4, v{vPW}")
    e(f"s_mul_i32 s7, s{sW}, 1536"); e(f"v_add_u32 v{vPW}, s7, v{vPW}")
    e(f"s_mov_b32 s{sC}, {f2u(192 ** -0.5 * math.log2(math.e)):#x}")
    for g in range(32):
        e(f"v_mov_b32 v{vSC + g}, 0")
    e("s_barrier")
    if stamps == 2:
        stamp("w", "B0")
    vm.wait(("x", 4))
    if stamps == 2:
        stamp("w", "xdone")
    nc = 0

    def Flo(i):
        return F2 if (F2 and i >= V0 + 3 * G2) else F

    def Fmid(i):
        if fb and i >= K0 + 3:
            return FH2 if (FH2 and i >= V0 + 3 * G2) else FH
        return Flo(i)

    def Fof(i):
        if FX and i > K0 + 3 * max(GX, 1):
            return FX2 if (FX2 and i >= V0 + 3 * G2) else FX
        return Fmid(i)

    ncond = [0]

    def pace():
        j = ni - Fof(ni)
        if j >= 0:
            vm.wait(j)
        jm = ni - Fmid(ni)
        j = ni - Flo(ni)
        if fb and ni < V0 + 3 * G3 and j >= 0 and j in vm.q:
            ncond[0] += 1
            if jm in vm.q and jm < j:
                e(f"s_cbranch_scc1 L_c{ncond[0]}")
                e(f"s_waitcnt vmcnt({len(vm.q) - 1 - vm.q.index(jm)}) ; cond")
                e(f"s_cbranch_vccnz L_c{ncond[0]} ; cond")
            else:
                e(f"s_cbranch_vccnz L_c{ncond[0]}")
            e(f"s_waitcnt vmcnt({len(vm.q) - 1 - vm.q.index(j)}) ; cond")
            e(f"L_c{ncond[0]}:")

    if fb:
        e("s_mov_b64 vcc, 0")

    while nc < K0:
        if ni - nc <= F:
            pace(); issue(ni); ni += 1
        consume(nc); nc += 1
    def qreads():
        e(f"ds_read_b32 v{vT1}, v{vZ} offset:{L_T + 4}")
        for t in range(3):
            e(f"ds_read_b128 {vr(vQ + 4 * t)}, v{vQR} offset:{t * 128}")
        e(f"ds_read_b32 v{vT}, v{vZ} offset:{L_T}")

    while ni < K0 + R:
        if qf and ni == K0 + R - 1:
            qreads()
        pace(); issue(ni); ni += 1
    stamp("w", "ringfull")
    if qf:
        e(f"s_mov_b32 s{sCNT}, 4000000")
        e("L_q:")
        e("s_waitcnt lgkmcnt(0)")
        e(f"v_readfirstlane_b32 s3, v{vT1}")
        e(f"s_sub_u32 s{sCNT}, s{sCNT}, 1")
        e("s_cbranch_scc1 L_qx")
        e("s_cmp_lg_u32 s3, 0")
        e("s_cbranch_scc1 L_qx")
        qreads()
        e("s_branch L_q")
        e("L_qx:")
        stamp("w", "qready")
    else:
        e("s_barrier")
        stamp("w", "qready")
        qreads()
        e("s_waitcnt lgkmcnt(0)")
    NH = min(N, O0 + H)
    early = None
    while nc < O0:
        lag = ni - nc
        if EH != 99 and ni == NH and early is None:
            early = (list(vm.q), ni, nc)
            e(f"s_cmp_gt_i32 s8, {4 * 62 + bias + EH}"); e("s_cbranch_scc1 L_early")
        if ni < NH:
            if lag >= R:
                consume(nc); nc += 1
            pace(); issue(ni); ni += 1
            k = 0
            while nc < O0 and nc <= ni - 1 - Fof(ni - 1) and k < 2:
                consume(nc); nc += 1; k += 1
        else:
            consume(nc); nc += 1
    while ni < NH:
        pace(); issue(ni); ni += 1
    if cs:
        pair_addr()
    if ni < N:
        e(f"s_mov_b32 s{sCNT}, 4000000")
        e("L_h:")
        e(f"ds_read_b32 v{vT0}, v{vZ} offset:{L_H}")
        e(f"s_sub_u32 s{sCNT}, s{sCNT}, 1")
        e("s_cbranch_scc1 L_hx")
        e("s_waitcnt lgkmcnt(0)")
        e(f"v_readfirstlane_b32 s3, v{vT0}")
        e("s_cmp_eq_u32 s3, 0")
        e("s_cbranch_scc1 L_h")
        e("L_hx:")
        if stamps == 3:
            stamp("w", "hgo")
    if FL:
        e("s_cmp_eq_u32 s3, 2")
    while ni < N:
        if ni - FW >= 0:
            vm.wait(ni - FW)
            if stamps == 3 and ni - FW - O0 in (1, 3):
                stamp("w", f"wa{ni - FW - O0}")
        if FL and ni - FL in vm.q:
            e(f"s_cbranch_scc1 L_w{ni}")
            e(f"s_waitcnt vmcnt({len(vm.q) - 1 - vm.q.index(ni - FL)}) ; cond")
            e(f"L_w{ni}:")
        issue(ni); ni += 1
    stamp("w", "woissued")
    e("L_tail:")
    e("s_barrier")
    stamp("w", "oready")
    for k in range(3):
        e(f"ds_read_b128 {vr(vQ + 4 * k)}, v{vOR} offset:{16 * k}")
    if at:
        assert cs and H < 12
        e("s_mov_b32 s32, 0"); e("s_mov_b32 s33, 0x43300800"); e("s_mov_b32 s34, 0"); e("s_mov_b32 s35, 0xc3320000")
        e(f"ds_read_b128 {vr(vFX)}, v{vZ} offset:{L_S}")
        e("s_mov_b32 vcc_lo, 0x00ff00ff"); e("s_mov_b32 vcc_hi, 0xff00ff00")
    e(f"s_waitcnt lgkmcnt({1 if at else 0})")
    tailq = len(vm.q)
    if cs:
        AB = (vA, vT0 - 1)
        for g in range(13):
            if g < 12:
                for r in range(4):
                    e(f"v_and_b32 v{AB[g & 1] + r}, v{vQ + g}, v{vM + r}")
            if g:
                vm.wait(O0 + g - 1)
                if stamps == 3 and g - 1 in (8, 11):
                    stamp("w", f"wa{g - 1}")
                e(f"v_mfma_f32_16x16x32_bf16 {vr(vACC)}, {vr(AB[(g - 1) & 1])}, {vr(slot(O0 + g - 1))}, {vr(vACC) if g > 1 else 0}")
    if at:
        a, X, O = vACC, vA, vA + 2
        e(f"v_cndmask_b32_dpp v{a}, v{a + 1}, v{a}, vcc row_ror:8 {DPPM}")
        e(f"v_cndmask_b32_dpp v{a + 2}, v{a + 3}, v{a + 2}, vcc row_ror:8 {DPPM}")
        e(f"v_permlane32_swap_b32 v{a}, v{a + 2}")
        e(f"v_add_f32_dpp v{a}, v{a + 2}, v{a} row_ror:8 {DPPM}")
        e("s_waitcnt lgkmcnt(0)")
        e(f"v_cvt_f64_f32 {vr(X, 2)}, v{a}")
        e(f"v_fma_f64 {vr(X, 2)}, {vr(X, 2)}, {vr(vFX, 2)}, s[32:33]")
        e(f"v_add_u32 v{vT0}, 0xbcd00000, v{X + 1}")
        e(f"v_cmp_gt_u32 vcc, 0x1000, v{vT0}")
        e(f"v_add_u32 v{X + 1}, 0xbed00000, v{X + 1}")
        e(f"v_cndmask_b32 v{X + 1}, v{vFX + 3}, v{X + 1}, vcc")
        e(f"global_atomic_add_x2 {vr(O, 2)}, v{vPUB}, {vr(X, 2)}, s[{sWS}:{sWS + 1}] sc0" + (" sc1" if asc else ""))
        stamp("w", "pub")
        e(f"v_mov_b32_dpp v{a + 1}, v{a} row_ror:8 {DPPM}")
        e(f"v_mov_b32 v{vT0}, v{a}"); e(f"v_mov_b32 v{vT1}, v{a + 1}")
        e(f"v_and_b32 v{vT2}, 7, v{vL}"); e(f"v_lshlrev_b32 v{vPUB + 1}, 5, v{vT2}")
        e(f"v_permlane32_swap_b32 v{vT0}, v{a + 2}")
        e(f"v_permlane32_swap_b32 v{vT1}, v{a + 3}")
        e(f"v_bfe_u32 v{vT2}, v{vL}, 4, 1"); e(f"v_lshl_add_u32 v{vPUB + 1}, v{vT2}, 4, v{vPUB + 1}")
        e(f"s_lshr_b32 s3, s{sLN}, 7"); e(f"s_mul_i32 s4, s{sB}, 10"); e("s_add_u32 s3, s3, s4")
        e("s_lshl_b32 s3, s3, 14"); e(f"s_add_u32 s3, s3, {A3}")
        e(f"v_add_u32 v{vPUB + 1}, s3, v{vPUB + 1}")
        e(f"s_lshl_b32 s3, s{sH}, 1"); e(f"s_add_u32 s3, s3, s{sRH}"); e("s_lshl_b32 s3, s3, 8")
        tag4(vQ, a)
        if not nraw:
            e("s_mov_b64 exec, 0x00ff00ff")
            e(f"buffer_store_dwordx4 {vr(vQ)}, v{vPUB + 1}, s[{rWS}:{rWS + 3}], s3 offen sc1")
            e("s_mov_b64 exec, -1")
        e(f"s_waitcnt vmcnt({0 if nraw else 1})")
        if stamps:
            e("s_memrealtime s[40:41]")
        e(f"v_lshl_add_u64 {vr(O, 2)}, {vr(O, 2)}, 0, {vr(X, 2)}")
        e(f"v_cmp_gt_i32 vcc, 0, v{O + 1}")
        e(f"v_and_b32 v{O + 1}, 0x1ffffff, v{O + 1}")
        e(f"v_add_u32 v{O + 1}, 0x43300000, v{O + 1}")
        e("s_and_b64 exec, exec, vcc")
        e("s_cbranch_scc0 L_atx")
        e(f"v_add_f64 {vr(O, 2)}, {vr(O, 2)}, s[34:35]")
        e(f"v_cvt_f32_f64 v{vT0}, {vr(O, 2)}")
        e(f"v_mul_f32 v{vT1}, v{vFX + 2}, v{vT0}")
        e(f"v_cvt_pk_bf16_f32 v{vT1}, v{vT1}, v{vT1}")
        e(f"buffer_store_short v{vT1}, v{vXA}, s[{rOUT}:{rOUT + 3}], 0 offen")
        e(f"s_cmp_eq_u32 s{sLN}, 0"); e("s_cselect_b32 s3, exec_lo, 0"); e("s_and_b32 s3, s3, 1")
        e("s_cbranch_scc0 L_att")
        e("s_mov_b64 s[36:37], exec"); e("s_mov_b64 exec, 1"); e(f"s_lshl_b32 s3, s{sB}, 7")
        e(f"buffer_store_dword v{vT}, v{vZ}, s[{rWS}:{rWS + 3}], s3 offen sc1")
        e("s_mov_b64 exec, s[36:37]")
        e("L_att:")
        e(f"s_mov_b32 s3, {f2u(2.0 ** SM):#x}"); e(f"s_mov_b32 s4, {f2u(2.0 ** 49):#x}")
        e(f"v_cmp_le_f32 s[36:37], s3, |v{vT0}|")
        e(f"v_cmp_gt_f32 vcc, s4, v{vT0}")
        e("s_and_b64 vcc, vcc, s[36:37]")
        e("s_andn2_b64 exec, exec, vcc")
        e("s_cbranch_scc0 L_atx")
        e(f"s_mov_b32 s{sSA}, 0x0c0c0400"); e(f"s_mov_b32 s{sSB}, 0x04000c0c"); e(f"s_mov_b32 s{sMASK}, 0xffffff00")
        e("s_mov_b32 s36, 0xff00ff00"); e("s_mov_b32 s37, 0xff00ff00")
        e("s_mov_b32 s4, 0"); e("s_mov_b32 s5, -1")
        e(f"s_mov_b32 s{sOFF}, 0")
        e(f"v_mov_b32 v{a}, 0")
        e("L_atf:")
        us = [vRING + 4 * k for k in range(8)]
        poll("L_p4", [f"buffer_load_dwordx4 {vr(u)}, v{vPUB + 1}, s[{rWS}:{rWS + 3}], s{sOFF} offen offset:{256 * k} sc1"
                      for k, u in enumerate(us)], us, vT0)
        for u in us:
            e(f"v_cndmask_b32 v{u}, v{u}, v{u + 1}, s[36:37]")
            e(f"v_cndmask_b32 v{u + 2}, v{u + 2}, v{u + 3}, s[36:37]")
            e(f"v_cndmask_b32 v{u}, v{u}, v{u + 2}, s[4:5]")
            e(f"v_add_f32 v{a}, v{a}, v{u}")
        e(f"s_add_u32 s{sOFF}, s{sOFF}, 2048"); e(f"s_cmp_lt_u32 s{sOFF}, 16384"); e("s_cbranch_scc1 L_atf")
        e(f"v_cvt_pk_bf16_f32 v{a}, v{a}, v{a}")
        e(f"buffer_store_short v{a}, v{vXA}, s[{rOUT}:{rOUT + 3}], 0 offen")
        e("L_atx:")
        e("s_mov_b64 exec, -1")
        if stamps:
            e("s_waitcnt lgkmcnt(0)")
            e("s_lshl_b32 s3, s2, 8"); e("s_add_u32 s3, s3, 0x8000000"); e(f"s_lshl_b32 s4, s{sW}, 3"); e("s_add_u32 s3, s3, s4")
            e(f"s_add_u32 s4, s{sWS}, s3"); e(f"s_addc_u32 s5, s{sWS + 1}, 0")
            e(f"v_mov_b32 v{vA}, s40"); e(f"v_mov_b32 v{vA + 1}, s41")
            e(f"global_store_dwordx2 v{vZ}, v[{vA}:{vA + 1}], s[4:5] offset:{8 * 25}")
            for k in range(5):
                names.append((25 + k, f"e{k}"))
            e(f"s_cmp_eq_u32 s{sW}, 4")
            e("s_cbranch_scc1 L_reduce")
    elif cs:
        for r in range(4):
            e(f"v_permlane32_swap_b32 v{vACC + r}, v{vQ + r}")
        for r in range(4):
            e(f"v_add_f32_dpp v{vACC + r}, v{vQ + r}, v{vACC + r} row_ror:8 {DPPM}")
        e(f"s_cmp_eq_u32 s{sW}, 0"); e("s_cbranch_scc1 L_pub")
        e(f"s_bitcmp1_b32 s{sW}, 0"); e("s_cbranch_scc1 L_fin")
        e("s_mov_b64 exec, 0x00ff00ff")
        e(f"ds_write_b128 v{vXA}, {vr(vACC)}")
        e("s_mov_b64 exec, 1")
        e(f"ds_write_b32 v{vXA}, v{vONE} offset:512")
        e("s_mov_b64 exec, -1")
        e(f"s_cmp_eq_u32 s{sW}, 4")
        e("s_cbranch_scc1 L_reduce")
        e("s_endpgm")
        e("L_fin:")
        e(f"s_mov_b32 s{sCNT}, 4000000")
        e("L_fs:")
        e(f"ds_read_b32 v{vT0}, v{vXA} offset:512")
        e(f"ds_read_b128 {vr(vQ)}, v{vXA}")
        e(f"s_sub_u32 s{sCNT}, s{sCNT}, 1")
        e("s_cbranch_scc1 L_fx")
        e("s_waitcnt lgkmcnt(1)")
        e(f"v_readfirstlane_b32 s3, v{vT0}")
        e("s_cmp_eq_u32 s3, 0")
        e("s_cbranch_scc1 L_fs")
        e("L_fx:")
        e("s_waitcnt lgkmcnt(0)")
        for r in range(4):
            e(f"v_add_f32 v{vACC + r}, v{vACC + r}, v{vQ + r}")
        e("L_pub:")
        e("s_nop 1")
        tag4(vA, vACC)
        e("s_mov_b64 exec, 0x00ff00ff")
    else:
        for g in range(12):
            afrag(vQ + g)
            vm.wait(O0 + g)
            mfma(vACC, slot(O0 + g), g == 0)
        tag4(vA, vACC)
        e("s_mov_b32 exec_hi, 0")
    if fq > 1:
        e(f"v_and_b32 v{vT0}, 15, v{vL}"); e(f"s_lshl_b32 s3, s{sW}, 4"); e(f"v_add_u32 v{vT0}, s3, v{vT0}")
        e(f"s_and_b32 s3, s{sS}, {fq - 1}"); e(f"s_mul_i32 s3, s3, {80 // fq}")
        e(f"v_subrev_u32 v{vT0}, s3, v{vT0}")
        e(f"v_mov_b32 v{vT1}, {80 // fq}")
        e(f"v_cmp_lt_u32 vcc, v{vT0}, v{vT1}")
        e("s_and_b64 exec, exec, vcc")
    if not at:
        e(f"buffer_store_dwordx4 {vr(vA)}, v{vPUB}, s[{rWS}:{rWS + 3}], 0 offen sc1")
        e("s_mov_b64 exec, -1")
        if not cs:
            e(f"s_cmp_eq_u32 s{sW}, 4")
            e("s_cbranch_scc1 L_reduce")
        stamp("w", "pub")

    def stamps_out(who):
        if not stamps:
            return
        base = 0 if who == "w" else 14
        e("s_waitcnt lgkmcnt(0)")
        e("s_lshl_b32 s3, s2, 8"); e("s_add_u32 s3, s3, 0x8000000")
        e(f"s_add_u32 s4, s{sWS}, s3"); e(f"s_addc_u32 s5, s{sWS + 1}, 0")
        for i in range(nst[who]):
            e(f"v_mov_b32 v{vA}, s{sST + 2 * i}"); e(f"v_mov_b32 v{vA + 1}, s{sST + 2 * i + 1}")
            e(f"global_store_dwordx2 v{vZ}, v[{vA}:{vA + 1}], s[4:5] offset:{8 * (base + i)}")
        if who == "s" and fb:
            e(f"v_mov_b32 v{vA}, s{sAUX}"); e(f"v_mov_b32 v{vA + 1}, s{sAUX + 1}")
            e(f"global_store_dwordx2 v{vZ}, v[{vA}:{vA + 1}], s[4:5] offset:{8 * 30}")
        if who == "w":
            e("s_getreg_b32 s6, hwreg(HW_REG_XCC_ID)"); e("s_getreg_b32 s7, hwreg(HW_REG_HW_ID)")
            e(f"v_mov_b32 v{vA}, s6"); e(f"v_mov_b32 v{vA + 1}, s7")
            e(f"global_store_dwordx2 v{vZ}, v[{vA}:{vA + 1}], s[4:5] offset:{8 * 31}")

    if stamps:
        e(f"s_cmp_lg_u32 s{sW}, {sw}"); e("s_cbranch_scc1 L_end")
        stamps_out("w")
    e("s_endpgm")
    if early:
        e("L_early:")
        vm.q, ni, nc = early
        cur[0] = None
        while nc < O0 or ni < N:
            if ni < N:
                vm.wait(ni - FE)
                issue(ni); ni += 1
            k = 0
            while nc < O0 and (ni == N or nc <= ni - 1 - FE) and k < 2:
                consume(nc); nc += 1; k += 1
        pair_addr()
        if stamps == 3:
            stamp("w", "hgo")
            for k in (1, 3):
                vm.wait(O0 + k)
                stamp("w", f"wa{k}")
        vm.wait(N - 1 - tailq)
        stamp("w", "woissued")
        e("s_branch L_tail")

    vD = vSC
    vE1, vE2, vP1, vP2, vP3 = 44, 45, 46, 47, 48
    vG = 8
    vS = 12
    vOP = vACC + 4
    vR1, vR2 = slot(N + 2), slot(N + 2) + 1
    vQY, vSY = slot(N), slot(N + 1)
    e("L_service:")
    if probe:
        e("s_memrealtime s[68:69]")
    e("s_nop 4")
    if prio:
        e("s_setprio 3")
    e(f"v_mov_b32 v{vZ}, 0")
    for k in range(4):
        e(f"ds_write_b32 v{vZ}, v{vZ} offset:{L_F + 4 * k}")
    e(f"ds_write_b32 v{vZ}, v{vZ} offset:{L_T + 4}")
    for o in (L_X + 512, L_X + 768, L_H):
        e(f"ds_write_b32 v{vZ}, v{vZ} offset:{o}")
    e("s_waitcnt lgkmcnt(0)")
    e("s_barrier")
    common_consts()
    e(f"s_lshl_b32 s9, s{sB}, 7")
    e(f"buffer_load_dword v{vT}, v{vZ}, s[{rWS}:{rWS + 3}], s9 offen sc1")
    if probe:
        e("s_getreg_b32 s70, hwreg(HW_REG_XCC_ID, 0, 3)"); e("s_lshl_b32 s71, s68, 3"); e("s_or_b32 s71, s71, s70")
        e("s_lshl_b32 s70, s2, 2"); e("s_add_u32 s70, s70, 1024")
        e(f"v_mov_b32 v{vT0}, s71")
        e("s_mov_b64 exec, 1")
        e(f"buffer_store_dword v{vT0}, v{vZ}, s[{rWS}:{rWS + 3}], s70 offen sc1")
        e("s_mov_b64 exec, -1")
    if fb:
        e(f"v_lshrrev_b32 v{vT0}, 4, v{vL}"); e(f"v_cmp_eq_u32 vcc, 1, v{vT0}")
        e(f"v_mov_b32 v{vT0}, 128"); e(f"v_cndmask_b32 v{vT0}, 0, v{vT0}, vcc")
        e(f"buffer_load_dword v{vPR}, v{vT0}, s[{rWS}:{rWS + 3}], 0 offen sc1")
    if at:
        e(f"s_cmp_lg_u32 s{sJB}, 0"); e("s_cbranch_scc1 L_ai")
        for k in range(20):
            e(f"v_mov_b32 v{vD + k}, 0")
        for k in range(10):
            e(f"s_mov_b32 s3, {k * ast}")
            e(f"buffer_atomic_swap_x2 {vr(vD + 2 * k, 2)}, v{vPUB}, s[{rWS}:{rWS + 3}], s3 offen sc0" + (" sc1" if asc else ""))
        e("L_ai:")
    if not cs:
        srd(rOUT, sOUT, None, 2560)
    if warm:
        srd(rV, sKV + 2, 5, 50331648)
        e(f"buffer_load_dword v{vSC}, v{vZ}, s[{rOUT}:{rOUT + 3}], 0 offen")
        e(f"buffer_load_dword v{vSC + 1}, v{vZ}, s[{rV}:{rV + 3}], 0 offen nt")
        e(f"buffer_load_dword v{vSC + 2}, v{vZ}, s[{rWO}:{rWO + 3}], 0 offen nt")
    e(f"s_mov_b32 s{sSA}, 0x0c0c0400"); e(f"s_mov_b32 s{sSB}, 0x04000c0c"); e(f"s_mov_b32 s{sMASK}, 0xffffff00")
    e(f"s_lshl_b32 s7, s{sHH}, 2"); e(f"s_add_u32 s8, s7, s{sS}")
    e(f"v_lshlrev_b32 v{vE1}, 4, v{vL}")
    e(f"v_lshrrev_b32 v{vT0}, 4, v{vL}"); e(f"v_and_b32 v{vT1}, 15, v{vL}")
    e(f"v_mul_u32_u24 v{vP1}, 768, v{vT0}"); e(f"v_lshl_add_u32 v{vP1}, v{vT1}, 4, v{vP1}")
    e(f"s_mul_i32 s3, s7, 768"); e(f"s_add_u32 s3, s3, {A1}"); e(f"v_add_u32 v{vP1}, s3, v{vP1}")
    e(f"v_lshlrev_b32 v{vP3}, 10, v{vT0}")
    e(f"s_lshl_b32 s3, s7, 10"); e(f"s_add_u32 s3, s3, {A2}"); e(f"v_add_u32 v{vP3}, s3, v{vP3}")
    if cs:
        e(f"v_mov_b32 v{vT2}, v{vT1}")
        e(f"v_lshl_add_u32 v{vP2}, v{vT2}, 4, v{vP3}")
    else:
        e(f"v_min_u32 v{vT2}, 11, v{vT1}")
        e(f"s_mul_i32 s3, s{sS}, 192"); e(f"v_lshl_add_u32 v{vP2}, v{vT2}, 4, s3"); e(f"v_add_u32 v{vP2}, v{vP2}, v{vP3}")
    e(f"v_and_b32 v{vT3}, 1, v{vT0}"); e(f"v_lshlrev_b32 v{vT3}, 1, v{vT3}")
    e(f"v_lshrrev_b32 v{vT0}, 1, v{vT0}"); e(f"v_or_b32 v{vT3}, v{vT3}, v{vT0}")
    e(f"v_lshl_add_u32 v{vMX}, v{vT1}, 2, v{vT3}")
    e(f"v_lshlrev_b32 v{vMX}, 1, v{vMX}"); e(f"v_add_u32 v{vMX}, {L_Q}, v{vMX}")
    e(f"v_lshl_add_u32 v{vLS}, v{vT2}, 2, v{vT3}")
    e(f"v_lshlrev_b32 v{vLS}, 2, v{vLS}"); e(f"v_add_u32 v{vLS}, {L_O}, v{vLS}")
    if at:
        pair_addr()
    elif cs:
        pair_addr()
        e(f"s_lshr_b32 s3, s{sJB}, 3")
        e(f"s_lshr_b32 s4, s{sJB}, 5"); e("s_mul_i32 s4, s4, 5"); e("s_bfe_u32 s5, s3, 0x10001"); e("s_mul_i32 s5, s5, 3")
        e("s_add_u32 s4, s4, s5"); e("s_and_b32 s5, s3, 1"); e("s_add_u32 s4, s4, s5"); e("s_lshl_b32 s4, s4, 6")
        e(f"s_and_b32 s5, s{sJB}, 7"); e("s_lshl_b32 s6, s5, 3"); e("s_add_u32 s4, s4, s6")
        e("s_lshl_b32 s3, s3, 13"); e("s_lshl_b32 s5, s5, 5"); e("s_add_u32 s3, s3, s5")
        e(f"s_bfe_u32 s5, s{sJB}, 0x10004"); e("s_mul_i32 s6, s5, 320"); e("s_add_u32 s6, s6, 128")
        e(f"s_and_b32 s7, s{sJB}, 15"); e(f"s_lshl_b32 s{sCNT}, s7, 2"); e(f"s_add_u32 s6, s6, s{sCNT}")
        e("s_lshl_b32 s5, s5, 14"); e("s_lshl_b32 s7, s7, 4"); e("s_add_u32 s5, s5, s7"); e("s_add_u32 s5, s5, 65536")
        e(f"s_cmp_lt_u32 s{sJB}, 64"); e("s_cselect_b32 s3, s3, s5"); e("s_cselect_b32 s4, s4, s6")
        e("s_cselect_b32 s5, 1, 0")
        e(f"s_mul_i32 s6, s{sB}, 98304"); e("s_add_u32 s3, s3, s6"); e(f"s_add_u32 s3, s3, {A3}")
        e(f"v_lshrrev_b32 v{vR1}, s5, v{vL}"); e(f"v_lshlrev_b32 v{vR1}, 8, v{vR1}")
        e(f"v_and_b32 v{vR2}, s5, v{vL}"); e(f"v_lshl_add_u32 v{vR1}, v{vR2}, 4, v{vR1}"); e(f"v_add_u32 v{vR1}, s3, v{vR1}")
        e(f"v_lshl_add_u32 v{vR2}, v{vR2}, 2, v{vT3}")
        e(f"s_mul_i32 s6, s{sB}, 640"); e("s_add_u32 s4, s4, s6")
        e(f"v_add_u32 v{vR2}, s4, v{vR2}"); e(f"v_lshlrev_b32 v{vR2}, 1, v{vR2}")
    e(f"s_mul_i32 s4, s8, 768"); e(f"s_add_u32 s4, s4, {A1}")
    e(f"s_lshl_b32 s5, s8, 10"); e(f"s_add_u32 s5, s5, {A2}")
    e(f"s_add_u32 s6, s4, {DY}"); e(f"s_add_u32 s7, s5, {DY}")
    e("s_waitcnt vmcnt(0)")
    e(f"v_and_b32 v{vT0}, 0x7f7f7f7f, v{vT}"); e(f"v_add_u32 v{vT0}, 0x01010101, v{vT0}")
    e(f"v_and_b32 v{vT}, 0x80808080, v{vT}"); e(f"v_xor_b32 v{vT}, v{vT}, v{vT0}")
    e(f"ds_write_b32 v{vZ}, v{vT} offset:{L_T}")
    if at:
        e(f"s_cmp_lg_u32 s{sJB}, 0"); e("s_cbranch_scc1 L_aj")
        e("s_mov_b64 exec, 1")
        e(f"buffer_store_dword v{vT}, v{vZ}, s[{rWS}:{rWS + 3}], s9 offen offset:256 sc1")
        e("s_mov_b64 exec, -1")
        e("L_aj:")
    if fb:
        e(f"v_and_b32 v{vT0}, 0x7f7f7f7f, v{vPR}"); e(f"v_add_u32 v{vT0}, 0x01010101, v{vT0}")
        e(f"v_and_b32 v{vPR}, 0x80808080, v{vPR}"); e(f"v_xor_b32 v{vPR}, v{vPR}, v{vT0}")
        e(f"v_and_b32 v{vPR}, s{sMASK}, v{vPR}")
        if xs:
            e(f"v_and_b32 v{vTX}, 0xfffff000, v{vPR}")
        if xd:
            e(f"v_and_b32 v{vTX}, 0xfffff000, v{vPR}")
            e("s_mov_b32 exec_lo, 0")
            e(f"v_mov_b32 v{vPR}, v{vTX}")
            e("s_mov_b32 exec_lo, -1")
    if pre:
        for r in range(4):
            e(f"v_not_b32 v{vA + r}, v{vT}")
        e(f"buffer_store_dwordx4 {vr(vA)}, v{vE1}, s[{rWS}:{rWS + 3}], s5 offen")
        e("s_mov_b32 exec_hi, 0xffff")
        e(f"buffer_store_dwordx4 {vr(vA)}, v{vE1}, s[{rWS}:{rWS + 3}], s4 offen")
        e("s_mov_b32 exec_hi, -1")
    if codepf:
        pass
    ldsspin("L_f1", L_F, vT0)
    stamp("s", "s.f1")
    for p in range(8):
        e(f"ds_read_b128 {vr(vD + 4 * p)}, v{vE1} offset:{p * 768}")
    for p in range(1, 8):
        e(f"s_waitcnt lgkmcnt({7 - p})")
        for r in range(4):
            e(f"v_add_f32 v{vD + r}, v{vD + r}, v{vD + 4 * p + r}")
    def ypub(n):
        if n == 1 or lazy:
            publish(vQY, vE1, 4, 0, 0, 1)
        if n == 2 or (lazy and n > 2):
            publish(vSY, vZ, 5, 768, 1, 1)
        if n == 3:
            publish(vOP, vE1, 5, 0, 0, 1)

    tag4(vQY, vD)
    publish(vQY, vE1, 4, 0, 0, 0 if xp else 1)
    stamp("s", "s.qpub")
    if qd:
        e(f"s_mov_b32 s{sCNT}, 4000000")
        e("L_qd:")
        e(f"ds_read_b32 v{vT0}, v{vZ} offset:{L_F + 12}")
        e(f"s_sub_u32 s{sCNT}, s{sCNT}, 1")
        e("s_cbranch_scc1 L_qdx")
        e("s_waitcnt lgkmcnt(0)")
        e(f"v_readfirstlane_b32 s3, v{vT0}")
        e(f"s_cmp_lt_u32 s3, {qd}")
        e("s_cbranch_scc1 L_qd")
        e("L_qdx:")
    l1 = [f"buffer_load_dwordx4 {vr(vD + 4 * t)}, v{vP1}, s[{rWS}:{rWS + 3}], s{sPO} offen offset:{256 * t} sc1" for t in range(3)]
    if op & 1:
        mpoll("L_p1", l1, [vD + 4 * t for t in range(3)], vT0)
    else:
        poll("L_p1", l1, [vD + 4 * t for t in range(3)], vT0, lambda: ypub(1))
    if xp and not lazy:
        ypub(1)
    stamp("s", "s.qpoll")
    for t in range(3):
        treduce(vD + 4 * t)
    for t in range(3):
        e(f"v_cvt_pk_bf16_f32 v{vD + 4 * t}, v{vD + 4 * t}, v{vD + 4 * t}")
    for t in range(3):
        e(f"ds_write_b16 v{vMX}, v{vD + 4 * t} offset:{128 * t}")
    if qf:
        e(f"ds_write_b32 v{vZ}, v{vONE} offset:{L_T + 4}")
    else:
        e("s_waitcnt lgkmcnt(0)")
        e("s_barrier")
    if at:
        e(f"global_load_dwordx4 {vr(vD + 16)}, v{vE1}, s[{sKV + 2}:{sKV + 3}]")
        e(f"global_load_dwordx4 {vr(vD + 20)}, v{vE1}, s[{sWW + 2}:{sWW + 3}]")
    for g in range(12):
        e(f"s_mov_b32 s{sOFF}, {(g // 4) * 5120}")
        e(f"buffer_load_dwordx4 {vr(slot(O0 + g))}, v{vWO}, s[{rWO}:{rWO + 3}], s{sOFF} offen offset:{(g % 4) * 1280} {fl}")
    if at:
        e("s_waitcnt vmcnt(12)")
        for k in range(8):
            e(f"v_and_b32 v{vD + 16 + k}, 0x7fff7fff, v{vD + 16 + k}")
        for m in (vD + 16, vD + 20):
            e(f"v_pk_max_u16 v{m}, v{m}, v{m + 1}"); e(f"v_pk_max_u16 v{m + 2}, v{m + 2}, v{m + 3}")
            e(f"v_pk_max_u16 v{m}, v{m}, v{m + 2}")
            e(f"v_lshrrev_b32 v{m + 1}, 16, v{m}"); e(f"v_and_b32 v{m}, 0xffff, v{m}"); e(f"v_max_u32 v{m}, v{m}, v{m + 1}")
            for d in ("quad_perm:[1,0,3,2]", "quad_perm:[2,3,0,1]", "row_half_mirror", "row_mirror"):
                e(f"v_max_u32_dpp v{m}, v{m}, v{m} {d} {DPPM}")
            allrows("v_max_u32", m, m + 1)
            e(f"v_lshrrev_b32 v{m}, 7, v{m}")
        e(f"v_add_u32 v{vT0}, v{vD + 16}, v{vD + 20}")
        e(f"v_sub_u32 v{vT0}, {SB + 254}, v{vT0}")
        e(f"v_min_i32 v{vT0}, 120, v{vT0}"); e(f"v_max_i32 v{vT0}, -100, v{vT0}")
        e(f"v_mov_b32 v{vFX}, 0")
        e(f"v_add_u32 v{vFX + 1}, 1023, v{vT0}"); e(f"v_lshlrev_b32 v{vFX + 1}, 20, v{vFX + 1}")
        e(f"v_sub_u32 v{vFX + 2}, 127, v{vT0}"); e(f"v_lshlrev_b32 v{vFX + 2}, 23, v{vFX + 2}")
        e(f"v_mov_b32 v{vFX + 3}, 0x2040000")
        e(f"ds_write_b128 v{vZ}, {vr(vFX)} offset:{L_S}")
        e(f"s_mov_b32 s{sCNT}, 400000")
        e("L_ak:")
        e(f"buffer_load_dword v{vT0}, v{vZ}, s[{rWS}:{rWS + 3}], s9 offen offset:256 sc1")
        e(f"s_sub_u32 s{sCNT}, s{sCNT}, 1")
        e("s_cbranch_scc1 L_akx")
        e("s_waitcnt vmcnt(0)")
        e(f"v_cmp_ne_u32 vcc, v{vT0}, v{vT}")
        e("s_cbranch_vccnz L_ak")
        e("L_akx:")
        e("s_waitcnt vmcnt(0)")
    if fb:
        e("s_and_b32 s3, s2, 7"); e("s_mul_i32 s3, s3, 4352"); e(f"s_add_u32 s3, s3, {A4}")
        e(f"s_lshr_b32 s{sK}, s2, 3")
        e(f"v_and_b32 v{vT0}, 31, v{vL}"); e(f"v_lshl_add_u32 v{vE2}, v{vT0}, 2, s3")
        e(f"s_lshl_b32 s{sSL}, s{sK}, 2"); e(f"s_add_u32 s{sSL}, s{sSL}, s3")
        if xd:
            e(f"s_add_u32 s{sDL}, s3, 128"); e(f"s_add_u32 s{sXL}, s3, {16 * 4352}")
            e(f"s_and_b32 s{sD}, s2, 7"); e(f"s_cmp_eq_u32 s{sD}, s{sK}"); e(f"s_cselect_b32 s{sLEAD}, 0xff, 0")
            e(f"v_mov_b32 v{vLIM}, 64")
            e("s_mov_b32 exec_lo, 0")
            e(f"v_mov_b32 v{vLIM}, 0"); e(f"v_mov_b32 v{vE2}, s{sDL}")
            e("s_mov_b32 exec_hi, 0x10000")
            e(f"v_mov_b32 v{vLIM}, 4096")
            e(f"s_mov_b32 exec_hi, s{sLEAD}")
            e(f"v_mov_b32 v{vLIM}, 4096")
            if xt != 1:
                e(f"v_mul_u32_u24 v{vE2}, 4352, v{vT0}"); e(f"v_add_u32 v{vE2}, {A4 + 16 * 4352}, v{vE2}")
            e("s_mov_b64 exec, -1")
        if xs:
            e(f"s_mul_i32 s{sPUB}, s{sK}, {xdn}"); e(f"s_add_u32 s{sPUB}, s{sPUB}, {xn}")
            e(f"s_cmp_lt_u32 s{sK}, {xs}"); e(f"s_cselect_b32 s{sPUB}, s{sPUB}, 0x7fffffff")
            e(f"s_mov_b32 s{sRD}, {xn + xdl}"); e(f"s_mov_b32 s{sXO}, {AX}")
            e(f"s_mov_b32 s{sBI}, 0"); e(f"s_mov_b32 s{sINT}, 0")
            e(f"s_and_b32 s{sXW}, s2, 63"); e(f"s_lshl_b32 s{sXW}, s{sXW}, 8"); e(f"s_add_u32 s{sXW}, s{sXW}, {AX}")
            e(f"v_lshlrev_b32 v{vLIM}, 8, v{vL}")
        if tb:
            e("s_getreg_b32 s3, hwreg(HW_REG_XCC_ID, 0, 1)"); e("s_cmp_eq_u32 s3, 1")
            e(f"s_cselect_b32 s{sBI}, {tb - te}, {-tb - te}")
        e(f"s_mov_b32 s{sN}, 0")
        e(f"s_and_b32 s3, s{sK}, {(1 << IL) - 1}"); e(f"s_add_u32 s{sTH}, s3, {TH0}")
        e(f"s_mov_b32 s{sCc}, 0"); e(f"s_mov_b64 s[{sAUX}:{sAUX + 1}], 0")
        fbspin("L_f2", 1, vD, vE2)
    else:
        ldsspin("L_f2", L_F + 4, vT0)
    stamp("s", "s.f2")
    e(f"ds_read_b128 {vr(vS)}, v{vZ} offset:{L_ST}")
    e(f"ds_read_b128 {vr(vS + 4)}, v{vZ} offset:{L_ST + 16}")
    e("s_waitcnt lgkmcnt(0)")
    e(f"v_max_f32 v{vT0}, v{vS}, v{vS + 2}"); e(f"v_max3_f32 v{vT0}, v{vT0}, v{vS + 4}, v{vS + 6}")
    for w in range(4):
        e(f"v_sub_f32 v{vG + w}, v{vS + 2 * w}, v{vT0}")
    for w in range(4):
        e(f"v_exp_f32 v{vG + w}, v{vG + w}")
    e(f"v_mul_f32 v{vD + 2}, v{vG}, v{vS + 1}")
    for w in range(1, 4):
        e(f"v_fma_f32 v{vD + 2}, v{vG + w}, v{vS + 2 * w + 1}, v{vD + 2}")
    e(f"v_and_b32 v{vD}, s{sMASK}, v{vT0}"); e(f"v_sub_f32 v{vD + 1}, v{vT0}, v{vD}")
    if xc:
        e(f"s_getreg_b32 s{sMIS}, hwreg(HW_REG_XCC_ID, 0, 16)"); e(f"s_lshl_b32 s{sMIS}, s{sMIS}, 8")
        e(f"v_mov_b32 v{vD + 3}, s{sMIS}")
    else:
        e(f"v_mov_b32 v{vD + 3}, 0")
    tag4(vSY, vD)
    publish(vSY, vZ, 5, 768, 1, 0 if xp else 1)
    if fb and dp:
        fbspin("L_f2b", None, vD + 4, vE2)
        e("s_waitcnt lgkmcnt(0)")
    poll("L_p2", [f"buffer_load_dwordx4 {vr(vD)}, v{vP3}, s[{rWS}:{rWS + 3}], s{sPO} offen offset:768 sc1"], [vD], vT0,
         lambda: ypub(2))
    if xp and not lazy:
        ypub(2)
    stamp("s", "s.stpoll")
    if xc:
        e(f"v_cmp_ne_u32 vcc, s{sMIS}, v{vD + 3}")
        e(f"s_or_b32 s{sMIS}, vcc_lo, vcc_hi")
    e(f"v_add_f32 v{vD}, v{vD}, v{vD + 1}")
    e(f"v_mov_b32 v{vD + 1}, v{vD}")
    allrows("v_max_f32", vD + 1, vT0)
    e(f"v_sub_f32 v{vD}, v{vD}, v{vD + 1}"); e(f"v_exp_f32 v{vD}, v{vD}")
    e(f"v_mul_f32 v{vD}, v{vD}, v{vD + 2}")
    allrows("v_add_f32", vD, vT0)
    e(f"v_rcp_f32 v{vD}, v{vD}")
    for w in range(4):
        e(f"v_sub_f32 v{vG + w}, v{vS + 2 * w}, v{vD + 1}")
    for w in range(4):
        e(f"v_exp_f32 v{vG + w}, v{vG + w}")
    for w in range(4):
        e(f"v_mul_f32 v{vG + w}, v{vG + w}, v{vD}")
    if RT:
        fbspin("L_f3a", None, vD + 4, vE2)
        e(f"s_mov_b32 s{sCNT}, 4000000")
        e("L_f3b:")
        e(f"ds_read_b32 v{vT0}, v{vZ} offset:{L_F + 12}")
        e(f"s_sub_u32 s{sCNT}, s{sCNT}, 1")
        e("s_cbranch_scc1 L_f3bx")
        e("s_waitcnt lgkmcnt(0)")
        e(f"v_readfirstlane_b32 s3, v{vT0}")
        e(f"s_sub_i32 s3, s3, s{sCc}")
        e(f"s_cmp_lt_i32 s3, {PF}")
        e("s_cbranch_scc1 L_f3b")
        e("L_f3bx:")
        e(f"v_and_b32 v{vT0}, s{sMASK}, v{vT}")
        e(f"buffer_load_dword v{vT1}, v{vE2}, s[{rWS}:{rWS + 3}], 0 offen offset:128 sc1")
        e("s_mov_b64 exec, 1")
        e(f"buffer_store_dword v{vT0}, v{vZ}, s[{rWS}:{rWS + 3}], s{sSL} offen offset:128")
        e("s_mov_b64 exec, -1")
        e("s_waitcnt vmcnt(1)")
        e(f"v_cmp_eq_u32 vcc, v{vT1}, v{vPR}")
        e("s_bcnt1_i32_b32 s3, vcc_lo")
        e(f"s_cmp_ge_u32 s3, {RT}"); e("s_cselect_b32 s3, 2, 1"); e(f"v_mov_b32 v{vONE}, s3")
        if stamps:
            e(f"s_lshl_b64 s[{sAUX}:{sAUX + 1}], s[{sAUX}:{sAUX + 1}], 5")
            e(f"s_and_b32 s{sAUX + 1}, s{sAUX + 1}, 0xfffffff")
            e("s_bcnt1_i32_b32 s3, vcc_lo"); e("s_min_u32 s3, s3, 31"); e(f"s_or_b32 s{sAUX}, s{sAUX}, s3")
        ldsspin("L_f3", L_F + 8, vT0)
    elif fb and not dp:
        fbspin("L_f3", 2, vD + 4, vE2)
    else:
        ldsspin("L_f3", L_F + 8, vT0)
    stamp("s", "s.f3")
    for p in range(8):
        e(f"ds_read_b128 {vr(vD + 4 * p)}, v{vE1} offset:{p * 768}")
    for w in range(4):
        e(f"s_waitcnt lgkmcnt({6 - 2 * w})")
        for r in range(4):
            e(f"v_add_f32 v{vD + 8 * w + r}, v{vD + 8 * w + r}, v{vD + 8 * w + 4 + r}")
        for r in range(4):
            if w == 0:
                e(f"v_mul_f32 v{vD + r}, v{vG}, v{vD + r}")
            else:
                e(f"v_fma_f32 v{vD + r}, v{vG + w}, v{vD + 8 * w + r}, v{vD + r}")
    tag4(vOP, vD)
    publish(vOP, vE1, 5, 0, 0, 0 if xp else 1)
    if xc:
        e(f"s_cmp_eq_u32 s{sMIS}, 0"); e("s_cbranch_scc1 L_same")
        ypub(3)
        e("L_same:")
    stamp("s", "s.opub")
    nt_ = 3 if cs else 1
    if FL and not RT:
        e(f"s_cmp_ge_i32 s{sCc}, {cth}"); e("s_cselect_b32 s3, 2, 1"); e(f"v_mov_b32 v{vONE}, s3")
    l3 = [f"buffer_load_dwordx4 {vr(vD + 4 * t)}, v{vP2}, s[{rWS}:{rWS + 3}], s{sPO} offen offset:{256 * t} sc1" for t in range(nt_)]
    h3 = [f"ds_write_b32 v{vZ}, v{vONE} offset:{L_H}"] if H < 12 else []
    if op & 4:
        mpoll("L_p3", l3, [vD + 4 * t for t in range(nt_)], vT0, h3)
    else:
        poll("L_p3", l3 + h3, [vD + 4 * t for t in range(nt_)], vT0, lambda: ypub(3))
    stamp("s", "s.opoll")
    for t in range(nt_):
        treduce(vD + 4 * t)
    for t in range(nt_):
        e(f"v_cvt_pk_bf16_f32 v{vD + 4 * t}, v{vD + 4 * t}, v{vD + 4 * t}")
    for t in range(nt_):
        e(f"ds_write_b32 v{vLS}, v{vD + 4 * t} offset:{256 * t}")
    e("s_waitcnt lgkmcnt(0)")
    if stamps:
        for i in range(nst["s"]):
            e(f"v_mov_b32 v{vSC + 2 * i}, s{sST + 2 * i}"); e(f"v_mov_b32 v{vSC + 2 * i + 1}, s{sST + 2 * i + 1}")
    e("s_branch L_tail")
    e("L_reduce:")
    e("s_nop 4")
    if xp and not xc:
        publish(vOP, vE1, 5, 0, 0, 1)
    if stamps:
        for i in range(nst["s"]):
            e(f"v_readfirstlane_b32 s{sST + 2 * i}, v{vSC + 2 * i}"); e(f"v_readfirstlane_b32 s{sST + 2 * i + 1}, v{vSC + 2 * i + 1}")
    stamp("s", "s.pub")
    if at:
        pass
    elif cs:
        e(f"s_cmp_ge_u32 s{sJB}, 96")
        e("s_cbranch_scc1 L_sdone")
        if pp:
            ppoll("L_p4", lambda d: f"buffer_load_dwordx4 {vr(d)}, v{vR1}, s[{rWS}:{rWS + 3}], 0 offen sc1",
                  [slot(O0 + k) for k in range(pp)], vD, vT0)
        else:
            poll("L_p4", [f"buffer_load_dwordx4 {vr(vD)}, v{vR1}, s[{rWS}:{rWS + 3}], 0 offen sc1"], [vD], vT0)
        stamp("s", "s.fpoll")
        treduce(vD)
        e(f"v_add_f32_dpp v{vD}, v{vD}, v{vD} quad_perm:[2,3,0,1] {DPPM}")
        e(f"v_add_f32_dpp v{vD}, v{vD}, v{vD} row_ror:4 {DPPM}")
        e(f"v_add_f32_dpp v{vD}, v{vD}, v{vD} row_ror:8 {DPPM}")
        e("s_mov_b32 s3, 0x00030003")
        e(f"s_cmp_lt_u32 s{sJB}, 64")
        e("s_cbranch_scc1 L_r8")
        e("s_mov_b32 s3, 0x00010001")
        e(f"v_add_f32_dpp v{vD}, v{vD}, v{vD} quad_perm:[1,0,3,2] {DPPM}")
        e("L_r8:")
        e(f"v_cvt_pk_bf16_f32 v{vD}, v{vD}, v{vD}")
        e("s_mov_b32 exec_lo, s3"); e("s_mov_b32 exec_hi, s3")
        e(f"buffer_store_short v{vD}, v{vR2}, s[{rOUT}:{rOUT + 3}], 0 offen")
    else:
        e(f"s_cmp_ge_u32 s{sJB}, 80")
        e("s_cbranch_scc1 L_sdone")
        e(f"v_lshrrev_b32 v{vT0}, 1, v{vL}"); e(f"v_mul_u32_u24 v{vP1}, {2560 * fq}, v{vT0}")
        if fq > 1:
            e(f"s_mul_i32 s3, s{sJB}, {(1 << 16) // (80 // fq) + 1}"); e("s_lshr_b32 s3, s3, 16"); e("s_mul_i32 s3, s3, 2560")
            e(f"v_add_u32 v{vP1}, s3, v{vP1}")
        e(f"v_and_b32 v{vT1}, 1, v{vL}"); e(f"v_lshl_add_u32 v{vP1}, v{vT1}, 4, v{vP1}")
        e(f"s_mul_i32 s3, s{sB}, {128 * 2560}"); e(f"s_lshl_b32 s4, s{sJB}, 5"); e("s_add_u32 s3, s3, s4"); e(f"s_add_u32 s3, s3, {A3}")
        e(f"v_add_u32 v{vP1}, s3, v{vP1}")
        for k in range(1, 4):
            e(f"s_mov_b32 s{4 + k}, {k * 32 * 2560 * fq}")
        e(f"v_bfe_u32 v{vT0}, v{vL}, 4, 1"); e(f"v_lshlrev_b32 v{vT0}, 1, v{vT0}")
        e(f"v_lshrrev_b32 v{vT2}, 5, v{vL}"); e(f"v_or_b32 v{vT0}, v{vT0}, v{vT2}")
        e(f"v_lshl_add_u32 v{vT0}, v{vT1}, 2, v{vT0}")
        e(f"s_mul_i32 s3, s{sB}, 640"); e(f"s_lshl_b32 s4, s{sJB}, 3"); e("s_add_u32 s3, s3, s4")
        e(f"v_add_u32 v{vP2}, s3, v{vT0}"); e(f"v_lshlrev_b32 v{vP2}, 1, v{vP2}")
        poll("L_p4", [f"buffer_load_dwordx4 {vr(vD + 4 * k)}, v{vP1}, s[{rWS}:{rWS + 3}], {'0' if k == 0 else 's' + str(4 + k)} offen sc1" for k in range(4 // fq)],
             [vD + 4 * k for k in range(4 // fq)], vT0)
        stamp("s", "s.fpoll")
        for r in range(4):
            e(f"v_add_f32 v{vD + r}, v{vD + r}, v{vD + 4 + r}")
            e(f"v_add_f32 v{vD + 8 + r}, v{vD + 8 + r}, v{vD + 12 + r}")
        for r in range(4):
            e(f"v_add_f32 v{vD + r}, v{vD + r}, v{vD + 8 + r}")
        treduce(vD)
        e(f"v_add_f32_dpp v{vD}, v{vD}, v{vD} quad_perm:[2,3,0,1] {DPPM}")
        e(f"v_add_f32_dpp v{vD}, v{vD}, v{vD} row_ror:4 {DPPM}")
        e(f"v_add_f32_dpp v{vD}, v{vD}, v{vD} row_ror:8 {DPPM}")
        e(f"v_cvt_pk_bf16_f32 v{vD}, v{vD}, v{vD}")
        e("s_mov_b32 exec_lo, 0x00030003"); e("s_mov_b32 exec_hi, 0x00030003")
        e(f"buffer_store_short v{vD}, v{vP2}, s[{rOUT}:{rOUT + 3}], 0 offen")
    if not at:
        e(f"s_cmp_lg_u32 s{sJB}, 0")
        e("s_cbranch_scc1 L_pb" if probe >= 6 else "s_cbranch_scc1 L_sdone")
        e("s_mov_b64 exec, 1")
        e(f"buffer_store_dword v{vT}, v{vZ}, s[{rWS}:{rWS + 3}], s9 offen sc1")
    if probe:
        e("L_pb:")
        e("s_memrealtime s[72:73]")
        e("s_mov_b64 exec, -1")
        if probe < 6:
            e(f"s_cmp_lg_u32 s{sB}, 0"); e("s_cbranch_scc1 L_sdone")
        e(f"v_lshlrev_b32 v{vT0}, 4, v{vL}")
        e(f"buffer_load_dwordx4 {vr(vA)}, v{vT0}, s[{rWS}:{rWS + 3}], 0 offen offset:1024 sc1")
        e("s_waitcnt vmcnt(0) lgkmcnt(0)")
        e("s_lshl_b32 s74, s68, 3")
        e("s_mov_b32 s75, 0x7fffffff"); e("s_mov_b32 s76, 0x80000000"); e("s_mov_b32 s77, 0"); e("s_mov_b32 s78, 0"); e("s_mov_b32 s79, 0")
        e("L_pr:")
        for r in range(4):
            e(f"v_readlane_b32 s80, v{vA + r}, s79")
            e("s_nop 3")
            e("s_and_b32 s81, s80, 7"); e("s_andn2_b32 s80, s80, 7"); e("s_sub_u32 s80, s80, s74"); e("s_ashr_i32 s80, s80, 3")
            e("s_min_i32 s75, s75, s80"); e("s_max_i32 s76, s76, s80"); e("s_add_i32 s77, s77, s80")
            e("s_sub_i32 s82, 0, s80"); e("s_cmp_ge_u32 s81, 4"); e("s_cselect_b32 s80, s80, s82"); e("s_add_i32 s78, s78, s80")
        e("s_add_u32 s79, s79, 1"); e("s_cmp_lt_u32 s79, 64"); e("s_cbranch_scc1 L_pr")
        if probe == 1:
            e("s_ashr_i32 s77, s77, 8"); e("s_sub_i32 s80, s76, s77")
        elif probe == 2:
            e("s_ashr_i32 s78, s78, 7"); e("s_add_i32 s80, s78, 100")
        elif probe == 7:
            e("s_ashr_i32 s77, s77, 8")
            e("s_sub_u32 s80, s72, s68"); e("s_sub_i32 s80, s80, s77"); e("s_sub_i32 s80, s80, 3200")
        elif probe in (3, 6):
            e("s_sub_u32 s80, s72, s68"); e("s_sub_i32 s80, s80, s75"); e("s_sub_i32 s80, s80, 3200")
        elif probe == 4:
            e("s_sub_u32 s80, s72, s68"); e("s_sub_i32 s80, s80, s76"); e("s_sub_i32 s80, s80, 3200")
        else:
            e("s_mov_b32 s80, 0")
        e(f"s_mul_i32 s80, s80, {amp}"); e("s_max_i32 s80, s80, 0"); e("s_min_i32 s80, s80, 8000"); e("s_add_u32 s80, s80, 1000")
        e("L_ps:")
        e("s_memrealtime s[82:83]"); e("s_waitcnt lgkmcnt(0)"); e("s_sub_u32 s82, s82, s72")
        e("s_cmp_lt_u32 s82, s80"); e("s_cbranch_scc1 L_ps")
    e("L_sdone:")
    e("s_mov_b64 exec, -1")
    if stamps:
        e("s_waitcnt vmcnt(0)")
    stamp("s", "s.end")
    stamps_out("s")
    e("L_end:")
    e("s_endpgm")

    body, nops = resolve(L)
    nv = vRING + 4 * R
    out = [HDR.rstrip("\n"),
           f"; @launch grid=(256,1,1) block=(320,1,1) lds={LDS}"]
    if stamps:
        out.append("; @stamps " + ",".join(f"{i}={n}" for i, n in names))
    out += ['.amdgcn_target "amdgcn-amd-amdhsa--gfx950"', ".text", f".globl {KN}", ".p2align 8",
            f".type {KN},@function", f"{KN}:"]
    out += [("" if t.endswith(":") else "    ") + t for t in body]
    out += ['.section .rodata,"a"', ".p2align 6", f".amdhsa_kernel {KN}",
            f"  .amdhsa_next_free_vgpr {nv}", "  .amdhsa_next_free_sgpr 102",
            f"  .amdhsa_accum_offset {(nv + 3) // 4 * 4}",
            "  .amdhsa_group_segment_fixed_size 0", "  .amdhsa_kernarg_size 104",
            "  .amdhsa_user_sgpr_count 2", "  .amdhsa_user_sgpr_kernarg_segment_ptr 1",
            "  .amdhsa_system_sgpr_workgroup_id_x 1", ".end_amdhsa_kernel"]
    return "\n".join(out) + "\n", nops


if __name__ == "__main__":
    outp = sys.argv[1]
    kw = {}
    for a in sys.argv[2:]:
        k, v = a.split("=")
        kw[k] = int(v) if v.lstrip("-").isdigit() else v.replace("+", " ")
    s, nops = gen(**kw)
    open(outp, "w").write(s)
    print(outp, "lines", s.count("\n"), "nop states", nops)
```

```python
import sys, math, struct
from asmlib import resolve, VM

KN = "concat_heads__mha_block_cached__gqa_block_cached__decode_kernel"
HDR = open("concat_heads__mha_block_cached__gqa_block_cached__decode.s.ref").read().split("; Override launch")[0]

A1 = 4096
A2 = A1 + 256 * 768
A3 = A2 + 256 * 1024
A4 = A3 + 256 * 2560
AY = A4 + 256 * 4352
DY = AY - A1
WS_USED = AY + A3 - A1
AA = (WS_USED + 4095) // 4096 * 4096
L_P = 0
L_Q = 6144
L_T = 6528
L_F = 6544
L_ST = 6560
L_O = 6592
L_X = 7360
L_H = L_X + 516
L_S = L_X + 528
LDS = 8448

sS, sHH, sB, sH, sW, sJB = 10, 11, 12, 13, 14, 15
sX, sMASK, sCNT = 16, 18, 19
sKV, sWW, sOUT, sWS = 20, 24, 28, 30
rX, rWQ, rK, rV, rWO, rWS, rOUT = 32, 36, 40, 44, 48, 52, 56
sOFF, sC = 60, 61
sSEL = 62
sSA, sSB = 66, 67
sROT = 100
sPO = 101
rDBG = 96
sLN = 96
sWM = 97
sRH = 98
sMIS = 99
sST = 68

vL, vKV, vWQ, vWO = 0, 1, 2, 3
vM = 4
vQ = 8
vACC = 20
vA = 32
vT = 36
vPW, vQR, vOR, vPUB = 37, 38, 39, 40
vMX, vLS, vNM = 41, 42, 43
vX = 44
vT0, vT1, vT2, vT3 = 49, 50, 51, 52
vZ, vONE, vPR = 53, 54, 55
vSC = 56
vRING = 88


def f2u(x):
    return struct.unpack("<I", struct.pack("<f", x))[0]


def gen(ry=0, ofl='', x6=0, T6=252, H6=0, FW6=6, EH=99, FE=14, at=0, ast=34816, acs=4352, asc=0, SB=34, SM=13, nraw=0, te=0, xo=0, FX=0, FX2=0, XT=3, GX=0, RT=0, PF=250, probe=0, amp=10, qd=0, op=0, osl=0, mp=0, xf=0, FL=0, cth=1, xs=0, xn=2, xdn=4, xdl=2, xa=1, xi=0, xsh=4, BM=20, tb=0, ns='', pp=0, pth=8, dry=0, cs=0, sw=0, xc=0, H=99, FW=12, dp=0, fq=1, nost=0, lazy=0, xt=0, xd=0, xg=1, xb=18, XM=64, F=6, F0=6, F2=0, G2=99, rot=0, R=27, fl="nt", stamps=0, prio=1, codepf=0, pk=2, warm=0, qf=0, fb=0, FH=8, FH2=0, G3=99, TH0=48, THL=232, ksh=1, CM=4, bias=1, cb=0, xp=0, N0=32, IL=4, pre=0, nopoll=0, skip=0, dummy=0):
    L = []
    e = L.append
    names = []
    nst = {"w": 0, "s": 0}

    def stamp(who, name):
        if not stamps or name in ns.split() or (stamps == 2 and name in ("woissued", "oready", "pub")):
            return
        for j, nm in names:
            if nm == name:
                j -= 0 if who == "w" else 14
                e(f"s_memrealtime s[{sST + 2 * j}:{sST + 2 * j + 1}]")
                return
        i = nst[who]
        assert i < 14
        nst[who] += 1
        e(f"s_memrealtime s[{sST + 2 * i}:{sST + 2 * i + 1}]")
        names.append((i + (0 if who == "w" else 14), name))

    def srd(d, base, off, size):
        if off is None:
            e(f"s_mov_b32 s{d}, s{base}"); e(f"s_mov_b32 s{d + 1}, s{base + 1}")
            e(f"s_mov_b32 s{d + 2}, {size}")
        else:
            e(f"s_add_u32 s{d}, s{base}, s{off}"); e(f"s_addc_u32 s{d + 1}, s{base + 1}, 0")
            e(f"s_sub_u32 s{d + 2}, {size}, s{off}")
        e(f"s_mov_b32 s{d + 3}, 0x20000")

    def slot(i):
        return vRING + 4 * (i % R)

    def vr(a, n=4):
        return f"v[{a}:{a + n - 1}]"

    DPPM = "row_mask:0xf bank_mask:0xf"

    def allrows(op, v, t):
        e(f"v_mov_b32 v{t}, v{v}")
        e(f"v_permlane16_swap_b32 v{v}, v{t}")
        e(f"{op} v{v}, v{v}, v{t}")
        e(f"v_mov_b32 v{t}, v{v}")
        e(f"v_permlane32_swap_b32 v{v}, v{t}")
        e(f"{op} v{v}, v{v}, v{t}")

    def treduce(d):
        e(f"v_permlane32_swap_b32 v{d}, v{d + 1}")
        e(f"v_permlane32_swap_b32 v{d + 2}, v{d + 3}")
        e(f"v_add_f32 v{d}, v{d}, v{d + 1}")
        e(f"v_add_f32 v{d + 2}, v{d + 2}, v{d + 3}")
        e(f"v_permlane16_swap_b32 v{d}, v{d + 2}")
        e(f"v_add_f32 v{d}, v{d}, v{d + 2}")

    def tag4(dst, src):
        for r in range(4):
            e(f"v_perm_b32 v{dst + r}, v{src + r}, v{vT}, s{sSEL + r}")

    def poll(label, loads, units, tmp, dual=None):
        e(f"s_mov_b32 s{sCNT}, {1 if nopoll >> (4 - int(label[-1])) & 1 else 400000}")
        if dual:
            e(f"s_mov_b32 s{sPO}, {0 if xp else DY}")
        e(f"{label}:")
        e("s_nop 1")
        for t in loads:
            if not skip >> (4 - int(label[-1])) & 1:
                e(t)
        e(f"s_sub_u32 s{sCNT}, s{sCNT}, 1")
        if dual and xp:
            e(f"s_cmp_lg_u32 s{sCNT}, {400000 - N0}"); e(f"s_cbranch_scc1 {label}_y")
            dual()
            e(f"{label}_y:")
            e(f"s_cmp_lt_u32 s{sCNT}, {400000 - N0}"); e(f"s_cselect_b32 s3, {DY}, 0"); e(f"s_xor_b32 s{sPO}, s{sPO}, s3")
        e("s_waitcnt vmcnt(0)")
        for k, u in enumerate(units):
            e(f"v_perm_b32 v{tmp}, v{u + 1}, v{u}, s{sSA}")
            e(f"v_perm_b32 v{tmp + 1}, v{u + 3}, v{u + 2}, s{sSB}")
            e(f"v_or_b32 v{tmp}, v{tmp}, v{tmp + 1}")
            if k == 0:
                e(f"v_xor_b32 v{tmp + 2}, v{tmp}, v{vT}")
            else:
                e(f"v_xor_b32 v{tmp}, v{tmp}, v{vT}")
                e(f"v_or_b32 v{tmp + 2}, v{tmp + 2}, v{tmp}")
        e(f"v_cmp_ne_u32 vcc, 0, v{tmp + 2}")
        e(f"s_cmp_eq_u32 s{sCNT}, 0")
        e(f"s_cbranch_scc1 {label}_x")
        e(f"s_cbranch_vccnz {label}")
        e(f"{label}_x:")
        for u in units:
            for r in range(4):
                e(f"v_and_b32 v{u + r}, s{sMASK}, v{u + r}")

    def ppoll(label, load, bufs, res, tmp):
        def check(src):
            if src != res:
                for r in range(4):
                    e(f"v_mov_b32 v{res + r}, v{src + r}")
            e(f"v_perm_b32 v{tmp}, v{src + 1}, v{src}, s{sSA}")
            e(f"v_perm_b32 v{tmp + 1}, v{src + 3}, v{src + 2}, s{sSB}")
            e(f"v_or_b32 v{tmp}, v{tmp}, v{tmp + 1}")
            e(f"v_cmp_ne_u32 vcc, v{tmp}, v{vT}")
        n = len(bufs)
        e(f"s_mov_b32 s{sCNT}, 400000")
        e(f"{label}:")
        e(load(res))
        e("s_waitcnt vmcnt(0)")
        check(res)
        e(f"s_sub_u32 s{sCNT}, s{sCNT}, 1")
        e(f"s_cbranch_scc1 {label}_x")
        e("s_and_b64 exec, exec, vcc")
        e(f"s_cbranch_scc0 {label}_x")
        if n > 1:
            e("s_bcnt1_i32_b64 s3, exec")
            e(f"s_cmp_gt_u32 s3, {pth}")
        e(f"s_cbranch_scc1 {label}")
        if n > 1:
            for k in range(n - 1):
                e(load(bufs[k]))
            e(f"{label}_f:")
            for k in range(n):
                e(load(bufs[(k + n - 1) % n]))
                e(f"s_waitcnt vmcnt({n - 1})")
                check(bufs[k])
                e("s_and_b64 exec, exec, vcc")
                e(f"s_cbranch_scc0 {label}_x")
            e(f"s_sub_u32 s{sCNT}, s{sCNT}, 1")
            e(f"s_cbranch_scc0 {label}_f")
        e(f"{label}_x:")
        e("s_mov_b64 exec, -1")
        for r in range(4):
            e(f"v_and_b32 v{res + r}, s{sMASK}, v{res + r}")

    def mpoll(label, loads, units, tmp, first=()):
        e(f"s_mov_b32 s{sCNT}, 400000")
        e(f"s_mov_b32 s{sPO}, {DY}")
        for t in loads:
            e(t)
        for t in first:
            e(t)
        e(f"{label}:")
        e("s_waitcnt vmcnt(0)")
        for k, u in enumerate(units):
            e(f"v_perm_b32 v{tmp}, v{u + 1}, v{u}, s{sSA}")
            e(f"v_perm_b32 v{tmp + 1}, v{u + 3}, v{u + 2}, s{sSB}")
            e(f"v_or_b32 v{tmp}, v{tmp}, v{tmp + 1}")
            if k == 0:
                e(f"v_xor_b32 v{tmp + 2}, v{tmp}, v{vT}")
            else:
                e(f"v_xor_b32 v{tmp}, v{tmp}, v{vT}")
                e(f"v_or_b32 v{tmp + 2}, v{tmp + 2}, v{tmp}")
        e(f"v_cmp_ne_u32 vcc, 0, v{tmp + 2}")
        e(f"s_sub_u32 s{sCNT}, s{sCNT}, 1")
        e(f"s_cbranch_scc1 {label}_x")
        e("s_and_b64 exec, exec, vcc")
        e(f"s_cbranch_scc0 {label}_x")
        if osl:
            e(f"s_sleep {osl}")
        for t in loads:
            e(t)
        e(f"s_branch {label}")
        e(f"{label}_x:")
        e("s_mov_b64 exec, -1")
        for u in units:
            for r in range(4):
                e(f"v_and_b32 v{u + r}, s{sMASK}, v{u + r}")

    def publish(src, vaddr, sx, off, one, y):
        o = f" offset:{off}" if off else ""
        e("s_mov_b64 exec, 1" if one else "s_mov_b32 exec_hi, 0xffff")
        e(f"buffer_store_dwordx4 {vr(src)}, v{vaddr}, s[{rWS}:{rWS + 3}], s{sx + 2 * y} offen{o}" + (" sc1" if y else ""))
        e("s_mov_b64 exec, -1")

    def ldsspin(label, off, tmp):
        e(f"s_mov_b32 s{sCNT}, 4000000")
        e(f"{label}:")
        e(f"ds_read_b32 v{tmp}, v{vZ} offset:{off}")
        e(f"s_sub_u32 s{sCNT}, s{sCNT}, 1")
        e("s_waitcnt lgkmcnt(0)")
        e(f"v_readfirstlane_b32 s3, v{tmp}")
        e(f"s_cmp_eq_u32 s{sCNT}, 0")
        e(f"s_cbranch_scc1 {label}_x")
        e("s_cmp_lt_u32 s3, 4")
        e(f"s_cbranch_scc1 {label}")
        e(f"{label}_x:")

    sN, sSL, sCc, sTH, sP, sK, sAUX = 32, 33, 34, 35, 36, 37, 38
    sD, sXL, sDL, sLEAD = 40, 41, 42, 43
    vLIM, vTX = 37, 38
    sPUB, sRD, sXO, sBI, sTM, sINT, sXW = 40, 41, 42, 43, 44, 46, 47
    AX = A4 + 16 * 4352

    def fbspin(label, k, tmp, vad):
        e(f"s_mov_b32 s{sCNT}, 4000000")
        e(f"{label}:")
        e(f"ds_read_b128 {vr(tmp)}, v{vZ} offset:{L_F}")
        e(f"s_sub_u32 s{sCNT}, s{sCNT}, 1")
        e(f"s_cbranch_scc1 {label}_x")
        if k is None:
            e(f"s_cmp_eq_u32 s{sTH}, 0x7fffffff")
            e(f"s_cbranch_scc1 {label}_x")
        e("s_waitcnt lgkmcnt(0)")
        if k is not None:
            e(f"v_readfirstlane_b32 s3, v{tmp + k}")
        e(f"v_readfirstlane_b32 s{sP}, v{tmp + 3}")
        if k is not None:
            e("s_cmp_ge_u32 s3, 4")
            e(f"s_cbranch_scc1 {label}_x")
        e(f"s_sub_i32 s{sP}, s{sP}, s{sCc}")
        e(f"s_cmp_lt_i32 s{sP}, s{sTH}")
        e(f"s_cbranch_scc1 {label}")
        e(f"s_sub_i32 s{sK}, s{sP}, s{sTH}"); e(f"s_lshr_b32 s{sK}, s{sK}, {IL}"); e(f"s_add_u32 s{sK}, s{sK}, 1")
        e(f"s_add_u32 s{sN}, s{sN}, s{sK}")
        if xs:
            e(f"s_cmp_ge_u32 s{sN}, s{sPUB}"); e(f"s_cbranch_scc0 {label}_a")
            e(f"s_memrealtime s[{sTM}:{sTM + 1}]")
            e(f"{label}_a:")
        e(f"v_and_b32 v{tmp}, s{sMASK}, v{vT}"); e(f"v_or_b32 v{tmp + 1}, s{sN}, v{tmp}")
        e(f"buffer_load_dword v{tmp + 2}, v{vad}, s[{rWS}:{rWS + 3}], 0 offen sc1")
        e("s_mov_b64 exec, 1")
        if nost:
            e(f"buffer_load_dword v{tmp + 1}, v{vZ}, s[{rWS}:{rWS + 3}], s{sSL} offen sc1")
        else:
            e(f"buffer_store_dword v{tmp + 1}, v{vZ}, s[{rWS}:{rWS + 3}], s{sSL} offen")
        e("s_mov_b64 exec, -1")
        e(f"s_lshl_b32 s{sK}, s{sK}, {IL}"); e(f"s_add_u32 s{sTH}, s{sTH}, s{sK}")
        e(f"s_cmp_gt_i32 s{sTH}, {THL + (1 << IL) - 1}"); e(f"s_cselect_b32 s{sTH}, 0x7fffffff, s{sTH}")
        if xs:
            e(f"s_cmp_ge_u32 s{sN}, s{sRD}"); e(f"s_cbranch_scc0 {label}_b")
            e("s_mov_b64 exec, 0xff")
            e(f"buffer_load_dword v{tmp + 3}, v{vLIM}, s[{rWS}:{rWS + 3}], s{sXO} offen sc1")
            e(f"s_add_u32 s{sRD}, s{sRD}, {xdn}"); e(f"s_add_u32 s{sXO}, s{sXO}, 2048")
            e(f"s_cmp_ge_u32 s{sXO}, {AX + 2048 * xs}"); e(f"s_cselect_b32 s{sRD}, 0x7fffffff, s{sRD}")
            e("s_and_b32 s3, s2, 7")
            e("s_waitcnt vmcnt(0)")
            e(f"v_xor_b32 v{tmp + 3}, v{tmp + 3}, v{vTX}")
            e(f"v_cmp_gt_u32 vcc, 0x1000, v{tmp + 3}")
            e(f"v_readlane_b32 s3, v{tmp + 3}, s3")
            e("s_cmp_eq_u32 vcc_lo, 0xff"); e(f"s_cbranch_scc0 {label}_b")
            e(f"v_sub_u32 v{tmp + 3}, s3, v{tmp + 3}")
            e(f"v_bfe_i32 v{tmp + 3}, v{tmp + 3}, 0, 12")
            for m in ("quad_perm:[1,0,3,2]", "quad_perm:[2,3,0,1]", "row_half_mirror"):
                e(f"v_add_u32_dpp v{tmp + 3}, v{tmp + 3}, v{tmp + 3} {m} {DPPM}")
            e(f"v_readfirstlane_b32 s3, v{tmp + 3}")
            if xi:
                e(f"s_mul_i32 s{sBI}, s3, {xi}"); e(f"s_add_i32 s{sINT}, s{sINT}, s{sBI}")
                e(f"s_min_i32 s{sINT}, s{sINT}, {BM << xsh}"); e(f"s_max_i32 s{sINT}, s{sINT}, {-(BM << xsh)}")
                e(f"s_mul_i32 s3, s3, {xa}"); e(f"s_add_i32 s3, s3, s{sINT}")
            else:
                e(f"s_mul_i32 s3, s3, {xa}")
                if tb:
                    e(f"s_add_i32 s3, s3, s{sINT}")
            e(f"s_ashr_i32 s3, s3, {xsh}")
            e(f"s_min_i32 s3, s3, {BM}"); e(f"s_max_i32 s{sBI}, s3, {-BM}")
            e(f"{label}_b:")
            e("s_mov_b64 exec, -1")
        e("s_waitcnt vmcnt(1)")
        e(f"v_xor_b32 v{tmp + 2}, v{tmp + 2}, v{vPR}")
        e(f"v_cmp_gt_u32 vcc, {'v' + str(vLIM) if xd else 64}, v{tmp + 2}")
        e(f"v_cndmask_b32 v{tmp + 2}, 0, v{tmp + 2}, vcc")
        for m in ("quad_perm:[1,0,3,2]", "quad_perm:[2,3,0,1]", "row_half_mirror", "row_mirror"):
            e(f"v_add_u32_dpp v{tmp + 2}, v{tmp + 2}, v{tmp + 2} {m} {DPPM}")
        e(f"v_readlane_b32 s{sK}, v{tmp + 2}, 0"); e(f"v_readlane_b32 s3, v{tmp + 2}, 16")
        e(f"s_add_u32 s{sK}, s{sK}, s3")
        if xd:
            e(f"v_readlane_b32 s{sD}, v{tmp + 2}, 48")
            e(f"s_cmp_eq_u32 s{sLEAD}, 0"); e(f"s_cbranch_scc1 {label}_n")
            e(f"v_readlane_b32 s3, v{tmp + 2}, 32")
            e(f"v_or_b32 v{tmp}, s{sK}, v{vTX}")
            e("s_lshr_b32 s3, s3, 3"); e(f"s_add_u32 s3, s3, {2048 + xb}"); e(f"s_sub_u32 s3, s3, s{sK}")
            e(f"s_min_u32 s3, s3, {2048 + XM}"); e(f"s_max_u32 s3, s3, {2048 - XM}")
            e(f"s_and_b32 s{sD}, vcc_hi, 0xff"); e(f"s_cmp_eq_u32 s{sD}, 0xff")
            e(f"s_cselect_b32 s{sD}, s3, 2048")
            e(f"v_or_b32 v{tmp + 1}, s{sD}, v{vTX}")
            if xf:
                e(f"v_lshlrev_b32 v{tmp + 3}, 2, v{vL}")
                e("s_mov_b32 exec_hi, 0")
                e(f"buffer_store_dword v{tmp}, v{tmp + 3}, s[{rWS}:{rWS + 3}], s{sXL} offen sc1")
            e("s_mov_b64 exec, 1")
            if xt != 2 and not xf:
                e(f"buffer_store_dword v{tmp}, v{vZ}, s[{rWS}:{rWS + 3}], s{sXL} offen sc1")
            e(f"buffer_store_dword v{tmp + 1}, v{vZ}, s[{rWS}:{rWS + 3}], s{sDL} offen")
            e("s_mov_b64 exec, -1")
            e(f"{label}_n:")
            e(f"s_cmp_eq_u32 s{sD}, 0"); e(f"s_cselect_b32 s{sD}, 2048, s{sD}")
            e(f"s_sub_i32 s{sD}, s{sD}, 2048")
            if xg:
                e(f"s_ashr_i32 s{sD}, s{sD}, {xg}")
            e(f"s_add_i32 s{sK}, s{sK}, s{sD}")
        if xs:
            e(f"s_cmp_ge_u32 s{sN}, s{sPUB}"); e(f"s_cbranch_scc0 {label}_c")
            e(f"s_mul_i32 s3, s{sK}, 43"); e("s_lshr_b32 s3, s3, 4")
            e("s_waitcnt lgkmcnt(0)")
            e(f"s_sub_u32 s3, s{sTM}, s3"); e("s_and_b32 s3, s3, 0xfff")
            e(f"v_or_b32 v{tmp}, s3, v{vTX}")
            if xf:
                e(f"v_lshlrev_b32 v{tmp + 3}, 2, v{vL}")
                e("s_mov_b32 exec_hi, 0")
                e(f"buffer_store_dword v{tmp}, v{tmp + 3}, s[{rWS}:{rWS + 3}], s{sXW} offen sc1")
            else:
                e("s_mov_b64 exec, 1")
                e(f"buffer_store_dword v{tmp}, v{vZ}, s[{rWS}:{rWS + 3}], s{sXW} offen sc1")
            e("s_mov_b64 exec, -1")
            e(f"s_mov_b32 s{sPUB}, 0x7fffffff")
            e(f"{label}_c:")
            e(f"s_add_i32 s{sK}, s{sK}, s{sBI}")
        if tb and not xs:
            e(f"s_add_i32 s{sK}, s{sK}, s{sBI}")
        if IL > 3:
            e(f"s_lshl_b32 s{sK}, s{sK}, {IL - 3}")
        e(f"s_lshl_b32 s3, s{sP}, 2")
        e(f"s_sub_i32 s3, s{sK}, s3")
        e(f"s_add_u32 s3, s3, {4 * TH0 - 2 + (2 << ksh) + cb}")
        e(f"s_ashr_i32 s3, s3, {2 + ksh}")
        e(f"s_min_i32 s3, s3, {CM}"); e(f"s_max_i32 s3, s3, {-CM}")
        e(f"s_sub_i32 s{sK}, s3, s{sCc}"); e(f"s_mov_b32 s{sCc}, s3")
        e(f"v_mov_b32 v{tmp}, s{sK}")
        e("s_mov_b64 exec, 1")
        e(f"ds_add_u32 v{vZ}, v{tmp} offset:{L_F + 12}")
        e("s_mov_b64 exec, -1")
        if stamps:
            e(f"s_lshl_b64 s[{sAUX}:{sAUX + 1}], s[{sAUX}:{sAUX + 1}], 5")
            e(f"s_and_b32 s{sAUX + 1}, s{sAUX + 1}, 0xfffffff")
            e("s_add_u32 s3, s3, 16"); e(f"s_or_b32 s{sAUX}, s{sAUX}, s3")
        e(f"s_branch {label}")
        e(f"{label}_x:")

    e("s_cmp_ge_u32 s2, 256"); e("s_cbranch_scc1 L_end")
    if stamps:
        e(f"s_memrealtime s[{sST}:{sST + 1}]")
        nst["w"] = 1; nst["s"] = 1
        names.append((0, "start")); names.append((14, "s.start"))
    if mp:
        e(f"s_and_b32 s{sS}, s2, 3"); e("s_lshr_b32 s4, s2, 3"); e("s_bfe_u32 s3, s2, 0x10002")
        e("s_lshl_b32 s3, s3, 5"); e(f"s_add_u32 s{sHH}, s4, s3")
    else:
        if xo:
            e(f"s_add_u32 s3, s2, {xo}"); e("s_and_b32 s3, s3, 7")
        else:
            e("s_and_b32 s3, s2, 7")
        e("s_lshr_b32 s4, s2, 3"); e(f"s_and_b32 s{sS}, s4, 3")
        e("s_lshr_b32 s4, s4, 2"); e("s_lshl_b32 s4, s4, 3"); e(f"s_add_u32 s{sHH}, s4, s3")
    e(f"s_lshr_b32 s{sB}, s{sHH}, 5"); e(f"s_mul_i32 s7, s{sB}, 40")
    e("s_add_u32 s8, s0, s7"); e("s_addc_u32 s9, s1, 0")
    e(f"s_load_dwordx4 s[{sWW}:{sWW + 3}], s[8:9], 24")
    e(f"s_load_dwordx2 s[{sX}:{sX + 1}], s[8:9], 0")
    e(f"s_load_dwordx4 s[{sKV}:{sKV + 3}], s[8:9], 8")
    e(f"s_load_dwordx2 s[{sOUT}:{sOUT + 1}], s[0:1], 80")
    e(f"s_load_dwordx2 s[{sWS}:{sWS + 1}], s[0:1], 96")
    e(f"v_lshrrev_b32 v{vT0}, 6, v0")
    e(f"v_and_b32 v{vL}, 63, v0")
    e(f"v_readfirstlane_b32 s{sW}, v{vT0}")
    e(f"s_and_b32 s{sH}, s{sHH}, 31")
    e(f"s_lshl_b32 s{sJB}, s{sH}, 2"); e(f"s_add_u32 s{sJB}, s{sJB}, s{sS}")
    e(f"v_lshrrev_b32 v{vT0}, 3, v{vL}")
    e(f"v_and_b32 v{vT1}, 7, v{vL}")
    e(f"v_lshlrev_b32 v{vT2}, 4, v{vT1}")
    e(f"v_mul_u32_u24 v{vWQ}, 12288, v{vT0}"); e(f"v_add_u32 v{vWQ}, v{vWQ}, v{vT2}")
    e(f"v_mul_u32_u24 v{vKV}, 384, v{vT0}"); e(f"v_add_u32 v{vKV}, v{vKV}, v{vT2}")
    e(f"v_lshlrev_b32 v{vT3}, 1, v{vT0}")
    e(f"v_add_u32 v{vQR}, {L_Q}, v{vT2}")
    e(f"s_mul_i32 s3, s{sS}, 160"); e(f"s_mul_i32 s4, s{sW}, 40"); e("s_add_u32 s3, s3, s4")
    e("s_mul_i32 s4, s3, 12288"); e(f"s_mul_i32 s5, s{sH}, 384"); e("s_add_u32 s4, s4, s5")
    e("s_lshl_b32 s3, s3, 1")
    e(f"s_mul_i32 s5, s{sH}, 1572864"); e(f"s_mul_i32 s6, s{sS}, 393216"); e("s_add_u32 s5, s5, s6")
    e(f"s_mul_i32 s6, s{sW}, 3072"); e("s_add_u32 s5, s5, s6")
    if cs:
        a, b_, c_ = sSEL, sSEL + 1, sSEL + 2
        wm = sWM if x6 else sW
        if x6:
            e(f"s_min_u32 s{sWM}, s{sW}, 4")
        e(f"s_and_b32 s{a}, s{sS}, 1"); e(f"s_mul_i32 s{b_}, s{a}, 3"); e(f"s_bfe_u32 s{c_}, s{wm}, 0x10001"); e(f"s_add_u32 s{b_}, s{b_}, s{c_}")
        e(f"s_and_b32 s{c_}, s{wm}, 1"); e(f"s_cmp_eq_u32 s{wm}, 0"); e(f"s_cselect_b32 s{b_}, 2, s{b_}"); e(f"s_cselect_b32 s{sRH}, s{a}, s{c_}")
        e(f"s_lshr_b32 s{a}, s{sS}, 1"); e(f"s_mul_i32 s{a}, s{a}, 5"); e(f"s_add_u32 s{b_}, s{b_}, s{a}"); e(f"s_lshl_b32 s{b_}, s{b_}, 7")
        if at:
            e(f"s_mov_b32 s{sLN}, s{b_}")
        e(f"s_mul_i32 s6, s{sH}, 245760"); e(f"s_add_u32 s6, s6, s{b_}")
        e(f"s_mul_i32 s{a}, s{sRH}, 122880"); e(f"s_add_u32 s6, s6, s{a}")
    else:
        e(f"s_mul_i32 s6, s{sJB}, 61440"); e(f"s_lshl_b32 s7, s{sW}, 8"); e("s_add_u32 s6, s6, s7")
    e(f"s_cmp_eq_u32 s{sW}, 4")
    e("s_cbranch_scc1 L_service")
    if x6:
        e(f"s_cmp_eq_u32 s{sW}, 5")
        e("s_cbranch_scc1 L_six")

    def common_consts():
        e(f"v_and_b32 v{vT0}, 1, v{vL}"); e(f"v_lshlrev_b32 v{vT0}, 4, v{vT0}")
        e(f"v_mov_b32 v{vT1}, 0xffff"); e(f"v_lshlrev_b32 v{vT0}, v{vT0}, v{vT1}")
        e(f"v_bfe_u32 v{vT1}, v{vL}, 1, 2")
        for r in range(4):
            e(f"v_cmp_eq_u32 vcc, {r}, v{vT1}")
            e(f"v_cndmask_b32 v{vM + r}, 0, v{vT0}, vcc")
        if cs:
            e(f"v_lshrrev_b32 v{vT0}, 3, v{vL}"); e(f"v_and_b32 v{vT1}, 7, v{vL}")
            e(f"v_mul_u32_u24 v{vWO}, 15360, v{vT0}"); e(f"v_lshl_add_u32 v{vWO}, v{vT1}, 4, v{vWO}")
            e(f"s_mul_i32 s7, s{sRH}, 384"); e(f"s_add_u32 s7, s7, {L_O}")
            e(f"v_mul_u32_u24 v{vOR}, 48, v{vT0}"); e(f"v_add_u32 v{vOR}, s7, v{vOR}")
        if cs and at:
            e(f"v_mul_u32_u24 v{vPUB}, {acs}, v{vT0}"); e(f"v_lshl_add_u32 v{vPUB}, v{vT1}, 3, v{vPUB}")
            e(f"s_lshr_b32 s7, s{sLN}, 7"); e(f"s_mul_i32 s8, s{sB}, 10"); e("s_add_u32 s7, s7, s8")
            e(f"s_mul_i32 s7, s7, {ast}"); e(f"s_add_u32 s7, s7, {AA}")
            e(f"v_add_u32 v{vPUB}, s7, v{vPUB}")
        elif cs:
            e(f"v_bfe_u32 v{vT0}, v{vL}, 4, 1")
            e(f"v_lshlrev_b32 v{vPUB}, 5, v{vT1}"); e(f"v_lshl_add_u32 v{vPUB}, v{vT0}, 4, v{vPUB}")
            e(f"s_bfe_u32 s8, s{sW}, 0x10001")
            e(f"s_lshl_b32 s7, s{sS}, 1"); e("s_add_u32 s7, s7, s8"); e("s_lshl_b32 s7, s7, 5"); e(f"s_add_u32 s7, s7, s{sH}")
            e(f"s_lshr_b32 s9, s{sS}, 1"); e("s_lshl_b32 s9, s9, 5"); e(f"s_add_u32 s9, s9, s{sH}")
            e("s_lshl_b32 s9, s9, 1"); e(f"s_add_u32 s9, s9, s{sRH}"); e("s_add_u32 s9, s9, 256")
            e(f"s_cmp_eq_u32 s{sW}, 0"); e("s_cselect_b32 s7, s9, s7")
            e(f"s_mul_i32 s9, s{sB}, 384"); e("s_add_u32 s7, s7, s9"); e("s_lshl_b32 s7, s7, 8"); e(f"s_add_u32 s7, s7, {A3}")
            e(f"v_add_u32 v{vPUB}, s7, v{vPUB}")
        else:
            e(f"v_lshrrev_b32 v{vT0}, 4, v{vL}")
            e(f"v_and_b32 v{vT1}, 15, v{vL}")
            e(f"v_mul_u32_u24 v{vWO}, 15360, v{vT0}"); e(f"v_lshl_add_u32 v{vWO}, v{vT1}, 4, v{vWO}")
            e(f"v_mul_u32_u24 v{vOR}, 48, v{vT0}"); e(f"v_add_u32 v{vOR}, {L_O}, v{vOR}")
            e(f"v_lshlrev_b32 v{vPUB}, 5, v{vT1}"); e(f"v_lshl_add_u32 v{vPUB}, v{vT0}, 4, v{vPUB}")
            e(f"s_lshl_b32 s7, s{sB}, 7"); e(f"s_add_u32 s7, s7, s{sJB}"); e("s_mul_i32 s7, s7, 2560")
            e(f"s_lshl_b32 s8, s{sW}, 9"); e("s_add_u32 s7, s7, s8"); e(f"s_add_u32 s7, s7, {A3}")
            e(f"v_add_u32 v{vPUB}, s7, v{vPUB}")
        e(f"v_mov_b32 v{vZ}, 0"); e(f"v_mov_b32 v{vONE}, 1")
        for r in range(4):
            e(f"s_mov_b32 s{sSEL + r}, {0x07060500 + r}")
        srd(rWO, sWW + 2, 6, 7864320)
        srd(rWS, sWS, None, AA + 20 * ast if at else WS_USED)
        if cs:
            srd(rOUT, sOUT, None, 2560)

    vXA = vNM

    vFX = vACC + 8

    def pair_addr():
        if at:
            e(f"v_and_b32 v{vT0}, 7, v{vL}"); e(f"v_lshlrev_b32 v{vXA}, 4, v{vT0}")
            e(f"v_bfe_u32 v{vT0}, v{vL}, 4, 1"); e(f"v_lshl_add_u32 v{vXA}, v{vT0}, 3, v{vXA}")
            e(f"v_lshrrev_b32 v{vT0}, 5, v{vL}"); e(f"v_lshl_add_u32 v{vXA}, v{vT0}, 2, v{vXA}")
            e(f"v_bfe_u32 v{vT0}, v{vL}, 3, 1"); e(f"v_lshl_add_u32 v{vXA}, v{vT0}, 1, v{vXA}")
            e(f"s_mul_i32 s3, s{sB}, 1280"); e(f"s_add_u32 s3, s3, s{sLN}")
            e(f"v_add_u32 v{vXA}, s3, v{vXA}")
            return
        e(f"s_bfe_u32 s3, s{sW}, 0x10001"); e("s_lshl_b32 s3, s3, 8"); e(f"s_add_u32 s3, s3, {L_X}")
        e(f"v_and_b32 v{vXA}, 255, v{vPUB}"); e(f"v_add_u32 v{vXA}, s3, v{vXA}")

    vm = VM(e)
    NQ, NK, NV, NO = 15, 96, 96, 12
    K0, V0, O0 = NQ, NQ + NK, NQ + NK + NV
    N = O0 + NO
    cur = [None]

    def setoff(v):
        if cur[0] != v:
            e(f"s_mov_b32 s{sOFF}, {v}")
            cur[0] = v

    def issue(i):
        d = vr(slot(i))
        if i < K0:
            g, t = divmod(i, 3)
            setoff(g * 8 * 12288)
            vm.issue(i, f"buffer_load_dwordx4 {d}, v{vWQ}, s[{rWQ}:{rWQ + 3}], s{sOFF} offen offset:{t * 128} {fl}")
        elif i < O0:
            r = rK if i < V0 else rV
            g, t = divmod(i - (K0 if i < V0 else V0), 3)
            if fb and t == 0 and i < V0 + 3 * G3:
                ga = (i - K0) // 3
                e("s_mov_b64 exec, 1")
                if ga > 0:
                    e("s_waitcnt lgkmcnt(0)")
                    e(f"v_cmp_lt_i32 vcc, {4 * (ga - 1) + bias}, v{vPR}")
                    if FX and ga >= GX:
                        e(f"v_readfirstlane_b32 s8, v{vPR}")
                e(f"ds_add_rtn_u32 v{vPR}, v{vZ}, v{vONE} offset:{L_F + 12}")
                e("s_mov_b64 exec, -1")
            if not rot:
                setoff(g * 12288)
            elif t == 0:
                cur[0] = None
                if g == 0:
                    e(f"s_mov_b32 s{sOFF}, s{sROT}")
                else:
                    e(f"s_add_u32 s{sOFF}, s{sOFF}, 12288"); e(f"s_cmp_eq_u32 s{sOFF}, 393216")
                    e(f"s_cselect_b32 s{sOFF}, 0, s{sOFF}")
                if FX and (i - K0) // 3 >= max(GX, 1):
                    e(f"s_cmp_gt_i32 s8, {4 * ((i - K0) // 3 - 1) + bias + XT}")
            vm.issue(i, f"buffer_load_dwordx4 {d}, v{vKV}, s[{r}:{r + 3}], s{sOFF} offen offset:{t * 128} {fl}")
        else:
            g = i - O0
            setoff((g // 4) * 5120)
            vm.issue(i, f"buffer_load_dwordx4 {d}, v{vWO}, s[{rWO}:{rWO + 3}], s{sOFF} offen offset:{(g % 4) * 1280} {fl}")

    def afrag(src):
        for r in range(4):
            e(f"v_and_b32 v{vA + r}, v{src}, v{vM + r}")

    def mfma(acc, b, first):
        c = "0" if first else vr(acc)
        e(f"v_mfma_f32_16x16x32_bf16 {vr(acc)}, {vr(vA)}, {vr(b)}, {c}")

    def partials_out(flag):
        e("s_mov_b32 exec_lo, 0x00ff00ff"); e("s_mov_b32 exec_hi, 0xff00ff00")
        for t in range(3):
            e(f"ds_write_b128 v{vPW}, {vr(vACC + 4 * t)} offset:{t * 256}")
        e("s_mov_b64 exec, 1")
        e(f"ds_add_u32 v{vZ}, v{vONE} offset:{flag}")
        e("s_mov_b64 exec, -1")

    def pcalc(g):
        s = vSC + g
        e(f"v_fma_f32 v{s}, v{s}, s{sC}, v{vNM}")
        e(f"v_exp_f32 v{s}, v{s}")
        if g == 0:
            e(f"v_mov_b32 v{vLS}, v{s}")
        else:
            e(f"v_add_f32 v{vLS}, v{vLS}, v{s}")
        e(f"v_cvt_pk_bf16_f32 v{s}, v{s}, v{s}")

    pend = []

    def red_steps(g):
        s = vSC + g
        st = [f"v_add_f32_dpp v{s}, v{s}, v{s} quad_perm:[1,0,3,2] {DPPM}",
              f"v_add_f32_dpp v{s}, v{s}, v{s} quad_perm:[2,3,0,1] {DPPM}",
              f"v_add_f32_dpp v{s}, v{s}, v{s} row_half_mirror {DPPM}"]
        st.append(f"v_mov_b32 v{vMX}, v{s}" if g == 0 else f"v_max_f32 v{vMX}, v{vMX}, v{s}")
        return st

    pdone = [0]

    def consume(i):
        vm.wait(i)
        b = slot(i)
        if i < K0:
            g, t = divmod(i, 3)
            if t == 0:
                e(f"v_lshl_or_b32 v{vT0}, v{vX + g}, 16, v{vX + g}")
                afrag(vT0)
            mfma(vACC + 4 * t, b, g == 0)
            if stamps == 2 and i in (0, 5, 11):
                stamp("w", f"wq{i}")
            if i == K0 - 1:
                partials_out(L_F)
                stamp("w", "qpart")
        elif i < V0:
            g, t = divmod(i - K0, 3)
            for r in range(4):
                e(f"v_dot2c_f32_bf16 v{vSC + g}, v{b + r}, v{vQ + 4 * t + r}")
                if r in (1, 3) and pend:
                    e(pend.pop(0))
            if t == 2:
                while pend:
                    e(pend.pop(0))
                pend.extend(red_steps(g))
            if i == V0 - 1:
                while pend:
                    e(pend.pop(0))
                e(f"v_max_f32_dpp v{vMX}, v{vMX}, v{vMX} row_ror:8 {DPPM}")
                allrows("v_max_f32", vMX, vT0)
                e(f"v_mul_f32 v{vMX}, s{sC}, v{vMX}")
                e(f"v_sub_f32 v{vNM}, 0, v{vMX}")
                for g2 in range(pk):
                    pcalc(g2)
                pdone[0] = pk
                stamp("w", "Kdone")
        elif i < O0:
            g, t = divmod(i - V0, 3)
            if stamps == 3 and t == 2 and g in (16, 22, 26, 29):
                stamp("w", f"v{g}")
            if t == 0:
                afrag(vSC + g)
            mfma(vACC + 4 * t, b, g == 0)
            if t < 2 and pdone[0] < 32:
                for _ in range((pk + 1 - t) // 2):
                    if pdone[0] < 32:
                        pcalc(pdone[0]); pdone[0] += 1
                if pdone[0] == 32:
                    pdone[0] = 33
                    e(f"v_add_f32_dpp v{vLS}, v{vLS}, v{vLS} row_ror:8 {DPPM}")
                    allrows("v_add_f32", vLS, vT0)
                    e(f"s_lshl_b32 s3, s{sW}, 3"); e(f"v_mov_b32 v{vT0}, s3")
                    e("s_mov_b64 exec, 1")
                    e(f"ds_write_b32 v{vT0}, v{vMX} offset:{L_ST}")
                    e(f"ds_write_b32 v{vT0}, v{vLS} offset:{L_ST + 4}")
                    e(f"ds_add_u32 v{vZ}, v{vONE} offset:{L_F + 4}")
                    e("s_mov_b64 exec, -1")
            if i == O0 - 1:
                partials_out(L_F + 8)
                stamp("w", "Vdone")

    e("s_waitcnt lgkmcnt(0)")
    if stamps == 2:
        stamp("w", "karg")
    srd(rX, sX, None, 1280)
    srd(rWQ, sWW, 4, 7864320)
    for g in range(5):
        vm.issue(("x", g), f"buffer_load_ushort v{vX + g}, v{vT3}, s[{rX}:{rX + 3}], s3 offen offset:{16 * g}")
    ni = 0
    while ni < F0:
        issue(ni); ni += 1
    if rot:
        ra, rb, rc = rot // 10000 % 100, rot // 100 % 100, rot % 100
        e(f"s_and_b32 s7, s{sHH}, 7"); e(f"s_mul_i32 s{sROT}, s7, {ra}")
        e(f"s_mul_i32 s7, s{sS}, {rb}"); e(f"s_add_u32 s{sROT}, s{sROT}, s7")
        e(f"s_lshr_b32 s7, s{sHH}, 3"); e(f"s_mul_i32 s7, s7, {rc}"); e(f"s_add_u32 s{sROT}, s{sROT}, s7")
        e(f"s_and_b32 s{sROT}, s{sROT}, 31"); e(f"s_mul_i32 s{sROT}, s{sROT}, 12288")
    srd(rK, sKV, 5, 50331648)
    srd(rV, sKV + 2, 5, 50331648)
    common_consts()
    e(f"v_lshrrev_b32 v{vT0}, 5, v{vL}"); e(f"v_mul_u32_u24 v{vPW}, 768, v{vT0}")
    e(f"v_and_b32 v{vT0}, 7, v{vL}"); e(f"v_lshl_add_u32 v{vPW}, v{vT0}, 5, v{vPW}")
    e(f"v_bfe_u32 v{vT0}, v{vL}, 4, 1"); e(f"v_lshl_add_u32 v{vPW}, v{vT0}, 4, v{vPW}")
    e(f"s_mul_i32 s7, s{sW}, 1536"); e(f"v_add_u32 v{vPW}, s7, v{vPW}")
    e(f"s_mov_b32 s{sC}, {f2u(192 ** -0.5 * math.log2(math.e)):#x}")
    for g in range(32):
        e(f"v_mov_b32 v{vSC + g}, 0")
    e("s_barrier")
    if stamps == 2:
        stamp("w", "B0")
    vm.wait(("x", 4))
    if stamps == 2:
        stamp("w", "xdone")
    nc = 0

    def Flo(i):
        return F2 if (F2 and i >= V0 + 3 * G2) else F

    def Fmid(i):
        if fb and i >= K0 + 3:
            return FH2 if (FH2 and i >= V0 + 3 * G2) else FH
        return Flo(i)

    def Fof(i):
        if FX and i > K0 + 3 * max(GX, 1):
            return FX2 if (FX2 and i >= V0 + 3 * G2) else FX
        return Fmid(i)

    ncond = [0]

    def pace():
        j = ni - Fof(ni)
        if j >= 0:
            vm.wait(j)
        jm = ni - Fmid(ni)
        j = ni - Flo(ni)
        if fb and ni < V0 + 3 * G3 and j >= 0 and j in vm.q:
            ncond[0] += 1
            if jm in vm.q and jm < j:
                e(f"s_cbranch_scc1 L_c{ncond[0]}")
                e(f"s_waitcnt vmcnt({len(vm.q) - 1 - vm.q.index(jm)}) ; cond")
                e(f"s_cbranch_vccnz L_c{ncond[0]} ; cond")
            else:
                e(f"s_cbranch_vccnz L_c{ncond[0]}")
            e(f"s_waitcnt vmcnt({len(vm.q) - 1 - vm.q.index(j)}) ; cond")
            e(f"L_c{ncond[0]}:")

    if fb:
        e("s_mov_b64 vcc, 0")

    while nc < K0:
        if ni - nc <= F:
            pace(); issue(ni); ni += 1
        consume(nc); nc += 1
    def qreads():
        e(f"ds_read_b32 v{vT1}, v{vZ} offset:{L_T + 4}")
        for t in range(3):
            e(f"ds_read_b128 {vr(vQ + 4 * t)}, v{vQR} offset:{t * 128}")
        e(f"ds_read_b32 v{vT}, v{vZ} offset:{L_T}")

    while ni < K0 + R:
        if qf and ni == K0 + R - 1:
            qreads()
        pace(); issue(ni); ni += 1
    stamp("w", "ringfull")
    if qf:
        e(f"s_mov_b32 s{sCNT}, 4000000")
        e("L_q:")
        e("s_waitcnt lgkmcnt(0)")
        e(f"v_readfirstlane_b32 s3, v{vT1}")
        e(f"s_sub_u32 s{sCNT}, s{sCNT}, 1")
        e("s_cbranch_scc1 L_qx")
        e("s_cmp_lg_u32 s3, 0")
        e("s_cbranch_scc1 L_qx")
        qreads()
        e("s_branch L_q")
        e("L_qx:")
        stamp("w", "qready")
    else:
        e("s_barrier")
        stamp("w", "qready")
        qreads()
        e("s_waitcnt lgkmcnt(0)")
    NH = min(N, O0 + H)
    early = None
    while nc < O0:
        lag = ni - nc
        if EH != 99 and ni == NH and early is None:
            early = (list(vm.q), ni, nc)
            e(f"s_cmp_gt_i32 s8, {4 * 62 + bias + EH}"); e("s_cbranch_scc1 L_early")
        if ni < NH:
            if lag >= R:
                consume(nc); nc += 1
            pace(); issue(ni); ni += 1
            k = 0
            while nc < O0 and nc <= ni - 1 - Fof(ni - 1) and k < 2:
                consume(nc); nc += 1; k += 1
        else:
            consume(nc); nc += 1
    while ni < NH:
        pace(); issue(ni); ni += 1
    if cs:
        pair_addr()
    if ni < N:
        e(f"s_mov_b32 s{sCNT}, 4000000")
        e("L_h:")
        e(f"ds_read_b32 v{vT0}, v{vZ} offset:{L_H}")
        e(f"s_sub_u32 s{sCNT}, s{sCNT}, 1")
        e("s_cbranch_scc1 L_hx")
        e("s_waitcnt lgkmcnt(0)")
        e(f"v_readfirstlane_b32 s3, v{vT0}")
        e("s_cmp_eq_u32 s3, 0")
        e("s_cbranch_scc1 L_h")
        e("L_hx:")
        if stamps == 3:
            stamp("w", "hgo")
    if FL:
        e("s_cmp_eq_u32 s3, 2")
    while ni < N:
        if ni - FW >= 0:
            vm.wait(ni - FW)
            if stamps == 3 and ni - FW - O0 in (1, 3):
                stamp("w", f"wa{ni - FW - O0}")
        if FL and ni - FL in vm.q:
            e(f"s_cbranch_scc1 L_w{ni}")
            e(f"s_waitcnt vmcnt({len(vm.q) - 1 - vm.q.index(ni - FL)}) ; cond")
            e(f"L_w{ni}:")
        issue(ni); ni += 1
    stamp("w", "woissued")
    e("L_tail:")
    e("s_barrier")
    stamp("w", "oready")
    for k in range(3):
        e(f"ds_read_b128 {vr(vQ + 4 * k)}, v{vOR} offset:{16 * k}")
    if at:
        assert cs and H < 12
        e("s_mov_b32 s32, 0"); e("s_mov_b32 s33, 0x43300800"); e("s_mov_b32 s34, 0"); e("s_mov_b32 s35, 0xc3320000")
        e(f"ds_read_b128 {vr(vFX)}, v{vZ} offset:{L_S}")
        e("s_mov_b32 vcc_lo, 0x00ff00ff"); e("s_mov_b32 vcc_hi, 0xff00ff00")
    e(f"s_waitcnt lgkmcnt({1 if at else 0})")
    tailq = len(vm.q)
    if cs:
        AB = (vA, vT0 - 1)
        for g in range(13):
            if g < 12:
                for r in range(4):
                    e(f"v_and_b32 v{AB[g & 1] + r}, v{vQ + g}, v{vM + r}")
            if g:
                vm.wait(O0 + g - 1)
                if stamps == 3 and g - 1 in (8, 11):
                    stamp("w", f"wa{g - 1}")
                e(f"v_mfma_f32_16x16x32_bf16 {vr(vACC)}, {vr(AB[(g - 1) & 1])}, {vr(slot(O0 + g - 1))}, {vr(vACC) if g > 1 else 0}")
    if at:
        a, X, O = vACC, vA, vA + 2
        e(f"v_cndmask_b32_dpp v{a}, v{a + 1}, v{a}, vcc row_ror:8 {DPPM}")
        e(f"v_cndmask_b32_dpp v{a + 2}, v{a + 3}, v{a + 2}, vcc row_ror:8 {DPPM}")
        e(f"v_permlane32_swap_b32 v{a}, v{a + 2}")
        e(f"v_add_f32_dpp v{a}, v{a + 2}, v{a} row_ror:8 {DPPM}")
        e("s_waitcnt lgkmcnt(0)")
        e(f"v_cvt_f64_f32 {vr(X, 2)}, v{a}")
        e(f"v_fma_f64 {vr(X, 2)}, {vr(X, 2)}, {vr(vFX, 2)}, s[32:33]")
        e(f"v_add_u32 v{vT0}, 0xbcd00000, v{X + 1}")
        e(f"v_cmp_gt_u32 vcc, 0x1000, v{vT0}")
        e(f"v_add_u32 v{X + 1}, 0xbed00000, v{X + 1}")
        e(f"v_cndmask_b32 v{X + 1}, v{vFX + 3}, v{X + 1}, vcc")
        e(f"global_atomic_add_x2 {vr(O, 2)}, v{vPUB}, {vr(X, 2)}, s[{sWS}:{sWS + 1}] sc0" + (" sc1" if asc else ""))
        stamp("w", "pub")
        e(f"v_mov_b32_dpp v{a + 1}, v{a} row_ror:8 {DPPM}")
        e(f"v_mov_b32 v{vT0}, v{a}"); e(f"v_mov_b32 v{vT1}, v{a + 1}")
        e(f"v_and_b32 v{vT2}, 7, v{vL}"); e(f"v_lshlrev_b32 v{vPUB + 1}, 5, v{vT2}")
        e(f"v_permlane32_swap_b32 v{vT0}, v{a + 2}")
        e(f"v_permlane32_swap_b32 v{vT1}, v{a + 3}")
        e(f"v_bfe_u32 v{vT2}, v{vL}, 4, 1"); e(f"v_lshl_add_u32 v{vPUB + 1}, v{vT2}, 4, v{vPUB + 1}")
        e(f"s_lshr_b32 s3, s{sLN}, 7"); e(f"s_mul_i32 s4, s{sB}, 10"); e("s_add_u32 s3, s3, s4")
        e("s_lshl_b32 s3, s3, 14"); e(f"s_add_u32 s3, s3, {A3}")
        e(f"v_add_u32 v{vPUB + 1}, s3, v{vPUB + 1}")
        e(f"s_lshl_b32 s3, s{sH}, 1"); e(f"s_add_u32 s3, s3, s{sRH}"); e("s_lshl_b32 s3, s3, 8")
        tag4(vQ, a)
        if not nraw:
            e("s_mov_b64 exec, 0x00ff00ff")
            e(f"buffer_store_dwordx4 {vr(vQ)}, v{vPUB + 1}, s[{rWS}:{rWS + 3}], s3 offen sc1")
            e("s_mov_b64 exec, -1")
        e(f"s_waitcnt vmcnt({0 if nraw else 1})")
        if stamps:
            e("s_memrealtime s[40:41]")
        e(f"v_lshl_add_u64 {vr(O, 2)}, {vr(O, 2)}, 0, {vr(X, 2)}")
        e(f"v_cmp_gt_i32 vcc, 0, v{O + 1}")
        e(f"v_and_b32 v{O + 1}, 0x1ffffff, v{O + 1}")
        e(f"v_add_u32 v{O + 1}, 0x43300000, v{O + 1}")
        e("s_and_b64 exec, exec, vcc")
        e("s_cbranch_scc0 L_atx")
        e(f"v_add_f64 {vr(O, 2)}, {vr(O, 2)}, s[34:35]")
        e(f"v_cvt_f32_f64 v{vT0}, {vr(O, 2)}")
        e(f"v_mul_f32 v{vT1}, v{vFX + 2}, v{vT0}")
        e(f"v_cvt_pk_bf16_f32 v{vT1}, v{vT1}, v{vT1}")
        e(f"buffer_store_short v{vT1}, v{vXA}, s[{rOUT}:{rOUT + 3}], 0 offen {ofl}".rstrip())
        e(f"s_cmp_eq_u32 s{sLN}, 0"); e("s_cselect_b32 s3, exec_lo, 0"); e("s_and_b32 s3, s3, 1")
        e("s_cbranch_scc0 L_att")
        e("s_mov_b64 s[36:37], exec"); e("s_mov_b64 exec, 1"); e(f"s_lshl_b32 s3, s{sB}, 7")
        e(f"buffer_store_dword v{vT}, v{vZ}, s[{rWS}:{rWS + 3}], s3 offen sc1")
        e("s_mov_b64 exec, s[36:37]")
        e("L_att:")
        e(f"s_mov_b32 s3, {f2u(2.0 ** SM):#x}"); e(f"s_mov_b32 s4, {f2u(2.0 ** 49):#x}")
        e(f"v_cmp_le_f32 s[36:37], s3, |v{vT0}|")
        e(f"v_cmp_gt_f32 vcc, s4, v{vT0}")
        e("s_and_b64 vcc, vcc, s[36:37]")
        e("s_andn2_b64 exec, exec, vcc")
        e("s_cbranch_scc0 L_atx")
        e(f"s_mov_b32 s{sSA}, 0x0c0c0400"); e(f"s_mov_b32 s{sSB}, 0x04000c0c"); e(f"s_mov_b32 s{sMASK}, 0xffffff00")
        e("s_mov_b32 s36, 0xff00ff00"); e("s_mov_b32 s37, 0xff00ff00")
        e("s_mov_b32 s4, 0"); e("s_mov_b32 s5, -1")
        e(f"s_mov_b32 s{sOFF}, 0")
        e(f"v_mov_b32 v{a}, 0")
        e("L_atf:")
        us = [vRING + 4 * k for k in range(8)]
        poll("L_p4", [f"buffer_load_dwordx4 {vr(u)}, v{vPUB + 1}, s[{rWS}:{rWS + 3}], s{sOFF} offen offset:{256 * k} sc1"
                      for k, u in enumerate(us)], us, vT0)
        for u in us:
            e(f"v_cndmask_b32 v{u}, v{u}, v{u + 1}, s[36:37]")
            e(f"v_cndmask_b32 v{u + 2}, v{u + 2}, v{u + 3}, s[36:37]")
            e(f"v_cndmask_b32 v{u}, v{u}, v{u + 2}, s[4:5]")
            e(f"v_add_f32 v{a}, v{a}, v{u}")
        e(f"s_add_u32 s{sOFF}, s{sOFF}, 2048"); e(f"s_cmp_lt_u32 s{sOFF}, 16384"); e("s_cbranch_scc1 L_atf")
        e(f"v_cvt_pk_bf16_f32 v{a}, v{a}, v{a}")
        e(f"buffer_store_short v{a}, v{vXA}, s[{rOUT}:{rOUT + 3}], 0 offen")
        e("L_atx:")
        e("s_mov_b64 exec, -1")
        if stamps:
            e("s_waitcnt lgkmcnt(0)")
            e("s_lshl_b32 s3, s2, 8"); e("s_add_u32 s3, s3, 0x8000000"); e(f"s_lshl_b32 s4, s{sWM if x6 else sW}, 3"); e("s_add_u32 s3, s3, s4")
            e(f"s_add_u32 s4, s{sWS}, s3"); e(f"s_addc_u32 s5, s{sWS + 1}, 0")
            e(f"v_mov_b32 v{vA}, s40"); e(f"v_mov_b32 v{vA + 1}, s41")
            e(f"global_store_dwordx2 v{vZ}, v[{vA}:{vA + 1}], s[4:5] offset:{8 * 25}")
            for k in range(5):
                names.append((25 + k, f"e{k}"))
            e(f"s_cmp_eq_u32 s{sW}, 4")
            e("s_cbranch_scc1 L_reduce")
    elif cs:
        for r in range(4):
            e(f"v_permlane32_swap_b32 v{vACC + r}, v{vQ + r}")
        for r in range(4):
            e(f"v_add_f32_dpp v{vACC + r}, v{vQ + r}, v{vACC + r} row_ror:8 {DPPM}")
        e(f"s_cmp_eq_u32 s{sW}, 0"); e("s_cbranch_scc1 L_pub")
        e(f"s_bitcmp1_b32 s{sW}, 0"); e("s_cbranch_scc1 L_fin")
        e("s_mov_b64 exec, 0x00ff00ff")
        e(f"ds_write_b128 v{vXA}, {vr(vACC)}")
        e("s_mov_b64 exec, 1")
        e(f"ds_write_b32 v{vXA}, v{vONE} offset:512")
        e("s_mov_b64 exec, -1")
        e(f"s_cmp_eq_u32 s{sW}, 4")
        e("s_cbranch_scc1 L_reduce")
        e("s_endpgm")
        e("L_fin:")
        e(f"s_mov_b32 s{sCNT}, 4000000")
        e("L_fs:")
        e(f"ds_read_b32 v{vT0}, v{vXA} offset:512")
        e(f"ds_read_b128 {vr(vQ)}, v{vXA}")
        e(f"s_sub_u32 s{sCNT}, s{sCNT}, 1")
        e("s_cbranch_scc1 L_fx")
        e("s_waitcnt lgkmcnt(1)")
        e(f"v_readfirstlane_b32 s3, v{vT0}")
        e("s_cmp_eq_u32 s3, 0")
        e("s_cbranch_scc1 L_fs")
        e("L_fx:")
        e("s_waitcnt lgkmcnt(0)")
        for r in range(4):
            e(f"v_add_f32 v{vACC + r}, v{vACC + r}, v{vQ + r}")
        e("L_pub:")
        e("s_nop 1")
        tag4(vA, vACC)
        e("s_mov_b64 exec, 0x00ff00ff")
    else:
        for g in range(12):
            afrag(vQ + g)
            vm.wait(O0 + g)
            mfma(vACC, slot(O0 + g), g == 0)
        tag4(vA, vACC)
        e("s_mov_b32 exec_hi, 0")
    if fq > 1:
        e(f"v_and_b32 v{vT0}, 15, v{vL}"); e(f"s_lshl_b32 s3, s{sW}, 4"); e(f"v_add_u32 v{vT0}, s3, v{vT0}")
        e(f"s_and_b32 s3, s{sS}, {fq - 1}"); e(f"s_mul_i32 s3, s3, {80 // fq}")
        e(f"v_subrev_u32 v{vT0}, s3, v{vT0}")
        e(f"v_mov_b32 v{vT1}, {80 // fq}")
        e(f"v_cmp_lt_u32 vcc, v{vT0}, v{vT1}")
        e("s_and_b64 exec, exec, vcc")
    if not at:
        e(f"buffer_store_dwordx4 {vr(vA)}, v{vPUB}, s[{rWS}:{rWS + 3}], 0 offen sc1")
        e("s_mov_b64 exec, -1")
        if not cs:
            e(f"s_cmp_eq_u32 s{sW}, 4")
            e("s_cbranch_scc1 L_reduce")
        stamp("w", "pub")

    def stamps_out(who):
        if not stamps:
            return
        base = 0 if who == "w" else 14
        e("s_waitcnt lgkmcnt(0)")
        e("s_lshl_b32 s3, s2, 8"); e("s_add_u32 s3, s3, 0x8000000")
        e(f"s_add_u32 s4, s{sWS}, s3"); e(f"s_addc_u32 s5, s{sWS + 1}, 0")
        for i in range(nst[who]):
            e(f"v_mov_b32 v{vA}, s{sST + 2 * i}"); e(f"v_mov_b32 v{vA + 1}, s{sST + 2 * i + 1}")
            e(f"global_store_dwordx2 v{vZ}, v[{vA}:{vA + 1}], s[4:5] offset:{8 * (base + i)}")
        if who == "s" and fb:
            e(f"v_mov_b32 v{vA}, s{sAUX}"); e(f"v_mov_b32 v{vA + 1}, s{sAUX + 1}")
            e(f"global_store_dwordx2 v{vZ}, v[{vA}:{vA + 1}], s[4:5] offset:{8 * 30}")
        if who == "w":
            e("s_getreg_b32 s6, hwreg(HW_REG_XCC_ID)"); e("s_getreg_b32 s7, hwreg(HW_REG_HW_ID)")
            e(f"v_mov_b32 v{vA}, s6"); e(f"v_mov_b32 v{vA + 1}, s7")
            e(f"global_store_dwordx2 v{vZ}, v[{vA}:{vA + 1}], s[4:5] offset:{8 * 31}")

    if stamps:
        e(f"s_cmp_lg_u32 s{sW}, {sw}"); e("s_cbranch_scc1 L_end")
        stamps_out("w")
    e("s_endpgm")
    if early:
        e("L_early:")
        vm.q, ni, nc = early
        cur[0] = None
        while nc < O0 or ni < N:
            if ni < N:
                vm.wait(ni - FE)
                issue(ni); ni += 1
            k = 0
            while nc < O0 and (ni == N or nc <= ni - 1 - FE) and k < 2:
                consume(nc); nc += 1; k += 1
        pair_addr()
        if stamps == 3:
            stamp("w", "hgo")
            for k in (1, 3):
                vm.wait(O0 + k)
                stamp("w", f"wa{k}")
        vm.wait(N - 1 - tailq)
        stamp("w", "woissued")
        e("s_branch L_tail")

    if x6:
        e("L_six:")
        e("s_waitcnt lgkmcnt(0)")
        e("s_barrier")
        common_consts()
        pair_addr()

        def spin6(label, off, cond):
            e(f"s_mov_b32 s{sCNT}, 4000000")
            e(f"{label}:")
            e(f"ds_read_b32 v{vT0}, v{vZ} offset:{off}")
            e(f"s_sub_u32 s{sCNT}, s{sCNT}, 1")
            e(f"s_cbranch_scc1 {label}x")
            e("s_waitcnt lgkmcnt(0)")
            e(f"v_readfirstlane_b32 s3, v{vT0}")
            e(cond)
            e(f"s_cbranch_scc1 {label}")
            e(f"{label}x:")

        vm.q = []
        cur[0] = None
        ni = O0
        if H6:
            spin6("L_6a", L_F + 12, f"s_cmp_lt_i32 s3, {T6}")
            while ni < O0 + H6:
                if ni - FW6 >= O0:
                    vm.wait(ni - FW6)
                issue(ni); ni += 1
        if ni < N:
            spin6("L_6b", L_H, "s_cmp_eq_u32 s3, 0")
        e(f"ds_read_b32 v{vT}, v{vZ} offset:{L_T}")
        if FL:
            e("s_cmp_eq_u32 s3, 2")
        while ni < N:
            if ni - FW6 >= O0:
                vm.wait(ni - FW6)
            if FL and ni - FL in vm.q:
                e(f"s_cbranch_scc1 L_v{ni}")
                e(f"s_waitcnt vmcnt({len(vm.q) - 1 - vm.q.index(ni - FL)}) ; cond")
                e(f"L_v{ni}:")
            issue(ni); ni += 1
        vm.wait(N - 1 - tailq)
        e("s_branch L_tail")

    vD = vSC
    vE1, vE2, vP1, vP2, vP3 = 44, 45, 46, 47, 48
    vG = 8
    vS = 12
    vOP = vACC + 4
    vR1, vR2 = slot(N + 2), slot(N + 2) + 1
    vQY, vSY = slot(N), slot(N + 1)
    e("L_service:")
    if probe:
        e("s_memrealtime s[68:69]")
    e("s_nop 4")
    if prio:
        e("s_setprio 3")
    e(f"v_mov_b32 v{vZ}, 0")
    for k in range(4):
        e(f"ds_write_b32 v{vZ}, v{vZ} offset:{L_F + 4 * k}")
    e(f"ds_write_b32 v{vZ}, v{vZ} offset:{L_T + 4}")
    for o in (L_X + 512, L_X + 768, L_H):
        e(f"ds_write_b32 v{vZ}, v{vZ} offset:{o}")
    e("s_waitcnt lgkmcnt(0)")
    e("s_barrier")
    common_consts()
    e(f"s_lshl_b32 s9, s{sB}, 7")
    e(f"buffer_load_dword v{vT}, v{vZ}, s[{rWS}:{rWS + 3}], s9 offen sc1")
    if probe:
        e("s_getreg_b32 s70, hwreg(HW_REG_XCC_ID, 0, 3)"); e("s_lshl_b32 s71, s68, 3"); e("s_or_b32 s71, s71, s70")
        e("s_lshl_b32 s70, s2, 2"); e("s_add_u32 s70, s70, 1024")
        e(f"v_mov_b32 v{vT0}, s71")
        e("s_mov_b64 exec, 1")
        e(f"buffer_store_dword v{vT0}, v{vZ}, s[{rWS}:{rWS + 3}], s70 offen sc1")
        e("s_mov_b64 exec, -1")
    if fb:
        e(f"v_lshrrev_b32 v{vT0}, 4, v{vL}"); e(f"v_cmp_eq_u32 vcc, 1, v{vT0}")
        e(f"v_mov_b32 v{vT0}, 128"); e(f"v_cndmask_b32 v{vT0}, 0, v{vT0}, vcc")
        e(f"buffer_load_dword v{vPR}, v{vT0}, s[{rWS}:{rWS + 3}], 0 offen sc1")
    if at:
        e(f"s_cmp_lg_u32 s{sJB}, 0"); e("s_cbranch_scc1 L_ai")
        for k in range(20):
            e(f"v_mov_b32 v{vD + k}, 0")
        for k in range(10):
            e(f"s_mov_b32 s3, {k * ast}")
            e(f"buffer_atomic_swap_x2 {vr(vD + 2 * k, 2)}, v{vPUB}, s[{rWS}:{rWS + 3}], s3 offen sc0" + (" sc1" if asc else ""))
        e("L_ai:")
    if not cs:
        srd(rOUT, sOUT, None, 2560)
    if warm:
        srd(rV, sKV + 2, 5, 50331648)
        e(f"buffer_load_dword v{vSC}, v{vZ}, s[{rOUT}:{rOUT + 3}], 0 offen")
        e(f"buffer_load_dword v{vSC + 1}, v{vZ}, s[{rV}:{rV + 3}], 0 offen nt")
        e(f"buffer_load_dword v{vSC + 2}, v{vZ}, s[{rWO}:{rWO + 3}], 0 offen nt")
    e(f"s_mov_b32 s{sSA}, 0x0c0c0400"); e(f"s_mov_b32 s{sSB}, 0x04000c0c"); e(f"s_mov_b32 s{sMASK}, 0xffffff00")
    e(f"s_lshl_b32 s7, s{sHH}, 2"); e(f"s_add_u32 s8, s7, s{sS}")
    e(f"v_lshlrev_b32 v{vE1}, 4, v{vL}")
    e(f"v_lshrrev_b32 v{vT0}, 4, v{vL}"); e(f"v_and_b32 v{vT1}, 15, v{vL}")
    e(f"v_mul_u32_u24 v{vP1}, 768, v{vT0}"); e(f"v_lshl_add_u32 v{vP1}, v{vT1}, 4, v{vP1}")
    e(f"s_mul_i32 s3, s7, 768"); e(f"s_add_u32 s3, s3, {A1}"); e(f"v_add_u32 v{vP1}, s3, v{vP1}")
    e(f"v_lshlrev_b32 v{vP3}, 10, v{vT0}")
    e(f"s_lshl_b32 s3, s7, 10"); e(f"s_add_u32 s3, s3, {A2}"); e(f"v_add_u32 v{vP3}, s3, v{vP3}")
    if cs:
        e(f"v_mov_b32 v{vT2}, v{vT1}")
        e(f"v_lshl_add_u32 v{vP2}, v{vT2}, 4, v{vP3}")
    else:
        e(f"v_min_u32 v{vT2}, 11, v{vT1}")
        e(f"s_mul_i32 s3, s{sS}, 192"); e(f"v_lshl_add_u32 v{vP2}, v{vT2}, 4, s3"); e(f"v_add_u32 v{vP2}, v{vP2}, v{vP3}")
    e(f"v_and_b32 v{vT3}, 1, v{vT0}"); e(f"v_lshlrev_b32 v{vT3}, 1, v{vT3}")
    e(f"v_lshrrev_b32 v{vT0}, 1, v{vT0}"); e(f"v_or_b32 v{vT3}, v{vT3}, v{vT0}")
    e(f"v_lshl_add_u32 v{vMX}, v{vT1}, 2, v{vT3}")
    e(f"v_lshlrev_b32 v{vMX}, 1, v{vMX}"); e(f"v_add_u32 v{vMX}, {L_Q}, v{vMX}")
    e(f"v_lshl_add_u32 v{vLS}, v{vT2}, 2, v{vT3}")
    e(f"v_lshlrev_b32 v{vLS}, 2, v{vLS}"); e(f"v_add_u32 v{vLS}, {L_O}, v{vLS}")
    if at:
        pair_addr()
    elif cs:
        pair_addr()
        e(f"s_lshr_b32 s3, s{sJB}, 3")
        e(f"s_lshr_b32 s4, s{sJB}, 5"); e("s_mul_i32 s4, s4, 5"); e("s_bfe_u32 s5, s3, 0x10001"); e("s_mul_i32 s5, s5, 3")
        e("s_add_u32 s4, s4, s5"); e("s_and_b32 s5, s3, 1"); e("s_add_u32 s4, s4, s5"); e("s_lshl_b32 s4, s4, 6")
        e(f"s_and_b32 s5, s{sJB}, 7"); e("s_lshl_b32 s6, s5, 3"); e("s_add_u32 s4, s4, s6")
        e("s_lshl_b32 s3, s3, 13"); e("s_lshl_b32 s5, s5, 5"); e("s_add_u32 s3, s3, s5")
        e(f"s_bfe_u32 s5, s{sJB}, 0x10004"); e("s_mul_i32 s6, s5, 320"); e("s_add_u32 s6, s6, 128")
        e(f"s_and_b32 s7, s{sJB}, 15"); e(f"s_lshl_b32 s{sCNT}, s7, 2"); e(f"s_add_u32 s6, s6, s{sCNT}")
        e("s_lshl_b32 s5, s5, 14"); e("s_lshl_b32 s7, s7, 4"); e("s_add_u32 s5, s5, s7"); e("s_add_u32 s5, s5, 65536")
        e(f"s_cmp_lt_u32 s{sJB}, 64"); e("s_cselect_b32 s3, s3, s5"); e("s_cselect_b32 s4, s4, s6")
        e("s_cselect_b32 s5, 1, 0")
        e(f"s_mul_i32 s6, s{sB}, 98304"); e("s_add_u32 s3, s3, s6"); e(f"s_add_u32 s3, s3, {A3}")
        e(f"v_lshrrev_b32 v{vR1}, s5, v{vL}"); e(f"v_lshlrev_b32 v{vR1}, 8, v{vR1}")
        e(f"v_and_b32 v{vR2}, s5, v{vL}"); e(f"v_lshl_add_u32 v{vR1}, v{vR2}, 4, v{vR1}"); e(f"v_add_u32 v{vR1}, s3, v{vR1}")
        e(f"v_lshl_add_u32 v{vR2}, v{vR2}, 2, v{vT3}")
        e(f"s_mul_i32 s6, s{sB}, 640"); e("s_add_u32 s4, s4, s6")
        e(f"v_add_u32 v{vR2}, s4, v{vR2}"); e(f"v_lshlrev_b32 v{vR2}, 1, v{vR2}")
    e(f"s_mul_i32 s4, s8, 768"); e(f"s_add_u32 s4, s4, {A1}")
    e(f"s_lshl_b32 s5, s8, 10"); e(f"s_add_u32 s5, s5, {A2}")
    e(f"s_add_u32 s6, s4, {DY}"); e(f"s_add_u32 s7, s5, {DY}")
    e("s_waitcnt vmcnt(0)")
    e(f"v_and_b32 v{vT0}, 0x7f7f7f7f, v{vT}"); e(f"v_add_u32 v{vT0}, 0x01010101, v{vT0}")
    e(f"v_and_b32 v{vT}, 0x80808080, v{vT}"); e(f"v_xor_b32 v{vT}, v{vT}, v{vT0}")
    e(f"ds_write_b32 v{vZ}, v{vT} offset:{L_T}")
    if at:
        e(f"s_cmp_lg_u32 s{sJB}, 0"); e("s_cbranch_scc1 L_aj")
        e("s_mov_b64 exec, 1")
        e(f"buffer_store_dword v{vT}, v{vZ}, s[{rWS}:{rWS + 3}], s9 offen offset:256 sc1")
        e("s_mov_b64 exec, -1")
        e("L_aj:")
    if fb:
        e(f"v_and_b32 v{vT0}, 0x7f7f7f7f, v{vPR}"); e(f"v_add_u32 v{vT0}, 0x01010101, v{vT0}")
        e(f"v_and_b32 v{vPR}, 0x80808080, v{vPR}"); e(f"v_xor_b32 v{vPR}, v{vPR}, v{vT0}")
        e(f"v_and_b32 v{vPR}, s{sMASK}, v{vPR}")
        if xs:
            e(f"v_and_b32 v{vTX}, 0xfffff000, v{vPR}")
        if xd:
            e(f"v_and_b32 v{vTX}, 0xfffff000, v{vPR}")
            e("s_mov_b32 exec_lo, 0")
            e(f"v_mov_b32 v{vPR}, v{vTX}")
            e("s_mov_b32 exec_lo, -1")
    if pre:
        for r in range(4):
            e(f"v_not_b32 v{vA + r}, v{vT}")
        e(f"buffer_store_dwordx4 {vr(vA)}, v{vE1}, s[{rWS}:{rWS + 3}], s5 offen")
        e("s_mov_b32 exec_hi, 0xffff")
        e(f"buffer_store_dwordx4 {vr(vA)}, v{vE1}, s[{rWS}:{rWS + 3}], s4 offen")
        e("s_mov_b32 exec_hi, -1")
    if codepf:
        pass
    ldsspin("L_f1", L_F, vT0)
    stamp("s", "s.f1")
    for p in range(8):
        e(f"ds_read_b128 {vr(vD + 4 * p)}, v{vE1} offset:{p * 768}")
    for p in range(1, 8):
        e(f"s_waitcnt lgkmcnt({7 - p})")
        for r in range(4):
            e(f"v_add_f32 v{vD + r}, v{vD + r}, v{vD + 4 * p + r}")
    def ypub(n):
        if n == 1 or lazy:
            publish(vQY, vE1, 4, 0, 0, 1)
        if n == 2 or (lazy and n > 2):
            publish(vSY, vZ, 5, 768, 1, 1)
        if n == 3:
            publish(vOP, vE1, 5, 0, 0, 1)

    tag4(vQY, vD)
    publish(vQY, vE1, 4, 0, 0, 0 if xp else 1)
    stamp("s", "s.qpub")
    if qd:
        e(f"s_mov_b32 s{sCNT}, 4000000")
        e("L_qd:")
        e(f"ds_read_b32 v{vT0}, v{vZ} offset:{L_F + 12}")
        e(f"s_sub_u32 s{sCNT}, s{sCNT}, 1")
        e("s_cbranch_scc1 L_qdx")
        e("s_waitcnt lgkmcnt(0)")
        e(f"v_readfirstlane_b32 s3, v{vT0}")
        e(f"s_cmp_lt_u32 s3, {qd}")
        e("s_cbranch_scc1 L_qd")
        e("L_qdx:")
    l1 = [f"buffer_load_dwordx4 {vr(vD + 4 * t)}, v{vP1}, s[{rWS}:{rWS + 3}], s{sPO} offen offset:{256 * t} sc1" for t in range(3)]
    if op & 1:
        mpoll("L_p1", l1, [vD + 4 * t for t in range(3)], vT0)
    else:
        poll("L_p1", l1, [vD + 4 * t for t in range(3)], vT0, lambda: ypub(1))
    if xp and not lazy:
        ypub(1)
    stamp("s", "s.qpoll")
    for t in range(3):
        treduce(vD + 4 * t)
    for t in range(3):
        e(f"v_cvt_pk_bf16_f32 v{vD + 4 * t}, v{vD + 4 * t}, v{vD + 4 * t}")
    for t in range(3):
        e(f"ds_write_b16 v{vMX}, v{vD + 4 * t} offset:{128 * t}")
    if qf:
        e(f"ds_write_b32 v{vZ}, v{vONE} offset:{L_T + 4}")
    else:
        e("s_waitcnt lgkmcnt(0)")
        e("s_barrier")
    if at:
        e(f"global_load_dwordx4 {vr(vD + 16)}, v{vE1}, s[{sKV + 2}:{sKV + 3}]")
        e(f"global_load_dwordx4 {vr(vD + 20)}, v{vE1}, s[{sWW + 2}:{sWW + 3}]")
    for g in range(0 if x6 else 12):
        e(f"s_mov_b32 s{sOFF}, {(g // 4) * 5120}")
        e(f"buffer_load_dwordx4 {vr(slot(O0 + g))}, v{vWO}, s[{rWO}:{rWO + 3}], s{sOFF} offen offset:{(g % 4) * 1280} {fl}")
    if at:
        e(f"s_waitcnt vmcnt({0 if x6 else 12})")
        for k in range(8):
            e(f"v_and_b32 v{vD + 16 + k}, 0x7fff7fff, v{vD + 16 + k}")
        for m in (vD + 16, vD + 20):
            e(f"v_pk_max_u16 v{m}, v{m}, v{m + 1}"); e(f"v_pk_max_u16 v{m + 2}, v{m + 2}, v{m + 3}")
            e(f"v_pk_max_u16 v{m}, v{m}, v{m + 2}")
            e(f"v_lshrrev_b32 v{m + 1}, 16, v{m}"); e(f"v_and_b32 v{m}, 0xffff, v{m}"); e(f"v_max_u32 v{m}, v{m}, v{m + 1}")
            for d in ("quad_perm:[1,0,3,2]", "quad_perm:[2,3,0,1]", "row_half_mirror", "row_mirror"):
                e(f"v_max_u32_dpp v{m}, v{m}, v{m} {d} {DPPM}")
            allrows("v_max_u32", m, m + 1)
            e(f"v_lshrrev_b32 v{m}, 7, v{m}")
        e(f"v_add_u32 v{vT0}, v{vD + 16}, v{vD + 20}")
        e(f"v_sub_u32 v{vT0}, {SB + 254}, v{vT0}")
        e(f"v_min_i32 v{vT0}, 120, v{vT0}"); e(f"v_max_i32 v{vT0}, -100, v{vT0}")
        e(f"v_mov_b32 v{vFX}, 0")
        e(f"v_add_u32 v{vFX + 1}, 1023, v{vT0}"); e(f"v_lshlrev_b32 v{vFX + 1}, 20, v{vFX + 1}")
        e(f"v_sub_u32 v{vFX + 2}, 127, v{vT0}"); e(f"v_lshlrev_b32 v{vFX + 2}, 23, v{vFX + 2}")
        e(f"v_mov_b32 v{vFX + 3}, 0x2040000")
        e(f"ds_write_b128 v{vZ}, {vr(vFX)} offset:{L_S}")
        e(f"s_mov_b32 s{sCNT}, 400000")
        e("L_ak:")
        e(f"buffer_load_dword v{vT0}, v{vZ}, s[{rWS}:{rWS + 3}], s9 offen offset:256 sc1")
        e(f"s_sub_u32 s{sCNT}, s{sCNT}, 1")
        e("s_cbranch_scc1 L_akx")
        e("s_waitcnt vmcnt(0)")
        e(f"v_cmp_ne_u32 vcc, v{vT0}, v{vT}")
        e("s_cbranch_vccnz L_ak")
        e("L_akx:")
        e("s_waitcnt vmcnt(0)")
    if fb:
        e("s_and_b32 s3, s2, 7"); e("s_mul_i32 s3, s3, 4352"); e(f"s_add_u32 s3, s3, {A4}")
        e(f"s_lshr_b32 s{sK}, s2, 3")
        e(f"v_and_b32 v{vT0}, 31, v{vL}"); e(f"v_lshl_add_u32 v{vE2}, v{vT0}, 2, s3")
        e(f"s_lshl_b32 s{sSL}, s{sK}, 2"); e(f"s_add_u32 s{sSL}, s{sSL}, s3")
        if xd:
            e(f"s_add_u32 s{sDL}, s3, 128"); e(f"s_add_u32 s{sXL}, s3, {16 * 4352}")
            e(f"s_and_b32 s{sD}, s2, 7"); e(f"s_cmp_eq_u32 s{sD}, s{sK}"); e(f"s_cselect_b32 s{sLEAD}, 0xff, 0")
            e(f"v_mov_b32 v{vLIM}, 64")
            e("s_mov_b32 exec_lo, 0")
            e(f"v_mov_b32 v{vLIM}, 0"); e(f"v_mov_b32 v{vE2}, s{sDL}")
            e("s_mov_b32 exec_hi, 0x10000")
            e(f"v_mov_b32 v{vLIM}, 4096")
            e(f"s_mov_b32 exec_hi, s{sLEAD}")
            e(f"v_mov_b32 v{vLIM}, 4096")
            if xt != 1:
                e(f"v_mul_u32_u24 v{vE2}, 4352, v{vT0}"); e(f"v_add_u32 v{vE2}, {A4 + 16 * 4352}, v{vE2}")
            e("s_mov_b64 exec, -1")
        if xs:
            e(f"s_mul_i32 s{sPUB}, s{sK}, {xdn}"); e(f"s_add_u32 s{sPUB}, s{sPUB}, {xn}")
            e(f"s_cmp_lt_u32 s{sK}, {xs}"); e(f"s_cselect_b32 s{sPUB}, s{sPUB}, 0x7fffffff")
            e(f"s_mov_b32 s{sRD}, {xn + xdl}"); e(f"s_mov_b32 s{sXO}, {AX}")
            e(f"s_mov_b32 s{sBI}, 0"); e(f"s_mov_b32 s{sINT}, 0")
            e(f"s_and_b32 s{sXW}, s2, 63"); e(f"s_lshl_b32 s{sXW}, s{sXW}, 8"); e(f"s_add_u32 s{sXW}, s{sXW}, {AX}")
            e(f"v_lshlrev_b32 v{vLIM}, 8, v{vL}")
        if tb:
            e("s_getreg_b32 s3, hwreg(HW_REG_XCC_ID, 0, 1)"); e("s_cmp_eq_u32 s3, 1")
            e(f"s_cselect_b32 s{sBI}, {tb - te}, {-tb - te}")
            if xs:
                e(f"s_lshl_b32 s{sINT}, s{sBI}, {xsh}")
        e(f"s_mov_b32 s{sN}, 0")
        e(f"s_and_b32 s3, s{sK}, {(1 << IL) - 1}"); e(f"s_add_u32 s{sTH}, s3, {TH0}")
        e(f"s_mov_b32 s{sCc}, 0"); e(f"s_mov_b64 s[{sAUX}:{sAUX + 1}], 0")
        fbspin("L_f2", 1, vD, vE2)
    else:
        ldsspin("L_f2", L_F + 4, vT0)
    stamp("s", "s.f2")
    e(f"ds_read_b128 {vr(vS)}, v{vZ} offset:{L_ST}")
    e(f"ds_read_b128 {vr(vS + 4)}, v{vZ} offset:{L_ST + 16}")
    e("s_waitcnt lgkmcnt(0)")
    e(f"v_max_f32 v{vT0}, v{vS}, v{vS + 2}"); e(f"v_max3_f32 v{vT0}, v{vT0}, v{vS + 4}, v{vS + 6}")
    for w in range(4):
        e(f"v_sub_f32 v{vG + w}, v{vS + 2 * w}, v{vT0}")
    for w in range(4):
        e(f"v_exp_f32 v{vG + w}, v{vG + w}")
    e(f"v_mul_f32 v{vD + 2}, v{vG}, v{vS + 1}")
    for w in range(1, 4):
        e(f"v_fma_f32 v{vD + 2}, v{vG + w}, v{vS + 2 * w + 1}, v{vD + 2}")
    e(f"v_and_b32 v{vD}, s{sMASK}, v{vT0}"); e(f"v_sub_f32 v{vD + 1}, v{vT0}, v{vD}")
    if xc:
        e(f"s_getreg_b32 s{sMIS}, hwreg(HW_REG_XCC_ID, 0, 16)"); e(f"s_lshl_b32 s{sMIS}, s{sMIS}, 8")
        e(f"v_mov_b32 v{vD + 3}, s{sMIS}")
    else:
        e(f"v_mov_b32 v{vD + 3}, 0")
    tag4(vSY, vD)
    publish(vSY, vZ, 5, 768, 1, 0 if xp else 1)
    if fb and dp:
        fbspin("L_f2b", None, vD + 4, vE2)
        e("s_waitcnt lgkmcnt(0)")
    poll("L_p2", [f"buffer_load_dwordx4 {vr(vD)}, v{vP3}, s[{rWS}:{rWS + 3}], s{sPO} offen offset:768 sc1"], [vD], vT0,
         lambda: ypub(2))
    if xp and not lazy:
        ypub(2)
    stamp("s", "s.stpoll")
    if xc:
        e(f"v_cmp_ne_u32 vcc, s{sMIS}, v{vD + 3}")
        e(f"s_or_b32 s{sMIS}, vcc_lo, vcc_hi")
    e(f"v_add_f32 v{vD}, v{vD}, v{vD + 1}")
    e(f"v_mov_b32 v{vD + 1}, v{vD}")
    allrows("v_max_f32", vD + 1, vT0)
    e(f"v_sub_f32 v{vD}, v{vD}, v{vD + 1}"); e(f"v_exp_f32 v{vD}, v{vD}")
    e(f"v_mul_f32 v{vD}, v{vD}, v{vD + 2}")
    allrows("v_add_f32", vD, vT0)
    e(f"v_rcp_f32 v{vD}, v{vD}")
    for w in range(4):
        e(f"v_sub_f32 v{vG + w}, v{vS + 2 * w}, v{vD + 1}")
    for w in range(4):
        e(f"v_exp_f32 v{vG + w}, v{vG + w}")
    for w in range(4):
        e(f"v_mul_f32 v{vG + w}, v{vG + w}, v{vD}")
    if RT:
        fbspin("L_f3a", None, vD + 4, vE2)
        e(f"s_mov_b32 s{sCNT}, 4000000")
        e("L_f3b:")
        e(f"ds_read_b32 v{vT0}, v{vZ} offset:{L_F + 12}")
        e(f"s_sub_u32 s{sCNT}, s{sCNT}, 1")
        e("s_cbranch_scc1 L_f3bx")
        e("s_waitcnt lgkmcnt(0)")
        e(f"v_readfirstlane_b32 s3, v{vT0}")
        e(f"s_sub_i32 s3, s3, s{sCc}")
        e(f"s_cmp_lt_i32 s3, {PF}")
        e("s_cbranch_scc1 L_f3b")
        e("L_f3bx:")
        e(f"v_and_b32 v{vT0}, s{sMASK}, v{vT}")
        e(f"buffer_load_dword v{vT1}, v{vE2}, s[{rWS}:{rWS + 3}], 0 offen offset:128 sc1")
        e("s_mov_b64 exec, 1")
        e(f"buffer_store_dword v{vT0}, v{vZ}, s[{rWS}:{rWS + 3}], s{sSL} offen offset:128")
        e("s_mov_b64 exec, -1")
        e("s_waitcnt vmcnt(1)")
        e(f"v_cmp_eq_u32 vcc, v{vT1}, v{vPR}")
        e("s_bcnt1_i32_b32 s3, vcc_lo")
        e(f"s_cmp_ge_u32 s3, {RT}"); e("s_cselect_b32 s3, 2, 1"); e(f"v_mov_b32 v{vONE}, s3")
        if stamps:
            e(f"s_lshl_b64 s[{sAUX}:{sAUX + 1}], s[{sAUX}:{sAUX + 1}], 5")
            e(f"s_and_b32 s{sAUX + 1}, s{sAUX + 1}, 0xfffffff")
            e("s_bcnt1_i32_b32 s3, vcc_lo"); e("s_min_u32 s3, s3, 31"); e(f"s_or_b32 s{sAUX}, s{sAUX}, s3")
        ldsspin("L_f3", L_F + 8, vT0)
    elif fb and not dp:
        fbspin("L_f3", 2, vD + 4, vE2)
    else:
        ldsspin("L_f3", L_F + 8, vT0)
    stamp("s", "s.f3")
    for p in range(8):
        e(f"ds_read_b128 {vr(vD + 4 * p)}, v{vE1} offset:{p * 768}")
    for w in range(4):
        e(f"s_waitcnt lgkmcnt({6 - 2 * w})")
        for r in range(4):
            e(f"v_add_f32 v{vD + 8 * w + r}, v{vD + 8 * w + r}, v{vD + 8 * w + 4 + r}")
        for r in range(4):
            if w == 0:
                e(f"v_mul_f32 v{vD + r}, v{vG}, v{vD + r}")
            else:
                e(f"v_fma_f32 v{vD + r}, v{vG + w}, v{vD + 8 * w + r}, v{vD + r}")
    tag4(vOP, vD)
    publish(vOP, vE1, 5, 0, 0, 0 if xp else 1)
    if xc:
        e(f"s_cmp_eq_u32 s{sMIS}, 0"); e("s_cbranch_scc1 L_same")
        ypub(3)
        e("L_same:")
    stamp("s", "s.opub")
    nt_ = 3 if cs else 1
    if FL and not RT:
        e(f"s_cmp_ge_i32 s{sCc}, {cth}"); e("s_cselect_b32 s3, 2, 1"); e(f"v_mov_b32 v{vONE}, s3")
    l3 = [f"buffer_load_dwordx4 {vr(vD + 4 * t)}, v{vP2}, s[{rWS}:{rWS + 3}], s{sPO} offen offset:{256 * t} sc1" for t in range(nt_)]
    h3 = [f"ds_write_b32 v{vZ}, v{vONE} offset:{L_H}"] if H < 12 else []
    if op & 4:
        mpoll("L_p3", l3, [vD + 4 * t for t in range(nt_)], vT0, h3)
    else:
        poll("L_p3", l3 + h3, [vD + 4 * t for t in range(nt_)], vT0, lambda: ypub(3))
    stamp("s", "s.opoll")
    for t in range(nt_):
        treduce(vD + 4 * t)
    for t in range(nt_):
        e(f"v_cvt_pk_bf16_f32 v{vD + 4 * t}, v{vD + 4 * t}, v{vD + 4 * t}")
    for t in range(nt_):
        e(f"ds_write_b32 v{vLS}, v{vD + 4 * t} offset:{256 * t}")
    if ry == 1:
        publish(vOP, vE1, 5, 0, 0, 1)
    e("s_waitcnt lgkmcnt(0)")
    if stamps:
        for i in range(nst["s"]):
            e(f"v_mov_b32 v{vSC + 2 * i}, s{sST + 2 * i}"); e(f"v_mov_b32 v{vSC + 2 * i + 1}, s{sST + 2 * i + 1}")
    if x6:
        e("s_barrier")
        if ry == 2:
            publish(vOP, vE1, 5, 0, 0, 1)
    else:
        e("s_branch L_tail")
    e("L_reduce:")
    e("s_nop 4")
    if xp and not xc:
        publish(vOP, vE1, 5, 0, 0, 1)
    if stamps:
        for i in range(nst["s"]):
            e(f"v_readfirstlane_b32 s{sST + 2 * i}, v{vSC + 2 * i}"); e(f"v_readfirstlane_b32 s{sST + 2 * i + 1}, v{vSC + 2 * i + 1}")
    stamp("s", "s.pub")
    if at:
        pass
    elif cs:
        e(f"s_cmp_ge_u32 s{sJB}, 96")
        e("s_cbranch_scc1 L_sdone")
        if pp:
            ppoll("L_p4", lambda d: f"buffer_load_dwordx4 {vr(d)}, v{vR1}, s[{rWS}:{rWS + 3}], 0 offen sc1",
                  [slot(O0 + k) for k in range(pp)], vD, vT0)
        else:
            poll("L_p4", [f"buffer_load_dwordx4 {vr(vD)}, v{vR1}, s[{rWS}:{rWS + 3}], 0 offen sc1"], [vD], vT0)
        stamp("s", "s.fpoll")
        treduce(vD)
        e(f"v_add_f32_dpp v{vD}, v{vD}, v{vD} quad_perm:[2,3,0,1] {DPPM}")
        e(f"v_add_f32_dpp v{vD}, v{vD}, v{vD} row_ror:4 {DPPM}")
        e(f"v_add_f32_dpp v{vD}, v{vD}, v{vD} row_ror:8 {DPPM}")
        e("s_mov_b32 s3, 0x00030003")
        e(f"s_cmp_lt_u32 s{sJB}, 64")
        e("s_cbranch_scc1 L_r8")
        e("s_mov_b32 s3, 0x00010001")
        e(f"v_add_f32_dpp v{vD}, v{vD}, v{vD} quad_perm:[1,0,3,2] {DPPM}")
        e("L_r8:")
        e(f"v_cvt_pk_bf16_f32 v{vD}, v{vD}, v{vD}")
        e("s_mov_b32 exec_lo, s3"); e("s_mov_b32 exec_hi, s3")
        e(f"buffer_store_short v{vD}, v{vR2}, s[{rOUT}:{rOUT + 3}], 0 offen")
    else:
        e(f"s_cmp_ge_u32 s{sJB}, 80")
        e("s_cbranch_scc1 L_sdone")
        e(f"v_lshrrev_b32 v{vT0}, 1, v{vL}"); e(f"v_mul_u32_u24 v{vP1}, {2560 * fq}, v{vT0}")
        if fq > 1:
            e(f"s_mul_i32 s3, s{sJB}, {(1 << 16) // (80 // fq) + 1}"); e("s_lshr_b32 s3, s3, 16"); e("s_mul_i32 s3, s3, 2560")
            e(f"v_add_u32 v{vP1}, s3, v{vP1}")
        e(f"v_and_b32 v{vT1}, 1, v{vL}"); e(f"v_lshl_add_u32 v{vP1}, v{vT1}, 4, v{vP1}")
        e(f"s_mul_i32 s3, s{sB}, {128 * 2560}"); e(f"s_lshl_b32 s4, s{sJB}, 5"); e("s_add_u32 s3, s3, s4"); e(f"s_add_u32 s3, s3, {A3}")
        e(f"v_add_u32 v{vP1}, s3, v{vP1}")
        for k in range(1, 4):
            e(f"s_mov_b32 s{4 + k}, {k * 32 * 2560 * fq}")
        e(f"v_bfe_u32 v{vT0}, v{vL}, 4, 1"); e(f"v_lshlrev_b32 v{vT0}, 1, v{vT0}")
        e(f"v_lshrrev_b32 v{vT2}, 5, v{vL}"); e(f"v_or_b32 v{vT0}, v{vT0}, v{vT2}")
        e(f"v_lshl_add_u32 v{vT0}, v{vT1}, 2, v{vT0}")
        e(f"s_mul_i32 s3, s{sB}, 640"); e(f"s_lshl_b32 s4, s{sJB}, 3"); e("s_add_u32 s3, s3, s4")
        e(f"v_add_u32 v{vP2}, s3, v{vT0}"); e(f"v_lshlrev_b32 v{vP2}, 1, v{vP2}")
        poll("L_p4", [f"buffer_load_dwordx4 {vr(vD + 4 * k)}, v{vP1}, s[{rWS}:{rWS + 3}], {'0' if k == 0 else 's' + str(4 + k)} offen sc1" for k in range(4 // fq)],
             [vD + 4 * k for k in range(4 // fq)], vT0)
        stamp("s", "s.fpoll")
        for r in range(4):
            e(f"v_add_f32 v{vD + r}, v{vD + r}, v{vD + 4 + r}")
            e(f"v_add_f32 v{vD + 8 + r}, v{vD + 8 + r}, v{vD + 12 + r}")
        for r in range(4):
            e(f"v_add_f32 v{vD + r}, v{vD + r}, v{vD + 8 + r}")
        treduce(vD)
        e(f"v_add_f32_dpp v{vD}, v{vD}, v{vD} quad_perm:[2,3,0,1] {DPPM}")
        e(f"v_add_f32_dpp v{vD}, v{vD}, v{vD} row_ror:4 {DPPM}")
        e(f"v_add_f32_dpp v{vD}, v{vD}, v{vD} row_ror:8 {DPPM}")
        e(f"v_cvt_pk_bf16_f32 v{vD}, v{vD}, v{vD}")
        e("s_mov_b32 exec_lo, 0x00030003"); e("s_mov_b32 exec_hi, 0x00030003")
        e(f"buffer_store_short v{vD}, v{vP2}, s[{rOUT}:{rOUT + 3}], 0 offen")
    if not at:
        e(f"s_cmp_lg_u32 s{sJB}, 0")
        e("s_cbranch_scc1 L_pb" if probe >= 6 else "s_cbranch_scc1 L_sdone")
        e("s_mov_b64 exec, 1")
        e(f"buffer_store_dword v{vT}, v{vZ}, s[{rWS}:{rWS + 3}], s9 offen sc1")
    if probe:
        e("L_pb:")
        e("s_memrealtime s[72:73]")
        e("s_mov_b64 exec, -1")
        if probe < 6:
            e(f"s_cmp_lg_u32 s{sB}, 0"); e("s_cbranch_scc1 L_sdone")
        e(f"v_lshlrev_b32 v{vT0}, 4, v{vL}")
        e(f"buffer_load_dwordx4 {vr(vA)}, v{vT0}, s[{rWS}:{rWS + 3}], 0 offen offset:1024 sc1")
        e("s_waitcnt vmcnt(0) lgkmcnt(0)")
        e("s_lshl_b32 s74, s68, 3")
        e("s_mov_b32 s75, 0x7fffffff"); e("s_mov_b32 s76, 0x80000000"); e("s_mov_b32 s77, 0"); e("s_mov_b32 s78, 0"); e("s_mov_b32 s79, 0")
        e("L_pr:")
        for r in range(4):
            e(f"v_readlane_b32 s80, v{vA + r}, s79")
            e("s_nop 3")
            e("s_and_b32 s81, s80, 7"); e("s_andn2_b32 s80, s80, 7"); e("s_sub_u32 s80, s80, s74"); e("s_ashr_i32 s80, s80, 3")
            e("s_min_i32 s75, s75, s80"); e("s_max_i32 s76, s76, s80"); e("s_add_i32 s77, s77, s80")
            e("s_sub_i32 s82, 0, s80"); e("s_cmp_ge_u32 s81, 4"); e("s_cselect_b32 s80, s80, s82"); e("s_add_i32 s78, s78, s80")
        e("s_add_u32 s79, s79, 1"); e("s_cmp_lt_u32 s79, 64"); e("s_cbranch_scc1 L_pr")
        if probe == 1:
            e("s_ashr_i32 s77, s77, 8"); e("s_sub_i32 s80, s76, s77")
        elif probe == 2:
            e("s_ashr_i32 s78, s78, 7"); e("s_add_i32 s80, s78, 100")
        elif probe == 7:
            e("s_ashr_i32 s77, s77, 8")
            e("s_sub_u32 s80, s72, s68"); e("s_sub_i32 s80, s80, s77"); e("s_sub_i32 s80, s80, 3200")
        elif probe in (3, 6):
            e("s_sub_u32 s80, s72, s68"); e("s_sub_i32 s80, s80, s75"); e("s_sub_i32 s80, s80, 3200")
        elif probe == 4:
            e("s_sub_u32 s80, s72, s68"); e("s_sub_i32 s80, s80, s76"); e("s_sub_i32 s80, s80, 3200")
        else:
            e("s_mov_b32 s80, 0")
        e(f"s_mul_i32 s80, s80, {amp}"); e("s_max_i32 s80, s80, 0"); e("s_min_i32 s80, s80, 8000"); e("s_add_u32 s80, s80, 1000")
        e("L_ps:")
        e("s_memrealtime s[82:83]"); e("s_waitcnt lgkmcnt(0)"); e("s_sub_u32 s82, s82, s72")
        e("s_cmp_lt_u32 s82, s80"); e("s_cbranch_scc1 L_ps")
    e("L_sdone:")
    e("s_mov_b64 exec, -1")
    if stamps:
        e("s_waitcnt vmcnt(0)")
    stamp("s", "s.end")
    stamps_out("s")
    e("L_end:")
    e("s_endpgm")

    body, nops = resolve(L)
    nv = vRING + 4 * R
    out = [HDR.rstrip("\n"),
           f"; @launch grid=(256,1,1) block=({384 if x6 else 320},1,1) lds={LDS}"]
    if stamps:
        out.append("; @stamps " + ",".join(f"{i}={n}" for i, n in names))
    out += ['.amdgcn_target "amdgcn-amd-amdhsa--gfx950"', ".text", f".globl {KN}", ".p2align 8",
            f".type {KN},@function", f"{KN}:"]
    out += [("" if t.endswith(":") else "    ") + t for t in body]
    out += ['.section .rodata,"a"', ".p2align 6", f".amdhsa_kernel {KN}",
            f"  .amdhsa_next_free_vgpr {nv}", "  .amdhsa_next_free_sgpr 102",
            f"  .amdhsa_accum_offset {(nv + 3) // 4 * 4}",
            "  .amdhsa_group_segment_fixed_size 0", "  .amdhsa_kernarg_size 104",
            "  .amdhsa_user_sgpr_count 2", "  .amdhsa_user_sgpr_kernarg_segment_ptr 1",
            "  .amdhsa_system_sgpr_workgroup_id_x 1", ".end_amdhsa_kernel"]
    return "\n".join(out) + "\n", nops


if __name__ == "__main__":
    outp = sys.argv[1]
    kw = {}
    for a in sys.argv[2:]:
        k, v = a.split("=")
        kw[k] = int(v) if v.lstrip("-").isdigit() else v.replace("+", " ")
    s, nops = gen(**kw)
    open(outp, "w").write(s)
    print(outp, "lines", s.count("\n"), "nop states", nops)
```

```python
import sys, math, struct
from asmlib import resolve, VM

KN = "concat_heads__mha_block_cached__gqa_block_cached__decode_kernel"
HDR = open("concat_heads__mha_block_cached__gqa_block_cached__decode.s.ref").read().split("; Override launch")[0]

A1 = 4096
A2 = A1 + 256 * 768
A3 = A2 + 256 * 1024
A4 = A3 + 256 * 2560
AY = A4 + 256 * 4352
DY = AY - A1
WS_USED = AY + A3 - A1
AA = (WS_USED + 4095) // 4096 * 4096
L_P = 0
L_Q = 6144
L_T = 6528
L_F = 6544
L_ST = 6560
L_O = 6592
L_X = 7360
L_H = L_X + 516
L_K = L_X + 520
L_S = L_X + 528
LDS = 8448

sS, sHH, sB, sH, sW, sJB = 10, 11, 12, 13, 14, 15
sX, sMASK, sCNT = 16, 18, 19
sKV, sWW, sOUT, sWS = 20, 24, 28, 30
rX, rWQ, rK, rV, rWO, rWS, rOUT = 32, 36, 40, 44, 48, 52, 56
sOFF, sC = 60, 61
sSEL = 62
sSA, sSB = 66, 67
sROT = 100
sPO = 101
rDBG = 96
sLN = 96
sWM = 97
sRH = 98
sMIS = 99
sST = 68

vL, vKV, vWQ, vWO = 0, 1, 2, 3
vM = 4
vQ = 8
vACC = 20
vA = 32
vT = 36
vPW, vQR, vOR, vPUB = 37, 38, 39, 40
vMX, vLS, vNM = 41, 42, 43
vX = 44
vT0, vT1, vT2, vT3 = 49, 50, 51, 52
vZ, vONE, vPR = 53, 54, 55
vSC = 56
vRING = 88


def f2u(x):
    return struct.unpack("<I", struct.pack("<f", x))[0]


def gen(pq=0, tk=6, HW=0, ry=0, ofl='', x6=0, T6=252, H6=0, FW6=6, EH=99, FE=14, at=0, ast=34816, acs=4352, asc=0, SB=34, SM=13, nraw=0, te=0, xo=0, FX=0, FX2=0, XT=3, GX=0, RT=0, PF=250, probe=0, amp=10, qd=0, op=0, osl=0, mp=0, xf=0, FL=0, cth=1, xs=0, xn=2, xdn=4, xdl=2, xa=1, xi=0, xsh=4, BM=20, tb=0, ns='', pp=0, pth=8, dry=0, cs=0, sw=0, xc=0, H=99, FW=12, dp=0, fq=1, nost=0, lazy=0, xt=0, xd=0, xg=1, xb=18, XM=64, F=6, F0=6, F2=0, G2=99, rot=0, R=27, fl="nt", stamps=0, prio=1, codepf=0, pk=2, warm=0, qf=0, fb=0, FH=8, FH2=0, G3=99, TH0=48, THL=232, ksh=1, CM=4, bias=1, cb=0, xp=0, N0=32, IL=4, pre=0, nopoll=0, skip=0, dummy=0):
    L = []
    e = L.append
    names = []
    nst = {"w": 0, "s": 0}

    def stamp(who, name):
        if not stamps or name in ns.split() or (stamps == 2 and name in ("woissued", "oready", "pub")):
            return
        for j, nm in names:
            if nm == name:
                j -= 0 if who == "w" else 14
                e(f"s_memrealtime s[{sST + 2 * j}:{sST + 2 * j + 1}]")
                return
        i = nst[who]
        assert i < 14
        nst[who] += 1
        e(f"s_memrealtime s[{sST + 2 * i}:{sST + 2 * i + 1}]")
        names.append((i + (0 if who == "w" else 14), name))

    def srd(d, base, off, size):
        if off is None:
            e(f"s_mov_b32 s{d}, s{base}"); e(f"s_mov_b32 s{d + 1}, s{base + 1}")
            e(f"s_mov_b32 s{d + 2}, {size}")
        else:
            e(f"s_add_u32 s{d}, s{base}, s{off}"); e(f"s_addc_u32 s{d + 1}, s{base + 1}, 0")
            e(f"s_sub_u32 s{d + 2}, {size}, s{off}")
        e(f"s_mov_b32 s{d + 3}, 0x20000")

    def slot(i):
        return vRING + 4 * (i % R)

    def vr(a, n=4):
        return f"v[{a}:{a + n - 1}]"

    DPPM = "row_mask:0xf bank_mask:0xf"

    def allrows(op, v, t):
        e(f"v_mov_b32 v{t}, v{v}")
        e(f"v_permlane16_swap_b32 v{v}, v{t}")
        e(f"{op} v{v}, v{v}, v{t}")
        e(f"v_mov_b32 v{t}, v{v}")
        e(f"v_permlane32_swap_b32 v{v}, v{t}")
        e(f"{op} v{v}, v{v}, v{t}")

    def treduce(d):
        e(f"v_permlane32_swap_b32 v{d}, v{d + 1}")
        e(f"v_permlane32_swap_b32 v{d + 2}, v{d + 3}")
        e(f"v_add_f32 v{d}, v{d}, v{d + 1}")
        e(f"v_add_f32 v{d + 2}, v{d + 2}, v{d + 3}")
        e(f"v_permlane16_swap_b32 v{d}, v{d + 2}")
        e(f"v_add_f32 v{d}, v{d}, v{d + 2}")

    def tag4(dst, src):
        for r in range(4):
            e(f"v_perm_b32 v{dst + r}, v{src + r}, v{vT}, s{sSEL + r}")

    def poll(label, loads, units, tmp, dual=None):
        e(f"s_mov_b32 s{sCNT}, {1 if nopoll >> (4 - int(label[-1])) & 1 else 400000}")
        if dual:
            e(f"s_mov_b32 s{sPO}, {0 if xp else DY}")
        e(f"{label}:")
        e("s_nop 1")
        for t in loads:
            if not skip >> (4 - int(label[-1])) & 1:
                e(t)
        e(f"s_sub_u32 s{sCNT}, s{sCNT}, 1")
        if dual and xp:
            e(f"s_cmp_lg_u32 s{sCNT}, {400000 - N0}"); e(f"s_cbranch_scc1 {label}_y")
            dual()
            e(f"{label}_y:")
            e(f"s_cmp_lt_u32 s{sCNT}, {400000 - N0}"); e(f"s_cselect_b32 s3, {DY}, 0"); e(f"s_xor_b32 s{sPO}, s{sPO}, s3")
        e("s_waitcnt vmcnt(0)")
        for k, u in enumerate(units):
            e(f"v_perm_b32 v{tmp}, v{u + 1}, v{u}, s{sSA}")
            e(f"v_perm_b32 v{tmp + 1}, v{u + 3}, v{u + 2}, s{sSB}")
            e(f"v_or_b32 v{tmp}, v{tmp}, v{tmp + 1}")
            if k == 0:
                e(f"v_xor_b32 v{tmp + 2}, v{tmp}, v{vT}")
            else:
                e(f"v_xor_b32 v{tmp}, v{tmp}, v{vT}")
                e(f"v_or_b32 v{tmp + 2}, v{tmp + 2}, v{tmp}")
        e(f"v_cmp_ne_u32 vcc, 0, v{tmp + 2}")
        e(f"s_cmp_eq_u32 s{sCNT}, 0")
        e(f"s_cbranch_scc1 {label}_x")
        e(f"s_cbranch_vccnz {label}")
        e(f"{label}_x:")
        for u in units:
            for r in range(4):
                e(f"v_and_b32 v{u + r}, s{sMASK}, v{u + r}")

    def ppoll(label, load, bufs, res, tmp):
        def check(src):
            if src != res:
                for r in range(4):
                    e(f"v_mov_b32 v{res + r}, v{src + r}")
            e(f"v_perm_b32 v{tmp}, v{src + 1}, v{src}, s{sSA}")
            e(f"v_perm_b32 v{tmp + 1}, v{src + 3}, v{src + 2}, s{sSB}")
            e(f"v_or_b32 v{tmp}, v{tmp}, v{tmp + 1}")
            e(f"v_cmp_ne_u32 vcc, v{tmp}, v{vT}")
        n = len(bufs)
        e(f"s_mov_b32 s{sCNT}, 400000")
        e(f"{label}:")
        e(load(res))
        e("s_waitcnt vmcnt(0)")
        check(res)
        e(f"s_sub_u32 s{sCNT}, s{sCNT}, 1")
        e(f"s_cbranch_scc1 {label}_x")
        e("s_and_b64 exec, exec, vcc")
        e(f"s_cbranch_scc0 {label}_x")
        if n > 1:
            e("s_bcnt1_i32_b64 s3, exec")
            e(f"s_cmp_gt_u32 s3, {pth}")
        e(f"s_cbranch_scc1 {label}")
        if n > 1:
            for k in range(n - 1):
                e(load(bufs[k]))
            e(f"{label}_f:")
            for k in range(n):
                e(load(bufs[(k + n - 1) % n]))
                e(f"s_waitcnt vmcnt({n - 1})")
                check(bufs[k])
                e("s_and_b64 exec, exec, vcc")
                e(f"s_cbranch_scc0 {label}_x")
            e(f"s_sub_u32 s{sCNT}, s{sCNT}, 1")
            e(f"s_cbranch_scc0 {label}_f")
        e(f"{label}_x:")
        e("s_mov_b64 exec, -1")
        for r in range(4):
            e(f"v_and_b32 v{res + r}, s{sMASK}, v{res + r}")

    def mpoll(label, loads, units, tmp, first=()):
        e(f"s_mov_b32 s{sCNT}, 400000")
        e(f"s_mov_b32 s{sPO}, {DY}")
        for t in loads:
            e(t)
        for t in first:
            e(t)
        e(f"{label}:")
        e("s_waitcnt vmcnt(0)")
        for k, u in enumerate(units):
            e(f"v_perm_b32 v{tmp}, v{u + 1}, v{u}, s{sSA}")
            e(f"v_perm_b32 v{tmp + 1}, v{u + 3}, v{u + 2}, s{sSB}")
            e(f"v_or_b32 v{tmp}, v{tmp}, v{tmp + 1}")
            if k == 0:
                e(f"v_xor_b32 v{tmp + 2}, v{tmp}, v{vT}")
            else:
                e(f"v_xor_b32 v{tmp}, v{tmp}, v{vT}")
                e(f"v_or_b32 v{tmp + 2}, v{tmp + 2}, v{tmp}")
        e(f"v_cmp_ne_u32 vcc, 0, v{tmp + 2}")
        e(f"s_sub_u32 s{sCNT}, s{sCNT}, 1")
        e(f"s_cbranch_scc1 {label}_x")
        e("s_and_b64 exec, exec, vcc")
        e(f"s_cbranch_scc0 {label}_x")
        if osl:
            e(f"s_sleep {osl}")
        for t in loads:
            e(t)
        e(f"s_branch {label}")
        e(f"{label}_x:")
        e("s_mov_b64 exec, -1")
        for u in units:
            for r in range(4):
                e(f"v_and_b32 v{u + r}, s{sMASK}, v{u + r}")

    def publish(src, vaddr, sx, off, one, y):
        o = f" offset:{off}" if off else ""
        e("s_mov_b64 exec, 1" if one else "s_mov_b32 exec_hi, 0xffff")
        e(f"buffer_store_dwordx4 {vr(src)}, v{vaddr}, s[{rWS}:{rWS + 3}], s{sx + 2 * y} offen{o}" + (" sc1" if y else ""))
        e("s_mov_b64 exec, -1")

    def ldsspin(label, off, tmp):
        e(f"s_mov_b32 s{sCNT}, 4000000")
        e(f"{label}:")
        e(f"ds_read_b32 v{tmp}, v{vZ} offset:{off}")
        e(f"s_sub_u32 s{sCNT}, s{sCNT}, 1")
        e("s_waitcnt lgkmcnt(0)")
        e(f"v_readfirstlane_b32 s3, v{tmp}")
        e(f"s_cmp_eq_u32 s{sCNT}, 0")
        e(f"s_cbranch_scc1 {label}_x")
        e("s_cmp_lt_u32 s3, 4")
        e(f"s_cbranch_scc1 {label}")
        e(f"{label}_x:")

    sN, sSL, sCc, sTH, sP, sK, sAUX = 32, 33, 34, 35, 36, 37, 38
    sD, sXL, sDL, sLEAD = 40, 41, 42, 43
    vLIM, vTX = 37, 38
    sPUB, sRD, sXO, sBI, sTM, sINT, sXW = 40, 41, 42, 43, 44, 46, 47
    AX = A4 + 16 * 4352

    def fbspin(label, k, tmp, vad):
        e(f"s_mov_b32 s{sCNT}, 4000000")
        e(f"{label}:")
        e(f"ds_read_b128 {vr(tmp)}, v{vZ} offset:{L_F}")
        e(f"s_sub_u32 s{sCNT}, s{sCNT}, 1")
        e(f"s_cbranch_scc1 {label}_x")
        if k is None:
            e(f"s_cmp_eq_u32 s{sTH}, 0x7fffffff")
            e(f"s_cbranch_scc1 {label}_x")
        e("s_waitcnt lgkmcnt(0)")
        if k is not None:
            e(f"v_readfirstlane_b32 s3, v{tmp + k}")
        e(f"v_readfirstlane_b32 s{sP}, v{tmp + 3}")
        if k is not None:
            e("s_cmp_ge_u32 s3, 4")
            e(f"s_cbranch_scc1 {label}_x")
        e(f"s_sub_i32 s{sP}, s{sP}, s{sCc}")
        e(f"s_cmp_lt_i32 s{sP}, s{sTH}")
        e(f"s_cbranch_scc1 {label}")
        e(f"s_sub_i32 s{sK}, s{sP}, s{sTH}"); e(f"s_lshr_b32 s{sK}, s{sK}, {IL}"); e(f"s_add_u32 s{sK}, s{sK}, 1")
        e(f"s_add_u32 s{sN}, s{sN}, s{sK}")
        if xs:
            e(f"s_cmp_ge_u32 s{sN}, s{sPUB}"); e(f"s_cbranch_scc0 {label}_a")
            e(f"s_memrealtime s[{sTM}:{sTM + 1}]")
            e(f"{label}_a:")
        e(f"v_and_b32 v{tmp}, s{sMASK}, v{vT}"); e(f"v_or_b32 v{tmp + 1}, s{sN}, v{tmp}")
        e(f"buffer_load_dword v{tmp + 2}, v{vad}, s[{rWS}:{rWS + 3}], 0 offen sc1")
        e("s_mov_b64 exec, 1")
        if nost:
            e(f"buffer_load_dword v{tmp + 1}, v{vZ}, s[{rWS}:{rWS + 3}], s{sSL} offen sc1")
        else:
            e(f"buffer_store_dword v{tmp + 1}, v{vZ}, s[{rWS}:{rWS + 3}], s{sSL} offen")
        e("s_mov_b64 exec, -1")
        e(f"s_lshl_b32 s{sK}, s{sK}, {IL}"); e(f"s_add_u32 s{sTH}, s{sTH}, s{sK}")
        e(f"s_cmp_gt_i32 s{sTH}, {THL + (1 << IL) - 1}"); e(f"s_cselect_b32 s{sTH}, 0x7fffffff, s{sTH}")
        if xs:
            e(f"s_cmp_ge_u32 s{sN}, s{sRD}"); e(f"s_cbranch_scc0 {label}_b")
            e("s_mov_b64 exec, 0xff")
            e(f"buffer_load_dword v{tmp + 3}, v{vLIM}, s[{rWS}:{rWS + 3}], s{sXO} offen sc1")
            e(f"s_add_u32 s{sRD}, s{sRD}, {xdn}"); e(f"s_add_u32 s{sXO}, s{sXO}, 2048")
            e(f"s_cmp_ge_u32 s{sXO}, {AX + 2048 * xs}"); e(f"s_cselect_b32 s{sRD}, 0x7fffffff, s{sRD}")
            e("s_and_b32 s3, s2, 7")
            e("s_waitcnt vmcnt(0)")
            e(f"v_xor_b32 v{tmp + 3}, v{tmp + 3}, v{vTX}")
            e(f"v_cmp_gt_u32 vcc, 0x1000, v{tmp + 3}")
            e(f"v_readlane_b32 s3, v{tmp + 3}, s3")
            e("s_cmp_eq_u32 vcc_lo, 0xff"); e(f"s_cbranch_scc0 {label}_b")
            e(f"v_sub_u32 v{tmp + 3}, s3, v{tmp + 3}")
            e(f"v_bfe_i32 v{tmp + 3}, v{tmp + 3}, 0, 12")
            for m in ("quad_perm:[1,0,3,2]", "quad_perm:[2,3,0,1]", "row_half_mirror"):
                e(f"v_add_u32_dpp v{tmp + 3}, v{tmp + 3}, v{tmp + 3} {m} {DPPM}")
            e(f"v_readfirstlane_b32 s3, v{tmp + 3}")
            if xi:
                e(f"s_mul_i32 s{sBI}, s3, {xi}"); e(f"s_add_i32 s{sINT}, s{sINT}, s{sBI}")
                e(f"s_min_i32 s{sINT}, s{sINT}, {BM << xsh}"); e(f"s_max_i32 s{sINT}, s{sINT}, {-(BM << xsh)}")
                e(f"s_mul_i32 s3, s3, {xa}"); e(f"s_add_i32 s3, s3, s{sINT}")
            else:
                e(f"s_mul_i32 s3, s3, {xa}")
                if tb:
                    e(f"s_add_i32 s3, s3, s{sINT}")
            e(f"s_ashr_i32 s3, s3, {xsh}")
            e(f"s_min_i32 s3, s3, {BM}"); e(f"s_max_i32 s{sBI}, s3, {-BM}")
            e(f"{label}_b:")
            e("s_mov_b64 exec, -1")
        e("s_waitcnt vmcnt(1)")
        e(f"v_xor_b32 v{tmp + 2}, v{tmp + 2}, v{vPR}")
        e(f"v_cmp_gt_u32 vcc, {'v' + str(vLIM) if xd else 64}, v{tmp + 2}")
        e(f"v_cndmask_b32 v{tmp + 2}, 0, v{tmp + 2}, vcc")
        for m in ("quad_perm:[1,0,3,2]", "quad_perm:[2,3,0,1]", "row_half_mirror", "row_mirror"):
            e(f"v_add_u32_dpp v{tmp + 2}, v{tmp + 2}, v{tmp + 2} {m} {DPPM}")
        e(f"v_readlane_b32 s{sK}, v{tmp + 2}, 0"); e(f"v_readlane_b32 s3, v{tmp + 2}, 16")
        e(f"s_add_u32 s{sK}, s{sK}, s3")
        if xd:
            e(f"v_readlane_b32 s{sD}, v{tmp + 2}, 48")
            e(f"s_cmp_eq_u32 s{sLEAD}, 0"); e(f"s_cbranch_scc1 {label}_n")
            e(f"v_readlane_b32 s3, v{tmp + 2}, 32")
            e(f"v_or_b32 v{tmp}, s{sK}, v{vTX}")
            e("s_lshr_b32 s3, s3, 3"); e(f"s_add_u32 s3, s3, {2048 + xb}"); e(f"s_sub_u32 s3, s3, s{sK}")
            e(f"s_min_u32 s3, s3, {2048 + XM}"); e(f"s_max_u32 s3, s3, {2048 - XM}")
            e(f"s_and_b32 s{sD}, vcc_hi, 0xff"); e(f"s_cmp_eq_u32 s{sD}, 0xff")
            e(f"s_cselect_b32 s{sD}, s3, 2048")
            e(f"v_or_b32 v{tmp + 1}, s{sD}, v{vTX}")
            if xf:
                e(f"v_lshlrev_b32 v{tmp + 3}, 2, v{vL}")
                e("s_mov_b32 exec_hi, 0")
                e(f"buffer_store_dword v{tmp}, v{tmp + 3}, s[{rWS}:{rWS + 3}], s{sXL} offen sc1")
            e("s_mov_b64 exec, 1")
            if xt != 2 and not xf:
                e(f"buffer_store_dword v{tmp}, v{vZ}, s[{rWS}:{rWS + 3}], s{sXL} offen sc1")
            e(f"buffer_store_dword v{tmp + 1}, v{vZ}, s[{rWS}:{rWS + 3}], s{sDL} offen")
            e("s_mov_b64 exec, -1")
            e(f"{label}_n:")
            e(f"s_cmp_eq_u32 s{sD}, 0"); e(f"s_cselect_b32 s{sD}, 2048, s{sD}")
            e(f"s_sub_i32 s{sD}, s{sD}, 2048")
            if xg:
                e(f"s_ashr_i32 s{sD}, s{sD}, {xg}")
            e(f"s_add_i32 s{sK}, s{sK}, s{sD}")
        if xs:
            e(f"s_cmp_ge_u32 s{sN}, s{sPUB}"); e(f"s_cbranch_scc0 {label}_c")
            e(f"s_mul_i32 s3, s{sK}, 43"); e("s_lshr_b32 s3, s3, 4")
            e("s_waitcnt lgkmcnt(0)")
            e(f"s_sub_u32 s3, s{sTM}, s3"); e("s_and_b32 s3, s3, 0xfff")
            e(f"v_or_b32 v{tmp}, s3, v{vTX}")
            if xf:
                e(f"v_lshlrev_b32 v{tmp + 3}, 2, v{vL}")
                e("s_mov_b32 exec_hi, 0")
                e(f"buffer_store_dword v{tmp}, v{tmp + 3}, s[{rWS}:{rWS + 3}], s{sXW} offen sc1")
            else:
                e("s_mov_b64 exec, 1")
                e(f"buffer_store_dword v{tmp}, v{vZ}, s[{rWS}:{rWS + 3}], s{sXW} offen sc1")
            e("s_mov_b64 exec, -1")
            e(f"s_mov_b32 s{sPUB}, 0x7fffffff")
            e(f"{label}_c:")
            e(f"s_add_i32 s{sK}, s{sK}, s{sBI}")
        if tb and not xs:
            e(f"s_add_i32 s{sK}, s{sK}, s{sBI}")
        if IL > 3:
            e(f"s_lshl_b32 s{sK}, s{sK}, {IL - 3}")
        e(f"s_lshl_b32 s3, s{sP}, 2")
        e(f"s_sub_i32 s3, s{sK}, s3")
        e(f"s_add_u32 s3, s3, {4 * TH0 - 2 + (2 << ksh) + cb}")
        e(f"s_ashr_i32 s3, s3, {2 + ksh}")
        e(f"s_min_i32 s3, s3, {CM}"); e(f"s_max_i32 s3, s3, {-CM}")
        e(f"s_sub_i32 s{sK}, s3, s{sCc}"); e(f"s_mov_b32 s{sCc}, s3")
        e(f"v_mov_b32 v{tmp}, s{sK}")
        e("s_mov_b64 exec, 1")
        e(f"ds_add_u32 v{vZ}, v{tmp} offset:{L_F + 12}")
        e("s_mov_b64 exec, -1")
        if stamps:
            e(f"s_lshl_b64 s[{sAUX}:{sAUX + 1}], s[{sAUX}:{sAUX + 1}], 5")
            e(f"s_and_b32 s{sAUX + 1}, s{sAUX + 1}, 0xfffffff")
            e("s_add_u32 s3, s3, 16"); e(f"s_or_b32 s{sAUX}, s{sAUX}, s3")
        e(f"s_branch {label}")
        e(f"{label}_x:")

    e("s_cmp_ge_u32 s2, 256"); e("s_cbranch_scc1 L_end")
    if stamps:
        e(f"s_memrealtime s[{sST}:{sST + 1}]")
        nst["w"] = 1; nst["s"] = 1
        names.append((0, "start")); names.append((14, "s.start"))
    if mp:
        e(f"s_and_b32 s{sS}, s2, 3"); e("s_lshr_b32 s4, s2, 3"); e("s_bfe_u32 s3, s2, 0x10002")
        e("s_lshl_b32 s3, s3, 5"); e(f"s_add_u32 s{sHH}, s4, s3")
    else:
        if xo:
            e(f"s_add_u32 s3, s2, {xo}"); e("s_and_b32 s3, s3, 7")
        else:
            e("s_and_b32 s3, s2, 7")
        e("s_lshr_b32 s4, s2, 3"); e(f"s_and_b32 s{sS}, s4, 3")
        e("s_lshr_b32 s4, s4, 2"); e("s_lshl_b32 s4, s4, 3"); e(f"s_add_u32 s{sHH}, s4, s3")
    e(f"s_lshr_b32 s{sB}, s{sHH}, 5"); e(f"s_mul_i32 s7, s{sB}, 40")
    e("s_add_u32 s8, s0, s7"); e("s_addc_u32 s9, s1, 0")
    e(f"s_load_dwordx4 s[{sWW}:{sWW + 3}], s[8:9], 24")
    e(f"s_load_dwordx2 s[{sX}:{sX + 1}], s[8:9], 0")
    e(f"s_load_dwordx4 s[{sKV}:{sKV + 3}], s[8:9], 8")
    e(f"s_load_dwordx2 s[{sOUT}:{sOUT + 1}], s[0:1], 80")
    e(f"s_load_dwordx2 s[{sWS}:{sWS + 1}], s[0:1], 96")
    e(f"v_lshrrev_b32 v{vT0}, 6, v0")
    e(f"v_and_b32 v{vL}, 63, v0")
    e(f"v_readfirstlane_b32 s{sW}, v{vT0}")
    e(f"s_and_b32 s{sH}, s{sHH}, 31")
    e(f"s_lshl_b32 s{sJB}, s{sH}, 2"); e(f"s_add_u32 s{sJB}, s{sJB}, s{sS}")
    e(f"v_lshrrev_b32 v{vT0}, 3, v{vL}")
    e(f"v_and_b32 v{vT1}, 7, v{vL}")
    e(f"v_lshlrev_b32 v{vT2}, 4, v{vT1}")
    e(f"v_mul_u32_u24 v{vWQ}, 12288, v{vT0}"); e(f"v_add_u32 v{vWQ}, v{vWQ}, v{vT2}")
    e(f"v_mul_u32_u24 v{vKV}, 384, v{vT0}"); e(f"v_add_u32 v{vKV}, v{vKV}, v{vT2}")
    e(f"v_lshlrev_b32 v{vT3}, 1, v{vT0}")
    e(f"v_add_u32 v{vQR}, {L_Q}, v{vT2}")
    e(f"s_mul_i32 s3, s{sS}, 160"); e(f"s_mul_i32 s4, s{sW}, 40"); e("s_add_u32 s3, s3, s4")
    e("s_mul_i32 s4, s3, 12288"); e(f"s_mul_i32 s5, s{sH}, 384"); e("s_add_u32 s4, s4, s5")
    e("s_lshl_b32 s3, s3, 1")
    e(f"s_mul_i32 s5, s{sH}, 1572864"); e(f"s_mul_i32 s6, s{sS}, 393216"); e("s_add_u32 s5, s5, s6")
    e(f"s_mul_i32 s6, s{sW}, 3072"); e("s_add_u32 s5, s5, s6")
    if cs:
        a, b_, c_ = sSEL, sSEL + 1, sSEL + 2
        wm = sWM if x6 else sW
        if x6:
            e(f"s_min_u32 s{sWM}, s{sW}, 4")
        e(f"s_and_b32 s{a}, s{sS}, 1"); e(f"s_mul_i32 s{b_}, s{a}, 3"); e(f"s_bfe_u32 s{c_}, s{wm}, 0x10001"); e(f"s_add_u32 s{b_}, s{b_}, s{c_}")
        e(f"s_and_b32 s{c_}, s{wm}, 1"); e(f"s_cmp_eq_u32 s{wm}, 0"); e(f"s_cselect_b32 s{b_}, 2, s{b_}"); e(f"s_cselect_b32 s{sRH}, s{a}, s{c_}")
        e(f"s_lshr_b32 s{a}, s{sS}, 1"); e(f"s_mul_i32 s{a}, s{a}, 5"); e(f"s_add_u32 s{b_}, s{b_}, s{a}"); e(f"s_lshl_b32 s{b_}, s{b_}, 7")
        if at:
            e(f"s_mov_b32 s{sLN}, s{b_}")
        e(f"s_mul_i32 s6, s{sH}, 245760"); e(f"s_add_u32 s6, s6, s{b_}")
        e(f"s_mul_i32 s{a}, s{sRH}, 122880"); e(f"s_add_u32 s6, s6, s{a}")
    else:
        e(f"s_mul_i32 s6, s{sJB}, 61440"); e(f"s_lshl_b32 s7, s{sW}, 8"); e("s_add_u32 s6, s6, s7")
    e(f"s_cmp_eq_u32 s{sW}, 4")
    e("s_cbranch_scc1 L_service")
    if x6:
        e(f"s_cmp_eq_u32 s{sW}, 5")
        e("s_cbranch_scc1 L_six")

    def common_consts():
        e(f"v_and_b32 v{vT0}, 1, v{vL}"); e(f"v_lshlrev_b32 v{vT0}, 4, v{vT0}")
        e(f"v_mov_b32 v{vT1}, 0xffff"); e(f"v_lshlrev_b32 v{vT0}, v{vT0}, v{vT1}")
        e(f"v_bfe_u32 v{vT1}, v{vL}, 1, 2")
        for r in range(4):
            e(f"v_cmp_eq_u32 vcc, {r}, v{vT1}")
            e(f"v_cndmask_b32 v{vM + r}, 0, v{vT0}, vcc")
        if cs:
            e(f"v_lshrrev_b32 v{vT0}, 3, v{vL}"); e(f"v_and_b32 v{vT1}, 7, v{vL}")
            e(f"v_mul_u32_u24 v{vWO}, 15360, v{vT0}"); e(f"v_lshl_add_u32 v{vWO}, v{vT1}, 4, v{vWO}")
            e(f"s_mul_i32 s7, s{sRH}, 384"); e(f"s_add_u32 s7, s7, {L_O}")
            e(f"v_mul_u32_u24 v{vOR}, 48, v{vT0}"); e(f"v_add_u32 v{vOR}, s7, v{vOR}")
        if cs and at:
            e(f"v_mul_u32_u24 v{vPUB}, {acs}, v{vT0}"); e(f"v_lshl_add_u32 v{vPUB}, v{vT1}, 3, v{vPUB}")
            e(f"s_lshr_b32 s7, s{sLN}, 7"); e(f"s_mul_i32 s8, s{sB}, 10"); e("s_add_u32 s7, s7, s8")
            e(f"s_mul_i32 s7, s7, {ast}"); e(f"s_add_u32 s7, s7, {AA}")
            e(f"v_add_u32 v{vPUB}, s7, v{vPUB}")
        elif cs:
            e(f"v_bfe_u32 v{vT0}, v{vL}, 4, 1")
            e(f"v_lshlrev_b32 v{vPUB}, 5, v{vT1}"); e(f"v_lshl_add_u32 v{vPUB}, v{vT0}, 4, v{vPUB}")
            e(f"s_bfe_u32 s8, s{sW}, 0x10001")
            e(f"s_lshl_b32 s7, s{sS}, 1"); e("s_add_u32 s7, s7, s8"); e("s_lshl_b32 s7, s7, 5"); e(f"s_add_u32 s7, s7, s{sH}")
            e(f"s_lshr_b32 s9, s{sS}, 1"); e("s_lshl_b32 s9, s9, 5"); e(f"s_add_u32 s9, s9, s{sH}")
            e("s_lshl_b32 s9, s9, 1"); e(f"s_add_u32 s9, s9, s{sRH}"); e("s_add_u32 s9, s9, 256")
            e(f"s_cmp_eq_u32 s{sW}, 0"); e("s_cselect_b32 s7, s9, s7")
            e(f"s_mul_i32 s9, s{sB}, 384"); e("s_add_u32 s7, s7, s9"); e("s_lshl_b32 s7, s7, 8"); e(f"s_add_u32 s7, s7, {A3}")
            e(f"v_add_u32 v{vPUB}, s7, v{vPUB}")
        else:
            e(f"v_lshrrev_b32 v{vT0}, 4, v{vL}")
            e(f"v_and_b32 v{vT1}, 15, v{vL}")
            e(f"v_mul_u32_u24 v{vWO}, 15360, v{vT0}"); e(f"v_lshl_add_u32 v{vWO}, v{vT1}, 4, v{vWO}")
            e(f"v_mul_u32_u24 v{vOR}, 48, v{vT0}"); e(f"v_add_u32 v{vOR}, {L_O}, v{vOR}")
            e(f"v_lshlrev_b32 v{vPUB}, 5, v{vT1}"); e(f"v_lshl_add_u32 v{vPUB}, v{vT0}, 4, v{vPUB}")
            e(f"s_lshl_b32 s7, s{sB}, 7"); e(f"s_add_u32 s7, s7, s{sJB}"); e("s_mul_i32 s7, s7, 2560")
            e(f"s_lshl_b32 s8, s{sW}, 9"); e("s_add_u32 s7, s7, s8"); e(f"s_add_u32 s7, s7, {A3}")
            e(f"v_add_u32 v{vPUB}, s7, v{vPUB}")
        e(f"v_mov_b32 v{vZ}, 0"); e(f"v_mov_b32 v{vONE}, 1")
        for r in range(4):
            e(f"s_mov_b32 s{sSEL + r}, {0x07060500 + r}")
        srd(rWO, sWW + 2, 6, 7864320)
        srd(rWS, sWS, None, AA + 20 * ast if at else WS_USED)
        if cs:
            srd(rOUT, sOUT, None, 2560)

    vXA = vNM

    vFX = vACC + 8

    def pair_addr():
        if at:
            e(f"v_and_b32 v{vT0}, 7, v{vL}"); e(f"v_lshlrev_b32 v{vXA}, 4, v{vT0}")
            e(f"v_bfe_u32 v{vT0}, v{vL}, 4, 1"); e(f"v_lshl_add_u32 v{vXA}, v{vT0}, 3, v{vXA}")
            e(f"v_lshrrev_b32 v{vT0}, 5, v{vL}"); e(f"v_lshl_add_u32 v{vXA}, v{vT0}, 2, v{vXA}")
            e(f"v_bfe_u32 v{vT0}, v{vL}, 3, 1"); e(f"v_lshl_add_u32 v{vXA}, v{vT0}, 1, v{vXA}")
            e(f"s_mul_i32 s3, s{sB}, 1280"); e(f"s_add_u32 s3, s3, s{sLN}")
            e(f"v_add_u32 v{vXA}, s3, v{vXA}")
            return
        e(f"s_bfe_u32 s3, s{sW}, 0x10001"); e("s_lshl_b32 s3, s3, 8"); e(f"s_add_u32 s3, s3, {L_X}")
        e(f"v_and_b32 v{vXA}, 255, v{vPUB}"); e(f"v_add_u32 v{vXA}, s3, v{vXA}")

    vm = VM(e)
    NQ, NK, NV, NO = 15, 96, 96, 12
    K0, V0, O0 = NQ, NQ + NK, NQ + NK + NV
    N = O0 + NO
    cur = [None]

    def setoff(v):
        if cur[0] != v:
            e(f"s_mov_b32 s{sOFF}, {v}")
            cur[0] = v

    def issue(i):
        d = vr(slot(i))
        if i < K0:
            g, t = divmod(i, 3)
            setoff(g * 8 * 12288)
            vm.issue(i, f"buffer_load_dwordx4 {d}, v{vWQ}, s[{rWQ}:{rWQ + 3}], s{sOFF} offen offset:{t * 128} {fl}")
        elif i < O0:
            r = rK if i < V0 else rV
            g, t = divmod(i - (K0 if i < V0 else V0), 3)
            if fb and t == 0 and i < V0 + 3 * G3:
                ga = (i - K0) // 3
                e("s_mov_b64 exec, 1")
                if ga > 0:
                    e("s_waitcnt lgkmcnt(0)")
                    e(f"v_cmp_lt_i32 vcc, {4 * (ga - 1) + bias}, v{vPR}")
                    if FX and ga >= GX:
                        e(f"v_readfirstlane_b32 s8, v{vPR}")
                e(f"ds_add_rtn_u32 v{vPR}, v{vZ}, v{vONE} offset:{L_F + 12}")
                e("s_mov_b64 exec, -1")
            if not rot:
                setoff(g * 12288)
            elif t == 0:
                cur[0] = None
                if g == 0:
                    e(f"s_mov_b32 s{sOFF}, s{sROT}")
                else:
                    e(f"s_add_u32 s{sOFF}, s{sOFF}, 12288"); e(f"s_cmp_eq_u32 s{sOFF}, 393216")
                    e(f"s_cselect_b32 s{sOFF}, 0, s{sOFF}")
                if FX and (i - K0) // 3 >= max(GX, 1):
                    e(f"s_cmp_gt_i32 s8, {4 * ((i - K0) // 3 - 1) + bias + XT}")
            vm.issue(i, f"buffer_load_dwordx4 {d}, v{vKV}, s[{r}:{r + 3}], s{sOFF} offen offset:{t * 128} {fl}")
        else:
            g = i - O0
            setoff((g // 4) * 5120)
            vm.issue(i, f"buffer_load_dwordx4 {d}, v{vWO}, s[{rWO}:{rWO + 3}], s{sOFF} offen offset:{(g % 4) * 1280} {fl}")

    def afrag(src):
        for r in range(4):
            e(f"v_and_b32 v{vA + r}, v{src}, v{vM + r}")

    def mfma(acc, b, first):
        c = "0" if first else vr(acc)
        e(f"v_mfma_f32_16x16x32_bf16 {vr(acc)}, {vr(vA)}, {vr(b)}, {c}")

    def partials_out(flag):
        e("s_mov_b32 exec_lo, 0x00ff00ff"); e("s_mov_b32 exec_hi, 0xff00ff00")
        for t in range(3):
            e(f"ds_write_b128 v{vPW}, {vr(vACC + 4 * t)} offset:{t * 256}")
        e("s_mov_b64 exec, 1")
        e(f"ds_add_u32 v{vZ}, v{vONE} offset:{flag}")
        e("s_mov_b64 exec, -1")

    def pcalc(g):
        s = vSC + g
        e(f"v_fma_f32 v{s}, v{s}, s{sC}, v{vNM}")
        e(f"v_exp_f32 v{s}, v{s}")
        if g == 0:
            e(f"v_mov_b32 v{vLS}, v{s}")
        else:
            e(f"v_add_f32 v{vLS}, v{vLS}, v{s}")
        e(f"v_cvt_pk_bf16_f32 v{s}, v{s}, v{s}")

    pend = []

    def red_steps(g):
        s = vSC + g
        st = [f"v_add_f32_dpp v{s}, v{s}, v{s} quad_perm:[1,0,3,2] {DPPM}",
              f"v_add_f32_dpp v{s}, v{s}, v{s} quad_perm:[2,3,0,1] {DPPM}",
              f"v_add_f32_dpp v{s}, v{s}, v{s} row_half_mirror {DPPM}"]
        st.append(f"v_mov_b32 v{vMX}, v{s}" if g == 0 else f"v_max_f32 v{vMX}, v{vMX}, v{s}")
        return st

    pdone = [0]

    def consume(i):
        vm.wait(i)
        b = slot(i)
        if i < K0:
            g, t = divmod(i, 3)
            if t == 0:
                e(f"v_lshl_or_b32 v{vT0}, v{vX + g}, 16, v{vX + g}")
                afrag(vT0)
            mfma(vACC + 4 * t, b, g == 0)
            if stamps == 2 and i in (0, 5, 11):
                stamp("w", f"wq{i}")
            if i == K0 - 1:
                partials_out(L_F)
                stamp("w", "qpart")
        elif i < V0:
            g, t = divmod(i - K0, 3)
            for r in range(4):
                e(f"v_dot2c_f32_bf16 v{vSC + g}, v{b + r}, v{vQ + 4 * t + r}")
                if r in (1, 3) and pend:
                    e(pend.pop(0))
            if t == 2:
                while pend:
                    e(pend.pop(0))
                pend.extend(red_steps(g))
            if i == V0 - 1:
                while pend:
                    e(pend.pop(0))
                e(f"v_max_f32_dpp v{vMX}, v{vMX}, v{vMX} row_ror:8 {DPPM}")
                allrows("v_max_f32", vMX, vT0)
                e(f"v_mul_f32 v{vMX}, s{sC}, v{vMX}")
                e(f"v_sub_f32 v{vNM}, 0, v{vMX}")
                for g2 in range(pk):
                    pcalc(g2)
                pdone[0] = pk
                stamp("w", "Kdone")
        elif i < O0:
            g, t = divmod(i - V0, 3)
            if stamps == 3 and t == 2 and g in (16, 22, 26, 29):
                stamp("w", f"v{g}")
            if t == 0:
                afrag(vSC + g)
            mfma(vACC + 4 * t, b, g == 0)
            if t < 2 and pdone[0] < 32:
                for _ in range((pk + 1 - t) // 2):
                    if pdone[0] < 32:
                        pcalc(pdone[0]); pdone[0] += 1
                if pdone[0] == 32:
                    pdone[0] = 33
                    e(f"v_add_f32_dpp v{vLS}, v{vLS}, v{vLS} row_ror:8 {DPPM}")
                    allrows("v_add_f32", vLS, vT0)
                    e(f"s_lshl_b32 s3, s{sW}, 3"); e(f"v_mov_b32 v{vT0}, s3")
                    e("s_mov_b64 exec, 1")
                    e(f"ds_write_b32 v{vT0}, v{vMX} offset:{L_ST}")
                    e(f"ds_write_b32 v{vT0}, v{vLS} offset:{L_ST + 4}")
                    e(f"ds_add_u32 v{vZ}, v{vONE} offset:{L_F + 4}")
                    e("s_mov_b64 exec, -1")
            if i == O0 - 1:
                partials_out(L_F + 8)
                stamp("w", "Vdone")

    e("s_waitcnt lgkmcnt(0)")
    if stamps == 2:
        stamp("w", "karg")
    srd(rX, sX, None, 1280)
    srd(rWQ, sWW, 4, 7864320)
    for g in range(5):
        vm.issue(("x", g), f"buffer_load_ushort v{vX + g}, v{vT3}, s[{rX}:{rX + 3}], s3 offen offset:{16 * g}")
    ni = 0
    while ni < F0:
        issue(ni); ni += 1
    if rot:
        ra, rb, rc = rot // 10000 % 100, rot // 100 % 100, rot % 100
        e(f"s_and_b32 s7, s{sHH}, 7"); e(f"s_mul_i32 s{sROT}, s7, {ra}")
        e(f"s_mul_i32 s7, s{sS}, {rb}"); e(f"s_add_u32 s{sROT}, s{sROT}, s7")
        e(f"s_lshr_b32 s7, s{sHH}, 3"); e(f"s_mul_i32 s7, s7, {rc}"); e(f"s_add_u32 s{sROT}, s{sROT}, s7")
        e(f"s_and_b32 s{sROT}, s{sROT}, 31"); e(f"s_mul_i32 s{sROT}, s{sROT}, 12288")
    srd(rK, sKV, 5, 50331648)
    srd(rV, sKV + 2, 5, 50331648)
    common_consts()
    e(f"v_lshrrev_b32 v{vT0}, 5, v{vL}"); e(f"v_mul_u32_u24 v{vPW}, 768, v{vT0}")
    e(f"v_and_b32 v{vT0}, 7, v{vL}"); e(f"v_lshl_add_u32 v{vPW}, v{vT0}, 5, v{vPW}")
    e(f"v_bfe_u32 v{vT0}, v{vL}, 4, 1"); e(f"v_lshl_add_u32 v{vPW}, v{vT0}, 4, v{vPW}")
    e(f"s_mul_i32 s7, s{sW}, 1536"); e(f"v_add_u32 v{vPW}, s7, v{vPW}")
    e(f"s_mov_b32 s{sC}, {f2u(192 ** -0.5 * math.log2(math.e)):#x}")
    for g in range(32):
        e(f"v_mov_b32 v{vSC + g}, 0")
    e("s_barrier")
    if stamps == 2:
        stamp("w", "B0")
    vm.wait(("x", 4))
    if stamps == 2:
        stamp("w", "xdone")
    nc = 0

    def Flo(i):
        return F2 if (F2 and i >= V0 + 3 * G2) else F

    def Fmid(i):
        if fb and i >= K0 + 3:
            return FH2 if (FH2 and i >= V0 + 3 * G2) else FH
        return Flo(i)

    def Fof(i):
        if FX and i > K0 + 3 * max(GX, 1):
            return FX2 if (FX2 and i >= V0 + 3 * G2) else FX
        return Fmid(i)

    ncond = [0]

    def pace():
        j = ni - Fof(ni)
        if j >= 0:
            vm.wait(j)
        jm = ni - Fmid(ni)
        j = ni - Flo(ni)
        if fb and ni < V0 + 3 * G3 and j >= 0 and j in vm.q:
            ncond[0] += 1
            if jm in vm.q and jm < j:
                e(f"s_cbranch_scc1 L_c{ncond[0]}")
                e(f"s_waitcnt vmcnt({len(vm.q) - 1 - vm.q.index(jm)}) ; cond")
                e(f"s_cbranch_vccnz L_c{ncond[0]} ; cond")
            else:
                e(f"s_cbranch_vccnz L_c{ncond[0]}")
            e(f"s_waitcnt vmcnt({len(vm.q) - 1 - vm.q.index(j)}) ; cond")
            e(f"L_c{ncond[0]}:")

    if fb:
        e("s_mov_b64 vcc, 0")

    while nc < K0:
        if ni - nc <= F:
            pace(); issue(ni); ni += 1
        consume(nc); nc += 1
    def qreads():
        e(f"ds_read_b32 v{vT1}, v{vZ} offset:{L_T + 4}")
        for t in range(3):
            e(f"ds_read_b128 {vr(vQ + 4 * t)}, v{vQR} offset:{t * 128}")
        e(f"ds_read_b32 v{vT}, v{vZ} offset:{L_T}")

    while ni < K0 + R:
        if qf and ni == K0 + R - 1:
            qreads()
        pace(); issue(ni); ni += 1
    stamp("w", "ringfull")
    if qf:
        e(f"s_mov_b32 s{sCNT}, 4000000")
        e("L_q:")
        e("s_waitcnt lgkmcnt(0)")
        e(f"v_readfirstlane_b32 s3, v{vT1}")
        e(f"s_sub_u32 s{sCNT}, s{sCNT}, 1")
        e("s_cbranch_scc1 L_qx")
        e("s_cmp_lg_u32 s3, 0")
        e("s_cbranch_scc1 L_qx")
        qreads()
        e("s_branch L_q")
        e("L_qx:")
        stamp("w", "qready")
    else:
        e("s_barrier")
        stamp("w", "qready")
        qreads()
        e("s_waitcnt lgkmcnt(0)")
    NH = min(N, O0 + H)
    early = None
    while nc < O0:
        lag = ni - nc
        if EH != 99 and ni == NH and early is None:
            early = (list(vm.q), ni, nc)
            e(f"s_cmp_gt_i32 s8, {4 * 62 + bias + EH}"); e("s_cbranch_scc1 L_early")
        if HW and ni >= O0:
            consume(nc); nc += 1
            if ni < NH and nc > ni - HW and nc < O0:
                issue(ni); ni += 1
        elif ni < NH:
            if lag >= R:
                consume(nc); nc += 1
            pace(); issue(ni); ni += 1
            k = 0
            while nc < O0 and nc <= ni - 1 - Fof(ni - 1) and k < 2:
                consume(nc); nc += 1; k += 1
        else:
            consume(nc); nc += 1
    while ni < NH:
        if HW:
            vm.wait(ni - HW)
        else:
            pace()
        issue(ni); ni += 1
    if cs:
        pair_addr()
    if ni < N:
        e(f"s_mov_b32 s{sCNT}, 4000000")
        e("L_h:")
        e(f"ds_read_b32 v{vT0}, v{vZ} offset:{L_H}")
        e(f"s_sub_u32 s{sCNT}, s{sCNT}, 1")
        e("s_cbranch_scc1 L_hx")
        e("s_waitcnt lgkmcnt(0)")
        e(f"v_readfirstlane_b32 s3, v{vT0}")
        e("s_cmp_eq_u32 s3, 0")
        e("s_cbranch_scc1 L_h")
        e("L_hx:")
        if stamps == 3:
            stamp("w", "hgo")
    if FL:
        e("s_cmp_eq_u32 s3, 2")
    def tick():
        e("s_mov_b64 exec, 1")
        e(f"ds_add_u32 v{vZ}, v{vONE} offset:{L_K}")
        e("s_mov_b64 exec, -1")

    nticks = 0
    while ni < N:
        if ni - FW >= 0:
            tk_ = pq and ni - FW in vm.q
            vm.wait(ni - FW)
            if stamps == 3 and ni - FW - O0 in (1, 3):
                stamp("w", f"wa{ni - FW - O0}")
        if FL and ni - FL in vm.q:
            e(f"s_cbranch_scc1 L_w{ni}")
            e(f"s_waitcnt vmcnt({len(vm.q) - 1 - vm.q.index(ni - FL)}) ; cond")
            e(f"L_w{ni}:")
        issue(ni); ni += 1
        if tk_:
            tick(); nticks += 4
    stamp("w", "woissued")
    e("L_tail:")
    e("s_barrier")
    stamp("w", "oready")
    for k in range(3):
        e(f"ds_read_b128 {vr(vQ + 4 * k)}, v{vOR} offset:{16 * k}")
    if at:
        assert cs and H < 12
        e("s_mov_b32 s32, 0"); e("s_mov_b32 s33, 0x43300800"); e("s_mov_b32 s34, 0"); e("s_mov_b32 s35, 0xc3320000")
        e(f"ds_read_b128 {vr(vFX)}, v{vZ} offset:{L_S}")
        e("s_mov_b32 vcc_lo, 0x00ff00ff"); e("s_mov_b32 vcc_hi, 0xff00ff00")
    e(f"s_waitcnt lgkmcnt({1 if at else 0})")
    tailq = len(vm.q)
    if cs:
        AB = (vA, vT0 - 1)
        for g in range(13):
            if g < 12:
                for r in range(4):
                    e(f"v_and_b32 v{AB[g & 1] + r}, v{vQ + g}, v{vM + r}")
            if g:
                vm.wait(O0 + g - 1)
                if stamps == 3 and g - 1 in (8, 11):
                    stamp("w", f"wa{g - 1}")
                e(f"v_mfma_f32_16x16x32_bf16 {vr(vACC)}, {vr(AB[(g - 1) & 1])}, {vr(slot(O0 + g - 1))}, {vr(vACC) if g > 1 else 0}")
    if at:
        a, X, O = vACC, vA, vA + 2
        e(f"v_cndmask_b32_dpp v{a}, v{a + 1}, v{a}, vcc row_ror:8 {DPPM}")
        e(f"v_cndmask_b32_dpp v{a + 2}, v{a + 3}, v{a + 2}, vcc row_ror:8 {DPPM}")
        e(f"v_permlane32_swap_b32 v{a}, v{a + 2}")
        e(f"v_add_f32_dpp v{a}, v{a + 2}, v{a} row_ror:8 {DPPM}")
        e("s_waitcnt lgkmcnt(0)")
        e(f"v_cvt_f64_f32 {vr(X, 2)}, v{a}")
        e(f"v_fma_f64 {vr(X, 2)}, {vr(X, 2)}, {vr(vFX, 2)}, s[32:33]")
        e(f"v_add_u32 v{vT0}, 0xbcd00000, v{X + 1}")
        e(f"v_cmp_gt_u32 vcc, 0x1000, v{vT0}")
        e(f"v_add_u32 v{X + 1}, 0xbed00000, v{X + 1}")
        e(f"v_cndmask_b32 v{X + 1}, v{vFX + 3}, v{X + 1}, vcc")
        e(f"global_atomic_add_x2 {vr(O, 2)}, v{vPUB}, {vr(X, 2)}, s[{sWS}:{sWS + 1}] sc0" + (" sc1" if asc else ""))
        stamp("w", "pub")
        e(f"v_mov_b32_dpp v{a + 1}, v{a} row_ror:8 {DPPM}")
        e(f"v_mov_b32 v{vT0}, v{a}"); e(f"v_mov_b32 v{vT1}, v{a + 1}")
        e(f"v_and_b32 v{vT2}, 7, v{vL}"); e(f"v_lshlrev_b32 v{vPUB + 1}, 5, v{vT2}")
        e(f"v_permlane32_swap_b32 v{vT0}, v{a + 2}")
        e(f"v_permlane32_swap_b32 v{vT1}, v{a + 3}")
        e(f"v_bfe_u32 v{vT2}, v{vL}, 4, 1"); e(f"v_lshl_add_u32 v{vPUB + 1}, v{vT2}, 4, v{vPUB + 1}")
        e(f"s_lshr_b32 s3, s{sLN}, 7"); e(f"s_mul_i32 s4, s{sB}, 10"); e("s_add_u32 s3, s3, s4")
        e("s_lshl_b32 s3, s3, 14"); e(f"s_add_u32 s3, s3, {A3}")
        e(f"v_add_u32 v{vPUB + 1}, s3, v{vPUB + 1}")
        e(f"s_lshl_b32 s3, s{sH}, 1"); e(f"s_add_u32 s3, s3, s{sRH}"); e("s_lshl_b32 s3, s3, 8")
        tag4(vQ, a)
        if not nraw:
            e("s_mov_b64 exec, 0x00ff00ff")
            e(f"buffer_store_dwordx4 {vr(vQ)}, v{vPUB + 1}, s[{rWS}:{rWS + 3}], s3 offen sc1")
            e("s_mov_b64 exec, -1")
        e(f"s_waitcnt vmcnt({0 if nraw else 1})")
        if stamps:
            e("s_memrealtime s[40:41]")
        e(f"v_lshl_add_u64 {vr(O, 2)}, {vr(O, 2)}, 0, {vr(X, 2)}")
        e(f"v_cmp_gt_i32 vcc, 0, v{O + 1}")
        e(f"v_and_b32 v{O + 1}, 0x1ffffff, v{O + 1}")
        e(f"v_add_u32 v{O + 1}, 0x43300000, v{O + 1}")
        e("s_and_b64 exec, exec, vcc")
        e("s_cbranch_scc0 L_atx")
        e(f"v_add_f64 {vr(O, 2)}, {vr(O, 2)}, s[34:35]")
        e(f"v_cvt_f32_f64 v{vT0}, {vr(O, 2)}")
        e(f"v_mul_f32 v{vT1}, v{vFX + 2}, v{vT0}")
        e(f"v_cvt_pk_bf16_f32 v{vT1}, v{vT1}, v{vT1}")
        e(f"buffer_store_short v{vT1}, v{vXA}, s[{rOUT}:{rOUT + 3}], 0 offen {ofl}".rstrip())
        e(f"s_cmp_eq_u32 s{sLN}, 0"); e("s_cselect_b32 s3, exec_lo, 0"); e("s_and_b32 s3, s3, 1")
        e("s_cbranch_scc0 L_att")
        e("s_mov_b64 s[36:37], exec"); e("s_mov_b64 exec, 1"); e(f"s_lshl_b32 s3, s{sB}, 7")
        e(f"buffer_store_dword v{vT}, v{vZ}, s[{rWS}:{rWS + 3}], s3 offen sc1")
        e("s_mov_b64 exec, s[36:37]")
        e("L_att:")
        e(f"s_mov_b32 s3, {f2u(2.0 ** SM):#x}"); e(f"s_mov_b32 s4, {f2u(2.0 ** 49):#x}")
        e(f"v_cmp_le_f32 s[36:37], s3, |v{vT0}|")
        e(f"v_cmp_gt_f32 vcc, s4, v{vT0}")
        e("s_and_b64 vcc, vcc, s[36:37]")
        e("s_andn2_b64 exec, exec, vcc")
        e("s_cbranch_scc0 L_atx")
        e(f"s_mov_b32 s{sSA}, 0x0c0c0400"); e(f"s_mov_b32 s{sSB}, 0x04000c0c"); e(f"s_mov_b32 s{sMASK}, 0xffffff00")
        e("s_mov_b32 s36, 0xff00ff00"); e("s_mov_b32 s37, 0xff00ff00")
        e("s_mov_b32 s4, 0"); e("s_mov_b32 s5, -1")
        e(f"s_mov_b32 s{sOFF}, 0")
        e(f"v_mov_b32 v{a}, 0")
        e("L_atf:")
        us = [vRING + 4 * k for k in range(8)]
        poll("L_p4", [f"buffer_load_dwordx4 {vr(u)}, v{vPUB + 1}, s[{rWS}:{rWS + 3}], s{sOFF} offen offset:{256 * k} sc1"
                      for k, u in enumerate(us)], us, vT0)
        for u in us:
            e(f"v_cndmask_b32 v{u}, v{u}, v{u + 1}, s[36:37]")
            e(f"v_cndmask_b32 v{u + 2}, v{u + 2}, v{u + 3}, s[36:37]")
            e(f"v_cndmask_b32 v{u}, v{u}, v{u + 2}, s[4:5]")
            e(f"v_add_f32 v{a}, v{a}, v{u}")
        e(f"s_add_u32 s{sOFF}, s{sOFF}, 2048"); e(f"s_cmp_lt_u32 s{sOFF}, 16384"); e("s_cbranch_scc1 L_atf")
        e(f"v_cvt_pk_bf16_f32 v{a}, v{a}, v{a}")
        e(f"buffer_store_short v{a}, v{vXA}, s[{rOUT}:{rOUT + 3}], 0 offen")
        e("L_atx:")
        e("s_mov_b64 exec, -1")
        if stamps:
            e("s_waitcnt lgkmcnt(0)")
            e("s_lshl_b32 s3, s2, 8"); e("s_add_u32 s3, s3, 0x8000000"); e(f"s_lshl_b32 s4, s{sWM if x6 else sW}, 3"); e("s_add_u32 s3, s3, s4")
            e(f"s_add_u32 s4, s{sWS}, s3"); e(f"s_addc_u32 s5, s{sWS + 1}, 0")
            e(f"v_mov_b32 v{vA}, s40"); e(f"v_mov_b32 v{vA + 1}, s41")
            e(f"global_store_dwordx2 v{vZ}, v[{vA}:{vA + 1}], s[4:5] offset:{8 * 25}")
            for k in range(5):
                names.append((25 + k, f"e{k}"))
            e(f"s_cmp_eq_u32 s{sW}, 4")
            e("s_cbranch_scc1 L_reduce")
    elif cs:
        for r in range(4):
            e(f"v_permlane32_swap_b32 v{vACC + r}, v{vQ + r}")
        for r in range(4):
            e(f"v_add_f32_dpp v{vACC + r}, v{vQ + r}, v{vACC + r} row_ror:8 {DPPM}")
        e(f"s_cmp_eq_u32 s{sW}, 0"); e("s_cbranch_scc1 L_pub")
        e(f"s_bitcmp1_b32 s{sW}, 0"); e("s_cbranch_scc1 L_fin")
        e("s_mov_b64 exec, 0x00ff00ff")
        e(f"ds_write_b128 v{vXA}, {vr(vACC)}")
        e("s_mov_b64 exec, 1")
        e(f"ds_write_b32 v{vXA}, v{vONE} offset:512")
        e("s_mov_b64 exec, -1")
        e(f"s_cmp_eq_u32 s{sW}, 4")
        e("s_cbranch_scc1 L_reduce")
        e("s_endpgm")
        e("L_fin:")
        e(f"s_mov_b32 s{sCNT}, 4000000")
        e("L_fs:")
        e(f"ds_read_b32 v{vT0}, v{vXA} offset:512")
        e(f"ds_read_b128 {vr(vQ)}, v{vXA}")
        e(f"s_sub_u32 s{sCNT}, s{sCNT}, 1")
        e("s_cbranch_scc1 L_fx")
        e("s_waitcnt lgkmcnt(1)")
        e(f"v_readfirstlane_b32 s3, v{vT0}")
        e("s_cmp_eq_u32 s3, 0")
        e("s_cbranch_scc1 L_fs")
        e("L_fx:")
        e("s_waitcnt lgkmcnt(0)")
        for r in range(4):
            e(f"v_add_f32 v{vACC + r}, v{vACC + r}, v{vQ + r}")
        e("L_pub:")
        e("s_nop 1")
        tag4(vA, vACC)
        e("s_mov_b64 exec, 0x00ff00ff")
    else:
        for g in range(12):
            afrag(vQ + g)
            vm.wait(O0 + g)
            mfma(vACC, slot(O0 + g), g == 0)
        tag4(vA, vACC)
        e("s_mov_b32 exec_hi, 0")
    if fq > 1:
        e(f"v_and_b32 v{vT0}, 15, v{vL}"); e(f"s_lshl_b32 s3, s{sW}, 4"); e(f"v_add_u32 v{vT0}, s3, v{vT0}")
        e(f"s_and_b32 s3, s{sS}, {fq - 1}"); e(f"s_mul_i32 s3, s3, {80 // fq}")
        e(f"v_subrev_u32 v{vT0}, s3, v{vT0}")
        e(f"v_mov_b32 v{vT1}, {80 // fq}")
        e(f"v_cmp_lt_u32 vcc, v{vT0}, v{vT1}")
        e("s_and_b64 exec, exec, vcc")
    if not at:
        e(f"buffer_store_dwordx4 {vr(vA)}, v{vPUB}, s[{rWS}:{rWS + 3}], 0 offen sc1")
        e("s_mov_b64 exec, -1")
        if not cs:
            e(f"s_cmp_eq_u32 s{sW}, 4")
            e("s_cbranch_scc1 L_reduce")
        stamp("w", "pub")

    def stamps_out(who):
        if not stamps:
            return
        base = 0 if who == "w" else 14
        e("s_waitcnt lgkmcnt(0)")
        e("s_lshl_b32 s3, s2, 8"); e("s_add_u32 s3, s3, 0x8000000")
        e(f"s_add_u32 s4, s{sWS}, s3"); e(f"s_addc_u32 s5, s{sWS + 1}, 0")
        for i in range(nst[who]):
            e(f"v_mov_b32 v{vA}, s{sST + 2 * i}"); e(f"v_mov_b32 v{vA + 1}, s{sST + 2 * i + 1}")
            e(f"global_store_dwordx2 v{vZ}, v[{vA}:{vA + 1}], s[4:5] offset:{8 * (base + i)}")
        if who == "s" and fb:
            e(f"v_mov_b32 v{vA}, s{sAUX}"); e(f"v_mov_b32 v{vA + 1}, s{sAUX + 1}")
            e(f"global_store_dwordx2 v{vZ}, v[{vA}:{vA + 1}], s[4:5] offset:{8 * 30}")
        if who == "w":
            e("s_getreg_b32 s6, hwreg(HW_REG_XCC_ID)"); e("s_getreg_b32 s7, hwreg(HW_REG_HW_ID)")
            e(f"v_mov_b32 v{vA}, s6"); e(f"v_mov_b32 v{vA + 1}, s7")
            e(f"global_store_dwordx2 v{vZ}, v[{vA}:{vA + 1}], s[4:5] offset:{8 * 31}")

    if stamps:
        e(f"s_cmp_lg_u32 s{sW}, {sw}"); e("s_cbranch_scc1 L_end")
        stamps_out("w")
    e("s_endpgm")
    if early:
        e("L_early:")
        vm.q, ni, nc = early
        cur[0] = None
        while nc < O0 or ni < N:
            if ni < N:
                vm.wait(ni - FE)
                issue(ni); ni += 1
            k = 0
            while nc < O0 and (ni == N or nc <= ni - 1 - FE) and k < 2:
                consume(nc); nc += 1; k += 1
        pair_addr()
        if stamps == 3:
            stamp("w", "hgo")
            for k in (1, 3):
                vm.wait(O0 + k)
                stamp("w", f"wa{k}")
        vm.wait(N - 1 - tailq)
        stamp("w", "woissued")
        e("s_branch L_tail")

    if x6:
        e("L_six:")
        e("s_waitcnt lgkmcnt(0)")
        e("s_barrier")
        common_consts()
        pair_addr()

        def spin6(label, off, cond):
            e(f"s_mov_b32 s{sCNT}, 4000000")
            e(f"{label}:")
            e(f"ds_read_b32 v{vT0}, v{vZ} offset:{off}")
            e(f"s_sub_u32 s{sCNT}, s{sCNT}, 1")
            e(f"s_cbranch_scc1 {label}x")
            e("s_waitcnt lgkmcnt(0)")
            e(f"v_readfirstlane_b32 s3, v{vT0}")
            e(cond)
            e(f"s_cbranch_scc1 {label}")
            e(f"{label}x:")

        vm.q = []
        cur[0] = None
        ni = O0
        if H6:
            spin6("L_6a", L_F + (12 if T6 > 4 else 8), f"s_cmp_lt_i32 s3, {T6}")
            while ni < O0 + H6:
                if ni - FW6 >= O0:
                    vm.wait(ni - FW6)
                issue(ni); ni += 1
        if ni < N:
            spin6("L_6b", L_H, "s_cmp_eq_u32 s3, 0")
        e(f"ds_read_b32 v{vT}, v{vZ} offset:{L_T}")
        if FL:
            e("s_cmp_eq_u32 s3, 2")
        while ni < N:
            tk_ = pq and ni - FW6 in vm.q
            if ni - FW6 >= O0:
                vm.wait(ni - FW6)
            if FL and ni - FL in vm.q:
                e(f"s_cbranch_scc1 L_v{ni}")
                e(f"s_waitcnt vmcnt({len(vm.q) - 1 - vm.q.index(ni - FL)}) ; cond")
                e(f"L_v{ni}:")
            issue(ni); ni += 1
            if tk_:
                tick(); nticks += 1
        vm.wait(N - 1 - tailq)
        e("s_branch L_tail")

    vD = vSC
    vE1, vE2, vP1, vP2, vP3 = 44, 45, 46, 47, 48
    vG = 8
    vS = 12
    vOP = vACC + 4
    vR1, vR2 = slot(N + 2), slot(N + 2) + 1
    vQY, vSY = slot(N), slot(N + 1)
    e("L_service:")
    if probe:
        e("s_memrealtime s[68:69]")
    e("s_nop 4")
    if prio:
        e("s_setprio 3")
    e(f"v_mov_b32 v{vZ}, 0")
    for k in range(4):
        e(f"ds_write_b32 v{vZ}, v{vZ} offset:{L_F + 4 * k}")
    e(f"ds_write_b32 v{vZ}, v{vZ} offset:{L_T + 4}")
    for o in (L_X + 512, L_X + 768, L_H) + ((L_K,) if pq else ()):
        e(f"ds_write_b32 v{vZ}, v{vZ} offset:{o}")
    e("s_waitcnt lgkmcnt(0)")
    e("s_barrier")
    common_consts()
    e(f"s_lshl_b32 s9, s{sB}, 7")
    e(f"buffer_load_dword v{vT}, v{vZ}, s[{rWS}:{rWS + 3}], s9 offen sc1")
    if probe:
        e("s_getreg_b32 s70, hwreg(HW_REG_XCC_ID, 0, 3)"); e("s_lshl_b32 s71, s68, 3"); e("s_or_b32 s71, s71, s70")
        e("s_lshl_b32 s70, s2, 2"); e("s_add_u32 s70, s70, 1024")
        e(f"v_mov_b32 v{vT0}, s71")
        e("s_mov_b64 exec, 1")
        e(f"buffer_store_dword v{vT0}, v{vZ}, s[{rWS}:{rWS + 3}], s70 offen sc1")
        e("s_mov_b64 exec, -1")
    if fb:
        e(f"v_lshrrev_b32 v{vT0}, 4, v{vL}"); e(f"v_cmp_eq_u32 vcc, 1, v{vT0}")
        e(f"v_mov_b32 v{vT0}, 128"); e(f"v_cndmask_b32 v{vT0}, 0, v{vT0}, vcc")
        e(f"buffer_load_dword v{vPR}, v{vT0}, s[{rWS}:{rWS + 3}], 0 offen sc1")
    if at:
        e(f"s_cmp_lg_u32 s{sJB}, 0"); e("s_cbranch_scc1 L_ai")
        for k in range(20):
            e(f"v_mov_b32 v{vD + k}, 0")
        for k in range(10):
            e(f"s_mov_b32 s3, {k * ast}")
            e(f"buffer_atomic_swap_x2 {vr(vD + 2 * k, 2)}, v{vPUB}, s[{rWS}:{rWS + 3}], s3 offen sc0" + (" sc1" if asc else ""))
        e("L_ai:")
    if not cs:
        srd(rOUT, sOUT, None, 2560)
    if warm:
        srd(rV, sKV + 2, 5, 50331648)
        e(f"buffer_load_dword v{vSC}, v{vZ}, s[{rOUT}:{rOUT + 3}], 0 offen")
        e(f"buffer_load_dword v{vSC + 1}, v{vZ}, s[{rV}:{rV + 3}], 0 offen nt")
        e(f"buffer_load_dword v{vSC + 2}, v{vZ}, s[{rWO}:{rWO + 3}], 0 offen nt")
    e(f"s_mov_b32 s{sSA}, 0x0c0c0400"); e(f"s_mov_b32 s{sSB}, 0x04000c0c"); e(f"s_mov_b32 s{sMASK}, 0xffffff00")
    e(f"s_lshl_b32 s7, s{sHH}, 2"); e(f"s_add_u32 s8, s7, s{sS}")
    e(f"v_lshlrev_b32 v{vE1}, 4, v{vL}")
    e(f"v_lshrrev_b32 v{vT0}, 4, v{vL}"); e(f"v_and_b32 v{vT1}, 15, v{vL}")
    e(f"v_mul_u32_u24 v{vP1}, 768, v{vT0}"); e(f"v_lshl_add_u32 v{vP1}, v{vT1}, 4, v{vP1}")
    e(f"s_mul_i32 s3, s7, 768"); e(f"s_add_u32 s3, s3, {A1}"); e(f"v_add_u32 v{vP1}, s3, v{vP1}")
    e(f"v_lshlrev_b32 v{vP3}, 10, v{vT0}")
    e(f"s_lshl_b32 s3, s7, 10"); e(f"s_add_u32 s3, s3, {A2}"); e(f"v_add_u32 v{vP3}, s3, v{vP3}")
    if cs:
        e(f"v_mov_b32 v{vT2}, v{vT1}")
        e(f"v_lshl_add_u32 v{vP2}, v{vT2}, 4, v{vP3}")
    else:
        e(f"v_min_u32 v{vT2}, 11, v{vT1}")
        e(f"s_mul_i32 s3, s{sS}, 192"); e(f"v_lshl_add_u32 v{vP2}, v{vT2}, 4, s3"); e(f"v_add_u32 v{vP2}, v{vP2}, v{vP3}")
    e(f"v_and_b32 v{vT3}, 1, v{vT0}"); e(f"v_lshlrev_b32 v{vT3}, 1, v{vT3}")
    e(f"v_lshrrev_b32 v{vT0}, 1, v{vT0}"); e(f"v_or_b32 v{vT3}, v{vT3}, v{vT0}")
    e(f"v_lshl_add_u32 v{vMX}, v{vT1}, 2, v{vT3}")
    e(f"v_lshlrev_b32 v{vMX}, 1, v{vMX}"); e(f"v_add_u32 v{vMX}, {L_Q}, v{vMX}")
    e(f"v_lshl_add_u32 v{vLS}, v{vT2}, 2, v{vT3}")
    e(f"v_lshlrev_b32 v{vLS}, 2, v{vLS}"); e(f"v_add_u32 v{vLS}, {L_O}, v{vLS}")
    if at:
        pair_addr()
    elif cs:
        pair_addr()
        e(f"s_lshr_b32 s3, s{sJB}, 3")
        e(f"s_lshr_b32 s4, s{sJB}, 5"); e("s_mul_i32 s4, s4, 5"); e("s_bfe_u32 s5, s3, 0x10001"); e("s_mul_i32 s5, s5, 3")
        e("s_add_u32 s4, s4, s5"); e("s_and_b32 s5, s3, 1"); e("s_add_u32 s4, s4, s5"); e("s_lshl_b32 s4, s4, 6")
        e(f"s_and_b32 s5, s{sJB}, 7"); e("s_lshl_b32 s6, s5, 3"); e("s_add_u32 s4, s4, s6")
        e("s_lshl_b32 s3, s3, 13"); e("s_lshl_b32 s5, s5, 5"); e("s_add_u32 s3, s3, s5")
        e(f"s_bfe_u32 s5, s{sJB}, 0x10004"); e("s_mul_i32 s6, s5, 320"); e("s_add_u32 s6, s6, 128")
        e(f"s_and_b32 s7, s{sJB}, 15"); e(f"s_lshl_b32 s{sCNT}, s7, 2"); e(f"s_add_u32 s6, s6, s{sCNT}")
        e("s_lshl_b32 s5, s5, 14"); e("s_lshl_b32 s7, s7, 4"); e("s_add_u32 s5, s5, s7"); e("s_add_u32 s5, s5, 65536")
        e(f"s_cmp_lt_u32 s{sJB}, 64"); e("s_cselect_b32 s3, s3, s5"); e("s_cselect_b32 s4, s4, s6")
        e("s_cselect_b32 s5, 1, 0")
        e(f"s_mul_i32 s6, s{sB}, 98304"); e("s_add_u32 s3, s3, s6"); e(f"s_add_u32 s3, s3, {A3}")
        e(f"v_lshrrev_b32 v{vR1}, s5, v{vL}"); e(f"v_lshlrev_b32 v{vR1}, 8, v{vR1}")
        e(f"v_and_b32 v{vR2}, s5, v{vL}"); e(f"v_lshl_add_u32 v{vR1}, v{vR2}, 4, v{vR1}"); e(f"v_add_u32 v{vR1}, s3, v{vR1}")
        e(f"v_lshl_add_u32 v{vR2}, v{vR2}, 2, v{vT3}")
        e(f"s_mul_i32 s6, s{sB}, 640"); e("s_add_u32 s4, s4, s6")
        e(f"v_add_u32 v{vR2}, s4, v{vR2}"); e(f"v_lshlrev_b32 v{vR2}, 1, v{vR2}")
    e(f"s_mul_i32 s4, s8, 768"); e(f"s_add_u32 s4, s4, {A1}")
    e(f"s_lshl_b32 s5, s8, 10"); e(f"s_add_u32 s5, s5, {A2}")
    e(f"s_add_u32 s6, s4, {DY}"); e(f"s_add_u32 s7, s5, {DY}")
    e("s_waitcnt vmcnt(0)")
    e(f"v_and_b32 v{vT0}, 0x7f7f7f7f, v{vT}"); e(f"v_add_u32 v{vT0}, 0x01010101, v{vT0}")
    e(f"v_and_b32 v{vT}, 0x80808080, v{vT}"); e(f"v_xor_b32 v{vT}, v{vT}, v{vT0}")
    e(f"ds_write_b32 v{vZ}, v{vT} offset:{L_T}")
    if at:
        e(f"s_cmp_lg_u32 s{sJB}, 0"); e("s_cbranch_scc1 L_aj")
        e("s_mov_b64 exec, 1")
        e(f"buffer_store_dword v{vT}, v{vZ}, s[{rWS}:{rWS + 3}], s9 offen offset:256 sc1")
        e("s_mov_b64 exec, -1")
        e("L_aj:")
    if fb:
        e(f"v_and_b32 v{vT0}, 0x7f7f7f7f, v{vPR}"); e(f"v_add_u32 v{vT0}, 0x01010101, v{vT0}")
        e(f"v_and_b32 v{vPR}, 0x80808080, v{vPR}"); e(f"v_xor_b32 v{vPR}, v{vPR}, v{vT0}")
        e(f"v_and_b32 v{vPR}, s{sMASK}, v{vPR}")
        if xs:
            e(f"v_and_b32 v{vTX}, 0xfffff000, v{vPR}")
        if xd:
            e(f"v_and_b32 v{vTX}, 0xfffff000, v{vPR}")
            e("s_mov_b32 exec_lo, 0")
            e(f"v_mov_b32 v{vPR}, v{vTX}")
            e("s_mov_b32 exec_lo, -1")
    if pre:
        for r in range(4):
            e(f"v_not_b32 v{vA + r}, v{vT}")
        e(f"buffer_store_dwordx4 {vr(vA)}, v{vE1}, s[{rWS}:{rWS + 3}], s5 offen")
        e("s_mov_b32 exec_hi, 0xffff")
        e(f"buffer_store_dwordx4 {vr(vA)}, v{vE1}, s[{rWS}:{rWS + 3}], s4 offen")
        e("s_mov_b32 exec_hi, -1")
    if codepf:
        pass
    ldsspin("L_f1", L_F, vT0)
    stamp("s", "s.f1")
    for p in range(8):
        e(f"ds_read_b128 {vr(vD + 4 * p)}, v{vE1} offset:{p * 768}")
    for p in range(1, 8):
        e(f"s_waitcnt lgkmcnt({7 - p})")
        for r in range(4):
            e(f"v_add_f32 v{vD + r}, v{vD + r}, v{vD + 4 * p + r}")
    def ypub(n):
        if n == 1 or lazy:
            publish(vQY, vE1, 4, 0, 0, 1)
        if n == 2 or (lazy and n > 2):
            publish(vSY, vZ, 5, 768, 1, 1)
        if n == 3:
            publish(vOP, vE1, 5, 0, 0, 1)

    tag4(vQY, vD)
    publish(vQY, vE1, 4, 0, 0, 0 if xp else 1)
    stamp("s", "s.qpub")
    if qd:
        e(f"s_mov_b32 s{sCNT}, 4000000")
        e("L_qd:")
        e(f"ds_read_b32 v{vT0}, v{vZ} offset:{L_F + 12}")
        e(f"s_sub_u32 s{sCNT}, s{sCNT}, 1")
        e("s_cbranch_scc1 L_qdx")
        e("s_waitcnt lgkmcnt(0)")
        e(f"v_readfirstlane_b32 s3, v{vT0}")
        e(f"s_cmp_lt_u32 s3, {qd}")
        e("s_cbranch_scc1 L_qd")
        e("L_qdx:")
    l1 = [f"buffer_load_dwordx4 {vr(vD + 4 * t)}, v{vP1}, s[{rWS}:{rWS + 3}], s{sPO} offen offset:{256 * t} sc1" for t in range(3)]
    if op & 1:
        mpoll("L_p1", l1, [vD + 4 * t for t in range(3)], vT0)
    else:
        poll("L_p1", l1, [vD + 4 * t for t in range(3)], vT0, lambda: ypub(1))
    if xp and not lazy:
        ypub(1)
    stamp("s", "s.qpoll")
    for t in range(3):
        treduce(vD + 4 * t)
    for t in range(3):
        e(f"v_cvt_pk_bf16_f32 v{vD + 4 * t}, v{vD + 4 * t}, v{vD + 4 * t}")
    for t in range(3):
        e(f"ds_write_b16 v{vMX}, v{vD + 4 * t} offset:{128 * t}")
    if qf:
        e(f"ds_write_b32 v{vZ}, v{vONE} offset:{L_T + 4}")
    else:
        e("s_waitcnt lgkmcnt(0)")
        e("s_barrier")
    if at:
        e(f"global_load_dwordx4 {vr(vD + 16)}, v{vE1}, s[{sKV + 2}:{sKV + 3}]")
        e(f"global_load_dwordx4 {vr(vD + 20)}, v{vE1}, s[{sWW + 2}:{sWW + 3}]")
    for g in range(0 if x6 else 12):
        e(f"s_mov_b32 s{sOFF}, {(g // 4) * 5120}")
        e(f"buffer_load_dwordx4 {vr(slot(O0 + g))}, v{vWO}, s[{rWO}:{rWO + 3}], s{sOFF} offen offset:{(g % 4) * 1280} {fl}")
    if at:
        e(f"s_waitcnt vmcnt({0 if x6 else 12})")
        for k in range(8):
            e(f"v_and_b32 v{vD + 16 + k}, 0x7fff7fff, v{vD + 16 + k}")
        for m in (vD + 16, vD + 20):
            e(f"v_pk_max_u16 v{m}, v{m}, v{m + 1}"); e(f"v_pk_max_u16 v{m + 2}, v{m + 2}, v{m + 3}")
            e(f"v_pk_max_u16 v{m}, v{m}, v{m + 2}")
            e(f"v_lshrrev_b32 v{m + 1}, 16, v{m}"); e(f"v_and_b32 v{m}, 0xffff, v{m}"); e(f"v_max_u32 v{m}, v{m}, v{m + 1}")
            for d in ("quad_perm:[1,0,3,2]", "quad_perm:[2,3,0,1]", "row_half_mirror", "row_mirror"):
                e(f"v_max_u32_dpp v{m}, v{m}, v{m} {d} {DPPM}")
            allrows("v_max_u32", m, m + 1)
            e(f"v_lshrrev_b32 v{m}, 7, v{m}")
        e(f"v_add_u32 v{vT0}, v{vD + 16}, v{vD + 20}")
        e(f"v_sub_u32 v{vT0}, {SB + 254}, v{vT0}")
        e(f"v_min_i32 v{vT0}, 120, v{vT0}"); e(f"v_max_i32 v{vT0}, -100, v{vT0}")
        e(f"v_mov_b32 v{vFX}, 0")
        e(f"v_add_u32 v{vFX + 1}, 1023, v{vT0}"); e(f"v_lshlrev_b32 v{vFX + 1}, 20, v{vFX + 1}")
        e(f"v_sub_u32 v{vFX + 2}, 127, v{vT0}"); e(f"v_lshlrev_b32 v{vFX + 2}, 23, v{vFX + 2}")
        e(f"v_mov_b32 v{vFX + 3}, 0x2040000")
        e(f"ds_write_b128 v{vZ}, {vr(vFX)} offset:{L_S}")
        e(f"s_mov_b32 s{sCNT}, 400000")
        e("L_ak:")
        e(f"buffer_load_dword v{vT0}, v{vZ}, s[{rWS}:{rWS + 3}], s9 offen offset:256 sc1")
        e(f"s_sub_u32 s{sCNT}, s{sCNT}, 1")
        e("s_cbranch_scc1 L_akx")
        e("s_waitcnt vmcnt(0)")
        e(f"v_cmp_ne_u32 vcc, v{vT0}, v{vT}")
        e("s_cbranch_vccnz L_ak")
        e("L_akx:")
        e("s_waitcnt vmcnt(0)")
    if fb:
        e("s_and_b32 s3, s2, 7"); e("s_mul_i32 s3, s3, 4352"); e(f"s_add_u32 s3, s3, {A4}")
        e(f"s_lshr_b32 s{sK}, s2, 3")
        e(f"v_and_b32 v{vT0}, 31, v{vL}"); e(f"v_lshl_add_u32 v{vE2}, v{vT0}, 2, s3")
        e(f"s_lshl_b32 s{sSL}, s{sK}, 2"); e(f"s_add_u32 s{sSL}, s{sSL}, s3")
        if xd:
            e(f"s_add_u32 s{sDL}, s3, 128"); e(f"s_add_u32 s{sXL}, s3, {16 * 4352}")
            e(f"s_and_b32 s{sD}, s2, 7"); e(f"s_cmp_eq_u32 s{sD}, s{sK}"); e(f"s_cselect_b32 s{sLEAD}, 0xff, 0")
            e(f"v_mov_b32 v{vLIM}, 64")
            e("s_mov_b32 exec_lo, 0")
            e(f"v_mov_b32 v{vLIM}, 0"); e(f"v_mov_b32 v{vE2}, s{sDL}")
            e("s_mov_b32 exec_hi, 0x10000")
            e(f"v_mov_b32 v{vLIM}, 4096")
            e(f"s_mov_b32 exec_hi, s{sLEAD}")
            e(f"v_mov_b32 v{vLIM}, 4096")
            if xt != 1:
                e(f"v_mul_u32_u24 v{vE2}, 4352, v{vT0}"); e(f"v_add_u32 v{vE2}, {A4 + 16 * 4352}, v{vE2}")
            e("s_mov_b64 exec, -1")
        if xs:
            e(f"s_mul_i32 s{sPUB}, s{sK}, {xdn}"); e(f"s_add_u32 s{sPUB}, s{sPUB}, {xn}")
            e(f"s_cmp_lt_u32 s{sK}, {xs}"); e(f"s_cselect_b32 s{sPUB}, s{sPUB}, 0x7fffffff")
            e(f"s_mov_b32 s{sRD}, {xn + xdl}"); e(f"s_mov_b32 s{sXO}, {AX}")
            e(f"s_mov_b32 s{sBI}, 0"); e(f"s_mov_b32 s{sINT}, 0")
            e(f"s_and_b32 s{sXW}, s2, 63"); e(f"s_lshl_b32 s{sXW}, s{sXW}, 8"); e(f"s_add_u32 s{sXW}, s{sXW}, {AX}")
            e(f"v_lshlrev_b32 v{vLIM}, 8, v{vL}")
        if tb:
            e("s_getreg_b32 s3, hwreg(HW_REG_XCC_ID, 0, 1)"); e("s_cmp_eq_u32 s3, 1")
            e(f"s_cselect_b32 s{sBI}, {tb - te}, {-tb - te}")
            if xs:
                e(f"s_lshl_b32 s{sINT}, s{sBI}, {xsh}")
        e(f"s_mov_b32 s{sN}, 0")
        e(f"s_and_b32 s3, s{sK}, {(1 << IL) - 1}"); e(f"s_add_u32 s{sTH}, s3, {TH0}")
        e(f"s_mov_b32 s{sCc}, 0"); e(f"s_mov_b64 s[{sAUX}:{sAUX + 1}], 0")
        fbspin("L_f2", 1, vD, vE2)
    else:
        ldsspin("L_f2", L_F + 4, vT0)
    stamp("s", "s.f2")
    e(f"ds_read_b128 {vr(vS)}, v{vZ} offset:{L_ST}")
    e(f"ds_read_b128 {vr(vS + 4)}, v{vZ} offset:{L_ST + 16}")
    e("s_waitcnt lgkmcnt(0)")
    e(f"v_max_f32 v{vT0}, v{vS}, v{vS + 2}"); e(f"v_max3_f32 v{vT0}, v{vT0}, v{vS + 4}, v{vS + 6}")
    for w in range(4):
        e(f"v_sub_f32 v{vG + w}, v{vS + 2 * w}, v{vT0}")
    for w in range(4):
        e(f"v_exp_f32 v{vG + w}, v{vG + w}")
    e(f"v_mul_f32 v{vD + 2}, v{vG}, v{vS + 1}")
    for w in range(1, 4):
        e(f"v_fma_f32 v{vD + 2}, v{vG + w}, v{vS + 2 * w + 1}, v{vD + 2}")
    e(f"v_and_b32 v{vD}, s{sMASK}, v{vT0}"); e(f"v_sub_f32 v{vD + 1}, v{vT0}, v{vD}")
    if xc:
        e(f"s_getreg_b32 s{sMIS}, hwreg(HW_REG_XCC_ID, 0, 16)"); e(f"s_lshl_b32 s{sMIS}, s{sMIS}, 8")
        e(f"v_mov_b32 v{vD + 3}, s{sMIS}")
    else:
        e(f"v_mov_b32 v{vD + 3}, 0")
    tag4(vSY, vD)
    publish(vSY, vZ, 5, 768, 1, 0 if xp else 1)
    if fb and dp:
        fbspin("L_f2b", None, vD + 4, vE2)
        e("s_waitcnt lgkmcnt(0)")
    poll("L_p2", [f"buffer_load_dwordx4 {vr(vD)}, v{vP3}, s[{rWS}:{rWS + 3}], s{sPO} offen offset:768 sc1"], [vD], vT0,
         lambda: ypub(2))
    if xp and not lazy:
        ypub(2)
    stamp("s", "s.stpoll")
    if xc:
        e(f"v_cmp_ne_u32 vcc, s{sMIS}, v{vD + 3}")
        e(f"s_or_b32 s{sMIS}, vcc_lo, vcc_hi")
    e(f"v_add_f32 v{vD}, v{vD}, v{vD + 1}")
    e(f"v_mov_b32 v{vD + 1}, v{vD}")
    allrows("v_max_f32", vD + 1, vT0)
    e(f"v_sub_f32 v{vD}, v{vD}, v{vD + 1}"); e(f"v_exp_f32 v{vD}, v{vD}")
    e(f"v_mul_f32 v{vD}, v{vD}, v{vD + 2}")
    allrows("v_add_f32", vD, vT0)
    e(f"v_rcp_f32 v{vD}, v{vD}")
    for w in range(4):
        e(f"v_sub_f32 v{vG + w}, v{vS + 2 * w}, v{vD + 1}")
    for w in range(4):
        e(f"v_exp_f32 v{vG + w}, v{vG + w}")
    for w in range(4):
        e(f"v_mul_f32 v{vG + w}, v{vG + w}, v{vD}")
    if RT:
        fbspin("L_f3a", None, vD + 4, vE2)
        e(f"s_mov_b32 s{sCNT}, 4000000")
        e("L_f3b:")
        e(f"ds_read_b32 v{vT0}, v{vZ} offset:{L_F + 12}")
        e(f"s_sub_u32 s{sCNT}, s{sCNT}, 1")
        e("s_cbranch_scc1 L_f3bx")
        e("s_waitcnt lgkmcnt(0)")
        e(f"v_readfirstlane_b32 s3, v{vT0}")
        e(f"s_sub_i32 s3, s3, s{sCc}")
        e(f"s_cmp_lt_i32 s3, {PF}")
        e("s_cbranch_scc1 L_f3b")
        e("L_f3bx:")
        e(f"v_and_b32 v{vT0}, s{sMASK}, v{vT}")
        e(f"buffer_load_dword v{vT1}, v{vE2}, s[{rWS}:{rWS + 3}], 0 offen offset:128 sc1")
        e("s_mov_b64 exec, 1")
        e(f"buffer_store_dword v{vT0}, v{vZ}, s[{rWS}:{rWS + 3}], s{sSL} offen offset:128")
        e("s_mov_b64 exec, -1")
        e("s_waitcnt vmcnt(1)")
        e(f"v_cmp_eq_u32 vcc, v{vT1}, v{vPR}")
        e("s_bcnt1_i32_b32 s3, vcc_lo")
        e(f"s_cmp_ge_u32 s3, {RT}"); e("s_cselect_b32 s3, 2, 1"); e(f"v_mov_b32 v{vONE}, s3")
        if stamps:
            e(f"s_lshl_b64 s[{sAUX}:{sAUX + 1}], s[{sAUX}:{sAUX + 1}], 5")
            e(f"s_and_b32 s{sAUX + 1}, s{sAUX + 1}, 0xfffffff")
            e("s_bcnt1_i32_b32 s3, vcc_lo"); e("s_min_u32 s3, s3, 31"); e(f"s_or_b32 s{sAUX}, s{sAUX}, s3")
        ldsspin("L_f3", L_F + 8, vT0)
    elif fb and not dp:
        fbspin("L_f3", 2, vD + 4, vE2)
    else:
        ldsspin("L_f3", L_F + 8, vT0)
    stamp("s", "s.f3")
    for p in range(8):
        e(f"ds_read_b128 {vr(vD + 4 * p)}, v{vE1} offset:{p * 768}")
    for w in range(4):
        e(f"s_waitcnt lgkmcnt({6 - 2 * w})")
        for r in range(4):
            e(f"v_add_f32 v{vD + 8 * w + r}, v{vD + 8 * w + r}, v{vD + 8 * w + 4 + r}")
        for r in range(4):
            if w == 0:
                e(f"v_mul_f32 v{vD + r}, v{vG}, v{vD + r}")
            else:
                e(f"v_fma_f32 v{vD + r}, v{vG + w}, v{vD + 8 * w + r}, v{vD + r}")
    tag4(vOP, vD)
    publish(vOP, vE1, 5, 0, 0, 0 if xp else 1)
    if xc:
        e(f"s_cmp_eq_u32 s{sMIS}, 0"); e("s_cbranch_scc1 L_same")
        ypub(3)
        e("L_same:")
    stamp("s", "s.opub")
    nt_ = 3 if cs else 1
    if FL and not RT:
        e(f"s_cmp_ge_i32 s{sCc}, {cth}"); e("s_cselect_b32 s3, 2, 1"); e(f"v_mov_b32 v{vONE}, s3")
    l3 = [f"buffer_load_dwordx4 {vr(vD + 4 * t)}, v{vP2}, s[{rWS}:{rWS + 3}], s{sPO} offen offset:{256 * t} sc1" for t in range(nt_)]
    h3 = [f"ds_write_b32 v{vZ}, v{vONE} offset:{L_H}"] if H < 12 else []
    if pq:
        assert x6 and (pq - 1) * tk <= nticks
        PB = [140 + 12 * k for k in range(pq)]

        def pissue(b):
            for t in range(3):
                e(f"buffer_load_dwordx4 {vr(b + 4 * t)}, v{vP2}, s[{rWS}:{rWS + 3}], 0 offen offset:{256 * t} sc1")

        pissue(PB[0])
        e(h3[0])
        for k in range(1, pq):
            e(f"s_mov_b32 s{sCNT}, 4000000")
            e(f"L_k{k}:")
            e(f"ds_read_b32 v{vT0}, v{vZ} offset:{L_K}")
            e(f"s_sub_u32 s{sCNT}, s{sCNT}, 1")
            e(f"s_cbranch_scc1 L_k{k}x")
            e("s_waitcnt lgkmcnt(0)")
            e(f"v_readfirstlane_b32 s3, v{vT0}")
            e(f"s_cmp_lt_u32 s3, {k * tk}")
            e(f"s_cbranch_scc1 L_k{k}")
            e(f"L_k{k}x:")
            pissue(PB[k])
        e(f"s_mov_b32 s{sCNT}, {N0}")
        e("L_pq:")
        for b in PB:
            e(f"s_waitcnt vmcnt({3 * (pq - 1)})")
            for t in range(3):
                u = b + 4 * t
                e(f"v_perm_b32 v{vT0}, v{u + 1}, v{u}, s{sSA}")
                e(f"v_perm_b32 v{vT0 + 1}, v{u + 3}, v{u + 2}, s{sSB}")
                e(f"v_or_b32 v{vT0}, v{vT0}, v{vT0 + 1}")
                if t == 0:
                    e(f"v_xor_b32 v{vT0 + 2}, v{vT0}, v{vT}")
                else:
                    e(f"v_xor_b32 v{vT0}, v{vT0}, v{vT}")
                    e(f"v_or_b32 v{vT0 + 2}, v{vT0 + 2}, v{vT0}")
            e(f"v_cmp_ne_u32 vcc, 0, v{vT0 + 2}")
            for r in range(12):
                e(f"v_and_b32 v{vD + r}, s{sMASK}, v{b + r}")
            e("s_and_b64 exec, exec, vcc")
            e("s_cbranch_scc0 L_pqx")
            pissue(b)
        e(f"s_sub_u32 s{sCNT}, s{sCNT}, 1")
        e("s_cbranch_scc0 L_pq")
        e("s_mov_b64 exec, -1")
    if op & 4:
        mpoll("L_p3", l3, [vD + 4 * t for t in range(nt_)], vT0, h3)
    else:
        poll("L_p3", l3 + h3, [vD + 4 * t for t in range(nt_)], vT0, lambda: ypub(3))
    if pq:
        e("L_pqx:")
        e("s_mov_b64 exec, -1")
    stamp("s", "s.opoll")
    for t in range(nt_):
        treduce(vD + 4 * t)
    for t in range(nt_):
        e(f"v_cvt_pk_bf16_f32 v{vD + 4 * t}, v{vD + 4 * t}, v{vD + 4 * t}")
    for t in range(nt_):
        e(f"ds_write_b32 v{vLS}, v{vD + 4 * t} offset:{256 * t}")
    if ry == 1:
        publish(vOP, vE1, 5, 0, 0, 1)
    e("s_waitcnt lgkmcnt(0)")
    if stamps:
        for i in range(nst["s"]):
            e(f"v_mov_b32 v{vSC + 2 * i}, s{sST + 2 * i}"); e(f"v_mov_b32 v{vSC + 2 * i + 1}, s{sST + 2 * i + 1}")
    if x6:
        e("s_barrier")
        if ry == 2:
            publish(vOP, vE1, 5, 0, 0, 1)
        if pq:
            e("s_waitcnt vmcnt(0)")
    else:
        e("s_branch L_tail")
    e("L_reduce:")
    e("s_nop 4")
    if xp and not xc:
        publish(vOP, vE1, 5, 0, 0, 1)
    if stamps:
        for i in range(nst["s"]):
            e(f"v_readfirstlane_b32 s{sST + 2 * i}, v{vSC + 2 * i}"); e(f"v_readfirstlane_b32 s{sST + 2 * i + 1}, v{vSC + 2 * i + 1}")
    stamp("s", "s.pub")
    if at:
        pass
    elif cs:
        e(f"s_cmp_ge_u32 s{sJB}, 96")
        e("s_cbranch_scc1 L_sdone")
        if pp:
            ppoll("L_p4", lambda d: f"buffer_load_dwordx4 {vr(d)}, v{vR1}, s[{rWS}:{rWS + 3}], 0 offen sc1",
                  [slot(O0 + k) for k in range(pp)], vD, vT0)
        else:
            poll("L_p4", [f"buffer_load_dwordx4 {vr(vD)}, v{vR1}, s[{rWS}:{rWS + 3}], 0 offen sc1"], [vD], vT0)
        stamp("s", "s.fpoll")
        treduce(vD)
        e(f"v_add_f32_dpp v{vD}, v{vD}, v{vD} quad_perm:[2,3,0,1] {DPPM}")
        e(f"v_add_f32_dpp v{vD}, v{vD}, v{vD} row_ror:4 {DPPM}")
        e(f"v_add_f32_dpp v{vD}, v{vD}, v{vD} row_ror:8 {DPPM}")
        e("s_mov_b32 s3, 0x00030003")
        e(f"s_cmp_lt_u32 s{sJB}, 64")
        e("s_cbranch_scc1 L_r8")
        e("s_mov_b32 s3, 0x00010001")
        e(f"v_add_f32_dpp v{vD}, v{vD}, v{vD} quad_perm:[1,0,3,2] {DPPM}")
        e("L_r8:")
        e(f"v_cvt_pk_bf16_f32 v{vD}, v{vD}, v{vD}")
        e("s_mov_b32 exec_lo, s3"); e("s_mov_b32 exec_hi, s3")
        e(f"buffer_store_short v{vD}, v{vR2}, s[{rOUT}:{rOUT + 3}], 0 offen")
    else:
        e(f"s_cmp_ge_u32 s{sJB}, 80")
        e("s_cbranch_scc1 L_sdone")
        e(f"v_lshrrev_b32 v{vT0}, 1, v{vL}"); e(f"v_mul_u32_u24 v{vP1}, {2560 * fq}, v{vT0}")
        if fq > 1:
            e(f"s_mul_i32 s3, s{sJB}, {(1 << 16) // (80 // fq) + 1}"); e("s_lshr_b32 s3, s3, 16"); e("s_mul_i32 s3, s3, 2560")
            e(f"v_add_u32 v{vP1}, s3, v{vP1}")
        e(f"v_and_b32 v{vT1}, 1, v{vL}"); e(f"v_lshl_add_u32 v{vP1}, v{vT1}, 4, v{vP1}")
        e(f"s_mul_i32 s3, s{sB}, {128 * 2560}"); e(f"s_lshl_b32 s4, s{sJB}, 5"); e("s_add_u32 s3, s3, s4"); e(f"s_add_u32 s3, s3, {A3}")
        e(f"v_add_u32 v{vP1}, s3, v{vP1}")
        for k in range(1, 4):
            e(f"s_mov_b32 s{4 + k}, {k * 32 * 2560 * fq}")
        e(f"v_bfe_u32 v{vT0}, v{vL}, 4, 1"); e(f"v_lshlrev_b32 v{vT0}, 1, v{vT0}")
        e(f"v_lshrrev_b32 v{vT2}, 5, v{vL}"); e(f"v_or_b32 v{vT0}, v{vT0}, v{vT2}")
        e(f"v_lshl_add_u32 v{vT0}, v{vT1}, 2, v{vT0}")
        e(f"s_mul_i32 s3, s{sB}, 640"); e(f"s_lshl_b32 s4, s{sJB}, 3"); e("s_add_u32 s3, s3, s4")
        e(f"v_add_u32 v{vP2}, s3, v{vT0}"); e(f"v_lshlrev_b32 v{vP2}, 1, v{vP2}")
        poll("L_p4", [f"buffer_load_dwordx4 {vr(vD + 4 * k)}, v{vP1}, s[{rWS}:{rWS + 3}], {'0' if k == 0 else 's' + str(4 + k)} offen sc1" for k in range(4 // fq)],
             [vD + 4 * k for k in range(4 // fq)], vT0)
        stamp("s", "s.fpoll")
        for r in range(4):
            e(f"v_add_f32 v{vD + r}, v{vD + r}, v{vD + 4 + r}")
            e(f"v_add_f32 v{vD + 8 + r}, v{vD + 8 + r}, v{vD + 12 + r}")
        for r in range(4):
            e(f"v_add_f32 v{vD + r}, v{vD + r}, v{vD + 8 + r}")
        treduce(vD)
        e(f"v_add_f32_dpp v{vD}, v{vD}, v{vD} quad_perm:[2,3,0,1] {DPPM}")
        e(f"v_add_f32_dpp v{vD}, v{vD}, v{vD} row_ror:4 {DPPM}")
        e(f"v_add_f32_dpp v{vD}, v{vD}, v{vD} row_ror:8 {DPPM}")
        e(f"v_cvt_pk_bf16_f32 v{vD}, v{vD}, v{vD}")
        e("s_mov_b32 exec_lo, 0x00030003"); e("s_mov_b32 exec_hi, 0x00030003")
        e(f"buffer_store_short v{vD}, v{vP2}, s[{rOUT}:{rOUT + 3}], 0 offen")
    if not at:
        e(f"s_cmp_lg_u32 s{sJB}, 0")
        e("s_cbranch_scc1 L_pb" if probe >= 6 else "s_cbranch_scc1 L_sdone")
        e("s_mov_b64 exec, 1")
        e(f"buffer_store_dword v{vT}, v{vZ}, s[{rWS}:{rWS + 3}], s9 offen sc1")
    if probe:
        e("L_pb:")
        e("s_memrealtime s[72:73]")
        e("s_mov_b64 exec, -1")
        if probe < 6:
            e(f"s_cmp_lg_u32 s{sB}, 0"); e("s_cbranch_scc1 L_sdone")
        e(f"v_lshlrev_b32 v{vT0}, 4, v{vL}")
        e(f"buffer_load_dwordx4 {vr(vA)}, v{vT0}, s[{rWS}:{rWS + 3}], 0 offen offset:1024 sc1")
        e("s_waitcnt vmcnt(0) lgkmcnt(0)")
        e("s_lshl_b32 s74, s68, 3")
        e("s_mov_b32 s75, 0x7fffffff"); e("s_mov_b32 s76, 0x80000000"); e("s_mov_b32 s77, 0"); e("s_mov_b32 s78, 0"); e("s_mov_b32 s79, 0")
        e("L_pr:")
        for r in range(4):
            e(f"v_readlane_b32 s80, v{vA + r}, s79")
            e("s_nop 3")
            e("s_and_b32 s81, s80, 7"); e("s_andn2_b32 s80, s80, 7"); e("s_sub_u32 s80, s80, s74"); e("s_ashr_i32 s80, s80, 3")
            e("s_min_i32 s75, s75, s80"); e("s_max_i32 s76, s76, s80"); e("s_add_i32 s77, s77, s80")
            e("s_sub_i32 s82, 0, s80"); e("s_cmp_ge_u32 s81, 4"); e("s_cselect_b32 s80, s80, s82"); e("s_add_i32 s78, s78, s80")
        e("s_add_u32 s79, s79, 1"); e("s_cmp_lt_u32 s79, 64"); e("s_cbranch_scc1 L_pr")
        if probe == 1:
            e("s_ashr_i32 s77, s77, 8"); e("s_sub_i32 s80, s76, s77")
        elif probe == 2:
            e("s_ashr_i32 s78, s78, 7"); e("s_add_i32 s80, s78, 100")
        elif probe == 7:
            e("s_ashr_i32 s77, s77, 8")
            e("s_sub_u32 s80, s72, s68"); e("s_sub_i32 s80, s80, s77"); e("s_sub_i32 s80, s80, 3200")
        elif probe in (3, 6):
            e("s_sub_u32 s80, s72, s68"); e("s_sub_i32 s80, s80, s75"); e("s_sub_i32 s80, s80, 3200")
        elif probe == 4:
            e("s_sub_u32 s80, s72, s68"); e("s_sub_i32 s80, s80, s76"); e("s_sub_i32 s80, s80, 3200")
        else:
            e("s_mov_b32 s80, 0")
        e(f"s_mul_i32 s80, s80, {amp}"); e("s_max_i32 s80, s80, 0"); e("s_min_i32 s80, s80, 8000"); e("s_add_u32 s80, s80, 1000")
        e("L_ps:")
        e("s_memrealtime s[82:83]"); e("s_waitcnt lgkmcnt(0)"); e("s_sub_u32 s82, s82, s72")
        e("s_cmp_lt_u32 s82, s80"); e("s_cbranch_scc1 L_ps")
    e("L_sdone:")
    e("s_mov_b64 exec, -1")
    if stamps:
        e("s_waitcnt vmcnt(0)")
    stamp("s", "s.end")
    stamps_out("s")
    e("L_end:")
    e("s_endpgm")

    body, nops = resolve(L)
    nv = vRING + 4 * R
    out = [HDR.rstrip("\n"),
           f"; @launch grid=(256,1,1) block=({384 if x6 else 320},1,1) lds={LDS}"]
    if stamps:
        out.append("; @stamps " + ",".join(f"{i}={n}" for i, n in names))
    out += ['.amdgcn_target "amdgcn-amd-amdhsa--gfx950"', ".text", f".globl {KN}", ".p2align 8",
            f".type {KN},@function", f"{KN}:"]
    out += [("" if t.endswith(":") else "    ") + t for t in body]
    out += ['.section .rodata,"a"', ".p2align 6", f".amdhsa_kernel {KN}",
            f"  .amdhsa_next_free_vgpr {nv}", "  .amdhsa_next_free_sgpr 102",
            f"  .amdhsa_accum_offset {(nv + 3) // 4 * 4}",
            "  .amdhsa_group_segment_fixed_size 0", "  .amdhsa_kernarg_size 104",
            "  .amdhsa_user_sgpr_count 2", "  .amdhsa_user_sgpr_kernarg_segment_ptr 1",
            "  .amdhsa_system_sgpr_workgroup_id_x 1", ".end_amdhsa_kernel"]
    return "\n".join(out) + "\n", nops


if __name__ == "__main__":
    outp = sys.argv[1]
    kw = {}
    for a in sys.argv[2:]:
        k, v = a.split("=")
        kw[k] = int(v) if v.lstrip("-").isdigit() else v.replace("+", " ")
    s, nops = gen(**kw)
    open(outp, "w").write(s)
    print(outp, "lines", s.count("\n"), "nop states", nops)
```

```python
import sys, math, struct
from asmlib import resolve, VM

KN = "concat_heads__mha_block_cached__gqa_block_cached__decode_kernel"
HDR = open("concat_heads__mha_block_cached__gqa_block_cached__decode.s.ref").read().split("; Override launch")[0]

A1 = 4096
A2 = A1 + 256 * 768
A3 = A2 + 256 * 1024
A4 = A3 + 256 * 2560
AY = A4 + 256 * 4352
DY = AY - A1
WS_USED = AY + A3 - A1
AA = (WS_USED + 4095) // 4096 * 4096
L_P = 0
L_Q = 6144
L_T = 6528
L_F = 6544
L_ST = 6560
L_O = 6592
L_X = 7360
L_H = L_X + 516
L_K = L_X + 520
L_S = L_X + 528
LDS = 8448

sS, sHH, sB, sH, sW, sJB = 10, 11, 12, 13, 14, 15
sX, sMASK, sCNT = 16, 18, 19
sKV, sWW, sOUT, sWS = 20, 24, 28, 30
rX, rWQ, rK, rV, rWO, rWS, rOUT = 32, 36, 40, 44, 48, 52, 56
sOFF, sC = 60, 61
sSEL = 62
sSA, sSB = 66, 67
sROT = 100
sPO = 101
rDBG = 96
sLN = 96
sWM = 97
sRH = 98
sMIS = 99
sST = 68

vL, vKV, vWQ, vWO = 0, 1, 2, 3
vM = 4
vQ = 8
vACC = 20
vA = 32
vT = 36
vPW, vQR, vOR, vPUB = 37, 38, 39, 40
vMX, vLS, vNM = 41, 42, 43
vX = 44
vT0, vT1, vT2, vT3 = 49, 50, 51, 52
vZ, vONE, vPR = 53, 54, 55
vSC = 56
vRING = 88


def f2u(x):
    return struct.unpack("<I", struct.pack("<f", x))[0]


def gen(dl=0, pkw=0, b0=0, fs=0, xq=3, pq=0, tk=6, HW=0, ry=0, ofl='', x6=0, T6=252, H6=0, FW6=6, EH=99, FE=14, at=0, ast=34816, acs=4352, asc=0, SB=34, SM=13, nraw=0, te=0, xo=0, FX=0, FX2=0, XT=3, GX=0, RT=0, PF=250, probe=0, amp=10, qd=0, op=0, osl=0, mp=0, xf=0, FL=0, cth=1, xs=0, xn=2, xdn=4, xdl=2, xa=1, xi=0, xsh=4, BM=20, tb=0, ns='', pp=0, pth=8, dry=0, cs=0, sw=0, xc=0, H=99, FW=12, dp=0, fq=1, nost=0, lazy=0, xt=0, xd=0, xg=1, xb=18, XM=64, F=6, F0=6, F2=0, G2=99, rot=0, R=27, fl="nt", stamps=0, prio=1, codepf=0, pk=2, warm=0, qf=0, fb=0, FH=8, FH2=0, G3=99, TH0=48, THL=232, ksh=1, CM=4, bias=1, cb=0, xp=0, N0=32, IL=4, pre=0, nopoll=0, skip=0, dummy=0):
    L = []
    e = L.append
    names = []
    nst = {"w": 0, "s": 0}

    def stamp(who, name):
        if not stamps or name in ns.split() or (stamps == 2 and name in ("woissued", "oready", "pub")):
            return
        for j, nm in names:
            if nm == name:
                j -= 0 if who == "w" else 14
                e(f"s_memrealtime s[{sST + 2 * j}:{sST + 2 * j + 1}]")
                return
        i = nst[who]
        assert i < 14
        nst[who] += 1
        e(f"s_memrealtime s[{sST + 2 * i}:{sST + 2 * i + 1}]")
        names.append((i + (0 if who == "w" else 14), name))

    def srd(d, base, off, size):
        if off is None:
            e(f"s_mov_b32 s{d}, s{base}"); e(f"s_mov_b32 s{d + 1}, s{base + 1}")
            e(f"s_mov_b32 s{d + 2}, {size}")
        else:
            e(f"s_add_u32 s{d}, s{base}, s{off}"); e(f"s_addc_u32 s{d + 1}, s{base + 1}, 0")
            e(f"s_sub_u32 s{d + 2}, {size}, s{off}")
        e(f"s_mov_b32 s{d + 3}, 0x20000")

    def slot(i):
        return vRING + 4 * (i % R)

    def vr(a, n=4):
        return f"v[{a}:{a + n - 1}]"

    DPPM = "row_mask:0xf bank_mask:0xf"

    def allrows(op, v, t):
        e(f"v_mov_b32 v{t}, v{v}")
        e(f"v_permlane16_swap_b32 v{v}, v{t}")
        e(f"{op} v{v}, v{v}, v{t}")
        e(f"v_mov_b32 v{t}, v{v}")
        e(f"v_permlane32_swap_b32 v{v}, v{t}")
        e(f"{op} v{v}, v{v}, v{t}")

    def treduce(d):
        e(f"v_permlane32_swap_b32 v{d}, v{d + 1}")
        e(f"v_permlane32_swap_b32 v{d + 2}, v{d + 3}")
        e(f"v_add_f32 v{d}, v{d}, v{d + 1}")
        e(f"v_add_f32 v{d + 2}, v{d + 2}, v{d + 3}")
        e(f"v_permlane16_swap_b32 v{d}, v{d + 2}")
        e(f"v_add_f32 v{d}, v{d}, v{d + 2}")

    def tag4(dst, src):
        for r in range(4):
            e(f"v_perm_b32 v{dst + r}, v{src + r}, v{vT}, s{sSEL + r}")

    def poll(label, loads, units, tmp, dual=None):
        e(f"s_mov_b32 s{sCNT}, {1 if nopoll >> (4 - int(label[-1])) & 1 else 400000}")
        if dual:
            e(f"s_mov_b32 s{sPO}, {0 if xp else DY}")
        e(f"{label}:")
        e("s_nop 1")
        for t in loads:
            if not skip >> (4 - int(label[-1])) & 1:
                e(t)
        e(f"s_sub_u32 s{sCNT}, s{sCNT}, 1")
        if dual and xp:
            e(f"s_cmp_lg_u32 s{sCNT}, {400000 - N0}"); e(f"s_cbranch_scc1 {label}_y")
            dual()
            e(f"{label}_y:")
            e(f"s_cmp_lt_u32 s{sCNT}, {400000 - N0}"); e(f"s_cselect_b32 s3, {DY}, 0"); e(f"s_xor_b32 s{sPO}, s{sPO}, s3")
        e("s_waitcnt vmcnt(0)")
        for k, u in enumerate(units):
            e(f"v_perm_b32 v{tmp}, v{u + 1}, v{u}, s{sSA}")
            e(f"v_perm_b32 v{tmp + 1}, v{u + 3}, v{u + 2}, s{sSB}")
            e(f"v_or_b32 v{tmp}, v{tmp}, v{tmp + 1}")
            if k == 0:
                e(f"v_xor_b32 v{tmp + 2}, v{tmp}, v{vT}")
            else:
                e(f"v_xor_b32 v{tmp}, v{tmp}, v{vT}")
                e(f"v_or_b32 v{tmp + 2}, v{tmp + 2}, v{tmp}")
        e(f"v_cmp_ne_u32 vcc, 0, v{tmp + 2}")
        e(f"s_cmp_eq_u32 s{sCNT}, 0")
        e(f"s_cbranch_scc1 {label}_x")
        e(f"s_cbranch_vccnz {label}")
        e(f"{label}_x:")
        for u in units:
            for r in range(4):
                e(f"v_and_b32 v{u + r}, s{sMASK}, v{u + r}")

    def ppoll(label, load, bufs, res, tmp):
        def check(src):
            if src != res:
                for r in range(4):
                    e(f"v_mov_b32 v{res + r}, v{src + r}")
            e(f"v_perm_b32 v{tmp}, v{src + 1}, v{src}, s{sSA}")
            e(f"v_perm_b32 v{tmp + 1}, v{src + 3}, v{src + 2}, s{sSB}")
            e(f"v_or_b32 v{tmp}, v{tmp}, v{tmp + 1}")
            e(f"v_cmp_ne_u32 vcc, v{tmp}, v{vT}")
        n = len(bufs)
        e(f"s_mov_b32 s{sCNT}, 400000")
        e(f"{label}:")
        e(load(res))
        e("s_waitcnt vmcnt(0)")
        check(res)
        e(f"s_sub_u32 s{sCNT}, s{sCNT}, 1")
        e(f"s_cbranch_scc1 {label}_x")
        e("s_and_b64 exec, exec, vcc")
        e(f"s_cbranch_scc0 {label}_x")
        if n > 1:
            e("s_bcnt1_i32_b64 s3, exec")
            e(f"s_cmp_gt_u32 s3, {pth}")
        e(f"s_cbranch_scc1 {label}")
        if n > 1:
            for k in range(n - 1):
                e(load(bufs[k]))
            e(f"{label}_f:")
            for k in range(n):
                e(load(bufs[(k + n - 1) % n]))
                e(f"s_waitcnt vmcnt({n - 1})")
                check(bufs[k])
                e("s_and_b64 exec, exec, vcc")
                e(f"s_cbranch_scc0 {label}_x")
            e(f"s_sub_u32 s{sCNT}, s{sCNT}, 1")
            e(f"s_cbranch_scc0 {label}_f")
        e(f"{label}_x:")
        e("s_mov_b64 exec, -1")
        for r in range(4):
            e(f"v_and_b32 v{res + r}, s{sMASK}, v{res + r}")

    def mpoll(label, loads, units, tmp, first=()):
        e(f"s_mov_b32 s{sCNT}, 400000")
        e(f"s_mov_b32 s{sPO}, {DY}")
        for t in loads:
            e(t)
        for t in first:
            e(t)
        e(f"{label}:")
        e("s_waitcnt vmcnt(0)")
        for k, u in enumerate(units):
            e(f"v_perm_b32 v{tmp}, v{u + 1}, v{u}, s{sSA}")
            e(f"v_perm_b32 v{tmp + 1}, v{u + 3}, v{u + 2}, s{sSB}")
            e(f"v_or_b32 v{tmp}, v{tmp}, v{tmp + 1}")
            if k == 0:
                e(f"v_xor_b32 v{tmp + 2}, v{tmp}, v{vT}")
            else:
                e(f"v_xor_b32 v{tmp}, v{tmp}, v{vT}")
                e(f"v_or_b32 v{tmp + 2}, v{tmp + 2}, v{tmp}")
        e(f"v_cmp_ne_u32 vcc, 0, v{tmp + 2}")
        e(f"s_sub_u32 s{sCNT}, s{sCNT}, 1")
        e(f"s_cbranch_scc1 {label}_x")
        e("s_and_b64 exec, exec, vcc")
        e(f"s_cbranch_scc0 {label}_x")
        if osl:
            e(f"s_sleep {osl}")
        for t in loads:
            e(t)
        e(f"s_branch {label}")
        e(f"{label}_x:")
        e("s_mov_b64 exec, -1")
        for u in units:
            for r in range(4):
                e(f"v_and_b32 v{u + r}, s{sMASK}, v{u + r}")

    def publish(src, vaddr, sx, off, one, y):
        o = f" offset:{off}" if off else ""
        e("s_mov_b64 exec, 1" if one else "s_mov_b32 exec_hi, 0xffff")
        e(f"buffer_store_dwordx4 {vr(src)}, v{vaddr}, s[{rWS}:{rWS + 3}], s{sx + 2 * y} offen{o}" + (" sc1" if y else ""))
        e("s_mov_b64 exec, -1")

    def ldsspin(label, off, tmp):
        e(f"s_mov_b32 s{sCNT}, 4000000")
        e(f"{label}:")
        e(f"ds_read_b32 v{tmp}, v{vZ} offset:{off}")
        e(f"s_sub_u32 s{sCNT}, s{sCNT}, 1")
        e("s_waitcnt lgkmcnt(0)")
        e(f"v_readfirstlane_b32 s3, v{tmp}")
        e(f"s_cmp_eq_u32 s{sCNT}, 0")
        e(f"s_cbranch_scc1 {label}_x")
        e("s_cmp_lt_u32 s3, 4")
        e(f"s_cbranch_scc1 {label}")
        e(f"{label}_x:")

    sN, sSL, sCc, sTH, sP, sK, sAUX = 32, 33, 34, 35, 36, 37, 38
    sD, sXL, sDL, sLEAD = 40, 41, 42, 43
    vLIM, vTX = 37, 38
    sPUB, sRD, sXO, sBI, sTM, sINT, sXW = 40, 41, 42, 43, 44, 46, 47
    AX = A4 + 16 * 4352

    def fbspin(label, k, tmp, vad):
        e(f"s_mov_b32 s{sCNT}, 4000000")
        e(f"{label}:")
        e(f"ds_read_b128 {vr(tmp)}, v{vZ} offset:{L_F}")
        e(f"s_sub_u32 s{sCNT}, s{sCNT}, 1")
        e(f"s_cbranch_scc1 {label}_x")
        if k is None:
            e(f"s_cmp_eq_u32 s{sTH}, 0x7fffffff")
            e(f"s_cbranch_scc1 {label}_x")
        e("s_waitcnt lgkmcnt(0)")
        if k is not None:
            e(f"v_readfirstlane_b32 s3, v{tmp + k}")
        e(f"v_readfirstlane_b32 s{sP}, v{tmp + 3}")
        if k is not None:
            e("s_cmp_ge_u32 s3, 4")
            e(f"s_cbranch_scc1 {label}_x")
        e(f"s_sub_i32 s{sP}, s{sP}, s{sCc}")
        e(f"s_cmp_lt_i32 s{sP}, s{sTH}")
        e(f"s_cbranch_scc1 {label}")
        e(f"s_sub_i32 s{sK}, s{sP}, s{sTH}"); e(f"s_lshr_b32 s{sK}, s{sK}, {IL}"); e(f"s_add_u32 s{sK}, s{sK}, 1")
        e(f"s_add_u32 s{sN}, s{sN}, s{sK}")
        if xs:
            e(f"s_cmp_ge_u32 s{sN}, s{sPUB}"); e(f"s_cbranch_scc0 {label}_a")
            e(f"s_memrealtime s[{sTM}:{sTM + 1}]")
            e(f"{label}_a:")
        e(f"v_and_b32 v{tmp}, s{sMASK}, v{vT}"); e(f"v_or_b32 v{tmp + 1}, s{sN}, v{tmp}")
        e(f"buffer_load_dword v{tmp + 2}, v{vad}, s[{rWS}:{rWS + 3}], 0 offen sc1")
        e("s_mov_b64 exec, 1")
        if nost:
            e(f"buffer_load_dword v{tmp + 1}, v{vZ}, s[{rWS}:{rWS + 3}], s{sSL} offen sc1")
        else:
            e(f"buffer_store_dword v{tmp + 1}, v{vZ}, s[{rWS}:{rWS + 3}], s{sSL} offen")
        e("s_mov_b64 exec, -1")
        e(f"s_lshl_b32 s{sK}, s{sK}, {IL}"); e(f"s_add_u32 s{sTH}, s{sTH}, s{sK}")
        e(f"s_cmp_gt_i32 s{sTH}, {THL + (1 << IL) - 1}"); e(f"s_cselect_b32 s{sTH}, 0x7fffffff, s{sTH}")
        if xs:
            e(f"s_cmp_ge_u32 s{sN}, s{sRD}"); e(f"s_cbranch_scc0 {label}_b")
            e("s_mov_b64 exec, 0xff")
            e(f"buffer_load_dword v{tmp + 3}, v{vLIM}, s[{rWS}:{rWS + 3}], s{sXO} offen sc1")
            e(f"s_add_u32 s{sRD}, s{sRD}, {xdn}"); e(f"s_add_u32 s{sXO}, s{sXO}, 2048")
            e(f"s_cmp_ge_u32 s{sXO}, {AX + 2048 * xs}"); e(f"s_cselect_b32 s{sRD}, 0x7fffffff, s{sRD}")
            e("s_and_b32 s3, s2, 7")
            e("s_waitcnt vmcnt(0)")
            e(f"v_xor_b32 v{tmp + 3}, v{tmp + 3}, v{vTX}")
            e(f"v_cmp_gt_u32 vcc, 0x1000, v{tmp + 3}")
            e(f"v_readlane_b32 s3, v{tmp + 3}, s3")
            e("s_cmp_eq_u32 vcc_lo, 0xff"); e(f"s_cbranch_scc0 {label}_b")
            e(f"v_sub_u32 v{tmp + 3}, s3, v{tmp + 3}")
            e(f"v_bfe_i32 v{tmp + 3}, v{tmp + 3}, 0, 12")
            for m in ("quad_perm:[1,0,3,2]", "quad_perm:[2,3,0,1]", "row_half_mirror"):
                e(f"v_add_u32_dpp v{tmp + 3}, v{tmp + 3}, v{tmp + 3} {m} {DPPM}")
            e(f"v_readfirstlane_b32 s3, v{tmp + 3}")
            if xi:
                e(f"s_mul_i32 s{sBI}, s3, {xi}"); e(f"s_add_i32 s{sINT}, s{sINT}, s{sBI}")
                e(f"s_min_i32 s{sINT}, s{sINT}, {BM << xsh}"); e(f"s_max_i32 s{sINT}, s{sINT}, {-(BM << xsh)}")
                e(f"s_mul_i32 s3, s3, {xa}"); e(f"s_add_i32 s3, s3, s{sINT}")
            else:
                e(f"s_mul_i32 s3, s3, {xa}")
                if tb:
                    e(f"s_add_i32 s3, s3, s{sINT}")
            e(f"s_ashr_i32 s3, s3, {xsh}")
            e(f"s_min_i32 s3, s3, {BM}"); e(f"s_max_i32 s{sBI}, s3, {-BM}")
            e(f"{label}_b:")
            e("s_mov_b64 exec, -1")
        e("s_waitcnt vmcnt(1)")
        e(f"v_xor_b32 v{tmp + 2}, v{tmp + 2}, v{vPR}")
        e(f"v_cmp_gt_u32 vcc, {'v' + str(vLIM) if xd else 64}, v{tmp + 2}")
        e(f"v_cndmask_b32 v{tmp + 2}, 0, v{tmp + 2}, vcc")
        for m in ("quad_perm:[1,0,3,2]", "quad_perm:[2,3,0,1]", "row_half_mirror", "row_mirror"):
            e(f"v_add_u32_dpp v{tmp + 2}, v{tmp + 2}, v{tmp + 2} {m} {DPPM}")
        e(f"v_readlane_b32 s{sK}, v{tmp + 2}, 0"); e(f"v_readlane_b32 s3, v{tmp + 2}, 16")
        e(f"s_add_u32 s{sK}, s{sK}, s3")
        if xd:
            e(f"v_readlane_b32 s{sD}, v{tmp + 2}, 48")
            e(f"s_cmp_eq_u32 s{sLEAD}, 0"); e(f"s_cbranch_scc1 {label}_n")
            e(f"v_readlane_b32 s3, v{tmp + 2}, 32")
            e(f"v_or_b32 v{tmp}, s{sK}, v{vTX}")
            e("s_lshr_b32 s3, s3, 3"); e(f"s_add_u32 s3, s3, {2048 + xb}"); e(f"s_sub_u32 s3, s3, s{sK}")
            e(f"s_min_u32 s3, s3, {2048 + XM}"); e(f"s_max_u32 s3, s3, {2048 - XM}")
            e(f"s_and_b32 s{sD}, vcc_hi, 0xff"); e(f"s_cmp_eq_u32 s{sD}, 0xff")
            e(f"s_cselect_b32 s{sD}, s3, 2048")
            e(f"v_or_b32 v{tmp + 1}, s{sD}, v{vTX}")
            if xf:
                e(f"v_lshlrev_b32 v{tmp + 3}, 2, v{vL}")
                e("s_mov_b32 exec_hi, 0")
                e(f"buffer_store_dword v{tmp}, v{tmp + 3}, s[{rWS}:{rWS + 3}], s{sXL} offen sc1")
            e("s_mov_b64 exec, 1")
            if xt != 2 and not xf:
                e(f"buffer_store_dword v{tmp}, v{vZ}, s[{rWS}:{rWS + 3}], s{sXL} offen sc1")
            e(f"buffer_store_dword v{tmp + 1}, v{vZ}, s[{rWS}:{rWS + 3}], s{sDL} offen")
            e("s_mov_b64 exec, -1")
            e(f"{label}_n:")
            e(f"s_cmp_eq_u32 s{sD}, 0"); e(f"s_cselect_b32 s{sD}, 2048, s{sD}")
            e(f"s_sub_i32 s{sD}, s{sD}, 2048")
            if xg:
                e(f"s_ashr_i32 s{sD}, s{sD}, {xg}")
            e(f"s_add_i32 s{sK}, s{sK}, s{sD}")
        if xs:
            e(f"s_cmp_ge_u32 s{sN}, s{sPUB}"); e(f"s_cbranch_scc0 {label}_c")
            e(f"s_mul_i32 s3, s{sK}, 43"); e("s_lshr_b32 s3, s3, 4")
            e("s_waitcnt lgkmcnt(0)")
            e(f"s_sub_u32 s3, s{sTM}, s3"); e("s_and_b32 s3, s3, 0xfff")
            e(f"v_or_b32 v{tmp}, s3, v{vTX}")
            if xf:
                e(f"v_lshlrev_b32 v{tmp + 3}, 2, v{vL}")
                e("s_mov_b32 exec_hi, 0")
                e(f"buffer_store_dword v{tmp}, v{tmp + 3}, s[{rWS}:{rWS + 3}], s{sXW} offen sc1")
            else:
                e("s_mov_b64 exec, 1")
                e(f"buffer_store_dword v{tmp}, v{vZ}, s[{rWS}:{rWS + 3}], s{sXW} offen sc1")
            e("s_mov_b64 exec, -1")
            e(f"s_mov_b32 s{sPUB}, 0x7fffffff")
            e(f"{label}_c:")
            e(f"s_add_i32 s{sK}, s{sK}, s{sBI}")
        if tb and not xs:
            e(f"s_add_i32 s{sK}, s{sK}, s{sBI}")
        if IL > 3:
            e(f"s_lshl_b32 s{sK}, s{sK}, {IL - 3}")
        e(f"s_lshl_b32 s3, s{sP}, 2")
        e(f"s_sub_i32 s3, s{sK}, s3")
        e(f"s_add_u32 s3, s3, {4 * TH0 - 2 + (2 << ksh) + cb}")
        e(f"s_ashr_i32 s3, s3, {2 + ksh}")
        e(f"s_min_i32 s3, s3, {CM}"); e(f"s_max_i32 s3, s3, {-CM}")
        e(f"s_sub_i32 s{sK}, s3, s{sCc}"); e(f"s_mov_b32 s{sCc}, s3")
        e(f"v_mov_b32 v{tmp}, s{sK}")
        e("s_mov_b64 exec, 1")
        e(f"ds_add_u32 v{vZ}, v{tmp} offset:{L_F + 12}")
        e("s_mov_b64 exec, -1")
        if stamps:
            e(f"s_lshl_b64 s[{sAUX}:{sAUX + 1}], s[{sAUX}:{sAUX + 1}], 5")
            e(f"s_and_b32 s{sAUX + 1}, s{sAUX + 1}, 0xfffffff")
            e("s_add_u32 s3, s3, 16"); e(f"s_or_b32 s{sAUX}, s{sAUX}, s3")
        e(f"s_branch {label}")
        e(f"{label}_x:")

    def wo_assign():
        a, b_, c_ = sSEL, sSEL + 1, sSEL + 2
        wm = sWM if x6 else sW
        if x6:
            e(f"s_min_u32 s{sWM}, s{sW}, 4")
        e(f"s_and_b32 s{a}, s{sS}, 1"); e(f"s_mul_i32 s{b_}, s{a}, 3"); e(f"s_bfe_u32 s{c_}, s{wm}, 0x10001"); e(f"s_add_u32 s{b_}, s{b_}, s{c_}")
        e(f"s_and_b32 s{c_}, s{wm}, 1"); e(f"s_cmp_eq_u32 s{wm}, 0"); e(f"s_cselect_b32 s{b_}, 2, s{b_}"); e(f"s_cselect_b32 s{sRH}, s{a}, s{c_}")
        e(f"s_lshr_b32 s{a}, s{sS}, 1"); e(f"s_mul_i32 s{a}, s{a}, 5"); e(f"s_add_u32 s{b_}, s{b_}, s{a}"); e(f"s_lshl_b32 s{b_}, s{b_}, 7")
        if at:
            e(f"s_mov_b32 s{sLN}, s{b_}")
        e(f"s_mul_i32 s6, s{sH}, 245760"); e(f"s_add_u32 s6, s6, s{b_}")
        e(f"s_mul_i32 s{a}, s{sRH}, 122880"); e(f"s_add_u32 s6, s6, s{a}")

    def pro_ptrs():
        e(f"s_load_dwordx2 s[{sWW + 2}:{sWW + 3}], s[0:1], s7 offset:32")
        e(f"s_load_dwordx2 s[{sOUT}:{sOUT + 1}], s[0:1], 80")
        e(f"s_load_dwordx2 s[{sWS}:{sWS + 1}], s[0:1], 96")

    def pro_rest():
        e(f"s_lshr_b32 s{sW}, s{sW}, 6")
        e(f"v_and_b32 v{vL}, 63, v0")
        e(f"s_lshl_b32 s{sJB}, s{sH}, 2"); e(f"s_add_u32 s{sJB}, s{sJB}, s{sS}")
        wo_assign()

    if fs == 2:
        assert cs and x6 and not mp and not xo and not warm
        if stamps:
            e(f"s_memrealtime s[{sST}:{sST + 1}]")
            nst["w"] = 1; nst["s"] = 1
            names.append((0, "start")); names.append((14, "s.start"))
        e("s_cmpk_ge_u32 s2, 256"); e("s_cbranch_scc1 L_end")
        e(f"s_lshr_b32 s{sB}, s2, 7"); e(f"s_mul_i32 s7, s{sB}, 40")
        e(f"s_load_dwordx8 s[{rK}:{rK + 7}], s[0:1], s7")
        e(f"v_lshrrev_b32 v{vT0}, 3, v0"); e(f"v_and_b32 v{vT1}, 7, v0")
        e(f"v_mul_u32_u24 v{vWQ}, 12288, v{vT0}"); e(f"v_lshl_add_u32 v{vWQ}, v{vT1}, 4, v{vWQ}")
        e("s_lshr_b32 s3, s2, 5"); e("s_and_b32 s5, s2, 7"); e(f"s_lshl3_add_u32 s{sHH}, s3, s5")
        e(f"s_and_b32 s{sH}, s{sHH}, 31")
        e("s_and_b32 s4, s2, 24"); e("s_mulk_i32 s4, 640"); e(f"s_add_u32 s4, s4, s{sH}"); e("s_mulk_i32 s4, 384")
        e(f"v_readfirstlane_b32 s{sW}, v0")
        e(f"v_add_u32 v{vWQ}, s4, v{vWQ}")
        e(f"s_cmpk_ge_u32 s{sW}, 256"); e("s_cbranch_scc1 L_other")
    else:
        if fs:
            assert not mp and not xo
            if stamps:
                e(f"s_memrealtime s[{sST}:{sST + 1}]")
            e("s_bfe_u32 s7, s2, 0x10007"); e("s_mul_i32 s7, s7, 40")
            e(f"s_load_dwordx2 s[{rWQ}:{rWQ + 1}], s[0:1], s7 offset:24")
            e(f"s_load_dwordx2 s[{rX}:{rX + 1}], s[0:1], s7")
            e(f"s_load_dwordx4 s[{sKV}:{sKV + 3}], s[0:1], s7 offset:8")
            e(f"s_load_dwordx2 s[{sWW + 2}:{sWW + 3}], s[0:1], s7 offset:32")
            e(f"s_load_dwordx2 s[{sOUT}:{sOUT + 1}], s[0:1], 80")
            e(f"s_load_dwordx2 s[{sWS}:{sWS + 1}], s[0:1], 96")
            e("s_cmp_ge_u32 s2, 256"); e("s_cbranch_scc1 L_xtra")
        else:
            e("s_cmp_ge_u32 s2, 256"); e("s_cbranch_scc1 L_end")
        if stamps:
            if not fs:
                e(f"s_memrealtime s[{sST}:{sST + 1}]")
            nst["w"] = 1; nst["s"] = 1
            names.append((0, "start")); names.append((14, "s.start"))
        if mp:
            e(f"s_and_b32 s{sS}, s2, 3"); e("s_lshr_b32 s4, s2, 3"); e("s_bfe_u32 s3, s2, 0x10002")
            e("s_lshl_b32 s3, s3, 5"); e(f"s_add_u32 s{sHH}, s4, s3")
        else:
            if xo:
                e(f"s_add_u32 s3, s2, {xo}"); e("s_and_b32 s3, s3, 7")
            else:
                e("s_and_b32 s3, s2, 7")
            e("s_lshr_b32 s4, s2, 3"); e(f"s_and_b32 s{sS}, s4, 3")
            e("s_lshr_b32 s4, s4, 2"); e("s_lshl_b32 s4, s4, 3"); e(f"s_add_u32 s{sHH}, s4, s3")
        e(f"s_lshr_b32 s{sB}, s{sHH}, 5")
        if not fs:
            e(f"s_mul_i32 s7, s{sB}, 40")
            e("s_add_u32 s8, s0, s7"); e("s_addc_u32 s9, s1, 0")
            e(f"s_load_dwordx4 s[{sWW}:{sWW + 3}], s[8:9], 24")
            e(f"s_load_dwordx2 s[{sX}:{sX + 1}], s[8:9], 0")
            e(f"s_load_dwordx4 s[{sKV}:{sKV + 3}], s[8:9], 8")
            e(f"s_load_dwordx2 s[{sOUT}:{sOUT + 1}], s[0:1], 80")
            e(f"s_load_dwordx2 s[{sWS}:{sWS + 1}], s[0:1], 96")
        if stamps == 2 and dummy:
            stamp("w", "p0")
        e(f"v_lshrrev_b32 v{vT0}, 6, v0")
        e(f"v_and_b32 v{vL}, 63, v0")
        e(f"v_readfirstlane_b32 s{sW}, v{vT0}")
        e(f"s_and_b32 s{sH}, s{sHH}, 31")
        e(f"s_lshl_b32 s{sJB}, s{sH}, 2"); e(f"s_add_u32 s{sJB}, s{sJB}, s{sS}")
        e(f"v_lshrrev_b32 v{vT0}, 3, v{vL}")
        e(f"v_and_b32 v{vT1}, 7, v{vL}")
        e(f"v_lshlrev_b32 v{vT2}, 4, v{vT1}")
        e(f"v_mul_u32_u24 v{vWQ}, 12288, v{vT0}"); e(f"v_add_u32 v{vWQ}, v{vWQ}, v{vT2}")
        e(f"v_mul_u32_u24 v{vKV}, 384, v{vT0}"); e(f"v_add_u32 v{vKV}, v{vKV}, v{vT2}")
        e(f"v_lshlrev_b32 v{vT3}, 1, v{vT0}")
        e(f"v_add_u32 v{vQR}, {L_Q}, v{vT2}")
        e(f"s_mul_i32 s3, s{sS}, 160"); e(f"s_mul_i32 s4, s{sW}, 40"); e("s_add_u32 s3, s3, s4")
        e("s_mul_i32 s4, s3, 12288"); e(f"s_mul_i32 s5, s{sH}, 384"); e("s_add_u32 s4, s4, s5")
        e("s_lshl_b32 s3, s3, 1")
        e(f"s_mul_i32 s5, s{sH}, 1572864"); e(f"s_mul_i32 s6, s{sS}, 393216"); e("s_add_u32 s5, s5, s6")
        e(f"s_mul_i32 s6, s{sW}, 3072"); e("s_add_u32 s5, s5, s6")
        if stamps == 2 and dummy:
            stamp("w", "p1")
        if cs:
            wo_assign()
        else:
            e(f"s_mul_i32 s6, s{sJB}, 61440"); e(f"s_lshl_b32 s7, s{sW}, 8"); e("s_add_u32 s6, s6, s7")
        e(f"s_cmp_eq_u32 s{sW}, 4")
        e("s_cbranch_scc1 L_service")
        if x6:
            e(f"s_cmp_eq_u32 s{sW}, 5")
            e("s_cbranch_scc1 L_six")

    def common_consts():
        e(f"v_and_b32 v{vT0}, 1, v{vL}"); e(f"v_lshlrev_b32 v{vT0}, 4, v{vT0}")
        e(f"v_mov_b32 v{vT1}, 0xffff"); e(f"v_lshlrev_b32 v{vT0}, v{vT0}, v{vT1}")
        e(f"v_bfe_u32 v{vT1}, v{vL}, 1, 2")
        for r in range(4):
            e(f"v_cmp_eq_u32 vcc, {r}, v{vT1}")
            e(f"v_cndmask_b32 v{vM + r}, 0, v{vT0}, vcc")
        if cs:
            e(f"v_lshrrev_b32 v{vT0}, 3, v{vL}"); e(f"v_and_b32 v{vT1}, 7, v{vL}")
            e(f"v_mul_u32_u24 v{vWO}, 15360, v{vT0}"); e(f"v_lshl_add_u32 v{vWO}, v{vT1}, 4, v{vWO}")
            e(f"s_mul_i32 s7, s{sRH}, 384"); e(f"s_add_u32 s7, s7, {L_O}")
            e(f"v_mul_u32_u24 v{vOR}, 48, v{vT0}"); e(f"v_add_u32 v{vOR}, s7, v{vOR}")
        if cs and at:
            e(f"v_mul_u32_u24 v{vPUB}, {acs}, v{vT0}"); e(f"v_lshl_add_u32 v{vPUB}, v{vT1}, 3, v{vPUB}")
            e(f"s_lshr_b32 s7, s{sLN}, 7"); e(f"s_mul_i32 s8, s{sB}, 10"); e("s_add_u32 s7, s7, s8")
            e(f"s_mul_i32 s7, s7, {ast}"); e(f"s_add_u32 s7, s7, {AA}")
            e(f"v_add_u32 v{vPUB}, s7, v{vPUB}")
        elif cs:
            e(f"v_bfe_u32 v{vT0}, v{vL}, 4, 1")
            e(f"v_lshlrev_b32 v{vPUB}, 5, v{vT1}"); e(f"v_lshl_add_u32 v{vPUB}, v{vT0}, 4, v{vPUB}")
            e(f"s_bfe_u32 s8, s{sW}, 0x10001")
            e(f"s_lshl_b32 s7, s{sS}, 1"); e("s_add_u32 s7, s7, s8"); e("s_lshl_b32 s7, s7, 5"); e(f"s_add_u32 s7, s7, s{sH}")
            e(f"s_lshr_b32 s9, s{sS}, 1"); e("s_lshl_b32 s9, s9, 5"); e(f"s_add_u32 s9, s9, s{sH}")
            e("s_lshl_b32 s9, s9, 1"); e(f"s_add_u32 s9, s9, s{sRH}"); e("s_add_u32 s9, s9, 256")
            e(f"s_cmp_eq_u32 s{sW}, 0"); e("s_cselect_b32 s7, s9, s7")
            e(f"s_mul_i32 s9, s{sB}, 384"); e("s_add_u32 s7, s7, s9"); e("s_lshl_b32 s7, s7, 8"); e(f"s_add_u32 s7, s7, {A3}")
            e(f"v_add_u32 v{vPUB}, s7, v{vPUB}")
        else:
            e(f"v_lshrrev_b32 v{vT0}, 4, v{vL}")
            e(f"v_and_b32 v{vT1}, 15, v{vL}")
            e(f"v_mul_u32_u24 v{vWO}, 15360, v{vT0}"); e(f"v_lshl_add_u32 v{vWO}, v{vT1}, 4, v{vWO}")
            e(f"v_mul_u32_u24 v{vOR}, 48, v{vT0}"); e(f"v_add_u32 v{vOR}, {L_O}, v{vOR}")
            e(f"v_lshlrev_b32 v{vPUB}, 5, v{vT1}"); e(f"v_lshl_add_u32 v{vPUB}, v{vT0}, 4, v{vPUB}")
            e(f"s_lshl_b32 s7, s{sB}, 7"); e(f"s_add_u32 s7, s7, s{sJB}"); e("s_mul_i32 s7, s7, 2560")
            e(f"s_lshl_b32 s8, s{sW}, 9"); e("s_add_u32 s7, s7, s8"); e(f"s_add_u32 s7, s7, {A3}")
            e(f"v_add_u32 v{vPUB}, s7, v{vPUB}")
        e(f"v_mov_b32 v{vZ}, 0"); e(f"v_mov_b32 v{vONE}, 1")
        for r in range(4):
            e(f"s_mov_b32 s{sSEL + r}, {0x07060500 + r}")
        srd(rWO, sWW + 2, 6, 7864320)
        srd(rWS, sWS, None, AA + 20 * ast if at else WS_USED)
        if cs:
            srd(rOUT, sOUT, None, 2560)

    vXA = vNM

    vFX = vACC + 8

    def pair_addr():
        if at:
            e(f"v_and_b32 v{vT0}, 7, v{vL}"); e(f"v_lshlrev_b32 v{vXA}, 4, v{vT0}")
            e(f"v_bfe_u32 v{vT0}, v{vL}, 4, 1"); e(f"v_lshl_add_u32 v{vXA}, v{vT0}, 3, v{vXA}")
            e(f"v_lshrrev_b32 v{vT0}, 5, v{vL}"); e(f"v_lshl_add_u32 v{vXA}, v{vT0}, 2, v{vXA}")
            e(f"v_bfe_u32 v{vT0}, v{vL}, 3, 1"); e(f"v_lshl_add_u32 v{vXA}, v{vT0}, 1, v{vXA}")
            e(f"s_mul_i32 s3, s{sB}, 1280"); e(f"s_add_u32 s3, s3, s{sLN}")
            e(f"v_add_u32 v{vXA}, s3, v{vXA}")
            return
        e(f"s_bfe_u32 s3, s{sW}, 0x10001"); e("s_lshl_b32 s3, s3, 8"); e(f"s_add_u32 s3, s3, {L_X}")
        e(f"v_and_b32 v{vXA}, 255, v{vPUB}"); e(f"v_add_u32 v{vXA}, s3, v{vXA}")

    vm = VM(e)
    NQ, NK, NV, NO = 15, 96, 96, 12
    K0, V0, O0 = NQ, NQ + NK, NQ + NK + NV
    N = O0 + NO
    cur = [None]

    def setoff(v):
        if cur[0] != v:
            e(f"s_mov_b32 s{sOFF}, {v}")
            cur[0] = v

    def issue(i):
        d = vr(slot(i))
        if i < K0:
            g, t = divmod(i, 3)
            if fs == 2:
                if g and not t:
                    e(f"v_add_u32 v{vWQ}, {32 * 12288}, v{vWQ}")
                vm.issue(i, f"global_load_dwordx4 {d}, v{vWQ}, s[{rV + 2}:{rV + 3}] offset:{t * 128} {fl}")
                if i == K0 - 1:
                    e(f"s_mov_b32 s{rV + 2}, s{rK + 2}"); e(f"s_mov_b32 s{rV + 3}, 0x20000")
                    if b0:
                        e("s_barrier")
                return
            setoff(g * 8 * 12288)
            vm.issue(i, f"buffer_load_dwordx4 {d}, v{vWQ}, s[{rWQ}:{rWQ + 3}], s{sOFF} offen offset:{t * 128} {fl}")
            if b0 and i == K0 - 1:
                e("s_barrier")
        elif i < O0:
            r = rK if i < V0 else rV
            g, t = divmod(i - (K0 if i < V0 else V0), 3)
            if fb and t == 0 and i < V0 + 3 * G3:
                ga = (i - K0) // 3
                e("s_mov_b64 exec, 1")
                if ga > 0:
                    e("s_waitcnt lgkmcnt(0)")
                    e(f"v_cmp_lt_i32 vcc, {4 * (ga - 1) + bias}, v{vPR}")
                    if FX and ga >= GX:
                        e(f"v_readfirstlane_b32 s8, v{vPR}")
                e(f"ds_add_rtn_u32 v{vPR}, v{vZ}, v{vONE} offset:{L_F + 12}")
                e("s_mov_b64 exec, -1")
            if not rot:
                setoff(g * 12288)
            elif t == 0:
                cur[0] = None
                if g == 0:
                    e(f"s_mov_b32 s{sOFF}, s{sROT}")
                else:
                    e(f"s_add_u32 s{sOFF}, s{sOFF}, 12288"); e(f"s_cmp_eq_u32 s{sOFF}, 393216")
                    e(f"s_cselect_b32 s{sOFF}, 0, s{sOFF}")
                if FX and (i - K0) // 3 >= max(GX, 1):
                    e(f"s_cmp_gt_i32 s8, {4 * ((i - K0) // 3 - 1) + bias + XT}")
            vm.issue(i, f"buffer_load_dwordx4 {d}, v{vKV}, s[{r}:{r + 3}], s{sOFF} offen offset:{t * 128} {fl}")
        else:
            g = i - O0
            setoff((g // 4) * 5120)
            vm.issue(i, f"buffer_load_dwordx4 {d}, v{vWO}, s[{rWO}:{rWO + 3}], s{sOFF} offen offset:{(g % 4) * 1280} {fl}")

    def afrag(src):
        for r in range(4):
            e(f"v_and_b32 v{vA + r}, v{src}, v{vM + r}")

    def mfma(acc, b, first):
        c = "0" if first else vr(acc)
        e(f"v_mfma_f32_16x16x32_bf16 {vr(acc)}, {vr(vA)}, {vr(b)}, {c}")

    def partials_out(flag):
        e("s_mov_b32 exec_lo, 0x00ff00ff"); e("s_mov_b32 exec_hi, 0xff00ff00")
        for t in range(3):
            e(f"ds_write_b128 v{vPW}, {vr(vACC + 4 * t)} offset:{t * 256}")
        e("s_mov_b64 exec, 1")
        e(f"ds_add_u32 v{vZ}, v{vONE} offset:{flag}")
        e("s_mov_b64 exec, -1")

    def pcalc(g):
        s = vSC + g
        e(f"v_fma_f32 v{s}, v{s}, s{sC}, v{vNM}")
        e(f"v_exp_f32 v{s}, v{s}")
        if g == 0:
            e(f"v_mov_b32 v{vLS}, v{s}")
        else:
            e(f"v_add_f32 v{vLS}, v{vLS}, v{s}")
        e(f"v_cvt_pk_bf16_f32 v{s}, v{s}, v{s}")

    pend = []

    def red_steps(g):
        s = vSC + g
        st = [f"v_add_f32_dpp v{s}, v{s}, v{s} quad_perm:[1,0,3,2] {DPPM}",
              f"v_add_f32_dpp v{s}, v{s}, v{s} quad_perm:[2,3,0,1] {DPPM}",
              f"v_add_f32_dpp v{s}, v{s}, v{s} row_half_mirror {DPPM}"]
        st.append(f"v_mov_b32 v{vMX}, v{s}" if g == 0 else f"v_max_f32 v{vMX}, v{vMX}, v{s}")
        return st

    pdone = [0]

    def consume(i):
        vm.wait(i)
        b = slot(i)
        if i < K0:
            g, t = divmod(i, 3)
            if t == 0:
                e(f"v_lshl_or_b32 v{vT0}, v{vX + g}, 16, v{vX + g}")
                afrag(vT0)
            mfma(vACC + 4 * t, b, g == 0)
            if stamps == 2 and i in (0, 5, 11):
                stamp("w", f"wq{i}")
            if i == K0 - 1:
                partials_out(L_F)
                stamp("w", "qpart")
        elif i < V0:
            g, t = divmod(i - K0, 3)
            for r in range(4):
                e(f"v_dot2c_f32_bf16 v{vSC + g}, v{b + r}, v{vQ + 4 * t + r}")
                if r in (1, 3) and pend:
                    e(pend.pop(0))
            if t == 2:
                while pend:
                    e(pend.pop(0))
                pend.extend(red_steps(g))
            if i == V0 - 1:
                while pend:
                    e(pend.pop(0))
                e(f"v_max_f32_dpp v{vMX}, v{vMX}, v{vMX} row_ror:8 {DPPM}")
                allrows("v_max_f32", vMX, vT0)
                e(f"v_mul_f32 v{vMX}, s{sC}, v{vMX}")
                e(f"v_sub_f32 v{vNM}, 0, v{vMX}")
                for g2 in range(pk):
                    pcalc(g2)
                pdone[0] = pk
                stamp("w", "Kdone")
        elif i < O0:
            g, t = divmod(i - V0, 3)
            if stamps == 3 and t == 2 and g in (16, 22, 26, 29):
                stamp("w", f"v{g}")
            if t == 0:
                afrag(vSC + g)
            mfma(vACC + 4 * t, b, g == 0)
            if t < 2 and pdone[0] < 32:
                for _ in range((pk + 1 - t) // 2):
                    if pdone[0] < 32:
                        pcalc(pdone[0]); pdone[0] += 1
                if pdone[0] == 32:
                    pdone[0] = 33
                    e(f"v_add_f32_dpp v{vLS}, v{vLS}, v{vLS} row_ror:8 {DPPM}")
                    allrows("v_add_f32", vLS, vT0)
                    e(f"s_lshl_b32 s3, s{sW}, 3"); e(f"v_mov_b32 v{vT0}, s3")
                    e("s_mov_b64 exec, 1")
                    e(f"ds_write_b32 v{vT0}, v{vMX} offset:{L_ST}")
                    e(f"ds_write_b32 v{vT0}, v{vLS} offset:{L_ST + 4}")
                    e(f"ds_add_u32 v{vZ}, v{vONE} offset:{L_F + 4}")
                    e("s_mov_b64 exec, -1")
            if i == O0 - 1:
                partials_out(L_F + 8)
                stamp("w", "Vdone")

    if fs == 1:
        e(f"v_add_u32 v{vWQ}, s4, v{vWQ}")
        e(f"s_mov_b32 s{rX + 2}, 1280"); e(f"s_mov_b32 s{rX + 3}, 0x20000")
        e(f"s_mov_b32 s{rWQ + 2}, 7864320"); e(f"s_mov_b32 s{rWQ + 3}, 0x20000")
        setoff(0)
    if stamps == 2:
        stamp("w", "pre")
    e("s_waitcnt lgkmcnt(0)")
    if stamps == 2:
        stamp("w", "karg")
    ni = 0
    if not fs:
        srd(rX, sX, None, 1280)
        srd(rWQ, sWW, 4, 7864320)
    else:
        while ni < xq:
            issue(ni); ni += 1
    if fs == 2:
        e(f"s_bfe_u32 s{sS}, s2, 0x20003"); e(f"s_mul_i32 s3, s{sS}, 320")
        e(f"v_lshl_add_u32 v{vT3}, v{vT0}, 1, s3")
    for g in range(5):
        if fs == 2:
            vm.issue(("x", g), f"global_load_ushort v{vX + g}, v{vT3}, s[{rK}:{rK + 1}] offset:{64 * g}")
        else:
            vm.issue(("x", g), f"buffer_load_ushort v{vX + g}, v{vT3}, s[{rX}:{rX + 3}], s3 offen offset:{16 * g}")
    while ni < F0:
        issue(ni); ni += 1
    if fs == 2:
        assert F0 < K0
        pro_ptrs()
        pro_rest()
        e(f"v_lshrrev_b32 v{vT0}, 3, v{vL}"); e(f"v_lshlrev_b32 v{vT2}, 4, v{vT1}")
        e(f"v_mul_u32_u24 v{vKV}, 384, v{vT0}"); e(f"v_add_u32 v{vKV}, v{vKV}, v{vT2}")
        e(f"v_add_u32 v{vQR}, {L_Q}, v{vT2}")
        e(f"s_mul_i32 s5, s{sH}, 1572864"); e(f"s_mul_i32 s7, s{sS}, 393216"); e("s_add_u32 s5, s5, s7")
        e(f"s_mul_i32 s7, s{sW}, 3072"); e("s_add_u32 s5, s5, s7")
    if rot:
        ra, rb, rc = rot // 10000 % 100, rot // 100 % 100, rot % 100
        e(f"s_and_b32 s7, s{sHH}, 7"); e(f"s_mul_i32 s{sROT}, s7, {ra}")
        e(f"s_mul_i32 s7, s{sS}, {rb}"); e(f"s_add_u32 s{sROT}, s{sROT}, s7")
        e(f"s_lshr_b32 s7, s{sHH}, 3"); e(f"s_mul_i32 s7, s7, {rc}"); e(f"s_add_u32 s{sROT}, s{sROT}, s7")
        e(f"s_and_b32 s{sROT}, s{sROT}, 31"); e(f"s_mul_i32 s{sROT}, s{sROT}, 12288")
    if fs == 2:
        srd(rK, rK + 2, 5, 50331648)
        e(f"s_add_u32 s{rV}, s{rV}, s5"); e(f"s_addc_u32 s{rV + 1}, s{rV + 1}, 0")
        e("s_waitcnt lgkmcnt(0)")
    else:
        srd(rK, sKV, 5, 50331648)
        srd(rV, sKV + 2, 5, 50331648)
    common_consts()
    e(f"v_lshrrev_b32 v{vT0}, 5, v{vL}"); e(f"v_mul_u32_u24 v{vPW}, 768, v{vT0}")
    e(f"v_and_b32 v{vT0}, 7, v{vL}"); e(f"v_lshl_add_u32 v{vPW}, v{vT0}, 5, v{vPW}")
    e(f"v_bfe_u32 v{vT0}, v{vL}, 4, 1"); e(f"v_lshl_add_u32 v{vPW}, v{vT0}, 4, v{vPW}")
    e(f"s_mul_i32 s7, s{sW}, 1536"); e(f"v_add_u32 v{vPW}, s7, v{vPW}")
    e(f"s_mov_b32 s{sC}, {f2u(192 ** -0.5 * math.log2(math.e)):#x}")
    for g in range(32):
        e(f"v_mov_b32 v{vSC + g}, 0")
    if not b0:
        e("s_barrier")
    if stamps == 2:
        stamp("w", "B0")
    vm.wait(("x", 4))
    if stamps == 2:
        stamp("w", "xdone")
    nc = 0

    def Flo(i):
        return F2 if (F2 and i >= V0 + 3 * G2) else F

    def Fmid(i):
        if fb and i >= K0 + 3:
            return FH2 if (FH2 and i >= V0 + 3 * G2) else FH
        return Flo(i)

    def Fof(i):
        if FX and i > K0 + 3 * max(GX, 1):
            return FX2 if (FX2 and i >= V0 + 3 * G2) else FX
        return Fmid(i)

    ncond = [0]

    def pace():
        j = ni - Fof(ni)
        if j >= 0:
            vm.wait(j)
        jm = ni - Fmid(ni)
        j = ni - Flo(ni)
        if fb and ni < V0 + 3 * G3 and j >= 0 and j in vm.q:
            ncond[0] += 1
            if jm in vm.q and jm < j:
                e(f"s_cbranch_scc1 L_c{ncond[0]}")
                e(f"s_waitcnt vmcnt({len(vm.q) - 1 - vm.q.index(jm)}) ; cond")
                e(f"s_cbranch_vccnz L_c{ncond[0]} ; cond")
            else:
                e(f"s_cbranch_vccnz L_c{ncond[0]}")
            e(f"s_waitcnt vmcnt({len(vm.q) - 1 - vm.q.index(j)}) ; cond")
            e(f"L_c{ncond[0]}:")

    if fb:
        e("s_mov_b64 vcc, 0")

    while nc < K0:
        if ni - nc <= F:
            pace(); issue(ni); ni += 1
        consume(nc); nc += 1
    def qreads():
        e(f"ds_read_b32 v{vT1}, v{vZ} offset:{L_T + 4}")
        for t in range(3):
            e(f"ds_read_b128 {vr(vQ + 4 * t)}, v{vQR} offset:{t * 128}")
        e(f"ds_read_b32 v{vT}, v{vZ} offset:{L_T}")

    while ni < K0 + R:
        if qf and ni == K0 + R - 1:
            qreads()
        pace(); issue(ni); ni += 1
    stamp("w", "ringfull")
    if qf:
        e(f"s_mov_b32 s{sCNT}, 4000000")
        e("L_q:")
        e("s_waitcnt lgkmcnt(0)")
        e(f"v_readfirstlane_b32 s3, v{vT1}")
        e(f"s_sub_u32 s{sCNT}, s{sCNT}, 1")
        e("s_cbranch_scc1 L_qx")
        e("s_cmp_lg_u32 s3, 0")
        e("s_cbranch_scc1 L_qx")
        qreads()
        e("s_branch L_q")
        e("L_qx:")
        stamp("w", "qready")
    else:
        e("s_barrier")
        stamp("w", "qready")
        qreads()
        e("s_waitcnt lgkmcnt(0)")
    NH = min(N, O0 + H)
    early = None
    while nc < O0:
        lag = ni - nc
        if EH != 99 and ni == NH and early is None:
            early = (list(vm.q), ni, nc)
            e(f"s_cmp_gt_i32 s8, {4 * 62 + bias + EH}"); e("s_cbranch_scc1 L_early")
        if HW and ni >= O0:
            consume(nc); nc += 1
            if ni < NH and nc > ni - HW and nc < O0:
                issue(ni); ni += 1
        elif ni < NH:
            if lag >= R:
                consume(nc); nc += 1
            pace(); issue(ni); ni += 1
            k = 0
            while nc < O0 and nc <= ni - 1 - Fof(ni - 1) and k < 2:
                consume(nc); nc += 1; k += 1
        else:
            consume(nc); nc += 1
    while ni < NH:
        if HW:
            vm.wait(ni - HW)
        else:
            pace()
        issue(ni); ni += 1
    if cs:
        pair_addr()
    if ni < N:
        e(f"s_mov_b32 s{sCNT}, 4000000")
        e("L_h:")
        e(f"ds_read_b32 v{vT0}, v{vZ} offset:{L_H}")
        e(f"s_sub_u32 s{sCNT}, s{sCNT}, 1")
        e("s_cbranch_scc1 L_hx")
        e("s_waitcnt lgkmcnt(0)")
        e(f"v_readfirstlane_b32 s3, v{vT0}")
        e("s_cmp_eq_u32 s3, 0")
        e("s_cbranch_scc1 L_h")
        e("L_hx:")
        if stamps == 3:
            stamp("w", "hgo")
    if FL:
        e("s_cmp_eq_u32 s3, 2")
    def tick():
        e("s_mov_b64 exec, 1")
        e(f"ds_add_u32 v{vZ}, v{vONE} offset:{L_K}")
        e("s_mov_b64 exec, -1")

    nticks = 0
    while ni < N:
        if ni - FW >= 0:
            tk_ = pq and ni - FW in vm.q
            vm.wait(ni - FW)
            if stamps == 3 and ni - FW - O0 in (1, 3):
                stamp("w", f"wa{ni - FW - O0}")
        if FL and ni - FL in vm.q:
            e(f"s_cbranch_scc1 L_w{ni}")
            e(f"s_waitcnt vmcnt({len(vm.q) - 1 - vm.q.index(ni - FL)}) ; cond")
            e(f"L_w{ni}:")
        issue(ni); ni += 1
        if tk_:
            tick(); nticks += 4
    stamp("w", "woissued")
    e("L_tail:")
    e("s_barrier")
    stamp("w", "oready")
    for k in range(3):
        e(f"ds_read_b128 {vr(vQ + 4 * k)}, v{vOR} offset:{16 * k}")
    if at:
        assert cs and H < 12
        e("s_mov_b32 s32, 0"); e("s_mov_b32 s33, 0x43300800"); e("s_mov_b32 s34, 0"); e("s_mov_b32 s35, 0xc3320000")
        e(f"ds_read_b128 {vr(vFX)}, v{vZ} offset:{L_S}")
        e("s_mov_b32 vcc_lo, 0x00ff00ff"); e("s_mov_b32 vcc_hi, 0xff00ff00")
    e(f"s_waitcnt lgkmcnt({1 if at else 0})")
    tailq = len(vm.q)
    if cs:
        AB = (vA, vT0 - 1)
        for g in range(13):
            if g < 12:
                for r in range(4):
                    e(f"v_and_b32 v{AB[g & 1] + r}, v{vQ + g}, v{vM + r}")
            if g:
                vm.wait(O0 + g - 1)
                if stamps == 3 and g - 1 in (8, 11):
                    stamp("w", f"wa{g - 1}")
                e(f"v_mfma_f32_16x16x32_bf16 {vr(vACC)}, {vr(AB[(g - 1) & 1])}, {vr(slot(O0 + g - 1))}, {vr(vACC) if g > 1 else 0}")
    if at:
        a, X, O = vACC, vA, vA + 2
        e(f"v_cndmask_b32_dpp v{a}, v{a + 1}, v{a}, vcc row_ror:8 {DPPM}")
        e(f"v_cndmask_b32_dpp v{a + 2}, v{a + 3}, v{a + 2}, vcc row_ror:8 {DPPM}")
        e(f"v_permlane32_swap_b32 v{a}, v{a + 2}")
        e(f"v_add_f32_dpp v{a}, v{a + 2}, v{a} row_ror:8 {DPPM}")
        e("s_waitcnt lgkmcnt(0)")
        e(f"v_cvt_f64_f32 {vr(X, 2)}, v{a}")
        e(f"v_fma_f64 {vr(X, 2)}, {vr(X, 2)}, {vr(vFX, 2)}, s[32:33]")
        e(f"v_add_u32 v{vT0}, 0xbcd00000, v{X + 1}")
        e(f"v_cmp_gt_u32 vcc, 0x1000, v{vT0}")
        e(f"v_add_u32 v{X + 1}, 0xbed00000, v{X + 1}")
        e(f"v_cndmask_b32 v{X + 1}, v{vFX + 3}, v{X + 1}, vcc")
        e(f"global_atomic_add_x2 {vr(O, 2)}, v{vPUB}, {vr(X, 2)}, s[{sWS}:{sWS + 1}] sc0" + (" sc1" if asc else ""))
        stamp("w", "pub")
        e(f"v_mov_b32_dpp v{a + 1}, v{a} row_ror:8 {DPPM}")
        e(f"v_mov_b32 v{vT0}, v{a}"); e(f"v_mov_b32 v{vT1}, v{a + 1}")
        e(f"v_and_b32 v{vT2}, 7, v{vL}"); e(f"v_lshlrev_b32 v{vPUB + 1}, 5, v{vT2}")
        e(f"v_permlane32_swap_b32 v{vT0}, v{a + 2}")
        e(f"v_permlane32_swap_b32 v{vT1}, v{a + 3}")
        e(f"v_bfe_u32 v{vT2}, v{vL}, 4, 1"); e(f"v_lshl_add_u32 v{vPUB + 1}, v{vT2}, 4, v{vPUB + 1}")
        e(f"s_lshr_b32 s3, s{sLN}, 7"); e(f"s_mul_i32 s4, s{sB}, 10"); e("s_add_u32 s3, s3, s4")
        e("s_lshl_b32 s3, s3, 14"); e(f"s_add_u32 s3, s3, {A3}")
        e(f"v_add_u32 v{vPUB + 1}, s3, v{vPUB + 1}")
        e(f"s_lshl_b32 s3, s{sH}, 1"); e(f"s_add_u32 s3, s3, s{sRH}"); e("s_lshl_b32 s3, s3, 8")
        tag4(vQ, a)
        if not nraw:
            e("s_mov_b64 exec, 0x00ff00ff")
            e(f"buffer_store_dwordx4 {vr(vQ)}, v{vPUB + 1}, s[{rWS}:{rWS + 3}], s3 offen sc1")
            e("s_mov_b64 exec, -1")
        e(f"s_waitcnt vmcnt({0 if nraw else 1})")
        if stamps:
            e("s_memrealtime s[40:41]")
        e(f"v_lshl_add_u64 {vr(O, 2)}, {vr(O, 2)}, 0, {vr(X, 2)}")
        e(f"v_cmp_gt_i32 vcc, 0, v{O + 1}")
        e(f"v_and_b32 v{O + 1}, 0x1ffffff, v{O + 1}")
        e(f"v_add_u32 v{O + 1}, 0x43300000, v{O + 1}")
        e("s_and_b64 exec, exec, vcc")
        e("s_cbranch_scc0 L_atx")
        e(f"v_add_f64 {vr(O, 2)}, {vr(O, 2)}, s[34:35]")
        e(f"v_cvt_f32_f64 v{vT0}, {vr(O, 2)}")
        e(f"v_mul_f32 v{vT1}, v{vFX + 2}, v{vT0}")
        e(f"v_cvt_pk_bf16_f32 v{vT1}, v{vT1}, v{vT1}")
        e(f"buffer_store_short v{vT1}, v{vXA}, s[{rOUT}:{rOUT + 3}], 0 offen {ofl}".rstrip())
        e(f"s_cmp_eq_u32 s{sLN}, 0"); e("s_cselect_b32 s3, exec_lo, 0"); e("s_and_b32 s3, s3, 1")
        e("s_cbranch_scc0 L_att")
        e("s_mov_b64 s[36:37], exec"); e("s_mov_b64 exec, 1"); e(f"s_lshl_b32 s3, s{sB}, 7")
        e(f"buffer_store_dword v{vT}, v{vZ}, s[{rWS}:{rWS + 3}], s3 offen sc1")
        e("s_mov_b64 exec, s[36:37]")
        e("L_att:")
        e(f"s_mov_b32 s3, {f2u(2.0 ** SM):#x}"); e(f"s_mov_b32 s4, {f2u(2.0 ** 49):#x}")
        e(f"v_cmp_le_f32 s[36:37], s3, |v{vT0}|")
        e(f"v_cmp_gt_f32 vcc, s4, v{vT0}")
        e("s_and_b64 vcc, vcc, s[36:37]")
        e("s_andn2_b64 exec, exec, vcc")
        e("s_cbranch_scc0 L_atx")
        e(f"s_mov_b32 s{sSA}, 0x0c0c0400"); e(f"s_mov_b32 s{sSB}, 0x04000c0c"); e(f"s_mov_b32 s{sMASK}, 0xffffff00")
        e("s_mov_b32 s36, 0xff00ff00"); e("s_mov_b32 s37, 0xff00ff00")
        e("s_mov_b32 s4, 0"); e("s_mov_b32 s5, -1")
        e(f"s_mov_b32 s{sOFF}, 0")
        e(f"v_mov_b32 v{a}, 0")
        e("L_atf:")
        us = [vRING + 4 * k for k in range(8)]
        poll("L_p4", [f"buffer_load_dwordx4 {vr(u)}, v{vPUB + 1}, s[{rWS}:{rWS + 3}], s{sOFF} offen offset:{256 * k} sc1"
                      for k, u in enumerate(us)], us, vT0)
        for u in us:
            e(f"v_cndmask_b32 v{u}, v{u}, v{u + 1}, s[36:37]")
            e(f"v_cndmask_b32 v{u + 2}, v{u + 2}, v{u + 3}, s[36:37]")
            e(f"v_cndmask_b32 v{u}, v{u}, v{u + 2}, s[4:5]")
            e(f"v_add_f32 v{a}, v{a}, v{u}")
        e(f"s_add_u32 s{sOFF}, s{sOFF}, 2048"); e(f"s_cmp_lt_u32 s{sOFF}, 16384"); e("s_cbranch_scc1 L_atf")
        e(f"v_cvt_pk_bf16_f32 v{a}, v{a}, v{a}")
        e(f"buffer_store_short v{a}, v{vXA}, s[{rOUT}:{rOUT + 3}], 0 offen")
        e("L_atx:")
        e("s_mov_b64 exec, -1")
        if stamps:
            e("s_waitcnt lgkmcnt(0)")
            e("s_lshl_b32 s3, s2, 8"); e("s_add_u32 s3, s3, 0x8000000"); e(f"s_lshl_b32 s4, s{sWM if x6 else sW}, 3"); e("s_add_u32 s3, s3, s4")
            e(f"s_add_u32 s4, s{sWS}, s3"); e(f"s_addc_u32 s5, s{sWS + 1}, 0")
            e(f"v_mov_b32 v{vA}, s40"); e(f"v_mov_b32 v{vA + 1}, s41")
            e(f"global_store_dwordx2 v{vZ}, v[{vA}:{vA + 1}], s[4:5] offset:{8 * 25}")
            for k in range(5):
                names.append((25 + k, f"e{k}"))
            e(f"s_cmp_eq_u32 s{sW}, 4")
            e("s_cbranch_scc1 L_reduce")
    elif cs:
        for r in range(4):
            e(f"v_permlane32_swap_b32 v{vACC + r}, v{vQ + r}")
        for r in range(4):
            e(f"v_add_f32_dpp v{vACC + r}, v{vQ + r}, v{vACC + r} row_ror:8 {DPPM}")
        e(f"s_cmp_eq_u32 s{sW}, 0"); e("s_cbranch_scc1 L_pub")
        e(f"s_bitcmp1_b32 s{sW}, 0"); e("s_cbranch_scc1 L_fin")
        e("s_mov_b64 exec, 0x00ff00ff")
        e(f"ds_write_b128 v{vXA}, {vr(vACC)}")
        e("s_mov_b64 exec, 1")
        e(f"ds_write_b32 v{vXA}, v{vONE} offset:512")
        e("s_mov_b64 exec, -1")
        e(f"s_cmp_eq_u32 s{sW}, 4")
        e("s_cbranch_scc1 L_reduce")
        e("s_endpgm")
        e("L_fin:")
        e(f"s_mov_b32 s{sCNT}, 4000000")
        e("L_fs:")
        e(f"ds_read_b32 v{vT0}, v{vXA} offset:512")
        e(f"ds_read_b128 {vr(vQ)}, v{vXA}")
        e(f"s_sub_u32 s{sCNT}, s{sCNT}, 1")
        e("s_cbranch_scc1 L_fx")
        e("s_waitcnt lgkmcnt(1)")
        e(f"v_readfirstlane_b32 s3, v{vT0}")
        e("s_cmp_eq_u32 s3, 0")
        e("s_cbranch_scc1 L_fs")
        e("L_fx:")
        e("s_waitcnt lgkmcnt(0)")
        for r in range(4):
            e(f"v_add_f32 v{vACC + r}, v{vACC + r}, v{vQ + r}")
        e("L_pub:")
        e("s_nop 1")
        tag4(vA, vACC)
        e("s_mov_b64 exec, 0x00ff00ff")
    else:
        for g in range(12):
            afrag(vQ + g)
            vm.wait(O0 + g)
            mfma(vACC, slot(O0 + g), g == 0)
        tag4(vA, vACC)
        e("s_mov_b32 exec_hi, 0")
    if fq > 1:
        e(f"v_and_b32 v{vT0}, 15, v{vL}"); e(f"s_lshl_b32 s3, s{sW}, 4"); e(f"v_add_u32 v{vT0}, s3, v{vT0}")
        e(f"s_and_b32 s3, s{sS}, {fq - 1}"); e(f"s_mul_i32 s3, s3, {80 // fq}")
        e(f"v_subrev_u32 v{vT0}, s3, v{vT0}")
        e(f"v_mov_b32 v{vT1}, {80 // fq}")
        e(f"v_cmp_lt_u32 vcc, v{vT0}, v{vT1}")
        e("s_and_b64 exec, exec, vcc")
    if not at:
        e(f"buffer_store_dwordx4 {vr(vA)}, v{vPUB}, s[{rWS}:{rWS + 3}], 0 offen sc1")
        e("s_mov_b64 exec, -1")
        if not cs:
            e(f"s_cmp_eq_u32 s{sW}, 4")
            e("s_cbranch_scc1 L_reduce")
        stamp("w", "pub")

    def stamps_out(who):
        if not stamps:
            return
        base = 0 if who == "w" else 14
        e("s_waitcnt lgkmcnt(0)")
        e("s_lshl_b32 s3, s2, 8"); e("s_add_u32 s3, s3, 0x8000000")
        e(f"s_add_u32 s4, s{sWS}, s3"); e(f"s_addc_u32 s5, s{sWS + 1}, 0")
        for i in range(nst[who]):
            e(f"v_mov_b32 v{vA}, s{sST + 2 * i}"); e(f"v_mov_b32 v{vA + 1}, s{sST + 2 * i + 1}")
            e(f"global_store_dwordx2 v{vZ}, v[{vA}:{vA + 1}], s[4:5] offset:{8 * (base + i)}")
        if who == "s" and fb:
            e(f"v_mov_b32 v{vA}, s{sAUX}"); e(f"v_mov_b32 v{vA + 1}, s{sAUX + 1}")
            e(f"global_store_dwordx2 v{vZ}, v[{vA}:{vA + 1}], s[4:5] offset:{8 * 30}")
        if who == "w":
            e("s_getreg_b32 s6, hwreg(HW_REG_XCC_ID)"); e("s_getreg_b32 s7, hwreg(HW_REG_HW_ID)")
            e(f"v_mov_b32 v{vA}, s6"); e(f"v_mov_b32 v{vA + 1}, s7")
            e(f"global_store_dwordx2 v{vZ}, v[{vA}:{vA + 1}], s[4:5] offset:{8 * 31}")

    if stamps:
        e(f"s_cmp_lg_u32 s{sW}, {sw}"); e("s_cbranch_scc1 L_end")
        stamps_out("w")
    e("s_endpgm")
    if early:
        e("L_early:")
        vm.q, ni, nc = early
        cur[0] = None
        while nc < O0 or ni < N:
            if ni < N:
                vm.wait(ni - FE)
                issue(ni); ni += 1
            k = 0
            while nc < O0 and (ni == N or nc <= ni - 1 - FE) and k < 2:
                consume(nc); nc += 1; k += 1
        pair_addr()
        if stamps == 3:
            stamp("w", "hgo")
            for k in (1, 3):
                vm.wait(O0 + k)
                stamp("w", f"wa{k}")
        vm.wait(N - 1 - tailq)
        stamp("w", "woissued")
        e("s_branch L_tail")

    if x6:
        e("L_six:")
        e("s_waitcnt lgkmcnt(0)")
        e("s_barrier")
        common_consts()
        pair_addr()

        def spin6(label, off, cond):
            e(f"s_mov_b32 s{sCNT}, 4000000")
            e(f"{label}:")
            e(f"ds_read_b32 v{vT0}, v{vZ} offset:{off}")
            e(f"s_sub_u32 s{sCNT}, s{sCNT}, 1")
            e(f"s_cbranch_scc1 {label}x")
            e("s_waitcnt lgkmcnt(0)")
            e(f"v_readfirstlane_b32 s3, v{vT0}")
            e(cond)
            e(f"s_cbranch_scc1 {label}")
            e(f"{label}x:")

        vm.q = []
        cur[0] = None
        ni = O0
        if H6:
            spin6("L_6a", L_F + (12 if T6 > 4 else 8), f"s_cmp_lt_i32 s3, {T6}")
            while ni < O0 + H6:
                if ni - FW6 >= O0:
                    vm.wait(ni - FW6)
                issue(ni); ni += 1
        if ni < N:
            spin6("L_6b", L_H, "s_cmp_eq_u32 s3, 0")
        e(f"ds_read_b32 v{vT}, v{vZ} offset:{L_T}")
        if FL:
            e("s_cmp_eq_u32 s3, 2")
        while ni < N:
            tk_ = pq and ni - FW6 in vm.q
            if ni - FW6 >= O0:
                vm.wait(ni - FW6)
            if FL and ni - FL in vm.q:
                e(f"s_cbranch_scc1 L_v{ni}")
                e(f"s_waitcnt vmcnt({len(vm.q) - 1 - vm.q.index(ni - FL)}) ; cond")
                e(f"L_v{ni}:")
            issue(ni); ni += 1
            if tk_:
                tick(); nticks += 1
        vm.wait(N - 1 - tailq)
        e("s_branch L_tail")

    vD = vSC
    vE1, vE2, vP1, vP2, vP3 = 44, 45, 46, 47, 48
    vG = 8
    vS = 12
    vOP = vACC + 4
    vR1, vR2 = slot(N + 2), slot(N + 2) + 1
    vQY, vSY = slot(N), slot(N + 1)
    if fs == 2:
        e("L_other:")
        pro_ptrs()
        e(f"s_bfe_u32 s{sS}, s2, 0x20003")
        pro_rest()
        e(f"s_cmp_eq_u32 s{sW}, 5"); e("s_cbranch_scc1 L_six")
    e("L_service:")
    if probe:
        e("s_memrealtime s[68:69]")
    e("s_nop 4")
    if prio:
        e("s_setprio 3")
    e(f"v_mov_b32 v{vZ}, 0")
    for k in range(4):
        e(f"ds_write_b32 v{vZ}, v{vZ} offset:{L_F + 4 * k}")
    e(f"ds_write_b32 v{vZ}, v{vZ} offset:{L_T + 4}")
    for o in (L_X + 512, L_X + 768, L_H) + ((L_K,) if pq else ()):
        e(f"ds_write_b32 v{vZ}, v{vZ} offset:{o}")
    e("s_waitcnt lgkmcnt(0)")
    if fs == 2:
        e(f"s_mov_b64 s[{sKV + 2}:{sKV + 3}], s[{rV}:{rV + 1}]")
    if not b0:
        e("s_barrier")
    common_consts()
    e(f"s_lshl_b32 s9, s{sB}, 7")
    e(f"buffer_load_dword v{vT}, v{vZ}, s[{rWS}:{rWS + 3}], s9 offen sc1")
    if probe:
        e("s_getreg_b32 s70, hwreg(HW_REG_XCC_ID, 0, 3)"); e("s_lshl_b32 s71, s68, 3"); e("s_or_b32 s71, s71, s70")
        e("s_lshl_b32 s70, s2, 2"); e("s_add_u32 s70, s70, 1024")
        e(f"v_mov_b32 v{vT0}, s71")
        e("s_mov_b64 exec, 1")
        e(f"buffer_store_dword v{vT0}, v{vZ}, s[{rWS}:{rWS + 3}], s70 offen sc1")
        e("s_mov_b64 exec, -1")
    if fb:
        e(f"v_lshrrev_b32 v{vT0}, 4, v{vL}"); e(f"v_cmp_eq_u32 vcc, 1, v{vT0}")
        e(f"v_mov_b32 v{vT0}, 128"); e(f"v_cndmask_b32 v{vT0}, 0, v{vT0}, vcc")
        e(f"buffer_load_dword v{vPR}, v{vT0}, s[{rWS}:{rWS + 3}], 0 offen sc1")
    if at:
        e(f"s_cmp_lg_u32 s{sJB}, 0"); e("s_cbranch_scc1 L_ai")
        for k in range(20):
            e(f"v_mov_b32 v{vD + k}, 0")
        for k in range(10):
            e(f"s_mov_b32 s3, {k * ast}")
            e(f"buffer_atomic_swap_x2 {vr(vD + 2 * k, 2)}, v{vPUB}, s[{rWS}:{rWS + 3}], s3 offen sc0" + (" sc1" if asc else ""))
        e("L_ai:")
    if not cs:
        srd(rOUT, sOUT, None, 2560)
    if warm:
        srd(rV, sKV + 2, 5, 50331648)
        e(f"buffer_load_dword v{vSC}, v{vZ}, s[{rOUT}:{rOUT + 3}], 0 offen")
        e(f"buffer_load_dword v{vSC + 1}, v{vZ}, s[{rV}:{rV + 3}], 0 offen nt")
        e(f"buffer_load_dword v{vSC + 2}, v{vZ}, s[{rWO}:{rWO + 3}], 0 offen nt")
    e(f"s_mov_b32 s{sSA}, 0x0c0c0400"); e(f"s_mov_b32 s{sSB}, 0x04000c0c"); e(f"s_mov_b32 s{sMASK}, 0xffffff00")
    e(f"s_lshl_b32 s7, s{sHH}, 2"); e(f"s_add_u32 s8, s7, s{sS}")
    e(f"v_lshlrev_b32 v{vE1}, 4, v{vL}")
    e(f"v_lshrrev_b32 v{vT0}, 4, v{vL}"); e(f"v_and_b32 v{vT1}, 15, v{vL}")
    e(f"v_mul_u32_u24 v{vP1}, 768, v{vT0}"); e(f"v_lshl_add_u32 v{vP1}, v{vT1}, 4, v{vP1}")
    e(f"s_mul_i32 s3, s7, 768"); e(f"s_add_u32 s3, s3, {A1}"); e(f"v_add_u32 v{vP1}, s3, v{vP1}")
    e(f"v_lshlrev_b32 v{vP3}, 10, v{vT0}")
    e(f"s_lshl_b32 s3, s7, 10"); e(f"s_add_u32 s3, s3, {A2}"); e(f"v_add_u32 v{vP3}, s3, v{vP3}")
    if cs:
        e(f"v_mov_b32 v{vT2}, v{vT1}")
        e(f"v_lshl_add_u32 v{vP2}, v{vT2}, 4, v{vP3}")
    else:
        e(f"v_min_u32 v{vT2}, 11, v{vT1}")
        e(f"s_mul_i32 s3, s{sS}, 192"); e(f"v_lshl_add_u32 v{vP2}, v{vT2}, 4, s3"); e(f"v_add_u32 v{vP2}, v{vP2}, v{vP3}")
    vPD = 180
    if dl:
        assert cs and pq
        e(f"v_min_u32 v{vPD + 2}, 47, v{vL}"); e(f"v_lshlrev_b32 v{vPD + 2}, 4, v{vPD + 2}")
        for j in range(3):
            e(f"s_xor_b32 s4, s8, {j + 1}"); e("s_lshl_b32 s4, s4, 10"); e(f"s_add_u32 s4, s4, {A2}")
            e(f"v_add_u32 v{vPD + j}, s4, v{vPD + 2}")
    e(f"v_and_b32 v{vT3}, 1, v{vT0}"); e(f"v_lshlrev_b32 v{vT3}, 1, v{vT3}")
    e(f"v_lshrrev_b32 v{vT0}, 1, v{vT0}"); e(f"v_or_b32 v{vT3}, v{vT3}, v{vT0}")
    e(f"v_lshl_add_u32 v{vMX}, v{vT1}, 2, v{vT3}")
    e(f"v_lshlrev_b32 v{vMX}, 1, v{vMX}"); e(f"v_add_u32 v{vMX}, {L_Q}, v{vMX}")
    e(f"v_lshl_add_u32 v{vLS}, v{vT2}, 2, v{vT3}")
    e(f"v_lshlrev_b32 v{vLS}, 2, v{vLS}"); e(f"v_add_u32 v{vLS}, {L_O}, v{vLS}")
    if at:
        pair_addr()
    elif cs:
        pair_addr()
        e(f"s_lshr_b32 s3, s{sJB}, 3")
        e(f"s_lshr_b32 s4, s{sJB}, 5"); e("s_mul_i32 s4, s4, 5"); e("s_bfe_u32 s5, s3, 0x10001"); e("s_mul_i32 s5, s5, 3")
        e("s_add_u32 s4, s4, s5"); e("s_and_b32 s5, s3, 1"); e("s_add_u32 s4, s4, s5"); e("s_lshl_b32 s4, s4, 6")
        e(f"s_and_b32 s5, s{sJB}, 7"); e("s_lshl_b32 s6, s5, 3"); e("s_add_u32 s4, s4, s6")
        e("s_lshl_b32 s3, s3, 13"); e("s_lshl_b32 s5, s5, 5"); e("s_add_u32 s3, s3, s5")
        e(f"s_bfe_u32 s5, s{sJB}, 0x10004"); e("s_mul_i32 s6, s5, 320"); e("s_add_u32 s6, s6, 128")
        e(f"s_and_b32 s7, s{sJB}, 15"); e(f"s_lshl_b32 s{sCNT}, s7, 2"); e(f"s_add_u32 s6, s6, s{sCNT}")
        e("s_lshl_b32 s5, s5, 14"); e("s_lshl_b32 s7, s7, 4"); e("s_add_u32 s5, s5, s7"); e("s_add_u32 s5, s5, 65536")
        e(f"s_cmp_lt_u32 s{sJB}, 64"); e("s_cselect_b32 s3, s3, s5"); e("s_cselect_b32 s4, s4, s6")
        e("s_cselect_b32 s5, 1, 0")
        e(f"s_mul_i32 s6, s{sB}, 98304"); e("s_add_u32 s3, s3, s6"); e(f"s_add_u32 s3, s3, {A3}")
        e(f"v_lshrrev_b32 v{vR1}, s5, v{vL}"); e(f"v_lshlrev_b32 v{vR1}, 8, v{vR1}")
        e(f"v_and_b32 v{vR2}, s5, v{vL}"); e(f"v_lshl_add_u32 v{vR1}, v{vR2}, 4, v{vR1}"); e(f"v_add_u32 v{vR1}, s3, v{vR1}")
        e(f"v_lshl_add_u32 v{vR2}, v{vR2}, 2, v{vT3}")
        e(f"s_mul_i32 s6, s{sB}, 640"); e("s_add_u32 s4, s4, s6")
        e(f"v_add_u32 v{vR2}, s4, v{vR2}"); e(f"v_lshlrev_b32 v{vR2}, 1, v{vR2}")
    e(f"s_mul_i32 s4, s8, 768"); e(f"s_add_u32 s4, s4, {A1}")
    e(f"s_lshl_b32 s5, s8, 10"); e(f"s_add_u32 s5, s5, {A2}")
    e(f"s_add_u32 s6, s4, {DY}"); e(f"s_add_u32 s7, s5, {DY}")
    if b0:
        e("s_barrier")
    e("s_waitcnt vmcnt(0)")
    e(f"v_and_b32 v{vT0}, 0x7f7f7f7f, v{vT}"); e(f"v_add_u32 v{vT0}, 0x01010101, v{vT0}")
    e(f"v_and_b32 v{vT}, 0x80808080, v{vT}"); e(f"v_xor_b32 v{vT}, v{vT}, v{vT0}")
    e(f"ds_write_b32 v{vZ}, v{vT} offset:{L_T}")
    if at:
        e(f"s_cmp_lg_u32 s{sJB}, 0"); e("s_cbranch_scc1 L_aj")
        e("s_mov_b64 exec, 1")
        e(f"buffer_store_dword v{vT}, v{vZ}, s[{rWS}:{rWS + 3}], s9 offen offset:256 sc1")
        e("s_mov_b64 exec, -1")
        e("L_aj:")
    if fb:
        e(f"v_and_b32 v{vT0}, 0x7f7f7f7f, v{vPR}"); e(f"v_add_u32 v{vT0}, 0x01010101, v{vT0}")
        e(f"v_and_b32 v{vPR}, 0x80808080, v{vPR}"); e(f"v_xor_b32 v{vPR}, v{vPR}, v{vT0}")
        e(f"v_and_b32 v{vPR}, s{sMASK}, v{vPR}")
        if xs:
            e(f"v_and_b32 v{vTX}, 0xfffff000, v{vPR}")
        if xd:
            e(f"v_and_b32 v{vTX}, 0xfffff000, v{vPR}")
            e("s_mov_b32 exec_lo, 0")
            e(f"v_mov_b32 v{vPR}, v{vTX}")
            e("s_mov_b32 exec_lo, -1")
    if pre:
        for r in range(4):
            e(f"v_not_b32 v{vA + r}, v{vT}")
        e(f"buffer_store_dwordx4 {vr(vA)}, v{vE1}, s[{rWS}:{rWS + 3}], s5 offen")
        e("s_mov_b32 exec_hi, 0xffff")
        e(f"buffer_store_dwordx4 {vr(vA)}, v{vE1}, s[{rWS}:{rWS + 3}], s4 offen")
        e("s_mov_b32 exec_hi, -1")
    if codepf:
        pass
    ldsspin("L_f1", L_F, vT0)
    stamp("s", "s.f1")
    for p in range(8):
        e(f"ds_read_b128 {vr(vD + 4 * p)}, v{vE1} offset:{p * 768}")
    for p in range(1, 8):
        e(f"s_waitcnt lgkmcnt({7 - p})")
        for r in range(4):
            e(f"v_add_f32 v{vD + r}, v{vD + r}, v{vD + 4 * p + r}")
    def ypub(n):
        if n == 1 or lazy:
            publish(vQY, vE1, 4, 0, 0, 1)
        if n == 2 or (lazy and n > 2):
            publish(vSY, vZ, 5, 768, 1, 1)
        if n == 3:
            publish(vOP, vE1, 5, 0, 0, 1)

    tag4(vQY, vD)
    publish(vQY, vE1, 4, 0, 0, 0 if xp else 1)
    stamp("s", "s.qpub")
    if qd:
        e(f"s_mov_b32 s{sCNT}, 4000000")
        e("L_qd:")
        e(f"ds_read_b32 v{vT0}, v{vZ} offset:{L_F + 12}")
        e(f"s_sub_u32 s{sCNT}, s{sCNT}, 1")
        e("s_cbranch_scc1 L_qdx")
        e("s_waitcnt lgkmcnt(0)")
        e(f"v_readfirstlane_b32 s3, v{vT0}")
        e(f"s_cmp_lt_u32 s3, {qd}")
        e("s_cbranch_scc1 L_qd")
        e("L_qdx:")
    l1 = [f"buffer_load_dwordx4 {vr(vD + 4 * t)}, v{vP1}, s[{rWS}:{rWS + 3}], s{sPO} offen offset:{256 * t} sc1" for t in range(3)]
    if op & 1:
        mpoll("L_p1", l1, [vD + 4 * t for t in range(3)], vT0)
    else:
        poll("L_p1", l1, [vD + 4 * t for t in range(3)], vT0, lambda: ypub(1))
    if xp and not lazy:
        ypub(1)
    stamp("s", "s.qpoll")
    for t in range(3):
        treduce(vD + 4 * t)
    for t in range(3):
        e(f"v_cvt_pk_bf16_f32 v{vD + 4 * t}, v{vD + 4 * t}, v{vD + 4 * t}")
    for t in range(3):
        e(f"ds_write_b16 v{vMX}, v{vD + 4 * t} offset:{128 * t}")
    if qf:
        e(f"ds_write_b32 v{vZ}, v{vONE} offset:{L_T + 4}")
    else:
        e("s_waitcnt lgkmcnt(0)")
        e("s_barrier")
    if at:
        e(f"global_load_dwordx4 {vr(vD + 16)}, v{vE1}, s[{sKV + 2}:{sKV + 3}]")
        e(f"global_load_dwordx4 {vr(vD + 20)}, v{vE1}, s[{sWW + 2}:{sWW + 3}]")
    for g in range(0 if x6 else 12):
        e(f"s_mov_b32 s{sOFF}, {(g // 4) * 5120}")
        e(f"buffer_load_dwordx4 {vr(slot(O0 + g))}, v{vWO}, s[{rWO}:{rWO + 3}], s{sOFF} offen offset:{(g % 4) * 1280} {fl}")
    if at:
        e(f"s_waitcnt vmcnt({0 if x6 else 12})")
        for k in range(8):
            e(f"v_and_b32 v{vD + 16 + k}, 0x7fff7fff, v{vD + 16 + k}")
        for m in (vD + 16, vD + 20):
            e(f"v_pk_max_u16 v{m}, v{m}, v{m + 1}"); e(f"v_pk_max_u16 v{m + 2}, v{m + 2}, v{m + 3}")
            e(f"v_pk_max_u16 v{m}, v{m}, v{m + 2}")
            e(f"v_lshrrev_b32 v{m + 1}, 16, v{m}"); e(f"v_and_b32 v{m}, 0xffff, v{m}"); e(f"v_max_u32 v{m}, v{m}, v{m + 1}")
            for d in ("quad_perm:[1,0,3,2]", "quad_perm:[2,3,0,1]", "row_half_mirror", "row_mirror"):
                e(f"v_max_u32_dpp v{m}, v{m}, v{m} {d} {DPPM}")
            allrows("v_max_u32", m, m + 1)
            e(f"v_lshrrev_b32 v{m}, 7, v{m}")
        e(f"v_add_u32 v{vT0}, v{vD + 16}, v{vD + 20}")
        e(f"v_sub_u32 v{vT0}, {SB + 254}, v{vT0}")
        e(f"v_min_i32 v{vT0}, 120, v{vT0}"); e(f"v_max_i32 v{vT0}, -100, v{vT0}")
        e(f"v_mov_b32 v{vFX}, 0")
        e(f"v_add_u32 v{vFX + 1}, 1023, v{vT0}"); e(f"v_lshlrev_b32 v{vFX + 1}, 20, v{vFX + 1}")
        e(f"v_sub_u32 v{vFX + 2}, 127, v{vT0}"); e(f"v_lshlrev_b32 v{vFX + 2}, 23, v{vFX + 2}")
        e(f"v_mov_b32 v{vFX + 3}, 0x2040000")
        e(f"ds_write_b128 v{vZ}, {vr(vFX)} offset:{L_S}")
        e(f"s_mov_b32 s{sCNT}, 400000")
        e("L_ak:")
        e(f"buffer_load_dword v{vT0}, v{vZ}, s[{rWS}:{rWS + 3}], s9 offen offset:256 sc1")
        e(f"s_sub_u32 s{sCNT}, s{sCNT}, 1")
        e("s_cbranch_scc1 L_akx")
        e("s_waitcnt vmcnt(0)")
        e(f"v_cmp_ne_u32 vcc, v{vT0}, v{vT}")
        e("s_cbranch_vccnz L_ak")
        e("L_akx:")
        e("s_waitcnt vmcnt(0)")
    if fb:
        e("s_and_b32 s3, s2, 7"); e("s_mul_i32 s3, s3, 4352"); e(f"s_add_u32 s3, s3, {A4}")
        e(f"s_lshr_b32 s{sK}, s2, 3")
        e(f"v_and_b32 v{vT0}, 31, v{vL}"); e(f"v_lshl_add_u32 v{vE2}, v{vT0}, 2, s3")
        e(f"s_lshl_b32 s{sSL}, s{sK}, 2"); e(f"s_add_u32 s{sSL}, s{sSL}, s3")
        if xd:
            e(f"s_add_u32 s{sDL}, s3, 128"); e(f"s_add_u32 s{sXL}, s3, {16 * 4352}")
            e(f"s_and_b32 s{sD}, s2, 7"); e(f"s_cmp_eq_u32 s{sD}, s{sK}"); e(f"s_cselect_b32 s{sLEAD}, 0xff, 0")
            e(f"v_mov_b32 v{vLIM}, 64")
            e("s_mov_b32 exec_lo, 0")
            e(f"v_mov_b32 v{vLIM}, 0"); e(f"v_mov_b32 v{vE2}, s{sDL}")
            e("s_mov_b32 exec_hi, 0x10000")
            e(f"v_mov_b32 v{vLIM}, 4096")
            e(f"s_mov_b32 exec_hi, s{sLEAD}")
            e(f"v_mov_b32 v{vLIM}, 4096")
            if xt != 1:
                e(f"v_mul_u32_u24 v{vE2}, 4352, v{vT0}"); e(f"v_add_u32 v{vE2}, {A4 + 16 * 4352}, v{vE2}")
            e("s_mov_b64 exec, -1")
        if xs:
            e(f"s_mul_i32 s{sPUB}, s{sK}, {xdn}"); e(f"s_add_u32 s{sPUB}, s{sPUB}, {xn}")
            e(f"s_cmp_lt_u32 s{sK}, {xs}"); e(f"s_cselect_b32 s{sPUB}, s{sPUB}, 0x7fffffff")
            e(f"s_mov_b32 s{sRD}, {xn + xdl}"); e(f"s_mov_b32 s{sXO}, {AX}")
            e(f"s_mov_b32 s{sBI}, 0"); e(f"s_mov_b32 s{sINT}, 0")
            e(f"s_and_b32 s{sXW}, s2, 63"); e(f"s_lshl_b32 s{sXW}, s{sXW}, 8"); e(f"s_add_u32 s{sXW}, s{sXW}, {AX}")
            e(f"v_lshlrev_b32 v{vLIM}, 8, v{vL}")
        if tb:
            e("s_getreg_b32 s3, hwreg(HW_REG_XCC_ID, 0, 1)"); e("s_cmp_eq_u32 s3, 1")
            e(f"s_cselect_b32 s{sBI}, {tb - te}, {-tb - te}")
            if xs:
                e(f"s_lshl_b32 s{sINT}, s{sBI}, {xsh}")
        e(f"s_mov_b32 s{sN}, 0")
        e(f"s_and_b32 s3, s{sK}, {(1 << IL) - 1}"); e(f"s_add_u32 s{sTH}, s3, {TH0}")
        e(f"s_mov_b32 s{sCc}, 0"); e(f"s_mov_b64 s[{sAUX}:{sAUX + 1}], 0")
        fbspin("L_f2", 1, vD, vE2)
    else:
        ldsspin("L_f2", L_F + 4, vT0)
    stamp("s", "s.f2")
    e(f"ds_read_b128 {vr(vS)}, v{vZ} offset:{L_ST}")
    e(f"ds_read_b128 {vr(vS + 4)}, v{vZ} offset:{L_ST + 16}")
    e("s_waitcnt lgkmcnt(0)")
    e(f"v_max_f32 v{vT0}, v{vS}, v{vS + 2}"); e(f"v_max3_f32 v{vT0}, v{vT0}, v{vS + 4}, v{vS + 6}")
    for w in range(4):
        e(f"v_sub_f32 v{vG + w}, v{vS + 2 * w}, v{vT0}")
    for w in range(4):
        e(f"v_exp_f32 v{vG + w}, v{vG + w}")
    e(f"v_mul_f32 v{vD + 2}, v{vG}, v{vS + 1}")
    for w in range(1, 4):
        e(f"v_fma_f32 v{vD + 2}, v{vG + w}, v{vS + 2 * w + 1}, v{vD + 2}")
    e(f"v_and_b32 v{vD}, s{sMASK}, v{vT0}"); e(f"v_sub_f32 v{vD + 1}, v{vT0}, v{vD}")
    if xc:
        e(f"s_getreg_b32 s{sMIS}, hwreg(HW_REG_XCC_ID, 0, 16)"); e(f"s_lshl_b32 s{sMIS}, s{sMIS}, 8")
        e(f"v_mov_b32 v{vD + 3}, s{sMIS}")
    else:
        e(f"v_mov_b32 v{vD + 3}, 0")
    tag4(vSY, vD)
    publish(vSY, vZ, 5, 768, 1, 0 if xp else 1)
    if fb and dp:
        fbspin("L_f2b", None, vD + 4, vE2)
        e("s_waitcnt lgkmcnt(0)")
    poll("L_p2", [f"buffer_load_dwordx4 {vr(vD)}, v{vP3}, s[{rWS}:{rWS + 3}], s{sPO} offen offset:768 sc1"], [vD], vT0,
         lambda: ypub(2))
    if xp and not lazy:
        ypub(2)
    stamp("s", "s.stpoll")
    if xc:
        e(f"v_cmp_ne_u32 vcc, s{sMIS}, v{vD + 3}")
        e(f"s_or_b32 s{sMIS}, vcc_lo, vcc_hi")
    e(f"v_add_f32 v{vD}, v{vD}, v{vD + 1}")
    e(f"v_mov_b32 v{vD + 1}, v{vD}")
    allrows("v_max_f32", vD + 1, vT0)
    e(f"v_sub_f32 v{vD}, v{vD}, v{vD + 1}"); e(f"v_exp_f32 v{vD}, v{vD}")
    e(f"v_mul_f32 v{vD}, v{vD}, v{vD + 2}")
    allrows("v_add_f32", vD, vT0)
    e(f"v_rcp_f32 v{vD}, v{vD}")
    for w in range(4):
        e(f"v_sub_f32 v{vG + w}, v{vS + 2 * w}, v{vD + 1}")
    for w in range(4):
        e(f"v_exp_f32 v{vG + w}, v{vG + w}")
    for w in range(4):
        e(f"v_mul_f32 v{vG + w}, v{vG + w}, v{vD}")
    if RT:
        fbspin("L_f3a", None, vD + 4, vE2)
        e(f"s_mov_b32 s{sCNT}, 4000000")
        e("L_f3b:")
        e(f"ds_read_b32 v{vT0}, v{vZ} offset:{L_F + 12}")
        e(f"s_sub_u32 s{sCNT}, s{sCNT}, 1")
        e("s_cbranch_scc1 L_f3bx")
        e("s_waitcnt lgkmcnt(0)")
        e(f"v_readfirstlane_b32 s3, v{vT0}")
        e(f"s_sub_i32 s3, s3, s{sCc}")
        e(f"s_cmp_lt_i32 s3, {PF}")
        e("s_cbranch_scc1 L_f3b")
        e("L_f3bx:")
        e(f"v_and_b32 v{vT0}, s{sMASK}, v{vT}")
        e(f"buffer_load_dword v{vT1}, v{vE2}, s[{rWS}:{rWS + 3}], 0 offen offset:128 sc1")
        e("s_mov_b64 exec, 1")
        e(f"buffer_store_dword v{vT0}, v{vZ}, s[{rWS}:{rWS + 3}], s{sSL} offen offset:128")
        e("s_mov_b64 exec, -1")
        e("s_waitcnt vmcnt(1)")
        e(f"v_cmp_eq_u32 vcc, v{vT1}, v{vPR}")
        e("s_bcnt1_i32_b32 s3, vcc_lo")
        e(f"s_cmp_ge_u32 s3, {RT}"); e("s_cselect_b32 s3, 2, 1"); e(f"v_mov_b32 v{vONE}, s3")
        if stamps:
            e(f"s_lshl_b64 s[{sAUX}:{sAUX + 1}], s[{sAUX}:{sAUX + 1}], 5")
            e(f"s_and_b32 s{sAUX + 1}, s{sAUX + 1}, 0xfffffff")
            e("s_bcnt1_i32_b32 s3, vcc_lo"); e("s_min_u32 s3, s3, 31"); e(f"s_or_b32 s{sAUX}, s{sAUX}, s3")
        ldsspin("L_f3", L_F + 8, vT0)
    elif fb and not dp:
        fbspin("L_f3", 2, vD + 4, vE2)
    else:
        ldsspin("L_f3", L_F + 8, vT0)
    stamp("s", "s.f3")
    for p in range(8):
        e(f"ds_read_b128 {vr(vD + 4 * p)}, v{vE1} offset:{p * 768}")
    for w in range(4):
        e(f"s_waitcnt lgkmcnt({6 - 2 * w})")
        if pkw:
            gp = vr(vG + (w & 2), 2)
            for r in (0, 2):
                e(f"v_pk_add_f32 {vr(vD + 8 * w + r, 2)}, {vr(vD + 8 * w + r, 2)}, {vr(vD + 8 * w + 4 + r, 2)}")
            for r in (0, 2):
                if w == 0:
                    e(f"v_pk_mul_f32 {vr(vD + r, 2)}, {gp}, {vr(vD + r, 2)} op_sel_hi:[0,1]")
                else:
                    sel = "op_sel:[1,0,0] op_sel_hi:[1,1,1]" if w & 1 else "op_sel_hi:[0,1,1]"
                    e(f"v_pk_fma_f32 {vr(vD + r, 2)}, {gp}, {vr(vD + 8 * w + r, 2)}, {vr(vD + r, 2)} {sel}")
            continue
        for r in range(4):
            e(f"v_add_f32 v{vD + 8 * w + r}, v{vD + 8 * w + r}, v{vD + 8 * w + 4 + r}")
        for r in range(4):
            if w == 0:
                e(f"v_mul_f32 v{vD + r}, v{vG}, v{vD + r}")
            else:
                e(f"v_fma_f32 v{vD + r}, v{vG + w}, v{vD + 8 * w + r}, v{vD + r}")
    tag4(vOP, vD)
    publish(vOP, vE1, 5, 0, 0, 0 if xp else 1)
    if xc:
        e(f"s_cmp_eq_u32 s{sMIS}, 0"); e("s_cbranch_scc1 L_same")
        ypub(3)
        e("L_same:")
    stamp("s", "s.opub")
    nt_ = 3 if cs else 1
    if FL and not RT:
        e(f"s_cmp_ge_i32 s{sCc}, {cth}"); e("s_cselect_b32 s3, 2, 1"); e(f"v_mov_b32 v{vONE}, s3")
    l3 = [f"buffer_load_dwordx4 {vr(vD + 4 * t)}, v{vP2}, s[{rWS}:{rWS + 3}], s{sPO} offen offset:{256 * t} sc1" for t in range(nt_)]
    U3 = [vD + 4 * t for t in range(nt_)]
    if dl:
        U3 = [vD + 4 + 4 * t for t in range(3)]
        l3 = [f"buffer_load_dwordx4 {vr(U3[t])}, v{vPD + t}, s[{rWS}:{rWS + 3}], s{sPO} offen sc1" for t in range(3)]
    h3 = [f"ds_write_b32 v{vZ}, v{vONE} offset:{L_H}"] if H < 12 else []
    if pq:
        assert x6 and (pq - 1) * tk <= nticks
        PB = [140 + 12 * k for k in range(pq)]

        def pissue(b):
            for t in range(3):
                if dl:
                    e(f"buffer_load_dwordx4 {vr(b + 4 * t)}, v{vPD + t}, s[{rWS}:{rWS + 3}], 0 offen sc1")
                else:
                    e(f"buffer_load_dwordx4 {vr(b + 4 * t)}, v{vP2}, s[{rWS}:{rWS + 3}], 0 offen offset:{256 * t} sc1")

        pissue(PB[0])
        e(h3[0])
        for k in range(1, pq):
            e(f"s_mov_b32 s{sCNT}, 4000000")
            e(f"L_k{k}:")
            e(f"ds_read_b32 v{vT0}, v{vZ} offset:{L_K}")
            e(f"s_sub_u32 s{sCNT}, s{sCNT}, 1")
            e(f"s_cbranch_scc1 L_k{k}x")
            e("s_waitcnt lgkmcnt(0)")
            e(f"v_readfirstlane_b32 s3, v{vT0}")
            e(f"s_cmp_lt_u32 s3, {k * tk}")
            e(f"s_cbranch_scc1 L_k{k}")
            e(f"L_k{k}x:")
            pissue(PB[k])
        e(f"s_mov_b32 s{sCNT}, {N0}")
        e("L_pq:")
        for b in PB:
            e(f"s_waitcnt vmcnt({3 * (pq - 1)})")
            for t in range(3 if dl else 0):
                u = b + 4 * t
                e(f"v_perm_b32 v{vT0 + t}, v{u + 1}, v{u}, s{sSA}")
                e(f"v_perm_b32 v{vT3}, v{u + 3}, v{u + 2}, s{sSB}")
                e(f"v_bitop3_b32 v{vT0 + t}, v{vT0 + t}, v{vT3}, v{vT} bitop3:0x56")
            if dl:
                e(f"v_or3_b32 v{vT0 + 2}, v{vT0}, v{vT0 + 1}, v{vT0 + 2}")
            for t in range(0 if dl else 3):
                u = b + 4 * t
                e(f"v_perm_b32 v{vT0}, v{u + 1}, v{u}, s{sSA}")
                e(f"v_perm_b32 v{vT0 + 1}, v{u + 3}, v{u + 2}, s{sSB}")
                e(f"v_or_b32 v{vT0}, v{vT0}, v{vT0 + 1}")
                if t == 0:
                    e(f"v_xor_b32 v{vT0 + 2}, v{vT0}, v{vT}")
                else:
                    e(f"v_xor_b32 v{vT0}, v{vT0}, v{vT}")
                    e(f"v_or_b32 v{vT0 + 2}, v{vT0 + 2}, v{vT0}")
            e(f"v_cmp_ne_u32 vcc, 0, v{vT0 + 2}")
            for r in range(12):
                e(f"v_and_b32 v{U3[0] + r}, s{sMASK}, v{b + r}")
            e("s_and_b64 exec, exec, vcc")
            e("s_cbranch_scc0 L_pqx")
            pissue(b)
        e(f"s_sub_u32 s{sCNT}, s{sCNT}, 1")
        e("s_cbranch_scc0 L_pq")
        e("s_mov_b64 exec, -1")
    if op & 4:
        mpoll("L_p3", l3, U3, vT0, h3)
    else:
        poll("L_p3", l3 + h3, U3, vT0, lambda: ypub(3))
    if pq:
        e("L_pqx:")
        if not dl:
            e("s_mov_b64 exec, -1")
    if dl:
        e("s_bfm_b64 exec, 48, 0")
    stamp("s", "s.opoll")
    if dl:
        for a_, b_ in ((0, 4), (2, 6), (8, 12), (10, 14), (0, 8), (2, 10)):
            e(f"v_pk_add_f32 {vr(vD + a_, 2)}, {vr(vD + a_, 2)}, {vr(vD + b_, 2)}")
        for r in range(4):
            e(f"v_cvt_pk_bf16_f32 v{vD + r}, v{vD + r}, v{vD + r}")
        e(f"ds_write_b128 v{vE1}, {vr(vD)} offset:{L_O}")
        e("s_mov_b64 exec, -1")
    for t in range(0 if dl else nt_):
        treduce(vD + 4 * t)
    for t in range(0 if dl else nt_):
        e(f"v_cvt_pk_bf16_f32 v{vD + 4 * t}, v{vD + 4 * t}, v{vD + 4 * t}")
    for t in range(0 if dl else nt_):
        e(f"ds_write_b32 v{vLS}, v{vD + 4 * t} offset:{256 * t}")
    if ry == 1:
        publish(vOP, vE1, 5, 0, 0, 1)
    e("s_waitcnt lgkmcnt(0)")
    if stamps:
        for i in range(nst["s"]):
            e(f"v_mov_b32 v{vSC + 2 * i}, s{sST + 2 * i}"); e(f"v_mov_b32 v{vSC + 2 * i + 1}, s{sST + 2 * i + 1}")
    if x6:
        e("s_barrier")
        if ry == 2:
            publish(vOP, vE1, 5, 0, 0, 1)
        if pq:
            e("s_waitcnt vmcnt(0)")
    else:
        e("s_branch L_tail")
    e("L_reduce:")
    e("s_nop 4")
    if xp and not xc:
        publish(vOP, vE1, 5, 0, 0, 1)
    if stamps:
        for i in range(nst["s"]):
            e(f"v_readfirstlane_b32 s{sST + 2 * i}, v{vSC + 2 * i}"); e(f"v_readfirstlane_b32 s{sST + 2 * i + 1}, v{vSC + 2 * i + 1}")
    stamp("s", "s.pub")
    if at:
        pass
    elif cs:
        e(f"s_cmp_ge_u32 s{sJB}, 96")
        e("s_cbranch_scc1 L_sdone")
        if pp:
            ppoll("L_p4", lambda d: f"buffer_load_dwordx4 {vr(d)}, v{vR1}, s[{rWS}:{rWS + 3}], 0 offen sc1",
                  [slot(O0 + k) for k in range(pp)], vD, vT0)
        else:
            poll("L_p4", [f"buffer_load_dwordx4 {vr(vD)}, v{vR1}, s[{rWS}:{rWS + 3}], 0 offen sc1"], [vD], vT0)
        stamp("s", "s.fpoll")
        treduce(vD)
        e(f"v_add_f32_dpp v{vD}, v{vD}, v{vD} quad_perm:[2,3,0,1] {DPPM}")
        e(f"v_add_f32_dpp v{vD}, v{vD}, v{vD} row_ror:4 {DPPM}")
        e(f"v_add_f32_dpp v{vD}, v{vD}, v{vD} row_ror:8 {DPPM}")
        e("s_mov_b32 s3, 0x00030003")
        e(f"s_cmp_lt_u32 s{sJB}, 64")
        e("s_cbranch_scc1 L_r8")
        e("s_mov_b32 s3, 0x00010001")
        e(f"v_add_f32_dpp v{vD}, v{vD}, v{vD} quad_perm:[1,0,3,2] {DPPM}")
        e("L_r8:")
        e(f"v_cvt_pk_bf16_f32 v{vD}, v{vD}, v{vD}")
        e("s_mov_b32 exec_lo, s3"); e("s_mov_b32 exec_hi, s3")
        e(f"buffer_store_short v{vD}, v{vR2}, s[{rOUT}:{rOUT + 3}], 0 offen")
    else:
        e(f"s_cmp_ge_u32 s{sJB}, 80")
        e("s_cbranch_scc1 L_sdone")
        e(f"v_lshrrev_b32 v{vT0}, 1, v{vL}"); e(f"v_mul_u32_u24 v{vP1}, {2560 * fq}, v{vT0}")
        if fq > 1:
            e(f"s_mul_i32 s3, s{sJB}, {(1 << 16) // (80 // fq) + 1}"); e("s_lshr_b32 s3, s3, 16"); e("s_mul_i32 s3, s3, 2560")
            e(f"v_add_u32 v{vP1}, s3, v{vP1}")
        e(f"v_and_b32 v{vT1}, 1, v{vL}"); e(f"v_lshl_add_u32 v{vP1}, v{vT1}, 4, v{vP1}")
        e(f"s_mul_i32 s3, s{sB}, {128 * 2560}"); e(f"s_lshl_b32 s4, s{sJB}, 5"); e("s_add_u32 s3, s3, s4"); e(f"s_add_u32 s3, s3, {A3}")
        e(f"v_add_u32 v{vP1}, s3, v{vP1}")
        for k in range(1, 4):
            e(f"s_mov_b32 s{4 + k}, {k * 32 * 2560 * fq}")
        e(f"v_bfe_u32 v{vT0}, v{vL}, 4, 1"); e(f"v_lshlrev_b32 v{vT0}, 1, v{vT0}")
        e(f"v_lshrrev_b32 v{vT2}, 5, v{vL}"); e(f"v_or_b32 v{vT0}, v{vT0}, v{vT2}")
        e(f"v_lshl_add_u32 v{vT0}, v{vT1}, 2, v{vT0}")
        e(f"s_mul_i32 s3, s{sB}, 640"); e(f"s_lshl_b32 s4, s{sJB}, 3"); e("s_add_u32 s3, s3, s4")
        e(f"v_add_u32 v{vP2}, s3, v{vT0}"); e(f"v_lshlrev_b32 v{vP2}, 1, v{vP2}")
        poll("L_p4", [f"buffer_load_dwordx4 {vr(vD + 4 * k)}, v{vP1}, s[{rWS}:{rWS + 3}], {'0' if k == 0 else 's' + str(4 + k)} offen sc1" for k in range(4 // fq)],
             [vD + 4 * k for k in range(4 // fq)], vT0)
        stamp("s", "s.fpoll")
        for r in range(4):
            e(f"v_add_f32 v{vD + r}, v{vD + r}, v{vD + 4 + r}")
            e(f"v_add_f32 v{vD + 8 + r}, v{vD + 8 + r}, v{vD + 12 + r}")
        for r in range(4):
            e(f"v_add_f32 v{vD + r}, v{vD + r}, v{vD + 8 + r}")
        treduce(vD)
        e(f"v_add_f32_dpp v{vD}, v{vD}, v{vD} quad_perm:[2,3,0,1] {DPPM}")
        e(f"v_add_f32_dpp v{vD}, v{vD}, v{vD} row_ror:4 {DPPM}")
        e(f"v_add_f32_dpp v{vD}, v{vD}, v{vD} row_ror:8 {DPPM}")
        e(f"v_cvt_pk_bf16_f32 v{vD}, v{vD}, v{vD}")
        e("s_mov_b32 exec_lo, 0x00030003"); e("s_mov_b32 exec_hi, 0x00030003")
        e(f"buffer_store_short v{vD}, v{vP2}, s[{rOUT}:{rOUT + 3}], 0 offen")
    if not at:
        e(f"s_cmp_lg_u32 s{sJB}, 0")
        e("s_cbranch_scc1 L_pb" if probe >= 6 else "s_cbranch_scc1 L_sdone")
        e("s_mov_b64 exec, 1")
        e(f"buffer_store_dword v{vT}, v{vZ}, s[{rWS}:{rWS + 3}], s9 offen sc1")
    if probe:
        e("L_pb:")
        e("s_memrealtime s[72:73]")
        e("s_mov_b64 exec, -1")
        if probe < 6:
            e(f"s_cmp_lg_u32 s{sB}, 0"); e("s_cbranch_scc1 L_sdone")
        e(f"v_lshlrev_b32 v{vT0}, 4, v{vL}")
        e(f"buffer_load_dwordx4 {vr(vA)}, v{vT0}, s[{rWS}:{rWS + 3}], 0 offen offset:1024 sc1")
        e("s_waitcnt vmcnt(0) lgkmcnt(0)")
        e("s_lshl_b32 s74, s68, 3")
        e("s_mov_b32 s75, 0x7fffffff"); e("s_mov_b32 s76, 0x80000000"); e("s_mov_b32 s77, 0"); e("s_mov_b32 s78, 0"); e("s_mov_b32 s79, 0")
        e("L_pr:")
        for r in range(4):
            e(f"v_readlane_b32 s80, v{vA + r}, s79")
            e("s_nop 3")
            e("s_and_b32 s81, s80, 7"); e("s_andn2_b32 s80, s80, 7"); e("s_sub_u32 s80, s80, s74"); e("s_ashr_i32 s80, s80, 3")
            e("s_min_i32 s75, s75, s80"); e("s_max_i32 s76, s76, s80"); e("s_add_i32 s77, s77, s80")
            e("s_sub_i32 s82, 0, s80"); e("s_cmp_ge_u32 s81, 4"); e("s_cselect_b32 s80, s80, s82"); e("s_add_i32 s78, s78, s80")
        e("s_add_u32 s79, s79, 1"); e("s_cmp_lt_u32 s79, 64"); e("s_cbranch_scc1 L_pr")
        if probe == 1:
            e("s_ashr_i32 s77, s77, 8"); e("s_sub_i32 s80, s76, s77")
        elif probe == 2:
            e("s_ashr_i32 s78, s78, 7"); e("s_add_i32 s80, s78, 100")
        elif probe == 7:
            e("s_ashr_i32 s77, s77, 8")
            e("s_sub_u32 s80, s72, s68"); e("s_sub_i32 s80, s80, s77"); e("s_sub_i32 s80, s80, 3200")
        elif probe in (3, 6):
            e("s_sub_u32 s80, s72, s68"); e("s_sub_i32 s80, s80, s75"); e("s_sub_i32 s80, s80, 3200")
        elif probe == 4:
            e("s_sub_u32 s80, s72, s68"); e("s_sub_i32 s80, s80, s76"); e("s_sub_i32 s80, s80, 3200")
        else:
            e("s_mov_b32 s80, 0")
        e(f"s_mul_i32 s80, s80, {amp}"); e("s_max_i32 s80, s80, 0"); e("s_min_i32 s80, s80, 8000"); e("s_add_u32 s80, s80, 1000")
        e("L_ps:")
        e("s_memrealtime s[82:83]"); e("s_waitcnt lgkmcnt(0)"); e("s_sub_u32 s82, s82, s72")
        e("s_cmp_lt_u32 s82, s80"); e("s_cbranch_scc1 L_ps")
    e("L_sdone:")
    e("s_mov_b64 exec, -1")
    if stamps:
        e("s_waitcnt vmcnt(0)")
    stamp("s", "s.end")
    stamps_out("s")
    if fs == 1:
        e("L_xtra:")
        e("s_waitcnt lgkmcnt(0)")
    e("L_end:")
    e("s_endpgm")

    body, nops = resolve(L)
    nv = vRING + 4 * R
    out = [HDR.rstrip("\n"),
           f"; @launch grid=(256,1,1) block=({384 if x6 else 320},1,1) lds={LDS}"]
    if stamps:
        out.append("; @stamps " + ",".join(f"{i}={n}" for i, n in names))
    out += ['.amdgcn_target "amdgcn-amd-amdhsa--gfx950"', ".text", f".globl {KN}", ".p2align 8",
            f".type {KN},@function", f"{KN}:"]
    out += [("" if t.endswith(":") else "    ") + t for t in body]
    out += ['.section .rodata,"a"', ".p2align 6", f".amdhsa_kernel {KN}",
            f"  .amdhsa_next_free_vgpr {nv}", "  .amdhsa_next_free_sgpr 102",
            f"  .amdhsa_accum_offset {(nv + 3) // 4 * 4}",
            "  .amdhsa_group_segment_fixed_size 0", "  .amdhsa_kernarg_size 104",
            "  .amdhsa_user_sgpr_count 2", "  .amdhsa_user_sgpr_kernarg_segment_ptr 1",
            "  .amdhsa_system_sgpr_workgroup_id_x 1", ".end_amdhsa_kernel"]
    return "\n".join(out) + "\n", nops


if __name__ == "__main__":
    outp = sys.argv[1]
    kw = {}
    for a in sys.argv[2:]:
        k, v = a.split("=")
        kw[k] = int(v) if v.lstrip("-").isdigit() else v.replace("+", " ")
    s, nops = gen(**kw)
    open(outp, "w").write(s)
    print(outp, "lines", s.count("\n"), "nop states", nops)
```

```python
import sys, math, struct
from asmlib import resolve, VM

KN = "concat_heads__mha_block_cached__gqa_block_cached__decode_kernel"
HDR = open("concat_heads__mha_block_cached__gqa_block_cached__decode.s.ref").read().split("; Override launch")[0]

A1 = 4096
A2 = A1 + 256 * 768
A3 = A2 + 256 * 1024
A4 = A3 + 256 * 2560
AY = A4 + 256 * 4352
DY = AY - A1
WS_USED = AY + A3 - A1
AA = (WS_USED + 4095) // 4096 * 4096
L_P = 0
L_Q = 6144
L_T = 6528
L_F = 6544
L_ST = 6560
L_O = 6592
L_X = 7360
L_H = L_X + 516
L_K = L_X + 520
L_S = L_X + 528
LDS = 8448

sS, sHH, sB, sH, sW, sJB = 10, 11, 12, 13, 14, 15
sX, sMASK, sCNT = 16, 18, 19
sKV, sWW, sOUT, sWS = 20, 24, 28, 30
rX, rWQ, rK, rV, rWO, rWS, rOUT = 32, 36, 40, 44, 48, 52, 56
sOFF, sC = 60, 61
sSEL = 62
sSA, sSB = 66, 67
sROT = 100
sPO = 101
rDBG = 96
sLN = 96
sWM = 97
sRH = 98
sMIS = 99
sST = 68

vL, vKV, vWQ, vWO = 0, 1, 2, 3
vM = 4
vQ = 8
vACC = 20
vA = 32
vT = 36
vPW, vQR, vOR, vPUB = 37, 38, 39, 40
vMX, vLS, vNM = 41, 42, 43
vX = 44
vT0, vT1, vT2, vT3 = 49, 50, 51, 52
vZ, vONE, vPR = 53, 54, 55
vSC = 56
vRING = 88


def f2u(x):
    return struct.unpack("<I", struct.pack("<f", x))[0]


def gen(pad=0, st1=0, p2=0, mg=0, cr=0, nb=0, al=0, dq=0, do=0, dfl='', pm=0, fx=0, dl=0, pkw=0, b0=0, fs=0, xq=3, pq=0, tk=6, HW=0, ry=0, ofl='', x6=0, T6=252, H6=0, FW6=6, EH=99, FE=14, at=0, ast=34816, acs=4352, asc=0, SB=34, SM=13, nraw=0, te=0, xo=0, FX=0, FX2=0, XT=3, GX=0, RT=0, PF=250, probe=0, amp=10, qd=0, op=0, osl=0, mp=0, xf=0, FL=0, cth=1, xs=0, xn=2, xdn=4, xdl=2, xa=1, xi=0, xsh=4, BM=20, tb=0, ns='', pp=0, pth=8, dry=0, cs=0, sw=0, xc=0, H=99, FW=12, dp=0, fq=1, nost=0, lazy=0, xt=0, xd=0, xg=1, xb=18, XM=64, F=6, F0=6, F2=0, G2=99, rot=0, R=27, fl="nt", stamps=0, prio=1, codepf=0, pk=2, warm=0, qf=0, fb=0, FH=8, FH2=0, G3=99, TH0=48, THL=232, ksh=1, CM=4, bias=1, cb=0, xp=0, N0=32, IL=4, pre=0, nopoll=0, skip=0, dummy=0):
    L = []
    e = L.append
    names = []
    nst = {"w": 0, "s": 0}

    def stamp(who, name):
        if not stamps or name in ns.split() or (stamps == 2 and name in ("woissued", "oready", "pub")):
            return
        for j, nm in names:
            if nm == name:
                j -= 0 if who == "w" else 14
                e(f"s_memrealtime s[{sST + 2 * j}:{sST + 2 * j + 1}]")
                return
        i = nst[who]
        assert i < 14
        nst[who] += 1
        e(f"s_memrealtime s[{sST + 2 * i}:{sST + 2 * i + 1}]")
        names.append((i + (0 if who == "w" else 14), name))

    def srd(d, base, off, size):
        if off is None:
            e(f"s_mov_b32 s{d}, s{base}"); e(f"s_mov_b32 s{d + 1}, s{base + 1}")
            e(f"s_mov_b32 s{d + 2}, {size}")
        else:
            e(f"s_add_u32 s{d}, s{base}, s{off}"); e(f"s_addc_u32 s{d + 1}, s{base + 1}, 0")
            e(f"s_sub_u32 s{d + 2}, {size}, s{off}")
        e(f"s_mov_b32 s{d + 3}, 0x20000")

    def slot(i):
        return vRING + 4 * (i % R)

    def vr(a, n=4):
        return f"v[{a}:{a + n - 1}]"

    DPPM = "row_mask:0xf bank_mask:0xf"

    def allrows(op, v, t):
        e(f"v_mov_b32 v{t}, v{v}")
        e(f"v_permlane16_swap_b32 v{v}, v{t}")
        e(f"{op} v{v}, v{v}, v{t}")
        e(f"v_mov_b32 v{t}, v{v}")
        e(f"v_permlane32_swap_b32 v{v}, v{t}")
        e(f"{op} v{v}, v{v}, v{t}")

    def treduce(d):
        e(f"v_permlane32_swap_b32 v{d}, v{d + 1}")
        e(f"v_permlane32_swap_b32 v{d + 2}, v{d + 3}")
        e(f"v_add_f32 v{d}, v{d}, v{d + 1}")
        e(f"v_add_f32 v{d + 2}, v{d + 2}, v{d + 3}")
        e(f"v_permlane16_swap_b32 v{d}, v{d + 2}")
        e(f"v_add_f32 v{d}, v{d}, v{d + 2}")

    def tag4(dst, src):
        for r in range(4):
            e(f"v_perm_b32 v{dst + r}, v{src + r}, v{vT}, s{sSEL + r}")

    def poll(label, loads, units, tmp, dual=None):
        e(f"s_mov_b32 s{sCNT}, {1 if nopoll >> (4 - int(label[-1])) & 1 else 400000}")
        if dual:
            e(f"s_mov_b32 s{sPO}, {0 if xp else DY}")
        e(f"{label}:")
        e("s_nop 1")
        for t in loads:
            if not skip >> (4 - int(label[-1])) & 1:
                e(t)
        e(f"s_sub_u32 s{sCNT}, s{sCNT}, 1")
        if dual and xp:
            e(f"s_cmp_lg_u32 s{sCNT}, {400000 - N0}"); e(f"s_cbranch_scc1 {label}_y")
            dual()
            e(f"{label}_y:")
            e(f"s_cmp_lt_u32 s{sCNT}, {400000 - N0}"); e(f"s_cselect_b32 s3, {DY}, 0"); e(f"s_xor_b32 s{sPO}, s{sPO}, s3")
        e("s_waitcnt vmcnt(0)")
        for k, u in enumerate(units):
            e(f"v_perm_b32 v{tmp}, v{u + 1}, v{u}, s{sSA}")
            e(f"v_perm_b32 v{tmp + 1}, v{u + 3}, v{u + 2}, s{sSB}")
            e(f"v_or_b32 v{tmp}, v{tmp}, v{tmp + 1}")
            if k == 0:
                e(f"v_xor_b32 v{tmp + 2}, v{tmp}, v{vT}")
            else:
                e(f"v_xor_b32 v{tmp}, v{tmp}, v{vT}")
                e(f"v_or_b32 v{tmp + 2}, v{tmp + 2}, v{tmp}")
        e(f"v_cmp_ne_u32 vcc, 0, v{tmp + 2}")
        e(f"s_cmp_eq_u32 s{sCNT}, 0")
        e(f"s_cbranch_scc1 {label}_x")
        e(f"s_cbranch_vccnz {label}")
        e(f"{label}_x:")
        for u in units:
            for r in range(4):
                e(f"v_and_b32 v{u + r}, s{sMASK}, v{u + r}")

    def ppoll(label, load, bufs, res, tmp):
        def check(src):
            if src != res:
                for r in range(4):
                    e(f"v_mov_b32 v{res + r}, v{src + r}")
            e(f"v_perm_b32 v{tmp}, v{src + 1}, v{src}, s{sSA}")
            e(f"v_perm_b32 v{tmp + 1}, v{src + 3}, v{src + 2}, s{sSB}")
            e(f"v_or_b32 v{tmp}, v{tmp}, v{tmp + 1}")
            e(f"v_cmp_ne_u32 vcc, v{tmp}, v{vT}")
        n = len(bufs)
        e(f"s_mov_b32 s{sCNT}, 400000")
        e(f"{label}:")
        e(load(res))
        e("s_waitcnt vmcnt(0)")
        check(res)
        e(f"s_sub_u32 s{sCNT}, s{sCNT}, 1")
        e(f"s_cbranch_scc1 {label}_x")
        e("s_and_b64 exec, exec, vcc")
        e(f"s_cbranch_scc0 {label}_x")
        if n > 1:
            e("s_bcnt1_i32_b64 s3, exec")
            e(f"s_cmp_gt_u32 s3, {pth}")
        e(f"s_cbranch_scc1 {label}")
        if n > 1:
            for k in range(n - 1):
                e(load(bufs[k]))
            e(f"{label}_f:")
            for k in range(n):
                e(load(bufs[(k + n - 1) % n]))
                e(f"s_waitcnt vmcnt({n - 1})")
                check(bufs[k])
                e("s_and_b64 exec, exec, vcc")
                e(f"s_cbranch_scc0 {label}_x")
            e(f"s_sub_u32 s{sCNT}, s{sCNT}, 1")
            e(f"s_cbranch_scc0 {label}_f")
        e(f"{label}_x:")
        e("s_mov_b64 exec, -1")
        for r in range(4):
            e(f"v_and_b32 v{res + r}, s{sMASK}, v{res + r}")

    def mpoll(label, loads, units, tmp, first=()):
        e(f"s_mov_b32 s{sCNT}, 400000")
        e(f"s_mov_b32 s{sPO}, {DY}")
        for t in loads:
            e(t)
        for t in first:
            e(t)
        e(f"{label}:")
        e("s_waitcnt vmcnt(0)")
        for k, u in enumerate(units):
            e(f"v_perm_b32 v{tmp}, v{u + 1}, v{u}, s{sSA}")
            e(f"v_perm_b32 v{tmp + 1}, v{u + 3}, v{u + 2}, s{sSB}")
            e(f"v_or_b32 v{tmp}, v{tmp}, v{tmp + 1}")
            if k == 0:
                e(f"v_xor_b32 v{tmp + 2}, v{tmp}, v{vT}")
            else:
                e(f"v_xor_b32 v{tmp}, v{tmp}, v{vT}")
                e(f"v_or_b32 v{tmp + 2}, v{tmp + 2}, v{tmp}")
        e(f"v_cmp_ne_u32 vcc, 0, v{tmp + 2}")
        e(f"s_sub_u32 s{sCNT}, s{sCNT}, 1")
        e(f"s_cbranch_scc1 {label}_x")
        e("s_and_b64 exec, exec, vcc")
        e(f"s_cbranch_scc0 {label}_x")
        if osl:
            e(f"s_sleep {osl}")
        for t in loads:
            e(t)
        e(f"s_branch {label}")
        e(f"{label}_x:")
        e("s_mov_b64 exec, -1")
        for u in units:
            for r in range(4):
                e(f"v_and_b32 v{u + r}, s{sMASK}, v{u + r}")

    def publish(src, vaddr, sx, off, one, y):
        o = f" offset:{off}" if off else ""
        e("s_mov_b64 exec, 1" if one else "s_mov_b32 exec_hi, 0xffff")
        e(f"buffer_store_dwordx4 {vr(src)}, v{vaddr}, s[{rWS}:{rWS + 3}], s{sx + 2 * y} offen{o}" + (" sc1" if y else ""))
        e("s_mov_b64 exec, -1")

    def dirty(n, k):
        if not n:
            return
        e(f"v_lshlrev_b32 v{vT3}, 4, v{vL}")
        e("s_lshl_b32 s3, s2, 14"); e(f"s_add_u32 s3, s3, {0x400000 + k * 0x400000}")
        e(f"s_add_u32 s48, s{sWS}, s3"); e(f"s_addc_u32 s49, s{sWS + 1}, 0")
        for i in range(n):
            e(f"global_store_dwordx4 v{vT3}, {vr(vQ)}, s[48:49] offset:{(i % 4) * 1024} {dfl}".rstrip())
            if i % 4 == 3:
                e("s_add_u32 s48, s48, 4096"); e("s_addc_u32 s49, s49, 0")

    def ldsspin(label, off, tmp):
        e(f"s_mov_b32 s{sCNT}, 4000000")
        e(f"{label}:")
        e(f"ds_read_b32 v{tmp}, v{vZ} offset:{off}")
        e(f"s_sub_u32 s{sCNT}, s{sCNT}, 1")
        e("s_waitcnt lgkmcnt(0)")
        e(f"v_readfirstlane_b32 s3, v{tmp}")
        e(f"s_cmp_eq_u32 s{sCNT}, 0")
        e(f"s_cbranch_scc1 {label}_x")
        e("s_cmp_lt_u32 s3, 4")
        e(f"s_cbranch_scc1 {label}")
        e(f"{label}_x:")

    sN, sSL, sCc, sTH, sP, sK, sAUX = 32, 33, 34, 35, 36, 37, 38
    sD, sXL, sDL, sLEAD = 40, 41, 42, 43
    vLIM, vTX = 37, 38
    sPUB, sRD, sXO, sBI, sTM, sINT, sXW = 40, 41, 42, 43, 44, 46, 47
    AX = A4 + 16 * 4352

    def fbspin(label, k, tmp, vad):
        e(f"s_mov_b32 s{sCNT}, 4000000")
        e(f"{label}:")
        e(f"ds_read_b128 {vr(tmp)}, v{vZ} offset:{L_F}")
        e(f"s_sub_u32 s{sCNT}, s{sCNT}, 1")
        e(f"s_cbranch_scc1 {label}_x")
        if k is None:
            e(f"s_cmp_eq_u32 s{sTH}, 0x7fffffff")
            e(f"s_cbranch_scc1 {label}_x")
        e("s_waitcnt lgkmcnt(0)")
        if k is not None:
            e(f"v_readfirstlane_b32 s3, v{tmp + k}")
        e(f"v_readfirstlane_b32 s{sP}, v{tmp + 3}")
        if k is not None:
            e("s_cmp_ge_u32 s3, 4")
            e(f"s_cbranch_scc1 {label}_x")
        e(f"s_sub_i32 s{sP}, s{sP}, s{sCc}")
        e(f"s_cmp_lt_i32 s{sP}, s{sTH}")
        e(f"s_cbranch_scc1 {label}")
        e(f"s_sub_i32 s{sK}, s{sP}, s{sTH}"); e(f"s_lshr_b32 s{sK}, s{sK}, {IL}"); e(f"s_add_u32 s{sK}, s{sK}, 1")
        e(f"s_add_u32 s{sN}, s{sN}, s{sK}")
        if xs:
            e(f"s_cmp_ge_u32 s{sN}, s{sPUB}"); e(f"s_cbranch_scc0 {label}_a")
            e(f"s_memrealtime s[{sTM}:{sTM + 1}]")
            e(f"{label}_a:")
        e(f"v_and_b32 v{tmp}, s{sMASK}, v{vT}"); e(f"v_or_b32 v{tmp + 1}, s{sN}, v{tmp}")
        e(f"buffer_load_dword v{tmp + 2}, v{vad}, s[{rWS}:{rWS + 3}], 0 offen sc1")
        e("s_mov_b64 exec, 1")
        if nost:
            e(f"buffer_load_dword v{tmp + 1}, v{vZ}, s[{rWS}:{rWS + 3}], s{sSL} offen sc1")
        else:
            e(f"buffer_store_dword v{tmp + 1}, v{vZ}, s[{rWS}:{rWS + 3}], s{sSL} offen")
        e("s_mov_b64 exec, -1")
        e(f"s_lshl_b32 s{sK}, s{sK}, {IL}"); e(f"s_add_u32 s{sTH}, s{sTH}, s{sK}")
        e(f"s_cmp_gt_i32 s{sTH}, {THL + (1 << IL) - 1}"); e(f"s_cselect_b32 s{sTH}, 0x7fffffff, s{sTH}")
        if xs:
            e(f"s_cmp_ge_u32 s{sN}, s{sRD}"); e(f"s_cbranch_scc0 {label}_b")
            e("s_mov_b64 exec, 0xff")
            e(f"buffer_load_dword v{tmp + 3}, v{vLIM}, s[{rWS}:{rWS + 3}], s{sXO} offen sc1")
            e(f"s_add_u32 s{sRD}, s{sRD}, {xdn}"); e(f"s_add_u32 s{sXO}, s{sXO}, 2048")
            e(f"s_cmp_ge_u32 s{sXO}, {AX + 2048 * xs}"); e(f"s_cselect_b32 s{sRD}, 0x7fffffff, s{sRD}")
            e("s_and_b32 s3, s2, 7")
            e("s_waitcnt vmcnt(0)")
            e(f"v_xor_b32 v{tmp + 3}, v{tmp + 3}, v{vTX}")
            e(f"v_cmp_gt_u32 vcc, 0x1000, v{tmp + 3}")
            e(f"v_readlane_b32 s3, v{tmp + 3}, s3")
            e("s_cmp_eq_u32 vcc_lo, 0xff"); e(f"s_cbranch_scc0 {label}_b")
            e(f"v_sub_u32 v{tmp + 3}, s3, v{tmp + 3}")
            e(f"v_bfe_i32 v{tmp + 3}, v{tmp + 3}, 0, 12")
            for m in ("quad_perm:[1,0,3,2]", "quad_perm:[2,3,0,1]", "row_half_mirror"):
                e(f"v_add_u32_dpp v{tmp + 3}, v{tmp + 3}, v{tmp + 3} {m} {DPPM}")
            e(f"v_readfirstlane_b32 s3, v{tmp + 3}")
            if xi:
                e(f"s_mul_i32 s{sBI}, s3, {xi}"); e(f"s_add_i32 s{sINT}, s{sINT}, s{sBI}")
                e(f"s_min_i32 s{sINT}, s{sINT}, {BM << xsh}"); e(f"s_max_i32 s{sINT}, s{sINT}, {-(BM << xsh)}")
                e(f"s_mul_i32 s3, s3, {xa}"); e(f"s_add_i32 s3, s3, s{sINT}")
            else:
                e(f"s_mul_i32 s3, s3, {xa}")
                if tb:
                    e(f"s_add_i32 s3, s3, s{sINT}")
            e(f"s_ashr_i32 s3, s3, {xsh}")
            e(f"s_min_i32 s3, s3, {BM}"); e(f"s_max_i32 s{sBI}, s3, {-BM}")
            e(f"{label}_b:")
            e("s_mov_b64 exec, -1")
        e("s_waitcnt vmcnt(1)")
        e(f"v_xor_b32 v{tmp + 2}, v{tmp + 2}, v{vPR}")
        e(f"v_cmp_gt_u32 vcc, {'v' + str(vLIM) if xd else 64}, v{tmp + 2}")
        e(f"v_cndmask_b32 v{tmp + 2}, 0, v{tmp + 2}, vcc")
        for m in ("quad_perm:[1,0,3,2]", "quad_perm:[2,3,0,1]", "row_half_mirror", "row_mirror"):
            e(f"v_add_u32_dpp v{tmp + 2}, v{tmp + 2}, v{tmp + 2} {m} {DPPM}")
        e(f"v_readlane_b32 s{sK}, v{tmp + 2}, 0"); e(f"v_readlane_b32 s3, v{tmp + 2}, 16")
        e(f"s_add_u32 s{sK}, s{sK}, s3")
        if xd:
            e(f"v_readlane_b32 s{sD}, v{tmp + 2}, 48")
            e(f"s_cmp_eq_u32 s{sLEAD}, 0"); e(f"s_cbranch_scc1 {label}_n")
            e(f"v_readlane_b32 s3, v{tmp + 2}, 32")
            e(f"v_or_b32 v{tmp}, s{sK}, v{vTX}")
            e("s_lshr_b32 s3, s3, 3"); e(f"s_add_u32 s3, s3, {2048 + xb}"); e(f"s_sub_u32 s3, s3, s{sK}")
            e(f"s_min_u32 s3, s3, {2048 + XM}"); e(f"s_max_u32 s3, s3, {2048 - XM}")
            e(f"s_and_b32 s{sD}, vcc_hi, 0xff"); e(f"s_cmp_eq_u32 s{sD}, 0xff")
            e(f"s_cselect_b32 s{sD}, s3, 2048")
            e(f"v_or_b32 v{tmp + 1}, s{sD}, v{vTX}")
            if xf:
                e(f"v_lshlrev_b32 v{tmp + 3}, 2, v{vL}")
                e("s_mov_b32 exec_hi, 0")
                e(f"buffer_store_dword v{tmp}, v{tmp + 3}, s[{rWS}:{rWS + 3}], s{sXL} offen sc1")
            e("s_mov_b64 exec, 1")
            if xt != 2 and not xf:
                e(f"buffer_store_dword v{tmp}, v{vZ}, s[{rWS}:{rWS + 3}], s{sXL} offen sc1")
            e(f"buffer_store_dword v{tmp + 1}, v{vZ}, s[{rWS}:{rWS + 3}], s{sDL} offen")
            e("s_mov_b64 exec, -1")
            e(f"{label}_n:")
            e(f"s_cmp_eq_u32 s{sD}, 0"); e(f"s_cselect_b32 s{sD}, 2048, s{sD}")
            e(f"s_sub_i32 s{sD}, s{sD}, 2048")
            if xg:
                e(f"s_ashr_i32 s{sD}, s{sD}, {xg}")
            e(f"s_add_i32 s{sK}, s{sK}, s{sD}")
        if xs:
            e(f"s_cmp_ge_u32 s{sN}, s{sPUB}"); e(f"s_cbranch_scc0 {label}_c")
            e(f"s_mul_i32 s3, s{sK}, 43"); e("s_lshr_b32 s3, s3, 4")
            e("s_waitcnt lgkmcnt(0)")
            e(f"s_sub_u32 s3, s{sTM}, s3"); e("s_and_b32 s3, s3, 0xfff")
            e(f"v_or_b32 v{tmp}, s3, v{vTX}")
            if xf:
                e(f"v_lshlrev_b32 v{tmp + 3}, 2, v{vL}")
                e("s_mov_b32 exec_hi, 0")
                e(f"buffer_store_dword v{tmp}, v{tmp + 3}, s[{rWS}:{rWS + 3}], s{sXW} offen sc1")
            else:
                e("s_mov_b64 exec, 1")
                e(f"buffer_store_dword v{tmp}, v{vZ}, s[{rWS}:{rWS + 3}], s{sXW} offen sc1")
            e("s_mov_b64 exec, -1")
            e(f"s_mov_b32 s{sPUB}, 0x7fffffff")
            e(f"{label}_c:")
            e(f"s_add_i32 s{sK}, s{sK}, s{sBI}")
        if tb and not xs:
            e(f"s_add_i32 s{sK}, s{sK}, s{sBI}")
        if IL > 3:
            e(f"s_lshl_b32 s{sK}, s{sK}, {IL - 3}")
        e(f"s_lshl_b32 s3, s{sP}, 2")
        e(f"s_sub_i32 s3, s{sK}, s3")
        e(f"s_add_u32 s3, s3, {4 * TH0 - 2 + (2 << ksh) + cb}")
        e(f"s_ashr_i32 s3, s3, {2 + ksh}")
        e(f"s_min_i32 s3, s3, {CM}"); e(f"s_max_i32 s3, s3, {-CM}")
        e(f"s_sub_i32 s{sK}, s3, s{sCc}"); e(f"s_mov_b32 s{sCc}, s3")
        e(f"v_mov_b32 v{tmp}, s{sK}")
        e("s_mov_b64 exec, 1")
        e(f"ds_add_u32 v{vZ}, v{tmp} offset:{L_F + 12}")
        e("s_mov_b64 exec, -1")
        if stamps:
            e(f"s_lshl_b64 s[{sAUX}:{sAUX + 1}], s[{sAUX}:{sAUX + 1}], 5")
            e(f"s_and_b32 s{sAUX + 1}, s{sAUX + 1}, 0xfffffff")
            e("s_add_u32 s3, s3, 16"); e(f"s_or_b32 s{sAUX}, s{sAUX}, s3")
        e(f"s_branch {label}")
        e(f"{label}_x:")

    def wo_assign():
        a, b_, c_ = sSEL, sSEL + 1, sSEL + 2
        wm = sWM if x6 else sW
        if x6:
            e(f"s_min_u32 s{sWM}, s{sW}, 4")
        e(f"s_and_b32 s{a}, s{sS}, 1"); e(f"s_mul_i32 s{b_}, s{a}, 3"); e(f"s_bfe_u32 s{c_}, s{wm}, 0x10001"); e(f"s_add_u32 s{b_}, s{b_}, s{c_}")
        e(f"s_and_b32 s{c_}, s{wm}, 1"); e(f"s_cmp_eq_u32 s{wm}, 0"); e(f"s_cselect_b32 s{b_}, 2, s{b_}"); e(f"s_cselect_b32 s{sRH}, s{a}, s{c_}")
        e(f"s_lshr_b32 s{a}, s{sS}, 1"); e(f"s_mul_i32 s{a}, s{a}, 5"); e(f"s_add_u32 s{b_}, s{b_}, s{a}"); e(f"s_lshl_b32 s{b_}, s{b_}, 7")
        if at:
            e(f"s_mov_b32 s{sLN}, s{b_}")
        e(f"s_mul_i32 s6, s{sH}, 245760"); e(f"s_add_u32 s6, s6, s{b_}")
        e(f"s_mul_i32 s{a}, s{sRH}, 122880"); e(f"s_add_u32 s6, s6, s{a}")

    def pro_ptrs():
        e(f"s_load_dwordx2 s[{sWW + 2}:{sWW + 3}], s[0:1], s7 offset:32")
        e(f"s_load_dwordx2 s[{sOUT}:{sOUT + 1}], s[0:1], 80")
        e(f"s_load_dwordx2 s[{sWS}:{sWS + 1}], s[0:1], 96")

    def pro_rest():
        e(f"s_lshr_b32 s{sW}, s{sW}, 6")
        e(f"v_and_b32 v{vL}, 63, v0")
        e(f"s_lshl_b32 s{sJB}, s{sH}, 2"); e(f"s_add_u32 s{sJB}, s{sJB}, s{sS}")
        wo_assign()

    if fs == 2:
        assert cs and x6 and not mp and not xo and not warm
        if stamps:
            e(f"s_memrealtime s[{sST}:{sST + 1}]")
            nst["w"] = 1; nst["s"] = 1
            names.append((0, "start")); names.append((14, "s.start"))
        e("s_cmpk_ge_u32 s2, 256"); e("s_cbranch_scc1 L_end")
        e(f"s_lshr_b32 s{sB}, s2, 7"); e(f"s_mul_i32 s7, s{sB}, 40")
        e(f"s_load_dwordx8 s[{rK}:{rK + 7}], s[0:1], s7")
        e(f"v_lshrrev_b32 v{vT0}, 3, v0"); e(f"v_and_b32 v{vT1}, 7, v0")
        e(f"v_mul_u32_u24 v{vWQ}, 12288, v{vT0}"); e(f"v_lshl_add_u32 v{vWQ}, v{vT1}, 4, v{vWQ}")
        e("s_lshr_b32 s3, s2, 5"); e("s_and_b32 s5, s2, 7"); e(f"s_lshl3_add_u32 s{sHH}, s3, s5")
        e(f"s_and_b32 s{sH}, s{sHH}, 31")
        e("s_and_b32 s4, s2, 24"); e("s_mulk_i32 s4, 640"); e(f"s_add_u32 s4, s4, s{sH}"); e("s_mulk_i32 s4, 384")
        e(f"v_readfirstlane_b32 s{sW}, v0")
        e(f"v_add_u32 v{vWQ}, s4, v{vWQ}")
        e(f"s_cmpk_ge_u32 s{sW}, 256"); e("s_cbranch_scc1 L_other")
    else:
        if fs:
            assert not mp and not xo
            if stamps:
                e(f"s_memrealtime s[{sST}:{sST + 1}]")
            e("s_bfe_u32 s7, s2, 0x10007"); e("s_mul_i32 s7, s7, 40")
            e(f"s_load_dwordx2 s[{rWQ}:{rWQ + 1}], s[0:1], s7 offset:24")
            e(f"s_load_dwordx2 s[{rX}:{rX + 1}], s[0:1], s7")
            e(f"s_load_dwordx4 s[{sKV}:{sKV + 3}], s[0:1], s7 offset:8")
            e(f"s_load_dwordx2 s[{sWW + 2}:{sWW + 3}], s[0:1], s7 offset:32")
            e(f"s_load_dwordx2 s[{sOUT}:{sOUT + 1}], s[0:1], 80")
            e(f"s_load_dwordx2 s[{sWS}:{sWS + 1}], s[0:1], 96")
            e("s_cmp_ge_u32 s2, 256"); e("s_cbranch_scc1 L_xtra")
        else:
            e("s_cmp_ge_u32 s2, 256"); e("s_cbranch_scc1 L_end")
        if stamps:
            if not fs:
                e(f"s_memrealtime s[{sST}:{sST + 1}]")
            nst["w"] = 1; nst["s"] = 1
            names.append((0, "start")); names.append((14, "s.start"))
        if mp:
            e(f"s_and_b32 s{sS}, s2, 3"); e("s_lshr_b32 s4, s2, 3"); e("s_bfe_u32 s3, s2, 0x10002")
            e("s_lshl_b32 s3, s3, 5"); e(f"s_add_u32 s{sHH}, s4, s3")
        else:
            if xo:
                e(f"s_add_u32 s3, s2, {xo}"); e("s_and_b32 s3, s3, 7")
            else:
                e("s_and_b32 s3, s2, 7")
            e("s_lshr_b32 s4, s2, 3"); e(f"s_and_b32 s{sS}, s4, 3")
            e("s_lshr_b32 s4, s4, 2"); e("s_lshl_b32 s4, s4, 3"); e(f"s_add_u32 s{sHH}, s4, s3")
        e(f"s_lshr_b32 s{sB}, s{sHH}, 5")
        if not fs:
            e(f"s_mul_i32 s7, s{sB}, 40")
            e("s_add_u32 s8, s0, s7"); e("s_addc_u32 s9, s1, 0")
            e(f"s_load_dwordx4 s[{sWW}:{sWW + 3}], s[8:9], 24")
            e(f"s_load_dwordx2 s[{sX}:{sX + 1}], s[8:9], 0")
            e(f"s_load_dwordx4 s[{sKV}:{sKV + 3}], s[8:9], 8")
            e(f"s_load_dwordx2 s[{sOUT}:{sOUT + 1}], s[0:1], 80")
            e(f"s_load_dwordx2 s[{sWS}:{sWS + 1}], s[0:1], 96")
        if stamps == 2 and dummy:
            stamp("w", "p0")
        e(f"v_lshrrev_b32 v{vT0}, 6, v0")
        e(f"v_and_b32 v{vL}, 63, v0")
        e(f"v_readfirstlane_b32 s{sW}, v{vT0}")
        e(f"s_and_b32 s{sH}, s{sHH}, 31")
        e(f"s_lshl_b32 s{sJB}, s{sH}, 2"); e(f"s_add_u32 s{sJB}, s{sJB}, s{sS}")
        e(f"v_lshrrev_b32 v{vT0}, 3, v{vL}")
        e(f"v_and_b32 v{vT1}, 7, v{vL}")
        e(f"v_lshlrev_b32 v{vT2}, 4, v{vT1}")
        e(f"v_mul_u32_u24 v{vWQ}, 12288, v{vT0}"); e(f"v_add_u32 v{vWQ}, v{vWQ}, v{vT2}")
        e(f"v_mul_u32_u24 v{vKV}, 384, v{vT0}"); e(f"v_add_u32 v{vKV}, v{vKV}, v{vT2}")
        e(f"v_lshlrev_b32 v{vT3}, 1, v{vT0}")
        e(f"v_add_u32 v{vQR}, {L_Q}, v{vT2}")
        e(f"s_mul_i32 s3, s{sS}, 160"); e(f"s_mul_i32 s4, s{sW}, 40"); e("s_add_u32 s3, s3, s4")
        e("s_mul_i32 s4, s3, 12288"); e(f"s_mul_i32 s5, s{sH}, 384"); e("s_add_u32 s4, s4, s5")
        e("s_lshl_b32 s3, s3, 1")
        e(f"s_mul_i32 s5, s{sH}, 1572864"); e(f"s_mul_i32 s6, s{sS}, 393216"); e("s_add_u32 s5, s5, s6")
        e(f"s_mul_i32 s6, s{sW}, 3072"); e("s_add_u32 s5, s5, s6")
        if stamps == 2 and dummy:
            stamp("w", "p1")
        if cs:
            wo_assign()
        else:
            e(f"s_mul_i32 s6, s{sJB}, 61440"); e(f"s_lshl_b32 s7, s{sW}, 8"); e("s_add_u32 s6, s6, s7")
        e(f"s_cmp_eq_u32 s{sW}, 4")
        e("s_cbranch_scc1 L_service")
        if x6:
            e(f"s_cmp_eq_u32 s{sW}, 5")
            e("s_cbranch_scc1 L_six")

    def common_consts():
        e(f"v_and_b32 v{vT0}, 1, v{vL}"); e(f"v_lshlrev_b32 v{vT0}, 4, v{vT0}")
        e(f"v_mov_b32 v{vT1}, 0xffff"); e(f"v_lshlrev_b32 v{vT0}, v{vT0}, v{vT1}")
        e(f"v_bfe_u32 v{vT1}, v{vL}, 1, 2")
        for r in range(4):
            e(f"v_cmp_eq_u32 vcc, {r}, v{vT1}")
            e(f"v_cndmask_b32 v{vM + r}, 0, v{vT0}, vcc")
        if cs:
            e(f"v_lshrrev_b32 v{vT0}, 3, v{vL}"); e(f"v_and_b32 v{vT1}, 7, v{vL}")
            e(f"v_mul_u32_u24 v{vWO}, 15360, v{vT0}"); e(f"v_lshl_add_u32 v{vWO}, v{vT1}, 4, v{vWO}")
            e(f"s_mul_i32 s7, s{sRH}, 384"); e(f"s_add_u32 s7, s7, {L_O}")
            e(f"v_mul_u32_u24 v{vOR}, 48, v{vT0}"); e(f"v_add_u32 v{vOR}, s7, v{vOR}")
        if cs and at:
            e(f"v_mul_u32_u24 v{vPUB}, {acs}, v{vT0}"); e(f"v_lshl_add_u32 v{vPUB}, v{vT1}, 3, v{vPUB}")
            e(f"s_lshr_b32 s7, s{sLN}, 7"); e(f"s_mul_i32 s8, s{sB}, 10"); e("s_add_u32 s7, s7, s8")
            e(f"s_mul_i32 s7, s7, {ast}"); e(f"s_add_u32 s7, s7, {AA}")
            e(f"v_add_u32 v{vPUB}, s7, v{vPUB}")
        elif cs:
            e(f"v_bfe_u32 v{vT0}, v{vL}, 4, 1")
            e(f"v_lshlrev_b32 v{vPUB}, 5, v{vT1}"); e(f"v_lshl_add_u32 v{vPUB}, v{vT0}, 4, v{vPUB}")
            e(f"s_bfe_u32 s8, s{sW}, 0x10001")
            e(f"s_lshl_b32 s7, s{sS}, 1"); e("s_add_u32 s7, s7, s8"); e("s_lshl_b32 s7, s7, 5"); e(f"s_add_u32 s7, s7, s{sH}")
            e(f"s_lshr_b32 s9, s{sS}, 1"); e("s_lshl_b32 s9, s9, 5"); e(f"s_add_u32 s9, s9, s{sH}")
            e("s_lshl_b32 s9, s9, 1"); e(f"s_add_u32 s9, s9, s{sRH}"); e("s_add_u32 s9, s9, 256")
            e(f"s_cmp_eq_u32 s{sW}, 0"); e("s_cselect_b32 s7, s9, s7")
            e(f"s_mul_i32 s9, s{sB}, 384"); e("s_add_u32 s7, s7, s9"); e("s_lshl_b32 s7, s7, 8"); e(f"s_add_u32 s7, s7, {A3}")
            e(f"v_add_u32 v{vPUB}, s7, v{vPUB}")
        else:
            e(f"v_lshrrev_b32 v{vT0}, 4, v{vL}")
            e(f"v_and_b32 v{vT1}, 15, v{vL}")
            e(f"v_mul_u32_u24 v{vWO}, 15360, v{vT0}"); e(f"v_lshl_add_u32 v{vWO}, v{vT1}, 4, v{vWO}")
            e(f"v_mul_u32_u24 v{vOR}, 48, v{vT0}"); e(f"v_add_u32 v{vOR}, {L_O}, v{vOR}")
            e(f"v_lshlrev_b32 v{vPUB}, 5, v{vT1}"); e(f"v_lshl_add_u32 v{vPUB}, v{vT0}, 4, v{vPUB}")
            e(f"s_lshl_b32 s7, s{sB}, 7"); e(f"s_add_u32 s7, s7, s{sJB}"); e("s_mul_i32 s7, s7, 2560")
            e(f"s_lshl_b32 s8, s{sW}, 9"); e("s_add_u32 s7, s7, s8"); e(f"s_add_u32 s7, s7, {A3}")
            e(f"v_add_u32 v{vPUB}, s7, v{vPUB}")
        e(f"v_mov_b32 v{vZ}, 0"); e(f"v_mov_b32 v{vONE}, 1")
        for r in range(4):
            e(f"s_mov_b32 s{sSEL + r}, {0x07060500 + r}")
        srd(rWO, sWW + 2, 6, 7864320)
        srd(rWS, sWS, None, AA + 20 * ast if at else WS_USED)
        if cs:
            srd(rOUT, sOUT, None, 2560)

    vXA = vNM

    vFX = vACC + 8

    def pair_addr():
        if at:
            e(f"v_and_b32 v{vT0}, 7, v{vL}"); e(f"v_lshlrev_b32 v{vXA}, 4, v{vT0}")
            e(f"v_bfe_u32 v{vT0}, v{vL}, 4, 1"); e(f"v_lshl_add_u32 v{vXA}, v{vT0}, 3, v{vXA}")
            e(f"v_lshrrev_b32 v{vT0}, 5, v{vL}"); e(f"v_lshl_add_u32 v{vXA}, v{vT0}, 2, v{vXA}")
            e(f"v_bfe_u32 v{vT0}, v{vL}, 3, 1"); e(f"v_lshl_add_u32 v{vXA}, v{vT0}, 1, v{vXA}")
            e(f"s_mul_i32 s3, s{sB}, 1280"); e(f"s_add_u32 s3, s3, s{sLN}")
            e(f"v_add_u32 v{vXA}, s3, v{vXA}")
            return
        e(f"s_bfe_u32 s3, s{sW}, 0x10001"); e("s_lshl_b32 s3, s3, 8"); e(f"s_add_u32 s3, s3, {L_X}")
        e(f"v_and_b32 v{vXA}, 255, v{vPUB}"); e(f"v_add_u32 v{vXA}, s3, v{vXA}")

    vm = VM(e)
    NQ, NK, NV, NO = 15, 96, 96, 12
    K0, V0, O0 = NQ, NQ + NK, NQ + NK + NV
    N = O0 + NO
    cur = [None]

    def setoff(v):
        if cur[0] != v:
            e(f"s_mov_b32 s{sOFF}, {v}")
            cur[0] = v

    def issue(i):
        d = vr(slot(i))
        if i < K0:
            g, t = divmod(i, 3)
            if fs == 2:
                if g and not t:
                    e(f"v_add_u32 v{vWQ}, {32 * 12288}, v{vWQ}")
                vm.issue(i, f"global_load_dwordx4 {d}, v{vWQ}, s[{rV + 2}:{rV + 3}] offset:{t * 128} {fl}")
                if i == K0 - 1:
                    e(f"s_mov_b32 s{rV + 2}, s{rK + 2}"); e(f"s_mov_b32 s{rV + 3}, 0x20000")
                    if b0:
                        e("s_barrier")
                return
            setoff(g * 8 * 12288)
            vm.issue(i, f"buffer_load_dwordx4 {d}, v{vWQ}, s[{rWQ}:{rWQ + 3}], s{sOFF} offen offset:{t * 128} {fl}")
            if b0 and i == K0 - 1:
                e("s_barrier")
        elif i < O0:
            r = rK if i < V0 else rV
            g, t = divmod(i - (K0 if i < V0 else V0), 3)
            if fb and t == 0 and i < V0 + 3 * G3:
                ga = (i - K0) // 3
                e("s_mov_b64 exec, 1")
                if ga > 0:
                    e("s_waitcnt lgkmcnt(0)")
                    e(f"v_cmp_lt_i32 vcc, {4 * (ga - 1) + bias}, v{vPR}")
                    if FX and ga >= GX:
                        e(f"v_readfirstlane_b32 s8, v{vPR}")
                e(f"ds_add_rtn_u32 v{vPR}, v{vZ}, v{vONE} offset:{L_F + 12}")
                e("s_mov_b64 exec, -1")
            if not rot:
                setoff(g * 12288)
            elif t == 0:
                cur[0] = None
                if g == 0:
                    e(f"s_mov_b32 s{sOFF}, s{sROT}")
                else:
                    e(f"s_add_u32 s{sOFF}, s{sOFF}, 12288"); e(f"s_cmp_eq_u32 s{sOFF}, 393216")
                    e(f"s_cselect_b32 s{sOFF}, 0, s{sOFF}")
                if FX and (i - K0) // 3 >= max(GX, 1):
                    e(f"s_cmp_gt_i32 s8, {4 * ((i - K0) // 3 - 1) + bias + XT}")
            vm.issue(i, f"buffer_load_dwordx4 {d}, v{vKV}, s[{r}:{r + 3}], s{sOFF} offen offset:{t * 128} {fl}")
        else:
            g = i - O0
            setoff((g // 4) * 5120)
            vm.issue(i, f"buffer_load_dwordx4 {d}, v{vWO}, s[{rWO}:{rWO + 3}], s{sOFF} offen offset:{(g % 4) * 1280} {fl}")

    def afrag(src):
        for r in range(4):
            e(f"v_and_b32 v{vA + r}, v{src}, v{vM + r}")

    def mfma(acc, b, first):
        c = "0" if first else vr(acc)
        e(f"v_mfma_f32_16x16x32_bf16 {vr(acc)}, {vr(vA)}, {vr(b)}, {c}")

    def partials_out(flag):
        e("s_mov_b32 exec_lo, 0x00ff00ff"); e("s_mov_b32 exec_hi, 0xff00ff00")
        for t in range(3):
            e(f"ds_write_b128 v{vPW}, {vr(vACC + 4 * t)} offset:{t * 256}")
        e("s_mov_b64 exec, 1")
        e(f"ds_add_u32 v{vZ}, v{vONE} offset:{flag}")
        e("s_mov_b64 exec, -1")

    def pcalc(g):
        s = vSC + g
        e(f"v_fma_f32 v{s}, v{s}, s{sC}, v{vNM}")
        e(f"v_exp_f32 v{s}, v{s}")
        if g == 0:
            e(f"v_mov_b32 v{vLS}, v{s}")
        else:
            e(f"v_add_f32 v{vLS}, v{vLS}, v{s}")
        e(f"v_cvt_pk_bf16_f32 v{s}, v{s}, v{s}")

    pend = []

    def red_steps(g):
        s = vSC + g
        st = [f"v_add_f32_dpp v{s}, v{s}, v{s} quad_perm:[1,0,3,2] {DPPM}",
              f"v_add_f32_dpp v{s}, v{s}, v{s} quad_perm:[2,3,0,1] {DPPM}",
              f"v_add_f32_dpp v{s}, v{s}, v{s} row_half_mirror {DPPM}"]
        st.append(f"v_mov_b32 v{vMX}, v{s}" if g == 0 else f"v_max_f32 v{vMX}, v{vMX}, v{s}")
        return st

    pdone = [0]

    def consume(i):
        vm.wait(i)
        b = slot(i)
        if i < K0:
            g, t = divmod(i, 3)
            if t == 0:
                e(f"v_lshl_or_b32 v{vT0}, v{vX + g}, 16, v{vX + g}")
                afrag(vT0)
            mfma(vACC + 4 * t, b, g == 0)
            if stamps == 2 and i in (0, 5, 11):
                stamp("w", f"wq{i}")
            if i == K0 - 1:
                partials_out(L_F)
                stamp("w", "qpart")
        elif i < V0:
            g, t = divmod(i - K0, 3)
            for r in range(4):
                e(f"v_dot2c_f32_bf16 v{vSC + g}, v{b + r}, v{vQ + 4 * t + r}")
                if r in (1, 3) and pend:
                    e(pend.pop(0))
            if t == 2:
                while pend:
                    e(pend.pop(0))
                pend.extend(red_steps(g))
            if i == V0 - 1:
                while pend:
                    e(pend.pop(0))
                e(f"v_max_f32_dpp v{vMX}, v{vMX}, v{vMX} row_ror:8 {DPPM}")
                allrows("v_max_f32", vMX, vT0)
                e(f"v_mul_f32 v{vMX}, s{sC}, v{vMX}")
                e(f"v_sub_f32 v{vNM}, 0, v{vMX}")
                for g2 in range(pk):
                    pcalc(g2)
                pdone[0] = pk
                stamp("w", "Kdone")
        elif i < O0:
            g, t = divmod(i - V0, 3)
            if stamps == 3 and t == 2 and g in (16, 22, 26, 29):
                stamp("w", f"v{g}")
            if t == 0:
                afrag(vSC + g)
            mfma(vACC + 4 * t, b, g == 0)
            if t < 2 and pdone[0] < 32:
                for _ in range((pk + 1 - t) // 2):
                    if pdone[0] < 32:
                        pcalc(pdone[0]); pdone[0] += 1
                if pdone[0] == 32:
                    pdone[0] = 33
                    e(f"v_add_f32_dpp v{vLS}, v{vLS}, v{vLS} row_ror:8 {DPPM}")
                    allrows("v_add_f32", vLS, vT0)
                    e(f"s_lshl_b32 s3, s{sW}, 3"); e(f"v_mov_b32 v{vT0}, s3")
                    e("s_mov_b64 exec, 1")
                    e(f"ds_write_b32 v{vT0}, v{vMX} offset:{L_ST}")
                    e(f"ds_write_b32 v{vT0}, v{vLS} offset:{L_ST + 4}")
                    e(f"ds_add_u32 v{vZ}, v{vONE} offset:{L_F + 4}")
                    e("s_mov_b64 exec, -1")
            if i == O0 - 1:
                partials_out(L_F + 8)
                stamp("w", "Vdone")

    if fs == 1:
        e(f"v_add_u32 v{vWQ}, s4, v{vWQ}")
        e(f"s_mov_b32 s{rX + 2}, 1280"); e(f"s_mov_b32 s{rX + 3}, 0x20000")
        e(f"s_mov_b32 s{rWQ + 2}, 7864320"); e(f"s_mov_b32 s{rWQ + 3}, 0x20000")
        setoff(0)
    if stamps == 2:
        stamp("w", "pre")
    e("s_waitcnt lgkmcnt(0)")
    if stamps == 2:
        stamp("w", "karg")
    ni = 0
    if not fs:
        srd(rX, sX, None, 1280)
        srd(rWQ, sWW, 4, 7864320)
    else:
        while ni < xq:
            issue(ni); ni += 1
    if fs == 2:
        e(f"s_bfe_u32 s{sS}, s2, 0x20003"); e(f"s_mul_i32 s3, s{sS}, 320")
        e(f"v_lshl_add_u32 v{vT3}, v{vT0}, 1, s3")
    for g in range(5):
        if fs == 2:
            vm.issue(("x", g), f"global_load_ushort v{vX + g}, v{vT3}, s[{rK}:{rK + 1}] offset:{64 * g}")
        else:
            vm.issue(("x", g), f"buffer_load_ushort v{vX + g}, v{vT3}, s[{rX}:{rX + 3}], s3 offen offset:{16 * g}")
    while ni < F0:
        issue(ni); ni += 1
    if fs == 2:
        assert F0 < K0
        pro_ptrs()
        pro_rest()
        e(f"v_lshrrev_b32 v{vT0}, 3, v{vL}"); e(f"v_lshlrev_b32 v{vT2}, 4, v{vT1}")
        e(f"v_mul_u32_u24 v{vKV}, 384, v{vT0}"); e(f"v_add_u32 v{vKV}, v{vKV}, v{vT2}")
        e(f"v_add_u32 v{vQR}, {L_Q}, v{vT2}")
        e(f"s_mul_i32 s5, s{sH}, 1572864"); e(f"s_mul_i32 s7, s{sS}, 393216"); e("s_add_u32 s5, s5, s7")
        e(f"s_mul_i32 s7, s{sW}, 3072"); e("s_add_u32 s5, s5, s7")
    if rot:
        ra, rb, rc = rot // 10000 % 100, rot // 100 % 100, rot % 100
        e(f"s_and_b32 s7, s{sHH}, 7"); e(f"s_mul_i32 s{sROT}, s7, {ra}")
        e(f"s_mul_i32 s7, s{sS}, {rb}"); e(f"s_add_u32 s{sROT}, s{sROT}, s7")
        e(f"s_lshr_b32 s7, s{sHH}, 3"); e(f"s_mul_i32 s7, s7, {rc}"); e(f"s_add_u32 s{sROT}, s{sROT}, s7")
        e(f"s_and_b32 s{sROT}, s{sROT}, 31"); e(f"s_mul_i32 s{sROT}, s{sROT}, 12288")
    if fs == 2:
        srd(rK, rK + 2, 5, 50331648)
        e(f"s_add_u32 s{rV}, s{rV}, s5"); e(f"s_addc_u32 s{rV + 1}, s{rV + 1}, 0")
        e("s_waitcnt lgkmcnt(0)")
    else:
        srd(rK, sKV, 5, 50331648)
        srd(rV, sKV + 2, 5, 50331648)
    common_consts()
    e(f"v_lshrrev_b32 v{vT0}, 5, v{vL}"); e(f"v_mul_u32_u24 v{vPW}, 768, v{vT0}")
    e(f"v_and_b32 v{vT0}, 7, v{vL}"); e(f"v_lshl_add_u32 v{vPW}, v{vT0}, 5, v{vPW}")
    e(f"v_bfe_u32 v{vT0}, v{vL}, 4, 1"); e(f"v_lshl_add_u32 v{vPW}, v{vT0}, 4, v{vPW}")
    e(f"s_mul_i32 s7, s{sW}, 1536"); e(f"v_add_u32 v{vPW}, s7, v{vPW}")
    e(f"s_mov_b32 s{sC}, {f2u(192 ** -0.5 * math.log2(math.e)):#x}")
    for g in range(32):
        e(f"v_mov_b32 v{vSC + g}, 0")
    if not b0:
        e("s_barrier")
    if stamps == 2:
        stamp("w", "B0")
    vm.wait(("x", 4))
    if stamps == 2:
        stamp("w", "xdone")
    nc = 0

    def Flo(i):
        return F2 if (F2 and i >= V0 + 3 * G2) else F

    def Fmid(i):
        if fb and i >= K0 + 3:
            return FH2 if (FH2 and i >= V0 + 3 * G2) else FH
        return Flo(i)

    def Fof(i):
        if FX and i > K0 + 3 * max(GX, 1):
            return FX2 if (FX2 and i >= V0 + 3 * G2) else FX
        return Fmid(i)

    ncond = [0]

    def pace():
        j = ni - Fof(ni)
        if j >= 0:
            vm.wait(j)
        jm = ni - Fmid(ni)
        j = ni - Flo(ni)
        if fb and ni < V0 + 3 * G3 and j >= 0 and j in vm.q:
            ncond[0] += 1
            if jm in vm.q and jm < j:
                e(f"s_cbranch_scc1 L_c{ncond[0]}")
                e(f"s_waitcnt vmcnt({len(vm.q) - 1 - vm.q.index(jm)}) ; cond")
                e(f"s_cbranch_vccnz L_c{ncond[0]} ; cond")
            else:
                e(f"s_cbranch_vccnz L_c{ncond[0]}")
            e(f"s_waitcnt vmcnt({len(vm.q) - 1 - vm.q.index(j)}) ; cond")
            e(f"L_c{ncond[0]}:")

    if fb:
        e("s_mov_b64 vcc, 0")

    while nc < K0:
        if ni - nc <= F:
            pace(); issue(ni); ni += 1
        consume(nc); nc += 1
    def qreads():
        e(f"ds_read_b32 v{vT1}, v{vZ} offset:{L_T + 4}")
        for t in range(3):
            e(f"ds_read_b128 {vr(vQ + 4 * t)}, v{vQR} offset:{t * 128}")
        e(f"ds_read_b32 v{vT}, v{vZ} offset:{L_T}")

    while ni < K0 + R:
        if qf and ni == K0 + R - 1:
            qreads()
        pace(); issue(ni); ni += 1
    stamp("w", "ringfull")
    if qf:
        e(f"s_mov_b32 s{sCNT}, 4000000")
        e("L_q:")
        e("s_waitcnt lgkmcnt(0)")
        e(f"v_readfirstlane_b32 s3, v{vT1}")
        e(f"s_sub_u32 s{sCNT}, s{sCNT}, 1")
        e("s_cbranch_scc1 L_qx")
        e("s_cmp_lg_u32 s3, 0")
        e("s_cbranch_scc1 L_qx")
        qreads()
        e("s_branch L_q")
        e("L_qx:")
        stamp("w", "qready")
    else:
        e("s_barrier")
        stamp("w", "qready")
        qreads()
        e("s_waitcnt lgkmcnt(0)")
    NH = min(N, O0 + H)
    early = None
    while nc < O0:
        lag = ni - nc
        if EH != 99 and ni == NH and early is None:
            early = (list(vm.q), ni, nc)
            e(f"s_cmp_gt_i32 s8, {4 * 62 + bias + EH}"); e("s_cbranch_scc1 L_early")
        if HW and ni >= O0:
            consume(nc); nc += 1
            if ni < NH and nc > ni - HW and nc < O0:
                issue(ni); ni += 1
        elif ni < NH:
            if lag >= R:
                consume(nc); nc += 1
            pace(); issue(ni); ni += 1
            k = 0
            while nc < O0 and nc <= ni - 1 - Fof(ni - 1) and k < 2:
                consume(nc); nc += 1; k += 1
        else:
            consume(nc); nc += 1
    while ni < NH:
        if HW:
            vm.wait(ni - HW)
        else:
            pace()
        issue(ni); ni += 1
    if cs:
        pair_addr()
    if ni < N:
        e(f"s_mov_b32 s{sCNT}, 4000000")
        e("L_h:")
        e(f"ds_read_b32 v{vT0}, v{vZ} offset:{L_H}")
        e(f"s_sub_u32 s{sCNT}, s{sCNT}, 1")
        e("s_cbranch_scc1 L_hx")
        e("s_waitcnt lgkmcnt(0)")
        e(f"v_readfirstlane_b32 s3, v{vT0}")
        e("s_cmp_eq_u32 s3, 0")
        e("s_cbranch_scc1 L_h")
        e("L_hx:")
        if stamps == 3:
            stamp("w", "hgo")
    if FL:
        e("s_cmp_eq_u32 s3, 2")
    def tick():
        e("s_mov_b64 exec, 1")
        e(f"ds_add_u32 v{vZ}, v{vONE} offset:{L_K}")
        e("s_mov_b64 exec, -1")

    nticks = 0
    while ni < N:
        if ni - FW >= 0:
            tk_ = pq and ni - FW in vm.q
            vm.wait(ni - FW)
            if stamps == 3 and ni - FW - O0 in (1, 3):
                stamp("w", f"wa{ni - FW - O0}")
        if FL and ni - FL in vm.q:
            e(f"s_cbranch_scc1 L_w{ni}")
            e(f"s_waitcnt vmcnt({len(vm.q) - 1 - vm.q.index(ni - FL)}) ; cond")
            e(f"L_w{ni}:")
        issue(ni); ni += 1
        if tk_:
            tick(); nticks += 4
    stamp("w", "woissued")
    e("L_tail:")
    if pm:
        assert at and cs and x6
        for r in range(4):
            e(f"v_med3_i32 v{vM + r}, v{vM + r}, -1, 1")
        for r in range(4):
            e(f"v_cvt_f32_i32 v{vM + r}, v{vM + r}")
    if fx:
        e("s_mov_b32 s32, 0"); e("s_mov_b32 s33, 0x02000800"); e("s_mov_b32 s34, 0"); e("s_mov_b32 s35, 0xc3320000")
        e("s_mov_b32 vcc_lo, 0x00ff00ff"); e("s_mov_b32 vcc_hi, 0xff00ff00")
        e(f"s_mov_b32 s36, {f2u(2.0 ** 43):#x}")
        e(f"ds_read_b128 {vr(vFX)}, v{vZ} offset:{L_S}")
        e("s_waitcnt lgkmcnt(0)")
        e(f"v_mul_f32 v{vT0 + 3}, s36, v{vFX + 2}")
    e("s_barrier")
    stamp("w", "oready")
    for k in range(3):
        e(f"ds_read_b128 {vr(vQ + 4 * k)}, v{vOR} offset:{16 * k}")
    if at:
        assert cs and H < 12
        if cr:
            assert not fx and not pm
            e("s_mov_b32 s32, 0"); e("s_mov_b32 s33, 0x43300010"); e("s_mov_b32 s34, 0"); e("s_mov_b32 s35, 0xc3300400")
        elif not fx:
            e("s_mov_b32 s32, 0"); e("s_mov_b32 s33, 0x43300800"); e("s_mov_b32 s34, 0"); e("s_mov_b32 s35, 0xc3320000")
        if not fx:
            e(f"ds_read_b128 {vr(vFX)}, v{vZ} offset:{L_S}")
            e("s_mov_b32 vcc_lo, 0x00ff00ff"); e("s_mov_b32 vcc_hi, 0xff00ff00")
    if not fx:
        e(f"s_waitcnt lgkmcnt({1 if at else 0})")
    tailq = len(vm.q)
    if cs:
        AB = (vA, vT0 - 1)
        for g in range(13):
            if fx and g in (0, 4, 8):
                e(f"s_waitcnt lgkmcnt({2 - g // 4})")
            if g < 12 and pm:
                sel = "op_sel:[1,0] op_sel_hi:[1,1]" if g & 1 else "op_sel_hi:[0,1]"
                for r in (0, 2):
                    e(f"v_pk_mul_f32 {vr(AB[g & 1] + r, 2)}, {vr(vQ + (g & ~1), 2)}, {vr(vM + r, 2)} {sel}")
            elif g < 12:
                for r in range(4):
                    e(f"v_and_b32 v{AB[g & 1] + r}, v{vQ + g}, v{vM + r}")
            if g:
                vm.wait(O0 + g - 1)
                if stamps == 3 and g - 1 in (8, 11):
                    stamp("w", f"wa{g - 1}")
                e(f"v_mfma_f32_16x16x32_bf16 {vr(vACC)}, {vr(AB[(g - 1) & 1])}, {vr(slot(O0 + g - 1))}, {vr(vACC) if g > 1 else 0}")
    if cr:
        a, X, O = vACC, vA, vA + 2
        LB, LS_, C0, C1, C2, FL_, MK = vQ, vQ + 1, vQ + 2, vQ + 3, vQ + 4, vQ + 5, vQ + 6
        e("s_waitcnt lgkmcnt(0)")
        e(f"v_mul_f32 v{LB}, {f2u(2.0 ** 36):#x}, v{vFX + 2}")
        e(f"v_mul_f32 v{LS_}, {f2u(2.0 ** SM):#x}, v{vFX + 2}")
        e(f"v_mov_b32 v{C0}, 0xbed00000"); e(f"v_mov_b32 v{C1}, 0xbed00800"); e(f"v_mov_b32 v{MK}, 0x2040010")
        e(f"v_cndmask_b32_dpp v{a}, v{a + 1}, v{a}, vcc row_ror:8 {DPPM}")
        e(f"v_cndmask_b32_dpp v{a + 2}, v{a + 3}, v{a + 2}, vcc row_ror:8 {DPPM}")
        e(f"v_permlane32_swap_b32 v{a}, v{a + 2}")
        e(f"v_add_f32_dpp v{a}, v{a + 2}, v{a} row_ror:8 {DPPM}")
        e(f"v_cvt_f64_f32 {vr(X, 2)}, v{a}")
        e(f"v_cmp_lt_f32 s[36:37], |v{a}|, v{LS_}")
        e(f"v_cmp_lt_f32 vcc, |v{a}|, v{LB}")
        e(f"v_fma_f64 {vr(X, 2)}, {vr(X, 2)}, {vr(vFX, 2)}, s[32:33]")
        e(f"v_cndmask_b32 v{C0}, v{C0}, v{C1}, s[36:37]")
        e(f"v_cndmask_b32 v{X}, 0, v{X}, vcc")
        e(f"v_add_u32 v{X + 1}, v{X + 1}, v{C0}")
        e(f"v_cndmask_b32 v{X + 1}, v{MK}, v{X + 1}, vcc")
        e(f"global_atomic_add_x2 {vr(O, 2)}, v{vPUB}, {vr(X, 2)}, s[{sWS}:{sWS + 1}] sc0" + (" sc1" if asc else ""))
        stamp("w", "pub")
        e(f"s_lshr_b32 s3, s{sLN}, 7"); e(f"s_mul_i32 s4, s{sB}, 10"); e("s_add_u32 s3, s3, s4")
        e("s_lshl_b32 s3, s3, 15"); e(f"s_add_u32 s3, s3, {A3}")
        e(f"v_lshl_add_u32 v{vPUB + 1}, v{vL}, 3, s3")
        e(f"v_mov_b32 v{a + 1}, v{vFX + 3}"); e(f"v_mov_b32 v{vT + 1}, v{vFX + 3}")
        e(f"v_mov_b32 v{C2}, 0x43300000")
        e("s_movk_i32 s38, 0x7ff")
        e("s_orn2_b64 s[36:37], s[36:37], vcc")
        e("s_cbranch_scc1 L_raw")
        e("s_waitcnt vmcnt(0)")
        e("L_got:")
        if stamps:
            e("s_memrealtime s[40:41]")
        e(f"v_lshl_add_u64 {vr(O, 2)}, {vr(O, 2)}, 0, {vr(X, 2)}")
        e(f"v_cmp_gt_i32 vcc, 0, v{O + 1}")
        e(f"v_bfe_u32 v{FL_}, v{O + 1}, 11, 14")
        e(f"v_and_or_b32 v{O + 1}, v{O + 1}, s38, v{C2}")
        e("s_and_b64 exec, exec, vcc")
        e("s_cbranch_scc0 L_atx")
        e(f"v_add_f64 {vr(O, 2)}, {vr(O, 2)}, s[34:35]")
        e(f"v_cvt_f32_f64 v{vT0}, {vr(O, 2)}")
        e(f"v_mul_f32 v{vT0}, v{vFX + 2}, v{vT0}")
        e(f"v_cvt_pk_bf16_f32 v{vT1}, v{vT0}, v{vT0}")
        e(f"buffer_store_short v{vT1}, v{vXA}, s[{rOUT}:{rOUT + 3}], 0 offen {ofl}".rstrip())
        e(f"s_cmp_eq_u32 s{sLN}, 0"); e("s_cselect_b32 s3, exec_lo, 0"); e("s_and_b32 s3, s3, 1")
        e("s_cbranch_scc0 L_att")
        e("s_mov_b64 s[36:37], exec"); e("s_mov_b64 exec, 1"); e(f"s_lshl_b32 s3, s{sB}, 7")
        e(f"buffer_store_dwordx2 {vr(vT, 2)}, v{vZ}, s[{rWS}:{rWS + 3}], s3 offen sc1")
        e("s_mov_b64 exec, s[36:37]")
        e("L_att:")
        e(f"v_cmp_le_u32 vcc, 64, v{FL_}")
        e("s_and_b64 exec, exec, vcc")
        e("s_cbranch_scc0 L_atx")
        NEED, CN, AC = C0, C1, C2
        e(f"v_and_b32 v{vT1}, 127, v{FL_}"); e(f"v_lshrrev_b32 v{NEED}, 7, v{FL_}")
        e(f"v_add_u32 v{vT1}, v{vT1}, v{NEED}")
        e(f"v_cmp_eq_u32 vcc, 64, v{vT1}")
        e(f"v_cndmask_b32 v{NEED}, v{NEED}, v{vT1}, vcc")
        e(f"v_mov_b32 v{vT1}, -1.0"); e(f"v_cndmask_b32 v{LB}, v{LB}, v{vT1}, vcc")
        e(f"v_mov_b32 v{vT1}, 0"); e(f"v_cndmask_b32 v{vT0}, v{vT0}, v{vT1}, vcc")
        e(f"s_mov_b32 s{sCNT}, 50000")
        e("L_atr:")
        e(f"v_mov_b32 v{CN}, 0"); e(f"v_mov_b32 v{AC}, v{vT0}")
        e(f"s_mov_b32 s{sOFF}, 0")
        e("L_atf:")
        us = [vRING + 2 * k for k in range(8)]
        for k, u in enumerate(us):
            e(f"buffer_load_dwordx2 {vr(u, 2)}, v{vPUB + 1}, s[{rWS}:{rWS + 3}], s{sOFF} offen offset:{512 * k} sc1")
        e("s_waitcnt vmcnt(0)")
        for u in us:
            e(f"v_cmp_eq_u32 vcc, v{u + 1}, v{vFX + 3}")
            e(f"v_cmp_nlt_f32 s[36:37], |v{u}|, v{LB}")
            e("s_and_b64 vcc, vcc, s[36:37]")
            e(f"v_cndmask_b32 v{u}, 0, v{u}, vcc")
            e(f"v_cndmask_b32 v{u + 1}, 0, 1, vcc")
            e(f"v_add_f32 v{AC}, v{AC}, v{u}")
            e(f"v_add_u32 v{CN}, v{CN}, v{u + 1}")
        e(f"s_add_u32 s{sOFF}, s{sOFF}, 4096"); e(f"s_cmp_lt_u32 s{sOFF}, 32768"); e("s_cbranch_scc1 L_atf")
        e(f"v_cvt_pk_bf16_f32 v{vT1}, v{AC}, v{AC}")
        e(f"buffer_store_short v{vT1}, v{vXA}, s[{rOUT}:{rOUT + 3}], 0 offen")
        e(f"v_cmp_ne_u32 vcc, v{CN}, v{NEED}")
        e("s_and_b64 exec, exec, vcc")
        e("s_cbranch_scc0 L_atx")
        e(f"s_sub_u32 s{sCNT}, s{sCNT}, 1")
        e("s_cbranch_scc0 L_atr")
        e("s_branch L_atx")
        e("L_raw:")
        e(f"s_lshl_b32 s3, s{sH}, 1"); e(f"s_add_u32 s3, s3, s{sRH}"); e("s_lshl_b32 s3, s3, 9")
        e("s_mov_b64 exec, s[36:37]")
        e(f"buffer_store_dwordx2 {vr(a, 2)}, v{vPUB + 1}, s[{rWS}:{rWS + 3}], s3 offen sc1")
        e("s_mov_b64 exec, -1")
        e("s_waitcnt vmcnt(1)")
        e("s_branch L_got")
    if at and not cr:
        a, X, O = vACC, vA, vA + 2
        if pm:
            for r in (0, 2):
                e(f"v_pk_add_f32 {vr(a + r, 2)}, {vr(a + r, 2)}, {vr(a + r, 2)} op_sel:[0,1] op_sel_hi:[0,1] neg_hi:[0,1]")
        e(f"v_cndmask_b32_dpp v{a}, v{a + 1}, v{a}, vcc row_ror:8 {DPPM}")
        e(f"v_cndmask_b32_dpp v{a + 2}, v{a + 3}, v{a + 2}, vcc row_ror:8 {DPPM}")
        e(f"v_permlane32_swap_b32 v{a}, v{a + 2}")
        e(f"v_add_f32_dpp v{a}, v{a + 2}, v{a} row_ror:8 {DPPM}")
        if not fx:
            e("s_waitcnt lgkmcnt(0)")
        e(f"v_cvt_f64_f32 {vr(X, 2)}, v{a}")
        if fx:
            e(f"v_cmp_lt_f32 vcc, |v{a}|, v{vT0 + 3}")
        e(f"v_fma_f64 {vr(X, 2)}, {vr(X, 2)}, {vr(vFX, 2)}, s[32:33]")
        if not fx:
            e(f"v_add_u32 v{vT0}, 0xbcd00000, v{X + 1}")
            e(f"v_cmp_gt_u32 vcc, 0x1000, v{vT0}")
            e(f"v_add_u32 v{X + 1}, 0xbed00000, v{X + 1}")
        e(f"v_cndmask_b32 v{X + 1}, v{vFX + 3}, v{X + 1}, vcc")
        e(f"global_atomic_add_x2 {vr(O, 2)}, v{vPUB}, {vr(X, 2)}, s[{sWS}:{sWS + 1}] sc0" + (" sc1" if asc else ""))
        stamp("w", "pub")
        e(f"v_mov_b32_dpp v{a + 1}, v{a} row_ror:8 {DPPM}")
        e(f"v_mov_b32 v{vT0}, v{a}"); e(f"v_mov_b32 v{vT1}, v{a + 1}")
        e(f"v_and_b32 v{vT2}, 7, v{vL}"); e(f"v_lshlrev_b32 v{vPUB + 1}, 5, v{vT2}")
        e(f"v_permlane32_swap_b32 v{vT0}, v{a + 2}")
        e(f"v_permlane32_swap_b32 v{vT1}, v{a + 3}")
        e(f"v_bfe_u32 v{vT2}, v{vL}, 4, 1"); e(f"v_lshl_add_u32 v{vPUB + 1}, v{vT2}, 4, v{vPUB + 1}")
        e(f"s_lshr_b32 s3, s{sLN}, 7"); e(f"s_mul_i32 s4, s{sB}, 10"); e("s_add_u32 s3, s3, s4")
        e("s_lshl_b32 s3, s3, 14"); e(f"s_add_u32 s3, s3, {A3}")
        e(f"v_add_u32 v{vPUB + 1}, s3, v{vPUB + 1}")
        e(f"s_lshl_b32 s3, s{sH}, 1"); e(f"s_add_u32 s3, s3, s{sRH}"); e("s_lshl_b32 s3, s3, 8")
        tag4(vQ, a)
        if not nraw:
            e("s_mov_b64 exec, 0x00ff00ff")
            e(f"buffer_store_dwordx4 {vr(vQ)}, v{vPUB + 1}, s[{rWS}:{rWS + 3}], s3 offen sc1")
            e("s_mov_b64 exec, -1")
        if fx:
            Y, IV, CC = vQ + 4, vQ + 6, vQ + 8
            e(f"v_mov_b32 v{Y}, v{X}"); e(f"v_add_u32 v{Y + 1}, 0xc3300000, v{X + 1}")
            e(f"v_cvt_f64_f32 {vr(IV, 2)}, v{vFX + 2}")
            e(f"v_mul_f64 {vr(CC, 2)}, {vr(IV, 2)}, s[34:35]")
            e("s_mov_b32 s36, 0x7e000000")
        if al:
            e(f".p2align {al}")
        e(f"s_waitcnt vmcnt({0 if nraw else 1})")
        if stamps:
            e("s_memrealtime s[40:41]")
        if fx:
            e(f"v_cmp_le_u32 vcc, s36, v{O + 1}")
            e(f"v_lshl_add_u64 {vr(O, 2)}, {vr(O, 2)}, 0, {vr(Y, 2)}")
            e("s_and_b64 exec, exec, vcc")
            e(f"v_fma_f64 {vr(Y, 2)}, {vr(O, 2)}, {vr(IV, 2)}, {vr(CC, 2)}")
            if not nb:
                e("s_cbranch_scc0 L_atx")
            e(f"v_cvt_f32_f64 v{vT1}, {vr(Y, 2)}")
            e(f"v_cvt_pk_bf16_f32 v{vT1}, v{vT1}, v{vT1}")
            e(f"buffer_store_short v{vT1}, v{vXA}, s[{rOUT}:{rOUT + 3}], 0 offen {ofl}".rstrip())
            if nb:
                e("s_cbranch_scc0 L_atx")
            e(f"v_add_f64 {vr(O, 2)}, {vr(O, 2)}, s[34:35]")
            e(f"v_cvt_f32_f64 v{vT0}, {vr(O, 2)}")
        else:
            e(f"v_lshl_add_u64 {vr(O, 2)}, {vr(O, 2)}, 0, {vr(X, 2)}")
            e(f"v_cmp_gt_i32 vcc, 0, v{O + 1}")
            e(f"v_and_b32 v{O + 1}, 0x1ffffff, v{O + 1}")
            e(f"v_add_u32 v{O + 1}, 0x43300000, v{O + 1}")
            e("s_and_b64 exec, exec, vcc")
            if not nb:
                e("s_cbranch_scc0 L_atx")
            e(f"v_add_f64 {vr(O, 2)}, {vr(O, 2)}, s[34:35]")
            e(f"v_cvt_f32_f64 v{vT0}, {vr(O, 2)}")
            e(f"v_mul_f32 v{vT1}, v{vFX + 2}, v{vT0}")
            e(f"v_cvt_pk_bf16_f32 v{vT1}, v{vT1}, v{vT1}")
            e(f"buffer_store_short v{vT1}, v{vXA}, s[{rOUT}:{rOUT + 3}], 0 offen {ofl}".rstrip())
            if nb:
                e("s_cbranch_scc0 L_atx")
        e(f"s_cmp_eq_u32 s{sLN}, 0"); e("s_cselect_b32 s3, exec_lo, 0"); e("s_and_b32 s3, s3, 1")
        e("s_cbranch_scc0 L_att")
        e("s_mov_b64 s[36:37], exec"); e("s_mov_b64 exec, 1"); e(f"s_lshl_b32 s3, s{sB}, 7")
        e(f"buffer_store_dword v{vT}, v{vZ}, s[{rWS}:{rWS + 3}], s3 offen sc1")
        e("s_mov_b64 exec, s[36:37]")
        e("L_att:")
        e(f"s_mov_b32 s3, {f2u(2.0 ** SM):#x}"); e(f"s_mov_b32 s4, {f2u(2.0 ** 49):#x}")
        e(f"v_cmp_le_f32 s[36:37], s3, |v{vT0}|")
        e(f"v_cmp_gt_f32 vcc, s4, v{vT0}")
        e("s_and_b64 vcc, vcc, s[36:37]")
        e("s_andn2_b64 exec, exec, vcc")
        e("s_cbranch_scc0 L_atx")
        e(f"s_mov_b32 s{sSA}, 0x0c0c0400"); e(f"s_mov_b32 s{sSB}, 0x04000c0c"); e(f"s_mov_b32 s{sMASK}, 0xffffff00")
        e("s_mov_b32 s36, 0xff00ff00"); e("s_mov_b32 s37, 0xff00ff00")
        e("s_mov_b32 s4, 0"); e("s_mov_b32 s5, -1")
        e(f"s_mov_b32 s{sOFF}, 0")
        e(f"v_mov_b32 v{a}, 0")
        e("L_atf:")
        us = [vRING + 4 * k for k in range(8)]
        poll("L_p4", [f"buffer_load_dwordx4 {vr(u)}, v{vPUB + 1}, s[{rWS}:{rWS + 3}], s{sOFF} offen offset:{256 * k} sc1"
                      for k, u in enumerate(us)], us, vT0)
        for u in us:
            e(f"v_cndmask_b32 v{u}, v{u}, v{u + 1}, s[36:37]")
            e(f"v_cndmask_b32 v{u + 2}, v{u + 2}, v{u + 3}, s[36:37]")
            e(f"v_cndmask_b32 v{u}, v{u}, v{u + 2}, s[4:5]")
            e(f"v_add_f32 v{a}, v{a}, v{u}")
        e(f"s_add_u32 s{sOFF}, s{sOFF}, 2048"); e(f"s_cmp_lt_u32 s{sOFF}, 16384"); e("s_cbranch_scc1 L_atf")
        e(f"v_cvt_pk_bf16_f32 v{a}, v{a}, v{a}")
        e(f"buffer_store_short v{a}, v{vXA}, s[{rOUT}:{rOUT + 3}], 0 offen")
    if at:
        e("L_atx:")
        e("s_mov_b64 exec, -1")
        if stamps:
            e("s_waitcnt lgkmcnt(0)")
            e("s_lshl_b32 s3, s2, 8"); e("s_add_u32 s3, s3, 0x8000000"); e(f"s_lshl_b32 s4, s{sWM if x6 else sW}, 3"); e("s_add_u32 s3, s3, s4")
            e(f"s_add_u32 s4, s{sWS}, s3"); e(f"s_addc_u32 s5, s{sWS + 1}, 0")
            e(f"v_mov_b32 v{vA}, s40"); e(f"v_mov_b32 v{vA + 1}, s41")
            e(f"global_store_dwordx2 v{vZ}, v[{vA}:{vA + 1}], s[4:5] offset:{8 * 25}")
            for k in range(5):
                names.append((25 + k, f"e{k}"))
            e(f"s_cmp_eq_u32 s{sW}, 4")
            e("s_cbranch_scc1 L_reduce")
    elif cs:
        for r in range(4):
            e(f"v_permlane32_swap_b32 v{vACC + r}, v{vQ + r}")
        for r in range(4):
            e(f"v_add_f32_dpp v{vACC + r}, v{vQ + r}, v{vACC + r} row_ror:8 {DPPM}")
        e(f"s_cmp_eq_u32 s{sW}, 0"); e("s_cbranch_scc1 L_pub")
        e(f"s_bitcmp1_b32 s{sW}, 0"); e("s_cbranch_scc1 L_fin")
        e("s_mov_b64 exec, 0x00ff00ff")
        e(f"ds_write_b128 v{vXA}, {vr(vACC)}")
        e("s_mov_b64 exec, 1")
        e(f"ds_write_b32 v{vXA}, v{vONE} offset:512")
        e("s_mov_b64 exec, -1")
        e(f"s_cmp_eq_u32 s{sW}, 4")
        e("s_cbranch_scc1 L_reduce")
        e("s_endpgm")
        e("L_fin:")
        e(f"s_mov_b32 s{sCNT}, 4000000")
        e("L_fs:")
        e(f"ds_read_b32 v{vT0}, v{vXA} offset:512")
        e(f"ds_read_b128 {vr(vQ)}, v{vXA}")
        e(f"s_sub_u32 s{sCNT}, s{sCNT}, 1")
        e("s_cbranch_scc1 L_fx")
        e("s_waitcnt lgkmcnt(1)")
        e(f"v_readfirstlane_b32 s3, v{vT0}")
        e("s_cmp_eq_u32 s3, 0")
        e("s_cbranch_scc1 L_fs")
        e("L_fx:")
        e("s_waitcnt lgkmcnt(0)")
        for r in range(4):
            e(f"v_add_f32 v{vACC + r}, v{vACC + r}, v{vQ + r}")
        e("L_pub:")
        e("s_nop 1")
        tag4(vA, vACC)
        e("s_mov_b64 exec, 0x00ff00ff")
    else:
        for g in range(12):
            afrag(vQ + g)
            vm.wait(O0 + g)
            mfma(vACC, slot(O0 + g), g == 0)
        tag4(vA, vACC)
        e("s_mov_b32 exec_hi, 0")
    if fq > 1:
        e(f"v_and_b32 v{vT0}, 15, v{vL}"); e(f"s_lshl_b32 s3, s{sW}, 4"); e(f"v_add_u32 v{vT0}, s3, v{vT0}")
        e(f"s_and_b32 s3, s{sS}, {fq - 1}"); e(f"s_mul_i32 s3, s3, {80 // fq}")
        e(f"v_subrev_u32 v{vT0}, s3, v{vT0}")
        e(f"v_mov_b32 v{vT1}, {80 // fq}")
        e(f"v_cmp_lt_u32 vcc, v{vT0}, v{vT1}")
        e("s_and_b64 exec, exec, vcc")
    if not at:
        e(f"buffer_store_dwordx4 {vr(vA)}, v{vPUB}, s[{rWS}:{rWS + 3}], 0 offen sc1")
        e("s_mov_b64 exec, -1")
        if not cs:
            e(f"s_cmp_eq_u32 s{sW}, 4")
            e("s_cbranch_scc1 L_reduce")
        stamp("w", "pub")

    def stamps_out(who):
        if not stamps:
            return
        base = 0 if who == "w" else 14
        e("s_waitcnt lgkmcnt(0)")
        e("s_lshl_b32 s3, s2, 8"); e("s_add_u32 s3, s3, 0x8000000")
        e(f"s_add_u32 s4, s{sWS}, s3"); e(f"s_addc_u32 s5, s{sWS + 1}, 0")
        for i in range(nst[who]):
            e(f"v_mov_b32 v{vA}, s{sST + 2 * i}"); e(f"v_mov_b32 v{vA + 1}, s{sST + 2 * i + 1}")
            e(f"global_store_dwordx2 v{vZ}, v[{vA}:{vA + 1}], s[4:5] offset:{8 * (base + i)}")
        if who == "s" and fb:
            e(f"v_mov_b32 v{vA}, s{sAUX}"); e(f"v_mov_b32 v{vA + 1}, s{sAUX + 1}")
            e(f"global_store_dwordx2 v{vZ}, v[{vA}:{vA + 1}], s[4:5] offset:{8 * 30}")
        if who == "w":
            e("s_getreg_b32 s6, hwreg(HW_REG_XCC_ID)"); e("s_getreg_b32 s7, hwreg(HW_REG_HW_ID)")
            e(f"v_mov_b32 v{vA}, s6"); e(f"v_mov_b32 v{vA + 1}, s7")
            e(f"global_store_dwordx2 v{vZ}, v[{vA}:{vA + 1}], s[4:5] offset:{8 * 31}")

    if stamps:
        e(f"s_cmp_lg_u32 s{sW}, {sw}"); e("s_cbranch_scc1 L_end")
        stamps_out("w")
    e("s_endpgm")
    if early:
        e("L_early:")
        vm.q, ni, nc = early
        cur[0] = None
        while nc < O0 or ni < N:
            if ni < N:
                vm.wait(ni - FE)
                issue(ni); ni += 1
            k = 0
            while nc < O0 and (ni == N or nc <= ni - 1 - FE) and k < 2:
                consume(nc); nc += 1; k += 1
        pair_addr()
        if stamps == 3:
            stamp("w", "hgo")
            for k in (1, 3):
                vm.wait(O0 + k)
                stamp("w", f"wa{k}")
        vm.wait(N - 1 - tailq)
        stamp("w", "woissued")
        e("s_branch L_tail")

    if x6:
        e("L_six:")
        e("s_waitcnt lgkmcnt(0)")
        e("s_barrier")
        common_consts()
        pair_addr()

        def spin6(label, off, cond):
            e(f"s_mov_b32 s{sCNT}, 4000000")
            e(f"{label}:")
            e(f"ds_read_b32 v{vT0}, v{vZ} offset:{off}")
            e(f"s_sub_u32 s{sCNT}, s{sCNT}, 1")
            e(f"s_cbranch_scc1 {label}x")
            e("s_waitcnt lgkmcnt(0)")
            e(f"v_readfirstlane_b32 s3, v{vT0}")
            e(cond)
            e(f"s_cbranch_scc1 {label}")
            e(f"{label}x:")

        vm.q = []
        cur[0] = None
        ni = O0
        if H6:
            spin6("L_6a", L_F + (12 if T6 > 4 else 8), f"s_cmp_lt_i32 s3, {T6}")
            while ni < O0 + H6:
                if ni - FW6 >= O0:
                    vm.wait(ni - FW6)
                issue(ni); ni += 1
        if ni < N:
            spin6("L_6b", L_H, "s_cmp_eq_u32 s3, 0")
        e(f"ds_read_b32 v{vT}, v{vZ} offset:{L_T}")
        if FL:
            e("s_cmp_eq_u32 s3, 2")
        while ni < N:
            tk_ = pq and ni - FW6 in vm.q
            if ni - FW6 >= O0:
                vm.wait(ni - FW6)
            if FL and ni - FL in vm.q:
                e(f"s_cbranch_scc1 L_v{ni}")
                e(f"s_waitcnt vmcnt({len(vm.q) - 1 - vm.q.index(ni - FL)}) ; cond")
                e(f"L_v{ni}:")
            issue(ni); ni += 1
            if tk_:
                tick(); nticks += 1
        vm.wait(N - 1 - tailq)
        e("s_branch L_tail")

    vD = vSC
    vE1, vE2, vP1, vP2, vP3 = 44, 45, 46, 47, 48
    vG = 8
    vS = 12
    vOP = vACC + 4
    vR1, vR2 = slot(N + 2), slot(N + 2) + 1
    vQY, vSY = slot(N), slot(N + 1)
    if fs == 2:
        e("L_other:")
        pro_ptrs()
        e(f"s_bfe_u32 s{sS}, s2, 0x20003")
        pro_rest()
        e(f"s_cmp_eq_u32 s{sW}, 5"); e("s_cbranch_scc1 L_six")
    e("L_service:")
    if probe:
        e("s_memrealtime s[68:69]")
    e("s_nop 4")
    if prio:
        e("s_setprio 3")
    e(f"v_mov_b32 v{vZ}, 0")
    for k in range(4):
        e(f"ds_write_b32 v{vZ}, v{vZ} offset:{L_F + 4 * k}")
    e(f"ds_write_b32 v{vZ}, v{vZ} offset:{L_T + 4}")
    for o in (L_X + 512, L_X + 768, L_H) + ((L_K,) if pq else ()):
        e(f"ds_write_b32 v{vZ}, v{vZ} offset:{o}")
    e("s_waitcnt lgkmcnt(0)")
    if fs == 2:
        e(f"s_mov_b64 s[{sKV + 2}:{sKV + 3}], s[{rV}:{rV + 1}]")
    if not b0:
        e("s_barrier")
    common_consts()
    e(f"s_lshl_b32 s9, s{sB}, 7")
    e(f"buffer_load_dword v{vT}, v{vZ}, s[{rWS}:{rWS + 3}], s9 offen sc1")
    if cr:
        e(f"buffer_load_dword v{vFX + 3}, v{vZ}, s[{rWS}:{rWS + 3}], s9 offen offset:4 sc1")
    if probe:
        e("s_getreg_b32 s70, hwreg(HW_REG_XCC_ID, 0, 3)"); e("s_lshl_b32 s71, s68, 3"); e("s_or_b32 s71, s71, s70")
        e("s_lshl_b32 s70, s2, 2"); e("s_add_u32 s70, s70, 1024")
        e(f"v_mov_b32 v{vT0}, s71")
        e("s_mov_b64 exec, 1")
        e(f"buffer_store_dword v{vT0}, v{vZ}, s[{rWS}:{rWS + 3}], s70 offen sc1")
        e("s_mov_b64 exec, -1")
    if fb:
        e(f"v_lshrrev_b32 v{vT0}, 4, v{vL}"); e(f"v_cmp_eq_u32 vcc, 1, v{vT0}")
        e(f"v_mov_b32 v{vT0}, 128"); e(f"v_cndmask_b32 v{vT0}, 0, v{vT0}, vcc")
        e(f"buffer_load_dword v{vPR}, v{vT0}, s[{rWS}:{rWS + 3}], 0 offen sc1")
    if at:
        e(f"s_cmp_lg_u32 s{sJB}, 0"); e("s_cbranch_scc1 L_ai")
        for k in range(20):
            e(f"v_mov_b32 v{vD + k}, 0")
        for k in range(10):
            e(f"s_mov_b32 s3, {k * ast}")
            e(f"buffer_atomic_swap_x2 {vr(vD + 2 * k, 2)}, v{vPUB}, s[{rWS}:{rWS + 3}], s3 offen sc0" + (" sc1" if asc else ""))
        e("L_ai:")
    if not cs:
        srd(rOUT, sOUT, None, 2560)
    if warm:
        srd(rV, sKV + 2, 5, 50331648)
        e(f"buffer_load_dword v{vSC}, v{vZ}, s[{rOUT}:{rOUT + 3}], 0 offen")
        e(f"buffer_load_dword v{vSC + 1}, v{vZ}, s[{rV}:{rV + 3}], 0 offen nt")
        e(f"buffer_load_dword v{vSC + 2}, v{vZ}, s[{rWO}:{rWO + 3}], 0 offen nt")
    e(f"s_mov_b32 s{sSA}, 0x0c0c0400"); e(f"s_mov_b32 s{sSB}, 0x04000c0c"); e(f"s_mov_b32 s{sMASK}, 0xffffff00")
    e(f"s_lshl_b32 s7, s{sHH}, 2"); e(f"s_add_u32 s8, s7, s{sS}")
    e(f"v_lshlrev_b32 v{vE1}, 4, v{vL}")
    e(f"v_lshrrev_b32 v{vT0}, 4, v{vL}"); e(f"v_and_b32 v{vT1}, 15, v{vL}")
    e(f"v_mul_u32_u24 v{vP1}, 768, v{vT0}"); e(f"v_lshl_add_u32 v{vP1}, v{vT1}, 4, v{vP1}")
    e(f"s_mul_i32 s3, s7, 768"); e(f"s_add_u32 s3, s3, {A1}"); e(f"v_add_u32 v{vP1}, s3, v{vP1}")
    e(f"v_lshlrev_b32 v{vP3}, 10, v{vT0}")
    e(f"s_lshl_b32 s3, s7, 10"); e(f"s_add_u32 s3, s3, {A2}"); e(f"v_add_u32 v{vP3}, s3, v{vP3}")
    if cs:
        e(f"v_mov_b32 v{vT2}, v{vT1}")
        e(f"v_lshl_add_u32 v{vP2}, v{vT2}, 4, v{vP3}")
    else:
        e(f"v_min_u32 v{vT2}, 11, v{vT1}")
        e(f"s_mul_i32 s3, s{sS}, 192"); e(f"v_lshl_add_u32 v{vP2}, v{vT2}, 4, s3"); e(f"v_add_u32 v{vP2}, v{vP2}, v{vP3}")
    if st1:
        assert cs and x6 and not (dq or do)
        e(f"v_lshl_add_u32 v{vP3}, v{vT0}, 4, s3")
        e(f"s_lshl_b32 s48, s{sS}, 4"); e("s_add_u32 s48, s48, s3"); e(f"s_add_u32 s50, s48, {DY}")
    vPD = 180
    if dl:
        assert cs and pq
        e(f"v_min_u32 v{vPD + 2}, 47, v{vL}"); e(f"v_lshlrev_b32 v{vPD + 2}, 4, v{vPD + 2}")
        for j in range(3):
            e(f"s_xor_b32 s4, s8, {j + 1}"); e("s_lshl_b32 s4, s4, 10"); e(f"s_add_u32 s4, s4, {A2}")
            e(f"v_add_u32 v{vPD + j}, s4, v{vPD + 2}")
    e(f"v_and_b32 v{vT3}, 1, v{vT0}"); e(f"v_lshlrev_b32 v{vT3}, 1, v{vT3}")
    e(f"v_lshrrev_b32 v{vT0}, 1, v{vT0}"); e(f"v_or_b32 v{vT3}, v{vT3}, v{vT0}")
    e(f"v_lshl_add_u32 v{vMX}, v{vT1}, 2, v{vT3}")
    e(f"v_lshlrev_b32 v{vMX}, 1, v{vMX}"); e(f"v_add_u32 v{vMX}, {L_Q}, v{vMX}")
    e(f"v_lshl_add_u32 v{vLS}, v{vT2}, 2, v{vT3}")
    e(f"v_lshlrev_b32 v{vLS}, 2, v{vLS}"); e(f"v_add_u32 v{vLS}, {L_O}, v{vLS}")
    if at:
        pair_addr()
    elif cs:
        pair_addr()
        e(f"s_lshr_b32 s3, s{sJB}, 3")
        e(f"s_lshr_b32 s4, s{sJB}, 5"); e("s_mul_i32 s4, s4, 5"); e("s_bfe_u32 s5, s3, 0x10001"); e("s_mul_i32 s5, s5, 3")
        e("s_add_u32 s4, s4, s5"); e("s_and_b32 s5, s3, 1"); e("s_add_u32 s4, s4, s5"); e("s_lshl_b32 s4, s4, 6")
        e(f"s_and_b32 s5, s{sJB}, 7"); e("s_lshl_b32 s6, s5, 3"); e("s_add_u32 s4, s4, s6")
        e("s_lshl_b32 s3, s3, 13"); e("s_lshl_b32 s5, s5, 5"); e("s_add_u32 s3, s3, s5")
        e(f"s_bfe_u32 s5, s{sJB}, 0x10004"); e("s_mul_i32 s6, s5, 320"); e("s_add_u32 s6, s6, 128")
        e(f"s_and_b32 s7, s{sJB}, 15"); e(f"s_lshl_b32 s{sCNT}, s7, 2"); e(f"s_add_u32 s6, s6, s{sCNT}")
        e("s_lshl_b32 s5, s5, 14"); e("s_lshl_b32 s7, s7, 4"); e("s_add_u32 s5, s5, s7"); e("s_add_u32 s5, s5, 65536")
        e(f"s_cmp_lt_u32 s{sJB}, 64"); e("s_cselect_b32 s3, s3, s5"); e("s_cselect_b32 s4, s4, s6")
        e("s_cselect_b32 s5, 1, 0")
        e(f"s_mul_i32 s6, s{sB}, 98304"); e("s_add_u32 s3, s3, s6"); e(f"s_add_u32 s3, s3, {A3}")
        e(f"v_lshrrev_b32 v{vR1}, s5, v{vL}"); e(f"v_lshlrev_b32 v{vR1}, 8, v{vR1}")
        e(f"v_and_b32 v{vR2}, s5, v{vL}"); e(f"v_lshl_add_u32 v{vR1}, v{vR2}, 4, v{vR1}"); e(f"v_add_u32 v{vR1}, s3, v{vR1}")
        e(f"v_lshl_add_u32 v{vR2}, v{vR2}, 2, v{vT3}")
        e(f"s_mul_i32 s6, s{sB}, 640"); e("s_add_u32 s4, s4, s6")
        e(f"v_add_u32 v{vR2}, s4, v{vR2}"); e(f"v_lshlrev_b32 v{vR2}, 1, v{vR2}")
    e(f"s_mul_i32 s4, s8, 768"); e(f"s_add_u32 s4, s4, {A1}")
    e(f"s_lshl_b32 s5, s8, 10"); e(f"s_add_u32 s5, s5, {A2}")
    if mg:
        e("s_mov_b32 s4, s5")
    e(f"s_add_u32 s6, s4, {DY}"); e(f"s_add_u32 s7, s5, {DY}")
    if b0:
        e("s_barrier")
    e("s_waitcnt vmcnt(0)")
    e(f"v_and_b32 v{vT0}, 0x7f7f7f7f, v{vT}"); e(f"v_add_u32 v{vT0}, 0x01010101, v{vT0}")
    e(f"v_and_b32 v{vT}, 0x80808080, v{vT}"); e(f"v_xor_b32 v{vT}, v{vT}, v{vT0}")
    e(f"ds_write_b32 v{vZ}, v{vT} offset:{L_T}")
    if at:
        e(f"s_cmp_lg_u32 s{sJB}, 0"); e("s_cbranch_scc1 L_aj")
        e("s_mov_b64 exec, 1")
        e(f"buffer_store_dword v{vT}, v{vZ}, s[{rWS}:{rWS + 3}], s9 offen offset:256 sc1")
        e("s_mov_b64 exec, -1")
        e("L_aj:")
    if fb:
        e(f"v_and_b32 v{vT0}, 0x7f7f7f7f, v{vPR}"); e(f"v_add_u32 v{vT0}, 0x01010101, v{vT0}")
        e(f"v_and_b32 v{vPR}, 0x80808080, v{vPR}"); e(f"v_xor_b32 v{vPR}, v{vPR}, v{vT0}")
        e(f"v_and_b32 v{vPR}, s{sMASK}, v{vPR}")
        if xs:
            e(f"v_and_b32 v{vTX}, 0xfffff000, v{vPR}")
        if xd:
            e(f"v_and_b32 v{vTX}, 0xfffff000, v{vPR}")
            e("s_mov_b32 exec_lo, 0")
            e(f"v_mov_b32 v{vPR}, v{vTX}")
            e("s_mov_b32 exec_lo, -1")
    if pre:
        for r in range(4):
            e(f"v_not_b32 v{vA + r}, v{vT}")
        e(f"buffer_store_dwordx4 {vr(vA)}, v{vE1}, s[{rWS}:{rWS + 3}], s5 offen")
        e("s_mov_b32 exec_hi, 0xffff")
        e(f"buffer_store_dwordx4 {vr(vA)}, v{vE1}, s[{rWS}:{rWS + 3}], s4 offen")
        e("s_mov_b32 exec_hi, -1")
    if codepf:
        pass
    for _ in range(pad):
        e("s_nop 0")
    ldsspin("L_f1", L_F, vT0)
    stamp("s", "s.f1")
    for p in range(8):
        e(f"ds_read_b128 {vr(vD + 4 * p)}, v{vE1} offset:{p * 768}")
    for p in range(1, 8):
        e(f"s_waitcnt lgkmcnt({7 - p})")
        for r in range(4):
            e(f"v_add_f32 v{vD + r}, v{vD + r}, v{vD + 4 * p + r}")
    def ypub(n):
        if n == 1 or (lazy and not (mg and n == 3)):
            publish(vQY, vE1, 4, 0, 0, 1)
        if n == 2 or (lazy and n > 2):
            publish(vSY, vZ, 48 if st1 else 5, 768, 1, 1)
        if n == 3:
            publish(vOP, vE1, 5, 0, 0, 1)

    tag4(vQY, vD)
    publish(vQY, vE1, 4, 0, 0, 0 if xp else 1)
    stamp("s", "s.qpub")
    dirty(dq, 1)
    if qd:
        e(f"s_mov_b32 s{sCNT}, 4000000")
        e("L_qd:")
        e(f"ds_read_b32 v{vT0}, v{vZ} offset:{L_F + 12}")
        e(f"s_sub_u32 s{sCNT}, s{sCNT}, 1")
        e("s_cbranch_scc1 L_qdx")
        e("s_waitcnt lgkmcnt(0)")
        e(f"v_readfirstlane_b32 s3, v{vT0}")
        e(f"s_cmp_lt_u32 s3, {qd}")
        e("s_cbranch_scc1 L_qd")
        e("L_qdx:")
    l1 = [f"buffer_load_dwordx4 {vr(vD + 4 * t)}, v{vP2 if mg else vP1}, s[{rWS}:{rWS + 3}], s{sPO} offen offset:{256 * t} sc1" for t in range(3)]
    if op & 1:
        mpoll("L_p1", l1, [vD + 4 * t for t in range(3)], vT0)
    else:
        poll("L_p1", l1, [vD + 4 * t for t in range(3)], vT0, lambda: ypub(1))
    if xp and not lazy:
        ypub(1)
    stamp("s", "s.qpoll")
    for t in range(3):
        treduce(vD + 4 * t)
    for t in range(3):
        e(f"v_cvt_pk_bf16_f32 v{vD + 4 * t}, v{vD + 4 * t}, v{vD + 4 * t}")
    for t in range(3):
        e(f"ds_write_b16 v{vMX}, v{vD + 4 * t} offset:{128 * t}")
    if qf:
        e(f"ds_write_b32 v{vZ}, v{vONE} offset:{L_T + 4}")
    else:
        e("s_waitcnt lgkmcnt(0)")
        e("s_barrier")
    if at:
        e(f"global_load_dwordx4 {vr(vD + 16)}, v{vE1}, s[{sKV + 2}:{sKV + 3}]")
        e(f"global_load_dwordx4 {vr(vD + 20)}, v{vE1}, s[{sWW + 2}:{sWW + 3}]")
    for g in range(0 if x6 else 12):
        e(f"s_mov_b32 s{sOFF}, {(g // 4) * 5120}")
        e(f"buffer_load_dwordx4 {vr(slot(O0 + g))}, v{vWO}, s[{rWO}:{rWO + 3}], s{sOFF} offen offset:{(g % 4) * 1280} {fl}")
    if at:
        e(f"s_waitcnt vmcnt({0 if x6 else 12})")
        for k in range(8):
            e(f"v_and_b32 v{vD + 16 + k}, 0x7fff7fff, v{vD + 16 + k}")
        for m in (vD + 16, vD + 20):
            e(f"v_pk_max_u16 v{m}, v{m}, v{m + 1}"); e(f"v_pk_max_u16 v{m + 2}, v{m + 2}, v{m + 3}")
            e(f"v_pk_max_u16 v{m}, v{m}, v{m + 2}")
            e(f"v_lshrrev_b32 v{m + 1}, 16, v{m}"); e(f"v_and_b32 v{m}, 0xffff, v{m}"); e(f"v_max_u32 v{m}, v{m}, v{m + 1}")
            for d in ("quad_perm:[1,0,3,2]", "quad_perm:[2,3,0,1]", "row_half_mirror", "row_mirror"):
                e(f"v_max_u32_dpp v{m}, v{m}, v{m} {d} {DPPM}")
            allrows("v_max_u32", m, m + 1)
            e(f"v_lshrrev_b32 v{m}, 7, v{m}")
        e(f"v_add_u32 v{vT0}, v{vD + 16}, v{vD + 20}")
        e(f"v_sub_u32 v{vT0}, {SB + 254}, v{vT0}")
        e(f"v_min_i32 v{vT0}, 120, v{vT0}"); e(f"v_max_i32 v{vT0}, -100, v{vT0}")
        e(f"v_mov_b32 v{vFX}, 0")
        if fx:
            e(f"v_add_u32 v{vFX + 1}, -20, v{vT0}"); e(f"v_max_i32 v{vFX + 1}, 0, v{vFX + 1}")
        else:
            e(f"v_add_u32 v{vFX + 1}, 1023, v{vT0}")
        e(f"v_lshlrev_b32 v{vFX + 1}, 20, v{vFX + 1}")
        e(f"v_sub_u32 v{vFX + 2}, 127, v{vT0}"); e(f"v_lshlrev_b32 v{vFX + 2}, 23, v{vFX + 2}")
        if cr:
            e("s_mov_b32 s3, 0x9e3779b1")
            e(f"v_mul_lo_u32 v{vFX + 3}, v{vFX + 3}, s3"); e(f"v_add_u32 v{vFX + 3}, 1, v{vFX + 3}")
        else:
            e(f"v_mov_b32 v{vFX + 3}, 0x2040000")
        e(f"ds_write_b128 v{vZ}, {vr(vFX)} offset:{L_S}")
        e(f"s_mov_b32 s{sCNT}, 400000")
        e("L_ak:")
        e(f"buffer_load_dword v{vT0}, v{vZ}, s[{rWS}:{rWS + 3}], s9 offen offset:256 sc1")
        e(f"s_sub_u32 s{sCNT}, s{sCNT}, 1")
        e("s_cbranch_scc1 L_akx")
        e("s_waitcnt vmcnt(0)")
        e(f"v_cmp_ne_u32 vcc, v{vT0}, v{vT}")
        e("s_cbranch_vccnz L_ak")
        e("L_akx:")
        e("s_waitcnt vmcnt(0)")
    if fb:
        e("s_and_b32 s3, s2, 7"); e("s_mul_i32 s3, s3, 4352"); e(f"s_add_u32 s3, s3, {A4}")
        e(f"s_lshr_b32 s{sK}, s2, 3")
        e(f"v_and_b32 v{vT0}, 31, v{vL}"); e(f"v_lshl_add_u32 v{vE2}, v{vT0}, 2, s3")
        e(f"s_lshl_b32 s{sSL}, s{sK}, 2"); e(f"s_add_u32 s{sSL}, s{sSL}, s3")
        if xd:
            e(f"s_add_u32 s{sDL}, s3, 128"); e(f"s_add_u32 s{sXL}, s3, {16 * 4352}")
            e(f"s_and_b32 s{sD}, s2, 7"); e(f"s_cmp_eq_u32 s{sD}, s{sK}"); e(f"s_cselect_b32 s{sLEAD}, 0xff, 0")
            e(f"v_mov_b32 v{vLIM}, 64")
            e("s_mov_b32 exec_lo, 0")
            e(f"v_mov_b32 v{vLIM}, 0"); e(f"v_mov_b32 v{vE2}, s{sDL}")
            e("s_mov_b32 exec_hi, 0x10000")
            e(f"v_mov_b32 v{vLIM}, 4096")
            e(f"s_mov_b32 exec_hi, s{sLEAD}")
            e(f"v_mov_b32 v{vLIM}, 4096")
            if xt != 1:
                e(f"v_mul_u32_u24 v{vE2}, 4352, v{vT0}"); e(f"v_add_u32 v{vE2}, {A4 + 16 * 4352}, v{vE2}")
            e("s_mov_b64 exec, -1")
        if xs:
            e(f"s_mul_i32 s{sPUB}, s{sK}, {xdn}"); e(f"s_add_u32 s{sPUB}, s{sPUB}, {xn}")
            e(f"s_cmp_lt_u32 s{sK}, {xs}"); e(f"s_cselect_b32 s{sPUB}, s{sPUB}, 0x7fffffff")
            e(f"s_mov_b32 s{sRD}, {xn + xdl}"); e(f"s_mov_b32 s{sXO}, {AX}")
            e(f"s_mov_b32 s{sBI}, 0"); e(f"s_mov_b32 s{sINT}, 0")
            e(f"s_and_b32 s{sXW}, s2, 63"); e(f"s_lshl_b32 s{sXW}, s{sXW}, 8"); e(f"s_add_u32 s{sXW}, s{sXW}, {AX}")
            e(f"v_lshlrev_b32 v{vLIM}, 8, v{vL}")
        if tb:
            e("s_getreg_b32 s3, hwreg(HW_REG_XCC_ID, 0, 1)"); e("s_cmp_eq_u32 s3, 1")
            e(f"s_cselect_b32 s{sBI}, {tb - te}, {-tb - te}")
            if xs:
                e(f"s_lshl_b32 s{sINT}, s{sBI}, {xsh}")
        e(f"s_mov_b32 s{sN}, 0")
        e(f"s_and_b32 s3, s{sK}, {(1 << IL) - 1}"); e(f"s_add_u32 s{sTH}, s3, {TH0}")
        e(f"s_mov_b32 s{sCc}, 0"); e(f"s_mov_b64 s[{sAUX}:{sAUX + 1}], 0")
        fbspin("L_f2", 1, vD, vE2)
    else:
        ldsspin("L_f2", L_F + 4, vT0)
    stamp("s", "s.f2")
    e(f"ds_read_b128 {vr(vS)}, v{vZ} offset:{L_ST}")
    e(f"ds_read_b128 {vr(vS + 4)}, v{vZ} offset:{L_ST + 16}")
    e("s_waitcnt lgkmcnt(0)")
    e(f"v_max_f32 v{vT0}, v{vS}, v{vS + 2}"); e(f"v_max3_f32 v{vT0}, v{vT0}, v{vS + 4}, v{vS + 6}")
    for w in range(4):
        e(f"v_sub_f32 v{vG + w}, v{vS + 2 * w}, v{vT0}")
    for w in range(4):
        e(f"v_exp_f32 v{vG + w}, v{vG + w}")
    e(f"v_mul_f32 v{vD + 2}, v{vG}, v{vS + 1}")
    for w in range(1, 4):
        e(f"v_fma_f32 v{vD + 2}, v{vG + w}, v{vS + 2 * w + 1}, v{vD + 2}")
    e(f"v_and_b32 v{vD}, s{sMASK}, v{vT0}"); e(f"v_sub_f32 v{vD + 1}, v{vT0}, v{vD}")
    if xc:
        e(f"s_getreg_b32 s{sMIS}, hwreg(HW_REG_XCC_ID, 0, 16)"); e(f"s_lshl_b32 s{sMIS}, s{sMIS}, 8")
        e(f"v_mov_b32 v{vD + 3}, s{sMIS}")
    else:
        e(f"v_mov_b32 v{vD + 3}, 0")
    tag4(vSY, vD)
    publish(vSY, vZ, 48 if st1 else 5, 768, 1, 0 if xp else 1)
    if fb and dp:
        fbspin("L_f2b", None, vD + 4, vE2)
        e("s_waitcnt lgkmcnt(0)")
    poll("L_p2", [f"buffer_load_dwordx4 {vr(vD)}, v{vP3}, s[{rWS}:{rWS + 3}], s{sPO} offen offset:768 sc1"], [vD], vT0,
         lambda: ypub(2))
    if xp and not lazy:
        ypub(2)
    stamp("s", "s.stpoll")
    if p2:
        assert mg
        publish(vQY, vE1, 4, 0, 0, 0)
    if xc:
        e(f"v_cmp_ne_u32 vcc, s{sMIS}, v{vD + 3}")
        e(f"s_or_b32 s{sMIS}, vcc_lo, vcc_hi")
    e(f"v_add_f32 v{vD}, v{vD}, v{vD + 1}")
    e(f"v_mov_b32 v{vD + 1}, v{vD}")
    allrows("v_max_f32", vD + 1, vT0)
    e(f"v_sub_f32 v{vD}, v{vD}, v{vD + 1}"); e(f"v_exp_f32 v{vD}, v{vD}")
    e(f"v_mul_f32 v{vD}, v{vD}, v{vD + 2}")
    allrows("v_add_f32", vD, vT0)
    e(f"v_rcp_f32 v{vD}, v{vD}")
    for w in range(4):
        e(f"v_sub_f32 v{vG + w}, v{vS + 2 * w}, v{vD + 1}")
    if pm:
        e(f"v_mul_f32 v{vD}, 0.5, v{vD}")
    for w in range(4):
        e(f"v_exp_f32 v{vG + w}, v{vG + w}")
    for w in range(4):
        e(f"v_mul_f32 v{vG + w}, v{vG + w}, v{vD}")
    if RT:
        fbspin("L_f3a", None, vD + 4, vE2)
        e(f"s_mov_b32 s{sCNT}, 4000000")
        e("L_f3b:")
        e(f"ds_read_b32 v{vT0}, v{vZ} offset:{L_F + 12}")
        e(f"s_sub_u32 s{sCNT}, s{sCNT}, 1")
        e("s_cbranch_scc1 L_f3bx")
        e("s_waitcnt lgkmcnt(0)")
        e(f"v_readfirstlane_b32 s3, v{vT0}")
        e(f"s_sub_i32 s3, s3, s{sCc}")
        e(f"s_cmp_lt_i32 s3, {PF}")
        e("s_cbranch_scc1 L_f3b")
        e("L_f3bx:")
        e(f"v_and_b32 v{vT0}, s{sMASK}, v{vT}")
        e(f"buffer_load_dword v{vT1}, v{vE2}, s[{rWS}:{rWS + 3}], 0 offen offset:128 sc1")
        e("s_mov_b64 exec, 1")
        e(f"buffer_store_dword v{vT0}, v{vZ}, s[{rWS}:{rWS + 3}], s{sSL} offen offset:128")
        e("s_mov_b64 exec, -1")
        e("s_waitcnt vmcnt(1)")
        e(f"v_cmp_eq_u32 vcc, v{vT1}, v{vPR}")
        e("s_bcnt1_i32_b32 s3, vcc_lo")
        e(f"s_cmp_ge_u32 s3, {RT}"); e("s_cselect_b32 s3, 2, 1"); e(f"v_mov_b32 v{vONE}, s3")
        if stamps:
            e(f"s_lshl_b64 s[{sAUX}:{sAUX + 1}], s[{sAUX}:{sAUX + 1}], 5")
            e(f"s_and_b32 s{sAUX + 1}, s{sAUX + 1}, 0xfffffff")
            e("s_bcnt1_i32_b32 s3, vcc_lo"); e("s_min_u32 s3, s3, 31"); e(f"s_or_b32 s{sAUX}, s{sAUX}, s3")
        ldsspin("L_f3", L_F + 8, vT0)
    elif fb and not dp:
        fbspin("L_f3", 2, vD + 4, vE2)
    else:
        ldsspin("L_f3", L_F + 8, vT0)
    stamp("s", "s.f3")
    for p in range(8):
        e(f"ds_read_b128 {vr(vD + 4 * p)}, v{vE1} offset:{p * 768}")
    if mg:
        assert cs and at and x6
        e(f"v_xor_b32 v{vT}, 0x80808080, v{vT}")
    for w in range(4):
        e(f"s_waitcnt lgkmcnt({6 - 2 * w})")
        if pkw:
            gp = vr(vG + (w & 2), 2)
            for r in (0, 2):
                e(f"v_pk_add_f32 {vr(vD + 8 * w + r, 2)}, {vr(vD + 8 * w + r, 2)}, {vr(vD + 8 * w + 4 + r, 2)}")
            for r in (0, 2):
                if w == 0:
                    e(f"v_pk_mul_f32 {vr(vD + r, 2)}, {gp}, {vr(vD + r, 2)} op_sel_hi:[0,1]")
                else:
                    sel = "op_sel:[1,0,0] op_sel_hi:[1,1,1]" if w & 1 else "op_sel_hi:[0,1,1]"
                    e(f"v_pk_fma_f32 {vr(vD + r, 2)}, {gp}, {vr(vD + 8 * w + r, 2)}, {vr(vD + r, 2)} {sel}")
            continue
        for r in range(4):
            e(f"v_add_f32 v{vD + 8 * w + r}, v{vD + 8 * w + r}, v{vD + 8 * w + 4 + r}")
        for r in range(4):
            if w == 0:
                e(f"v_mul_f32 v{vD + r}, v{vG}, v{vD + r}")
            else:
                e(f"v_fma_f32 v{vD + r}, v{vG + w}, v{vD + 8 * w + r}, v{vD + r}")
    tag4(vOP, vD)
    publish(vOP, vE1, 5, 0, 0, 0 if xp else 1)
    if xc:
        e(f"s_cmp_eq_u32 s{sMIS}, 0"); e("s_cbranch_scc1 L_same")
        ypub(3)
        e("L_same:")
    stamp("s", "s.opub")
    dirty(do, 0)
    nt_ = 3 if cs else 1
    if FL and not RT:
        e(f"s_cmp_ge_i32 s{sCc}, {cth}"); e("s_cselect_b32 s3, 2, 1"); e(f"v_mov_b32 v{vONE}, s3")
    l3 = [f"buffer_load_dwordx4 {vr(vD + 4 * t)}, v{vP2}, s[{rWS}:{rWS + 3}], s{sPO} offen offset:{256 * t} sc1" for t in range(nt_)]
    U3 = [vD + 4 * t for t in range(nt_)]
    if dl:
        U3 = [vD + 4 + 4 * t for t in range(3)]
        l3 = [f"buffer_load_dwordx4 {vr(U3[t])}, v{vPD + t}, s[{rWS}:{rWS + 3}], s{sPO} offen sc1" for t in range(3)]
    h3 = [f"ds_write_b32 v{vZ}, v{vONE} offset:{L_H}"] if H < 12 else []
    if pq:
        assert x6 and (pq - 1) * tk <= nticks
        PB = [140 + 12 * k for k in range(pq)]

        def pissue(b):
            for t in range(3):
                if dl:
                    e(f"buffer_load_dwordx4 {vr(b + 4 * t)}, v{vPD + t}, s[{rWS}:{rWS + 3}], 0 offen sc1")
                else:
                    e(f"buffer_load_dwordx4 {vr(b + 4 * t)}, v{vP2}, s[{rWS}:{rWS + 3}], 0 offen offset:{256 * t} sc1")

        pissue(PB[0])
        e(h3[0])
        for k in range(1, pq):
            e(f"s_mov_b32 s{sCNT}, 4000000")
            e(f"L_k{k}:")
            e(f"ds_read_b32 v{vT0}, v{vZ} offset:{L_K}")
            e(f"s_sub_u32 s{sCNT}, s{sCNT}, 1")
            e(f"s_cbranch_scc1 L_k{k}x")
            e("s_waitcnt lgkmcnt(0)")
            e(f"v_readfirstlane_b32 s3, v{vT0}")
            e(f"s_cmp_lt_u32 s3, {k * tk}")
            e(f"s_cbranch_scc1 L_k{k}")
            e(f"L_k{k}x:")
            pissue(PB[k])
        e(f"s_mov_b32 s{sCNT}, {N0}")
        e("L_pq:")
        for b in PB:
            e(f"s_waitcnt vmcnt({3 * (pq - 1)})")
            for t in range(3 if dl else 0):
                u = b + 4 * t
                e(f"v_perm_b32 v{vT0 + t}, v{u + 1}, v{u}, s{sSA}")
                e(f"v_perm_b32 v{vT3}, v{u + 3}, v{u + 2}, s{sSB}")
                e(f"v_bitop3_b32 v{vT0 + t}, v{vT0 + t}, v{vT3}, v{vT} bitop3:0x56")
            if dl:
                e(f"v_or3_b32 v{vT0 + 2}, v{vT0}, v{vT0 + 1}, v{vT0 + 2}")
            for t in range(0 if dl else 3):
                u = b + 4 * t
                e(f"v_perm_b32 v{vT0}, v{u + 1}, v{u}, s{sSA}")
                e(f"v_perm_b32 v{vT0 + 1}, v{u + 3}, v{u + 2}, s{sSB}")
                e(f"v_or_b32 v{vT0}, v{vT0}, v{vT0 + 1}")
                if t == 0:
                    e(f"v_xor_b32 v{vT0 + 2}, v{vT0}, v{vT}")
                else:
                    e(f"v_xor_b32 v{vT0}, v{vT0}, v{vT}")
                    e(f"v_or_b32 v{vT0 + 2}, v{vT0 + 2}, v{vT0}")
            e(f"v_cmp_ne_u32 vcc, 0, v{vT0 + 2}")
            for r in range(12):
                e(f"v_and_b32 v{U3[0] + r}, s{sMASK}, v{b + r}")
            e("s_and_b64 exec, exec, vcc")
            e("s_cbranch_scc0 L_pqx")
            pissue(b)
        e(f"s_sub_u32 s{sCNT}, s{sCNT}, 1")
        e("s_cbranch_scc0 L_pq")
        e("s_mov_b64 exec, -1")
    if op & 4:
        mpoll("L_p3", l3, U3, vT0, h3)
    else:
        poll("L_p3", l3 + h3, U3, vT0, lambda: ypub(3))
    if pq:
        e("L_pqx:")
        if not dl:
            e("s_mov_b64 exec, -1")
    if dl:
        e("s_bfm_b64 exec, 48, 0")
    stamp("s", "s.opoll")
    if dl:
        for a_, b_ in ((0, 4), (2, 6), (8, 12), (10, 14), (0, 8), (2, 10)):
            e(f"v_pk_add_f32 {vr(vD + a_, 2)}, {vr(vD + a_, 2)}, {vr(vD + b_, 2)}")
        for r in range(4):
            e(f"v_cvt_pk_bf16_f32 v{vD + r}, v{vD + r}, v{vD + r}")
        e(f"ds_write_b128 v{vE1}, {vr(vD)} offset:{L_O}")
        e("s_mov_b64 exec, -1")
    for t in range(0 if dl else nt_):
        treduce(vD + 4 * t)
    for t in range(0 if dl else nt_):
        e(f"v_cvt_pk_bf16_f32 v{vD + 4 * t}, v{vD + 4 * t}, v{vD + 4 * t}")
    for t in range(0 if dl else nt_):
        e(f"ds_write_b32 v{vLS}, v{vD + 4 * t} offset:{256 * t}")
    if ry == 1:
        publish(vOP, vE1, 5, 0, 0, 1)
    e("s_waitcnt lgkmcnt(0)")
    if stamps:
        for i in range(nst["s"]):
            e(f"v_mov_b32 v{vSC + 2 * i}, s{sST + 2 * i}"); e(f"v_mov_b32 v{vSC + 2 * i + 1}, s{sST + 2 * i + 1}")
    if x6:
        e("s_barrier")
        if ry == 2:
            publish(vOP, vE1, 5, 0, 0, 1)
        if pq:
            e("s_waitcnt vmcnt(0)")
    else:
        e("s_branch L_tail")
    e("L_reduce:")
    e("s_nop 4")
    if xp and not xc:
        publish(vOP, vE1, 5, 0, 0, 1)
    if stamps:
        for i in range(nst["s"]):
            e(f"v_readfirstlane_b32 s{sST + 2 * i}, v{vSC + 2 * i}"); e(f"v_readfirstlane_b32 s{sST + 2 * i + 1}, v{vSC + 2 * i + 1}")
    stamp("s", "s.pub")
    if at:
        pass
    elif cs:
        e(f"s_cmp_ge_u32 s{sJB}, 96")
        e("s_cbranch_scc1 L_sdone")
        if pp:
            ppoll("L_p4", lambda d: f"buffer_load_dwordx4 {vr(d)}, v{vR1}, s[{rWS}:{rWS + 3}], 0 offen sc1",
                  [slot(O0 + k) for k in range(pp)], vD, vT0)
        else:
            poll("L_p4", [f"buffer_load_dwordx4 {vr(vD)}, v{vR1}, s[{rWS}:{rWS + 3}], 0 offen sc1"], [vD], vT0)
        stamp("s", "s.fpoll")
        treduce(vD)
        e(f"v_add_f32_dpp v{vD}, v{vD}, v{vD} quad_perm:[2,3,0,1] {DPPM}")
        e(f"v_add_f32_dpp v{vD}, v{vD}, v{vD} row_ror:4 {DPPM}")
        e(f"v_add_f32_dpp v{vD}, v{vD}, v{vD} row_ror:8 {DPPM}")
        e("s_mov_b32 s3, 0x00030003")
        e(f"s_cmp_lt_u32 s{sJB}, 64")
        e("s_cbranch_scc1 L_r8")
        e("s_mov_b32 s3, 0x00010001")
        e(f"v_add_f32_dpp v{vD}, v{vD}, v{vD} quad_perm:[1,0,3,2] {DPPM}")
        e("L_r8:")
        e(f"v_cvt_pk_bf16_f32 v{vD}, v{vD}, v{vD}")
        e("s_mov_b32 exec_lo, s3"); e("s_mov_b32 exec_hi, s3")
        e(f"buffer_store_short v{vD}, v{vR2}, s[{rOUT}:{rOUT + 3}], 0 offen")
    else:
        e(f"s_cmp_ge_u32 s{sJB}, 80")
        e("s_cbranch_scc1 L_sdone")
        e(f"v_lshrrev_b32 v{vT0}, 1, v{vL}"); e(f"v_mul_u32_u24 v{vP1}, {2560 * fq}, v{vT0}")
        if fq > 1:
            e(f"s_mul_i32 s3, s{sJB}, {(1 << 16) // (80 // fq) + 1}"); e("s_lshr_b32 s3, s3, 16"); e("s_mul_i32 s3, s3, 2560")
            e(f"v_add_u32 v{vP1}, s3, v{vP1}")
        e(f"v_and_b32 v{vT1}, 1, v{vL}"); e(f"v_lshl_add_u32 v{vP1}, v{vT1}, 4, v{vP1}")
        e(f"s_mul_i32 s3, s{sB}, {128 * 2560}"); e(f"s_lshl_b32 s4, s{sJB}, 5"); e("s_add_u32 s3, s3, s4"); e(f"s_add_u32 s3, s3, {A3}")
        e(f"v_add_u32 v{vP1}, s3, v{vP1}")
        for k in range(1, 4):
            e(f"s_mov_b32 s{4 + k}, {k * 32 * 2560 * fq}")
        e(f"v_bfe_u32 v{vT0}, v{vL}, 4, 1"); e(f"v_lshlrev_b32 v{vT0}, 1, v{vT0}")
        e(f"v_lshrrev_b32 v{vT2}, 5, v{vL}"); e(f"v_or_b32 v{vT0}, v{vT0}, v{vT2}")
        e(f"v_lshl_add_u32 v{vT0}, v{vT1}, 2, v{vT0}")
        e(f"s_mul_i32 s3, s{sB}, 640"); e(f"s_lshl_b32 s4, s{sJB}, 3"); e("s_add_u32 s3, s3, s4")
        e(f"v_add_u32 v{vP2}, s3, v{vT0}"); e(f"v_lshlrev_b32 v{vP2}, 1, v{vP2}")
        poll("L_p4", [f"buffer_load_dwordx4 {vr(vD + 4 * k)}, v{vP1}, s[{rWS}:{rWS + 3}], {'0' if k == 0 else 's' + str(4 + k)} offen sc1" for k in range(4 // fq)],
             [vD + 4 * k for k in range(4 // fq)], vT0)
        stamp("s", "s.fpoll")
        for r in range(4):
            e(f"v_add_f32 v{vD + r}, v{vD + r}, v{vD + 4 + r}")
            e(f"v_add_f32 v{vD + 8 + r}, v{vD + 8 + r}, v{vD + 12 + r}")
        for r in range(4):
            e(f"v_add_f32 v{vD + r}, v{vD + r}, v{vD + 8 + r}")
        treduce(vD)
        e(f"v_add_f32_dpp v{vD}, v{vD}, v{vD} quad_perm:[2,3,0,1] {DPPM}")
        e(f"v_add_f32_dpp v{vD}, v{vD}, v{vD} row_ror:4 {DPPM}")
        e(f"v_add_f32_dpp v{vD}, v{vD}, v{vD} row_ror:8 {DPPM}")
        e(f"v_cvt_pk_bf16_f32 v{vD}, v{vD}, v{vD}")
        e("s_mov_b32 exec_lo, 0x00030003"); e("s_mov_b32 exec_hi, 0x00030003")
        e(f"buffer_store_short v{vD}, v{vP2}, s[{rOUT}:{rOUT + 3}], 0 offen")
    if not at:
        e(f"s_cmp_lg_u32 s{sJB}, 0")
        e("s_cbranch_scc1 L_pb" if probe >= 6 else "s_cbranch_scc1 L_sdone")
        e("s_mov_b64 exec, 1")
        e(f"buffer_store_dword v{vT}, v{vZ}, s[{rWS}:{rWS + 3}], s9 offen sc1")
    if probe:
        e("L_pb:")
        e("s_memrealtime s[72:73]")
        e("s_mov_b64 exec, -1")
        if probe < 6:
            e(f"s_cmp_lg_u32 s{sB}, 0"); e("s_cbranch_scc1 L_sdone")
        e(f"v_lshlrev_b32 v{vT0}, 4, v{vL}")
        e(f"buffer_load_dwordx4 {vr(vA)}, v{vT0}, s[{rWS}:{rWS + 3}], 0 offen offset:1024 sc1")
        e("s_waitcnt vmcnt(0) lgkmcnt(0)")
        e("s_lshl_b32 s74, s68, 3")
        e("s_mov_b32 s75, 0x7fffffff"); e("s_mov_b32 s76, 0x80000000"); e("s_mov_b32 s77, 0"); e("s_mov_b32 s78, 0"); e("s_mov_b32 s79, 0")
        e("L_pr:")
        for r in range(4):
            e(f"v_readlane_b32 s80, v{vA + r}, s79")
            e("s_nop 3")
            e("s_and_b32 s81, s80, 7"); e("s_andn2_b32 s80, s80, 7"); e("s_sub_u32 s80, s80, s74"); e("s_ashr_i32 s80, s80, 3")
            e("s_min_i32 s75, s75, s80"); e("s_max_i32 s76, s76, s80"); e("s_add_i32 s77, s77, s80")
            e("s_sub_i32 s82, 0, s80"); e("s_cmp_ge_u32 s81, 4"); e("s_cselect_b32 s80, s80, s82"); e("s_add_i32 s78, s78, s80")
        e("s_add_u32 s79, s79, 1"); e("s_cmp_lt_u32 s79, 64"); e("s_cbranch_scc1 L_pr")
        if probe == 1:
            e("s_ashr_i32 s77, s77, 8"); e("s_sub_i32 s80, s76, s77")
        elif probe == 2:
            e("s_ashr_i32 s78, s78, 7"); e("s_add_i32 s80, s78, 100")
        elif probe == 7:
            e("s_ashr_i32 s77, s77, 8")
            e("s_sub_u32 s80, s72, s68"); e("s_sub_i32 s80, s80, s77"); e("s_sub_i32 s80, s80, 3200")
        elif probe in (3, 6):
            e("s_sub_u32 s80, s72, s68"); e("s_sub_i32 s80, s80, s75"); e("s_sub_i32 s80, s80, 3200")
        elif probe == 4:
            e("s_sub_u32 s80, s72, s68"); e("s_sub_i32 s80, s80, s76"); e("s_sub_i32 s80, s80, 3200")
        else:
            e("s_mov_b32 s80, 0")
        e(f"s_mul_i32 s80, s80, {amp}"); e("s_max_i32 s80, s80, 0"); e("s_min_i32 s80, s80, 8000"); e("s_add_u32 s80, s80, 1000")
        e("L_ps:")
        e("s_memrealtime s[82:83]"); e("s_waitcnt lgkmcnt(0)"); e("s_sub_u32 s82, s82, s72")
        e("s_cmp_lt_u32 s82, s80"); e("s_cbranch_scc1 L_ps")
    e("L_sdone:")
    e("s_mov_b64 exec, -1")
    if stamps:
        e("s_waitcnt vmcnt(0)")
    stamp("s", "s.end")
    stamps_out("s")
    if fs == 1:
        e("L_xtra:")
        e("s_waitcnt lgkmcnt(0)")
    e("L_end:")
    e("s_endpgm")

    body, nops = resolve(L)
    nv = vRING + 4 * R
    out = [HDR.rstrip("\n"),
           f"; @launch grid=(256,1,1) block=({384 if x6 else 320},1,1) lds={LDS}"]
    if stamps:
        out.append("; @stamps " + ",".join(f"{i}={n}" for i, n in names))
    out += ['.amdgcn_target "amdgcn-amd-amdhsa--gfx950"', ".text", f".globl {KN}", ".p2align 8",
            f".type {KN},@function", f"{KN}:"]
    out += [("" if t.endswith(":") else "    ") + t for t in body]
    out += ['.section .rodata,"a"', ".p2align 6", f".amdhsa_kernel {KN}",
            f"  .amdhsa_next_free_vgpr {nv}", "  .amdhsa_next_free_sgpr 102",
            f"  .amdhsa_accum_offset {(nv + 3) // 4 * 4}",
            "  .amdhsa_group_segment_fixed_size 0", "  .amdhsa_kernarg_size 104",
            "  .amdhsa_user_sgpr_count 2", "  .amdhsa_user_sgpr_kernarg_segment_ptr 1",
            "  .amdhsa_system_sgpr_workgroup_id_x 1", ".end_amdhsa_kernel"]
    return "\n".join(out) + "\n", nops


if __name__ == "__main__":
    outp = sys.argv[1]
    kw = {}
    for a in sys.argv[2:]:
        k, v = a.split("=")
        kw[k] = int(v) if v.lstrip("-").isdigit() else v.replace("+", " ")
    s, nops = gen(**kw)
    open(outp, "w").write(s)
    print(outp, "lines", s.count("\n"), "nop states", nops)
```
